```python
import torch

def _softmax(x, axis=-1):
    return torch.softmax(x, dim=axis)

def _gelu(x):
    return torch.nn.functional.gelu(x, approximate='tanh')

def _silu(x):
    return torch.nn.functional.silu(x)

def _sigmoid(x):
    return torch.sigmoid(x)

def _layernorm(x, axis=-1, eps=1e-05):
    m = x.mean(dim=axis, keepdim=True)
    v = x.var(dim=axis, keepdim=True, unbiased=False)
    return (x - m) / torch.sqrt(v + eps)

def _scatter_add(tgt, idx, src, axis=0):
    return tgt.clone().index_add_(axis, idx, src)

def _segment_sum(src, seg, n):
    out = torch.zeros((n,) + src.shape[1:], dtype=src.dtype)
    return out.index_add_(0, seg, src)

def _pad(x, pw):
    flat = tuple((v for pair in reversed(pw) for v in pair))
    return torch.nn.functional.pad(x, flat)
kernel_name = 'adaLN_cond__mha_block_cached__mixer_channel_mlp__prompt'

def setup_inputs():

    _w = lambda a: (lambda t: t.to(torch.bfloat16) if t.is_floating_point() else t)(torch.as_tensor(a))

    def _A_setup():
        B, Sq, D = (1, 2048, 1024)
        H, Sk, Dh = (32, 2048, 128)
        return {'x': _w((lambda *s: torch.randn(*s, dtype=torch.bfloat16) * 0.05)(B, Sq, D)), 'k_cache': _w((lambda *s: torch.randn(*s, dtype=torch.bfloat16) * 3.2)(B, H, Sk, Dh)), 'v_cache': _w((lambda *s: torch.randn(*s, dtype=torch.bfloat16) * 0.4)(B, H, Sk, Dh)), 'wq': _w((lambda *s: torch.randn(*s, dtype=torch.bfloat16) * 3.2)(D, H * Dh) * D ** (-0.5)), 'wo': _w((lambda *s: torch.randn(*s, dtype=torch.bfloat16) * 0.4)(H * Dh, D) * (H * Dh) ** (-0.5))}
    _A_in = _A_setup()

    def _B_setup():
        B, S, D, F = (1, 2048, 1024, 3584)
        return {'x': _w((lambda *s: torch.randn(*s, dtype=torch.bfloat16) * 0.05)(B, S, D)), 'w1': _w((lambda *s: torch.randn(*s, dtype=torch.bfloat16) * 3.2)(D, F) * D ** (-0.5)), 'b1': _w((lambda *s: torch.randn(*s, dtype=torch.bfloat16) * 1.6)(F)), 'w2': _w((lambda *s: torch.randn(*s, dtype=torch.bfloat16) * 0.1)(F, D) * F ** (-0.5)), 'b2': _w((lambda *s: torch.randn(*s, dtype=torch.bfloat16) * 0.2)(D))}
    _B_in = _B_setup()
    return {'A_x': _A_in['x'], 'A_k_cache': _A_in['k_cache'], 'A_v_cache': _A_in['v_cache'], 'A_wq': _A_in['wq'], 'A_wo': _A_in['wo'], 'B_x': _B_in['x'], 'B_w1': _B_in['w1'], 'B_b1': _B_in['b1'], 'B_w2': _B_in['w2'], 'B_b2': _B_in['b2'], 'c': _w((lambda *s: torch.randn(*s, dtype=torch.bfloat16) * 0.1)(1, 1024) * 8.0), 'w_mod': _w((lambda *s: torch.randn(*s, dtype=torch.bfloat16) * 0.1)(1024, 6 * 1024) * 1024 ** (-0.5) * 8.0)}

def reference(A_x, A_k_cache, A_v_cache, A_wq, A_wo, B_x, B_w1, B_b1, B_w2, B_b2, c, w_mod):

    def _A_ref(x, k_cache, v_cache, wq, wo):
        B, Sq, D = x.shape
        H, Dh = (32, 128)
        q = (lambda x, *d: x.permute(*d))((x @ wq).reshape(B, Sq, H, Dh), 0, 2, 1, 3)
        scores = torch.einsum('bhqd,bhkd->bhqk', q, k_cache) * Dh ** (-0.5)
        p = _softmax(scores, axis=-1)
        o = torch.einsum('bhqk,bhkd->bhqd', p, v_cache)
        return (lambda x, *d: x.permute(*d))(o, 0, 2, 1, 3).reshape(B, Sq, H * Dh) @ wo

    def _B_ref(x, w1, b1, w2, b2):
        y = _layernorm(x, axis=-1)
        h = _gelu(torch.einsum('bsd,df->bsf', y, w1) + b1)
        return torch.einsum('bsf,fd->bsd', h, w2) + b2
    x = A_x
    mod = (_silu(c) @ w_mod).reshape(c.shape[0], 6, 1, -1)
    sa, ca, ga, sb, cb, gb = (mod[:, 0].clone(), mod[:, 1].clone(), mod[:, 2].clone(), mod[:, 3].clone(), mod[:, 4].clone(), mod[:, 5].clone())
    h = _layernorm(x, axis=-1) * (1 + ca) + sa
    x = x + ga * _A_ref(h, A_k_cache, A_v_cache, A_wq, A_wo)
    h = _layernorm(x, axis=-1) * (1 + cb) + sb
    x = x + gb * _B_ref(h, B_w1, B_b1, B_w2, B_b2)
    return x
```

```python
NAME = 'adaLN_cond__mha_block_cached__mixer_channel_mlp__prompt'

HEADER = open('cdna_kernels/' + NAME + '.s.ref').read().split('; Override launch')[0]

class Kern:
    def __init__(self, name, grid, block, lds, vgpr, agpr=0, sgpr=102, wgid_y=False):
        self.name = name; self.grid = grid; self.block = block; self.lds = lds
        self.vgpr = vgpr; self.agpr = agpr; self.sgpr = sgpr; self.wgid_y = wgid_y
        self.lines = []
        self.nlabel = 0
    def __call__(self, s):
        for l in s.split('\n'):
            l = l.strip()
            if l:
                self.lines.append(l)
    def label(self, base='L'):
        self.nlabel += 1
        return f'{self.name}_{base}{self.nlabel}'
    def srd(self, d, base, nbytes):
        self(f's_mov_b32 s{d}, s{base}')
        self(f's_and_b32 s{d+1}, s{base+1}, 0xffff')
        self(f's_mov_b32 s{d+2}, {nbytes}')
        self(f's_mov_b32 s{d+3}, 0x20000')
    STAMP = False
    def stamp(self, i):
        if not Kern.STAMP: return
        self.sgpr = 102
        self.nstamp = max(getattr(self, 'nstamp', 0), i + 1)
        self(f's_memrealtime s[{70+2*i}:{71+2*i}]')
        self('s_waitcnt lgkmcnt(0)')
    def stamp_out(self, kidx, vtmp=0):
        if not Kern.STAMP: return
        self(f's_load_dwordx2 s[90:91], s[0:1], 112')
        self('s_waitcnt lgkmcnt(0) vmcnt(0)')
        self.stamp(self.nstamp)
        self(f's_add_u32 s92, s90, {200*1048576 + kidx*65536}')
        self('s_addc_u32 s93, s91, 0')
        self('s_and_b32 s93, s93, 0xffff')
        self('s_mov_b32 s94, 65536')
        self('s_mov_b32 s95, 0x20000')
        self('s_lshl_b32 s96, s2, 6')
        self('s_mov_b64 exec, 1')
        self(f'v_mov_b32 v{vtmp+1}, 0')
        for i in range(self.nstamp):
            self(f'v_mov_b32 v{vtmp}, s{70+2*i}')
            self(f'buffer_store_dword v{vtmp}, v{vtmp+1}, s[92:95], s96 offen offset:{4*i}')
    def text(self):
        out = [f'.globl {self.name}', '.p2align 8', f'.type {self.name},@function', f'{self.name}:']
        for l in self.lines:
            out.append(l if l.endswith(':') else '  ' + l)
        return '\n'.join(out) + '\n'
    def desc(self):
        acc = (self.vgpr + 3) // 4 * 4
        nfv = acc + self.agpr if self.agpr else self.vgpr
        s = f'''.p2align 6
.amdhsa_kernel {self.name}
  .amdhsa_next_free_vgpr {nfv}
  .amdhsa_next_free_sgpr {self.sgpr}
  .amdhsa_accum_offset {acc}
  .amdhsa_group_segment_fixed_size 0
  .amdhsa_kernarg_size 120
  .amdhsa_user_sgpr_count 2
  .amdhsa_user_sgpr_kernarg_segment_ptr 1
  .amdhsa_system_sgpr_workgroup_id_x 1
'''
        if self.wgid_y:
            s += '  .amdhsa_system_sgpr_workgroup_id_y 1\n'
        s += '.end_amdhsa_kernel\n'
        return s
    def launch_line(self):
        g = self.grid; b = self.block
        return f'; @launch kernel={self.name} grid=({g[0]},{g[1]},{g[2]}) block=({b[0]},{b[1]},{b[2]}) lds={self.lds}'

def emit(path, launches):
    uniq = []
    for k in launches:
        if k not in uniq:
            uniq.append(k)
    s = HEADER
    for k in launches:
        s += k.launch_line() + '\n'
    s += '.amdgcn_target "amdgcn-amd-amdhsa--gfx950"\n.text\n'
    for k in uniq:
        s += k.text()
    s += '.section .rodata,"a"\n'
    for k in uniq:
        s += k.desc()
    open(path, 'w').write(s)
```

```python
from gen_gk import *

THRESH_LOG2 = 48

def gen_attn(thresh_log2=THRESH_LOG2, lead=27, E0=58, bias=32):
    k = Kern('attn_kernel', (256, 1, 1), (256, 1, 1), 160 * 1024, vgpr=256, agpr=256, sgpr=70)
    Lend = k.label('end')
    k('s_cmp_ge_u32 s2, 256')
    k(f's_cbranch_scc1 {Lend}')
    k.stamp(0)
    k(f's_load_dwordx4 s[4:7], s[0:1], {A_K}')
    k(f's_load_dwordx2 s[8:9], s[0:1], {A_WQ}')
    k(f's_load_dwordx2 s[10:11], s[0:1], {A_WS}')
    vKA, vVA, vKD, vVD = 8, 12, 20, 24
    tmp = 26
    vL = 32; vTA2 = 32; vWD = 40; vX = 44
    vQ, vS, vP, vNM, vE, vONE, vT = 64, 128, 192, 224, 240, 248, 252
    aO, aF = 0, 128
    sHEAD, sQT, sWAVE, sMB0, sW, sX, sM0, sK, sV, sCNT, sRET, sTH, sFIRST = 40, 41, 44, 47, 50, 51, 52, 53, 54, 55, 56, 57, 58
    k('v_and_b32 v1, 63, v0')
    k('v_lshrrev_b32 v2, 6, v0')
    k('s_and_b32 s42, s2, 7')
    k(f'v_readfirstlane_b32 s{sWAVE}, v2')
    k('s_lshl_b32 s42, s42, 2')
    k('s_bfe_u32 s43, s2, 0x20003')
    k(f's_add_u32 s{sHEAD}, s42, s43')
    k(f's_lshr_b32 s{sQT}, s2, 5')
    wd = wdma_regs(k, vWD, 256, 8192, 16, tmp, 1, sWAVE)
    k(f's_lshl_b32 s{sMB0}, s{sQT}, 4')
    k(f's_lshl_b32 s48, s{sWAVE}, 2')
    k(f's_add_u32 s{sMB0}, s{sMB0}, s48')
    k(f's_lshl_b32 s48, s{sMB0}, 10')
    k(f'v_lshl_add_u32 v{vX}, v1, 4, s48')
    k(f'v_add_u32 v{vX+1}, 0x20000, v{vX}')
    k(f's_lshl_b32 s{sW}, s{sHEAD}, 8')
    k(f's_mov_b32 s{sX}, 0')
    k(f's_lshl_b32 s{sM0}, s{sWAVE}, 12')
    k('s_waitcnt lgkmcnt(0)')
    k.srd(12, 8, 1024 * 8192)
    srd_off(k, 16, 10, WS_H, 4 * MB)
    S = 6
    SL = lambda i: i * 16384
    stage_off = [SL(6), SL(7), SL(8), SL(9), SL(4), SL(5)]
    bbase = {4: 0, 5: 32, 0: 64, 1: 96, 2: 128, 3: 160}
    def kdma(slot):
        return [[f's_add_u32 m0, s{sM0}, {SL(slot)}'], ['s_nop 0']] + \
               [[f'buffer_load_dwordx4 v{vKD+n}, s[20:23], s{sK} offen offset:{n*1024} lds'] for n in range(4)] + \
               [[f's_add_u32 s{sK}, s{sK}, 16384']]
    def vdma(slot):
        return [[f's_add_u32 m0, s{sM0}, {SL(4+slot)}'], ['s_nop 0']] + \
               [[f'buffer_load_dwordx4 v{vVD+(n&1)}, s[24:27], s{sV} offen offset:{n*1024} lds'] for n in range(4)] + \
               [[f's_add_u32 s{sV}, s{sV}, 16384']]
    def zero(base):
        return [[f'v_accvgpr_write_b32 a{base+i}, 0'] for i in range(32)]
    def extra(t):
        if t == 11: return kdma(0) + kdma(1) + vdma(0) + zero(0)
        if t == 12: return kdma(2) + vdma(1) + zero(32)
        if t == 13: return kdma(3) + vdma(2) + zero(64)
        if t == 14: return zero(96)
        return []
    def extra_p(t):
        return {12: 12, 13: 20, 14: 28}.get(t, 0)
    acc0 = 128
    g = Gemm(k, 8, 4, 256, S, 4, 8, 16,
             acc=lambda a, b: R4('v', acc0 + (a * 4 + b) * 4),
             aring=lambda s: ('a', 192 + 4 * s),
             bring=lambda st, ks, b: R4('a', bbase[st] + (ks * 4 + b) * 4),
             vA=[None, [vVA + a for a in range(8)], [vTA2 + a for a in range(8)]], lds_base=0,
             srdW=12, sW=sW, wpitch=8192, wdma=wd, sM0=sM0, srdX=16, sX=sX, vX=[vX, vX + 1],
             extra_loads=extra, stage_off=stage_off, extra_pending=extra_p)
    g.prologue_loads()
    tr_addr_regs(k, vVA, 8, 256, tmp, 1, add=0x10000)
    for a in range(8): k(f'v_add_u32 v{vTA2+a}, 0x10000, v{vVA+a}')
    k(f'v_and_b32 v{tmp}, 15, v1')
    k(f'v_lshrrev_b32 v{tmp+1}, 4, v1')
    k(f'v_xor_b32 v{tmp+2}, v{tmp}, v{tmp+1}')
    k(f'v_lshlrev_b32 v{tmp+3}, 8, v{tmp}')
    for ds in range(4):
        k(f'v_xor_b32 v{tmp+4}, {4*ds}, v{tmp+2}')
        k(f'v_lshl_add_u32 v{vKA+ds}, v{tmp+4}, 4, v{tmp+3}')
    k(f'v_lshlrev_b32 v{tmp+3}, 8, v{tmp+1}')
    k(f'v_add_u32 v{tmp+3}, s{sM0}, v{tmp+3}')
    for n in range(4):
        k(f'v_xor_b32 v{tmp+4}, {4*n}, v{tmp+2}')
        k(f'v_lshl_add_u32 v{vKD+n}, v{tmp+4}, 4, v{tmp+3}')
    k(f'v_lshlrev_b32 v{tmp+4}, 1, v{tmp+1}')
    k(f'v_xor_b32 v{tmp+4}, v{tmp+4}, v{tmp}')
    k(f'v_lshl_add_u32 v{vVD}, v{tmp+4}, 4, v{tmp+3}')
    k(f'v_xor_b32 v{tmp+4}, 8, v{tmp+4}')
    k(f'v_lshl_add_u32 v{vVD+1}, v{tmp+4}, 4, v{tmp+3}')
    k(f's_lshl_b32 s48, s{sHEAD}, 19')
    srd_off(k, 20, 4, 's48', 524288)
    srd_off(k, 24, 6, 's48', 524288)
    srd_off(k, 28, 10, WS_O, 16 * MB)
    k(f's_mov_b32 s{sK}, 0')
    k(f's_mov_b32 s{sV}, 0')
    k(f's_mov_b32 s{sTH}, 0x{f2u(2.0**thresh_log2):08x}')
    g.stamp_first = 1
    g.emit(loop_sreg=None)
    k.stamp(2)
    k('s_waitcnt vmcnt(16)')
    k('s_barrier')
    Kfr = lambda kb, ds: aF + 32 + (4 * kb + ds) * 4
    Vfr = lambda db: aF + 4 * db
    def kread(unit, kb, ds, dst=None):
        off = SL((unit >> 1) & 3) + ((unit & 1) * 32 + kb * 16) * 256
        return f'ds_read_b128 {R4("a", Kfr(kb, ds) if dst is None else dst)}, v{vKA+ds} offset:{off}'
    def vread(unit, db, hf):
        off = SL((unit >> 1) & 3) + ((unit & 1) * 32 + hf * 16) * 256
        return f'ds_read_b64_tr_b16 {R2("a", Vfr(db) + 2*hf)}, v{vVA+db} offset:{off}'
    for kb in range(2):
        for ds in range(4): k(kread(0, kb, ds, dst=Vfr(4 * kb + ds)))
    sc = math.log2(math.e) / math.sqrt(128.0)
    k(f'v_mov_b32 v{tmp}, 0x{f2u(sc):08x}'); k(f'v_mov_b32 v{tmp+1}, 0x{f2u(sc):08x}')
    Qf = lambda qb, ds: vQ + (qb * 4 + ds) * 4
    for u in range(4):
        for qb in range(4):
            p = Qf(qb, u)
            for h in range(2):
                A = acc0 + ((2 * u + h) * 4 + qb) * 4
                k(f'v_pk_mul_f32 {R2("v", A)}, {R2("v", A)}, {R2("v", tmp)}')
                k(f'v_pk_mul_f32 {R2("v", A+2)}, {R2("v", A+2)}, {R2("v", tmp)}')
                k(f'v_cvt_pk_bf16_f32 v{p+2*h}, v{A}, v{A+1}')
                k(f'v_cvt_pk_bf16_f32 v{p+2*h+1}, v{A+2}, v{A+3}')
        for sw in ('32', '16'):
            for qb in range(4):
                p = Qf(qb, u)
                k(f'v_permlane{sw}_swap_b32 v{p}, v{p+2}')
                k(f'v_permlane{sw}_swap_b32 v{p+1}, v{p+3}')
    k('s_waitcnt lgkmcnt(0)')
    for kb in range(2):
        for ds in range(4): k(kread(1, kb, ds))
    Sb = lambda N, kb, qb: vS + 32 * (N & 1) + (kb * 4 + qb) * 4
    Pb = lambda N, qb: vP + 16 * (N & 1) + 4 * qb
    Lb = lambda qb: vL + 4 * qb
    NM = lambda qb: vNM + 4 * qb
    for i in range(16): k(f'v_mov_b32 v{vL+i}, 0')
    for i in range(4): k(f'v_mov_b32 v{vONE+i}, 0x3f803f80')
    def qk(N, kb, ds, qb, fr=None, czero=False):
        d = R4('v', Sb(N, kb, qb))
        c = ('0' if czero else R4('v', NM(qb))) if ds == 0 else d
        return f'{MF} {d}, {R4("a", Kfr(kb, ds) if fr is None else fr)}, {R4("v", Qf(qb, ds))}, {c}'
    def pv(N, db, qb):
        d = R4('a', aO + (db * 4 + qb) * 4)
        return f'{MF} {d}, {R4("a", Vfr(db))}, {R4("v", Pb(N, qb))}, {d}'
    def ones(N, qb):
        return f'{MF} {R4("v", Lb(qb))}, {R4("v", vONE)}, {R4("v", Pb(N, qb))}, {R4("v", Lb(qb))}'
    def E(N, i):
        return f'v_exp_f32 v{vE + (i & 7)}, v{Sb(N, i >> 4, (i >> 2) & 3) + (i & 3)}'
    def C(N, j):
        i = 2 * j
        return f'v_cvt_pk_bf16_f32 v{Pb(N, (i >> 2) & 3) + 2 * (i >> 4) + ((i >> 1) & 1)}, v{vE + (i & 7)}, v{vE + (i & 7) + 1}'
    def xmax(D, X):
        for sw in ('16', '32'):
            k(f'v_mov_b32 v{X}, v{D}')
            k('s_nop 1')
            k(f'v_permlane{sw}_swap_b32 v{D}, v{X}')
            k(f'v_max_f32 v{D}, v{D}, v{X}')
    for kb in range(2):
        for ds in range(4):
            for qb in range(4): k(qk(0, kb, ds, qb, fr=Vfr(4 * kb + ds), czero=True))
    k('s_waitcnt lgkmcnt(0)')
    for kb in range(2):
        for ds in range(4):
            for qb in range(4): k(qk(1, kb, ds, qb, czero=True))

    NG = 68
    def build_iter(N):
        T = (N - 1) >> 1
        first_in_pair = (N & 1) == 1
        mf = [pv(N - 1, db, qb) for db in range(8) for qb in range(4)]
        mf += [ones(N - 1, qb) for qb in range(4)]
        mf += [qk(N + 1, kb, ds, qb) for kb in range(2) for ds in range(4) for qb in range(4)]
        first = [[] for _ in range(NG)]; rest = [[] for _ in range(NG)]; cost = [0] * NG
        def put(g, ins, mem=False, c=1):
            (first if mem else rest)[g].append(ins); cost[g] += c
        for i in range(32):
            gp = E0 + 2 * i
            if gp < NG: put(gp, E(N + 1, i), c=2)
            else: put(gp - NG, E(N, i), c=2)
        for j in range(16):
            gp = E0 + 2 * (2 * j + 1) + 1
            if gp < NG: put(gp, C(N + 1, j))
            else: put(gp - NG, C(N, j))
        rd = []
        for db in range(8):
            for hf in range(2):
                gp = 4 * db - lead + 2 * hf
                rd.append((gp % NG, vread(N - 1 if gp >= 0 else N, db, hf), ('V', db) if gp >= 0 else ('Vn', db)))
        for i in range(8):
            gp = 36 + 4 * i - lead
            rd.append((gp, kread(N + 1, i >> 2, i & 3), ('K', i)))
        rd.sort(key=lambda x: x[0])
        for gp, ins, tag in rd: put(gp, ins, mem=True)
        cyc = [(gp - NG, 'V' if tag[0] == 'Vn' else 'old', tag[1]) for gp, _, tag in rd] + \
              [(gp, tag[0], tag[1]) for gp, _, tag in rd]
        waits = {}
        for at, kind, hi in ((0, 'V', 3), (16, 'V', 7), (36, 'K', 3), (52, 'K', 7)):
            lastidx = max(i for i, x in enumerate(cyc) if x[1] == kind and x[2] == hi)
            n_after = sum(1 for i, x in enumerate(cyc) if i > lastidx and x[0] < at)
            assert cyc[lastidx][0] < at
            waits[at] = n_after
        for at in (16, 36, 52): put(at - 1, f's_waitcnt lgkmcnt({waits[at]})')
        put(NG - 1, f's_waitcnt lgkmcnt({waits[0]})')
        BG = (0 - lead) % NG - 2
        if not first_in_pair:
            put(BG, 's_waitcnt vmcnt(12)'); put(BG, 's_barrier')
            dma = [x[0] for x in kdma(T % 4) if x[0] != 's_nop 0']; gp = BG + 1
        else:
            dma = [x[0] for x in vdma((T + 3) % 4) if x[0] != 's_nop 0']; gp = 0
        for ins in dma:
            while cost[gp] >= 2: gp += 1
            put(gp, ins, mem=ins.startswith('buffer'))
            if not ins.startswith('buffer'): gp += 1
        out = []
        for gi in range(NG):
            out.append(mf[gi]); out += first[gi] + rest[gi]
            if cost[gi] > 2: print('gap over', N, gi, cost[gi], first[gi] + rest[gi])
        return out, waits[0], rd

    for gp, ins, tag in build_iter(0)[2]:
        if tag[0] == 'Vn': k(ins)
    D, X = vT, vT + 1
    for qb in range(4):
        regs = [Sb(M, kb, qb) + r for M in (0, 1) for kb in range(2) for r in range(4)]
        k(f'v_max3_f32 v{D}, v{regs[0]}, v{regs[1]}, v{regs[2]}')
        for i in range(3, 15, 2): k(f'v_max3_f32 v{D}, v{D}, v{regs[i]}, v{regs[i+1]}')
        k(f'v_max_f32 v{D}, v{D}, v{regs[15]}')
        xmax(D, X)
        k(f'v_sub_f32 v{NM(qb)}, 0x{f2u(-float(bias)):08x}, v{D}')
        for r in range(1, 4): k(f'v_mov_b32 v{NM(qb)+r}, v{NM(qb)}')
        for r in regs[::2]: k(f'v_pk_add_f32 {R2("v", r)}, {R2("v", r)}, {R2("v", NM(qb))}')
    for i in range(0, 32, 2):
        k(E(0, i)); k(E(0, i + 1))
        if i: k(C(0, (i >> 1) - 1))
    k('s_nop 0')
    k(C(0, 15))
    for i in range(32):
        if E0 + 2 * i < NG: k(E(1, i)); k('s_nop 0')
        if i & 1 and E0 + 2 * i + 1 < NG: k(C(1, i >> 1))
    k(f's_mov_b32 s{sCNT}, 8')
    k(f's_waitcnt lgkmcnt({build_iter(1)[1]})')
    k.stamp(3)
    Lloop = k.label('loop'); Ltail = k.label('tail'); Lslow = k.label('slow'); Lepi = k.label('epi')
    k(f'{Lloop}:')
    for N in range(1, 9):
        ins, w0, _ = build_iter(N)
        cnt = 0
        for idx, x in enumerate(ins):
            if x.startswith(MF):
                if N == 7 and cnt == 34: k(f's_sub_u32 s{sCNT}, s{sCNT}, 1')
                if N == 7 and cnt == 35: k(f's_cmp_eq_u32 s{sCNT}, 0')
                if N == 7 and cnt == 36:
                    k(f's_cbranch_scc1 {Ltail}')
                    tail_rest = ins[idx:]
                cnt += 1
            if N == 7 and cnt == 36: assert not x.startswith('s_add'), x
            k(x)
    k(f's_branch {Lloop}')
    k(f'{Ltail}:')
    k.stamp(4)
    N = 7
    for db in range(8):
        for hf in range(2): k(vread(N, db, hf))
    for x in tail_rest:
        if x.startswith('v_exp') and any(x == E(N, i) for i in range(32)): k(x); k('s_nop 0')
        elif x.startswith('v_cvt') and any(x == C(N, j) for j in range(16)): k(x)
    k('s_waitcnt lgkmcnt(0)')
    k('s_nop 0')
    for qb in range(4): k(ones(N, qb))
    for db in range(8):
        for qb in range(4): k(pv(N, db, qb))
    k(f'v_max3_f32 v{vT}, v{Lb(0)}, v{Lb(1)}, v{Lb(2)}')
    k(f'v_max_f32 v{vT}, v{vT}, v{Lb(3)}')
    k(f'v_cmp_nge_f32 vcc, s{sTH}, v{vT}')
    k(f's_cbranch_vccnz {Lslow}')
    k(f'{Lepi}:')
    RC = vE
    for qb in range(4):
        k(f'v_rcp_f32 v{RC+2*qb}, v{Lb(qb)}')
        k('s_nop 0')
        k(f'v_mov_b32 v{RC+2*qb+1}, v{RC+2*qb}')
    k('v_lshlrev_b32 v6, 4, v1')
    k(f's_lshl_b32 s48, s{sHEAD}, 9')
    k(f's_add_u32 s48, s48, s{sMB0}')
    k('s_lshl_b32 s48, s48, 10')
    n = 0
    for u in range(4):
        for qb in range(4):
            X = vS + (n % 4) * 8; D = vP + (n % 4) * 4; n += 1
            for h in range(2):
                a = aO + ((2 * u + h) * 4 + qb) * 4
                for r in range(4): k(f'v_accvgpr_read_b32 v{X+4*h+r}, a{a+r}')
            for j in range(4): k(f'v_pk_mul_f32 {R2("v", X+2*j)}, {R2("v", X+2*j)}, {R2("v", RC+2*qb)}')
            for j in range(4): k(f'v_cvt_pk_bf16_f32 v{D+j}, v{X+2*j}, v{X+2*j+1}')
            k(f'buffer_store_dwordx4 {R4("v", D)}, v6, s[28:31], s48 offen offset:{qb*1024}')
        if u < 3: k('s_add_u32 s48, s48, 131072')
    k.stamp_out(2)
    k(f'{Lend}:')
    k('s_endpgm')

    k(f'{Lslow}:')
    k('s_waitcnt vmcnt(0)')
    MX = vL + 16
    vKG = vL + 20
    vVP = vL + 22
    vVG = vL + 30
    k(f'v_and_b32 v{tmp}, 15, v1')
    k(f'v_lshrrev_b32 v{tmp+1}, 4, v1')
    k(f'v_lshlrev_b32 v{vKG}, 8, v{tmp}')
    k(f'v_lshl_add_u32 v{vKG}, v{tmp+1}, 4, v{vKG}')
    k(f'v_add_u32 v{vKG+1}, 4096, v{vKG}')
    k(f's_lshl_b32 s48, s{sWAVE}, 13')
    k(f's_add_u32 s48, s48, {SL(8)}')
    k(f's_sub_u32 s49, s48, 0x10000')
    for db in range(8): k(f'v_add_u32 v{vVP+db}, s49, v{vVA+db}')
    for j in range(2): k(f'v_subrev_u32 v{vVG+j}, s{sM0}, v{vVD+j}')
    for qb in range(4): k(f'v_mov_b32 v{MX+qb}, 0xff7fffff')
    for i in range(16): k(f'v_mov_b32 v{vNM+i}, 0')
    k(f's_mov_b32 s{sFIRST}, 0')
    Lp = k.label('spass'); Lu = k.label('sunit'); Lp1 = k.label('sp1'); Lnx = k.label('snext'); Lnov = k.label('snov')
    k(f'{Lp}:')
    k(f's_mov_b32 s{sK}, 0')
    k(f'{Lu}:')
    for kb in range(2):
        for ds in range(4):
            k(f'buffer_load_dwordx4 {R4("a", Kfr(kb, ds))}, v{vKG+kb}, s[20:23], s{sK} offen offset:{ds*64}')
    k(f's_cmp_eq_u32 s{sFIRST}, 0')
    k(f's_cbranch_scc1 {Lnov}')
    for half in range(2):
        k(f's_add_u32 m0, s48, {half*4096}')
        k(f's_add_u32 s49, s{sK}, {half*4096}')
        for n in range(4):
            k(f'buffer_load_dwordx4 v{vVG+(n&1)}, s[24:27], s49 offen offset:{n*1024} lds')
    k(f'{Lnov}:')
    k('s_waitcnt vmcnt(0)')
    for kb in range(2):
        for ds in range(4):
            for qb in range(4): k(qk(0, kb, ds, qb))
    k('s_nop 7')
    k(f's_cmp_eq_u32 s{sFIRST}, 0')
    k(f's_cbranch_scc0 {Lp1}')
    for qb in range(4):
        regs = [Sb(0, kb, qb) + r for kb in range(2) for r in range(4)]
        for i in range(0, 8, 2): k(f'v_max3_f32 v{MX+qb}, v{MX+qb}, v{regs[i]}, v{regs[i+1]}')
    k(f's_branch {Lnx}')
    k(f'{Lp1}:')
    for db in range(8):
        for hf in range(2):
            k(f'ds_read_b64_tr_b16 {R2("a", Vfr(db) + 2*hf)}, v{vVP+db} offset:{hf*4096}')
    for i in range(0, 32, 2):
        k(E(0, i)); k(E(0, i + 1)); k('s_nop 0'); k(C(0, i >> 1))
    k('s_waitcnt lgkmcnt(0)')
    k('s_nop 0')
    for qb in range(4): k(ones(0, qb))
    for db in range(8):
        for qb in range(4): k(pv(0, db, qb))
    k(f'{Lnx}:')
    k(f's_add_u32 s{sK}, s{sK}, 8192')
    k(f's_cmp_lt_u32 s{sK}, 524288')
    k(f's_cbranch_scc1 {Lu}')
    k('s_nop 7')
    k(f's_cmp_eq_u32 s{sFIRST}, 0')
    k(f's_cbranch_scc0 {Lepi}')
    for qb in range(4):
        xmax(MX + qb, vT)
        for r in range(4): k(f'v_sub_f32 v{NM(qb)+r}, 0, v{MX+qb}')
    for i in range(16): k(f'v_mov_b32 v{vL+i}, 0')
    for i in range(128): k(f'v_accvgpr_write_b32 a{aO+i}, 0')
    k(f's_mov_b32 s{sFIRST}, 1')
    k(f's_branch {Lp}')
    k.noreplay = {Lepi, Lp}
    return k
```

```python
from asmgen import *
from gen_small import *

def R4(kind, i): return f'{kind}[{i}:{i+3}]'
def R2(kind, i): return f'{kind}[{i}:{i+1}]'
MF = 'v_mfma_f32_16x16x32_bf16'

class Gemm:
    def __init__(self, k, NA, NB, LP, S, PD, RA, ntiles, acc, aring, bring, vA, lds_base,
                 srdW, sW, wpitch, wdma, sM0, srdX, sX, vX, cinit=None, wait_every=1, extra_loads=None, stage_off=None, extra_pending=None):
        self.__dict__.update(locals())
        self.tile_bytes = 64 * LP
        self.nops = len(wdma) + 2 * NB
        if stage_off is None: self.stage_off = [lds_base + i * self.tile_bytes for i in range(S)]
        if extra_pending is None: self.extra_pending = lambda t: 0

    def loads(self, t):
        st = t % self.S
        bl = []
        for ks in range(2):
            for b in range(self.NB):
                bl.append([f'buffer_load_dwordx4 {self.bring(st, ks, b)}, v{self.vX[ks]}, s[{self.srdX}:{self.srdX+3}], s{self.sX} offen offset:{b*1024}'])
        g = [[f's_add_u32 m0, s{self.sM0}, {self.stage_off[st]}'], bl[0]]
        for (voff, ioff) in self.wdma:
            g.append([f'buffer_load_dwordx4 v{voff}, s[{self.srdW}:{self.srdW+3}], s{self.sW} offen offset:{ioff} lds'])
        g.append([f's_add_u32 s{self.sW}, s{self.sW}, {64 * self.wpitch}'])
        g += bl[1:]
        g.append([f's_add_u32 s{self.sX}, s{self.sX}, 262144'])
        return g

    def reads(self, t, f):
        ks, a = divmod(f, self.NA)
        slot = (t * 2 * self.NA + f) % self.RA
        kind, base = self.aring(slot)
        r = []
        for hf in range(2):
            off = self.stage_off[t % self.S] + (32 * ks + 16 * hf) * self.LP
            va = self.vA[off >> 16][a]
            r.append(f'ds_read_b64_tr_b16 {R2(kind, base + 2 * hf)}, v{va} offset:{off & 0xffff}')
        return r

    def mfmas(self, t, f):
        ks, a = divmod(f, self.NA)
        slot = (t * 2 * self.NA + f) % self.RA
        kind, base = self.aring(slot)
        r = []
        for b in range(self.NB):
            c = self.acc(a, b)
            if t == 0 and ks == 0:
                c = self.cinit(a, b) if self.cinit else '0'
            r.append(f'{MF} {self.acc(a, b)}, {R4(kind, base)}, {self.bring(t % self.S, ks, b)}, {c}')
        return r

    def prologue_loads(self, t0=0, t1=None):
        for t in range(t0, min(self.S - 1, self.ntiles) if t1 is None else t1):
            for g in self.loads(t):
                for i in g:
                    self.k(i)

    def body(self, t, pending_after=None):
        k = self.k; NA2 = 2 * self.NA; PD = self.PD; nt = self.ntiles
        has_next = t + 1 < nt
        if has_next:
            k(f's_waitcnt vmcnt({pending_after})')
            k('s_barrier')
            if t == -1 and getattr(self, 'stamp_first', None): k.stamp(self.stamp_first)
        ld = []
        if t >= 0 and t + self.S - 1 < nt: ld = self.loads(t + self.S - 1)
        elif self.extra_loads: ld = self.extra_loads(t)
        groups = []
        for i in range(NA2):
            if i < PD: groups.append((t, NA2 - PD + i) if t >= 0 else None)
            else: groups.append((t + 1, i - PD) if has_next else None)
        out_reads = 2 * PD if t >= 0 else 0
        queue = [(t, NA2 - PD + i) for i in range(PD)] if t >= 0 else []
        queue = queue[getattr(self, '_carry', 0):] if t >= 0 else []
        nfree = sum(self.NB - 1 if (g and has_next) else (self.NB if g else 0) for g in groups)
        li = 0; seen = 0
        for i, g in enumerate(groups):
            rd = self.reads(t + 1, i) if has_next else []
            if g is None:
                for r in rd: k(r)
                if rd: queue.append((t + 1, i))
                continue
            if g in queue:
                idx = queue.index(g)
                upto = min(idx + self.wait_every - 1, len(queue) - 1)
                remain = len(queue) - 1 - upto
                k(f's_waitcnt lgkmcnt({2 * remain})')
                queue = queue[upto + 1:]
            mf = self.mfmas(*g)
            for b, m in enumerate(mf):
                k(m)
                if b == 0 and rd:
                    for r in rd: k(r)
                    queue.append((t + 1, i))
                else:
                    seen += 1
                    want = (seen * len(ld) + nfree - 1) // nfree if nfree else 0
                    while li < min(want, len(ld)):
                        for x in ld[li]: k(x)
                        li += 1
        while li < len(ld):
            for x in ld[li]:
                k(x)
                if x.startswith('s_add_u32 m0'): k('s_nop 0')
            li += 1
        self._carry = PD - len(queue) if has_next else 0

    def emit(self, loop_sreg=None, pre_pending=0):
        k = self.k; S = self.S; nt = self.ntiles; n = self.nops
        def pend(t):
            last = min(max(t + S - 2, S - 2), nt - 1)
            return (last - (t + 1)) * n + self.extra_pending(t)
        self.body(-1, pend(-1))
        t = 0
        if loop_sreg is not None:
            nsteady = nt - S + 1
            trips = nsteady // S
            if trips >= 2:
                c0 = self._carry
                k(f's_mov_b32 s{loop_sreg}, {trips}')
                L = k.label('gloop')
                k(f'{L}:')
                for u in range(S):
                    self.body(u + S, pend(0))
                assert self._carry == c0
                k(f's_sub_u32 s{loop_sreg}, s{loop_sreg}, 1')
                k(f's_cmp_lg_u32 s{loop_sreg}, 0')
                k(f's_cbranch_scc1 {L}')
                t = trips * S
        while t < nt:
            self.body(t, pend(t))
            t += 1

def tr_addr_regs(k, vbase, NA, LP, tmp, lane, add=0):
    t0, t1, t2 = tmp, tmp + 1, tmp + 2
    k(f'v_lshrrev_b32 v{t0}, 2, v{lane}')
    k(f'v_and_b32 v{t1}, 3, v{lane}')
    if LP == 256:
        k(f'v_and_b32 v{t2}, 7, v{t0}')
        sh = 8
    else:
        k(f'v_bfe_u32 v{t2}, v{t0}, 1, 2')
        sh = 7
    k(f'v_lshlrev_b32 v{t0}, {sh}, v{t0}')
    k(f'v_lshl_add_u32 v{t0}, v{t1}, 3, v{t0}')
    if add: k(f'v_add_u32 v{t0}, {add}, v{t0}')
    for a in range(NA):
        k(f'v_xor_b32 v{t1}, {a}, v{t2}')
        k(f'v_lshl_add_u32 v{vbase+a}, v{t1}, 5, v{t0}')

def wdma_regs(k, vbase, LP, pitch, nchunks, tmp, lane, swave):
    t0, t1, t2, t3 = tmp, tmp + 1, tmp + 2, tmp + 3
    res = []
    if LP == 256:
        n_ins, rows_per, shl, msk = 4, 4, 4, 15
    else:
        n_ins, rows_per, shl, msk = 2, 8, 3, 7
    k(f'v_lshrrev_b32 v{t0}, {shl}, v{lane}')
    k(f'v_and_b32 v{t1}, {msk}, v{lane}')
    k(f's_lshl_b32 s{swave+1}, s{swave}, 4')
    k(f's_mov_b32 s{swave+2}, {pitch}')
    for n in range(n_ins):
        k(f'v_add_u32 v{t2}, {n * rows_per}, v{t0}')
        if LP == 256:
            k(f'v_and_b32 v{t3}, 7, v{t2}')
        else:
            k(f'v_bfe_u32 v{t3}, v{t2}, 1, 2')
        k(f'v_lshlrev_b32 v{t3}, 1, v{t3}')
        k(f'v_xor_b32 v{t3}, v{t3}, v{t1}')
        k(f'v_add_u32 v{t2}, s{swave+1}, v{t2}')
        k(f'v_mul_lo_u32 v{t2}, v{t2}, s{swave+2}')
        k(f'v_lshl_add_u32 v{vbase+n}, v{t3}, 4, v{t2}')
        if n: k(f'v_subrev_u32 v{vbase+n}, {n*1024}, v{vbase+n}')
        if nchunks <= msk:
            k(f'v_cmp_le_u32 vcc, {nchunks}, v{t3}')
            k(f'v_mov_b32 v{t2}, 0x7ff00000')
            k('s_nop 0')
            k(f'v_cndmask_b32 v{vbase+n}, v{vbase+n}, v{t2}, vcc')
        res.append((vbase + n, n * 1024))
    return res
```

```python
from gen_gemm import *
import math, struct
def f2u(x): return struct.unpack('<I', struct.pack('<f', x))[0]

def swap_pair(k, x, y):
    k(f'v_permlane32_swap_b32 v{x}, v{y}')
    k('s_nop 1')
    k(f'v_permlane16_swap_b32 v{x}, v{y}')

def gen_resid(second, S=8, PD=4):
    name = 'mlp2_kernel' if second else 'oproj_kernel'
    K = 3584 if second else 4096
    KB = K // 32
    NA, NB, LP, RA = 4, 2, 128, 8
    k = Kern(name, (256, 1, 1), (256, 1, 1), S * 8192, vgpr=128, agpr=16 * S + 32, sgpr=64)
    Lend = k.label('end')
    k('s_cmp_ge_u32 s2, 256')
    k(f's_cbranch_scc1 {Lend}')
    k.stamp(0)
    k(f's_load_dwordx2 s[4:5], s[0:1], {A_W2 if second else A_WO}')
    k(f's_load_dwordx2 s[6:7], s[0:1], {A_WS}')
    k(f's_load_dwordx2 s[8:9], s[0:1], {A_OUT if second else A_X}')
    if second: k(f's_load_dwordx2 s[10:11], s[0:1], {A_B2}')
    k('v_and_b32 v1, 63, v0')
    k('v_lshrrev_b32 v2, 6, v0')
    k('s_and_b32 s40, s2, 7')
    k('v_readfirstlane_b32 s44, v2')
    k('s_lshr_b32 s41, s2, 3')
    k('s_lshr_b32 s42, s40, 1')
    k('s_lshl_b32 s42, s42, 2')
    k('s_lshr_b32 s43, s41, 3')
    k('s_add_u32 s42, s42, s43')
    k('s_and_b32 s43, s40, 1')
    k('s_lshl_b32 s43, s43, 3')
    k('s_and_b32 s41, s41, 7')
    k('s_add_u32 s43, s43, s41')
    vW = 8; vA = 12; vX = 16; tmp = 20
    wd = wdma_regs(k, vW, LP, 2048, 8, tmp, 1, 44)
    k('s_lshl_b32 s47, s42, 3')
    k('s_lshl_b32 s48, s44, 1')
    k('s_add_u32 s47, s47, s48')
    k('s_lshl_b32 s48, s47, 10')
    k(f'v_lshl_add_u32 v{vX}, v1, 4, s48')
    k(f'v_add_u32 v{vX+1}, 0x20000, v{vX}')
    k('s_lshl_b32 s50, s43, 7')
    k('s_mov_b32 s51, 0')
    k('s_lshl_b32 s52, s44, 11')
    k('s_waitcnt lgkmcnt(0)')
    k.srd(12, 4, K * 2048)
    srd_off(k, 16, 6, WS_HH if second else WS_O, 2048 * K * 2)
    acc0 = 64
    g = Gemm(k, NA, NB, LP, S, PD, RA, K // 64,
             acc=lambda a, b: R4('v', acc0 + (a * NB + b) * 4),
             aring=lambda s: ('a', 16 * S + 4 * s),
             bring=lambda st, ks, b: R4('a', st * 16 + (ks * NB + b) * 4),
             vA=[[vA + a for a in range(NA)]], lds_base=0,
             srdW=12, sW=50, wpitch=2048, wdma=wd, sM0=52, srdX=16, sX=51, vX=[vX, vX + 1], wait_every=2)
    g.prologue_loads()
    tr_addr_regs(k, vA, NA, LP, tmp, 1)
    g.stamp_first = 1
    g.emit(loop_sreg=53)
    k.stamp(2)
    if second:
        srd_off(k, 20, 6, WS_X1, 4 * MB)
        k.srd(24, 8, 4 * MB)
        k.srd(32, 10, 2048)
    else:
        k.srd(20, 8, 4 * MB)
        srd_off(k, 24, 6, WS_X1, 4 * MB)
    srd_off(k, 28, 6, WS_MOD32 + (5 if second else 2) * 4096, 4096)
    k('v_and_b32 v4, 15, v1')
    k('v_lshrrev_b32 v5, 4, v1')
    k('v_lshlrev_b32 v6, 11, v4')
    k('v_lshl_add_u32 v7, v5, 4, v6')
    k('v_lshl_add_u32 v6, v5, 3, v6')
    k('s_lshl_b32 s48, s47, 15')
    k('s_lshl_b32 s49, s43, 7')
    k('s_add_u32 s48, s48, s49')
    k('s_add_u32 s49, s48, 32768')
    XR = 24
    for b in range(NB):
        for a in range(NA):
            k(f'buffer_load_dwordx2 {R2("v", XR + (a*NB+b)*2)}, v6, s[20:23], s{48+b} offen offset:{a*32}')
    GR = 40
    k('v_lshlrev_b32 v4, 4, v5')
    k('s_lshl_b32 s54, s43, 8')
    for a in range(NA):
        k(f'buffer_load_dwordx4 {R4("v", GR + 4*a)}, v4, s[28:31], s54 offen offset:{a*64}')
    BR = 56
    if second:
        k('v_lshlrev_b32 v4, 3, v5')
        k('s_lshl_b32 s54, s43, 7')
        for a in range(NA):
            k(f'buffer_load_dwordx2 {R2("v", BR + 2*a)}, v4, s[32:35], s54 offen offset:{a*32}')
    k('s_waitcnt vmcnt(0)')
    T = 96
    for a in range(NA):
        if second:
            for j in range(2):
                k(f'v_lshlrev_b32 v{T+4+2*j}, 16, v{BR+2*a+j}')
                k(f'v_and_b32 v{T+5+2*j}, 0xffff0000, v{BR+2*a+j}')
        for b in range(NB):
            A = acc0 + (a * NB + b) * 4; xr = XR + (a * NB + b) * 2
            for j in range(2):
                k(f'v_lshlrev_b32 v{T+2*j}, 16, v{xr+j}')
                k(f'v_and_b32 v{T+2*j+1}, 0xffff0000, v{xr+j}')
            for r in range(4):
                if second: k(f'v_add_f32 v{A+r}, v{A+r}, v{T+4+r}')
                k(f'v_fma_f32 v{A+r}, v{A+r}, v{GR+4*a+r}, v{T+r}')
    P = 104
    for b in range(NB):
        for u in range(2):
            p = P + (b * 2 + u) * 4
            A0 = acc0 + ((2 * u) * NB + b) * 4; A1 = acc0 + ((2 * u + 1) * NB + b) * 4
            k(f'v_cvt_pk_bf16_f32 v{p}, v{A0}, v{A0+1}')
            k(f'v_cvt_pk_bf16_f32 v{p+1}, v{A0+2}, v{A0+3}')
            k(f'v_cvt_pk_bf16_f32 v{p+2}, v{A1}, v{A1+1}')
            k(f'v_cvt_pk_bf16_f32 v{p+3}, v{A1+2}, v{A1+3}')
            k('s_nop 1')
            k(f'v_permlane32_swap_b32 v{p}, v{p+2}')
            k(f'v_permlane32_swap_b32 v{p+1}, v{p+3}')
            k('s_nop 0')
            k(f'v_permlane16_swap_b32 v{p}, v{p+2}')
            k(f'v_permlane16_swap_b32 v{p+1}, v{p+3}')
            k(f'buffer_store_dwordx4 {R4("v", p)}, v7, s[24:27], s{48+b} offen offset:{u*64}')
    k.stamp_out(6 if second else 3)
    k(f'{Lend}:')
    k('s_endpgm')
    return k

def gen_mlp1(S=6, PD=4):
    K = 1024; KB = 32
    NA, NB, LP, RA = 7, 4, 256, 7
    k = Kern('mlp1_kernel', (256, 1, 1), (256, 1, 1), S * 16384, vgpr=256, agpr=32 * S + 28, sgpr=64)
    Lend = k.label('end')
    k('s_cmp_ge_u32 s2, 256')
    k(f's_cbranch_scc1 {Lend}')
    k.stamp(0)
    k(f's_load_dwordx4 s[4:7], s[0:1], {A_W1}')
    k(f's_load_dwordx2 s[8:9], s[0:1], {A_WS}')
    k('v_and_b32 v1, 63, v0')
    k('v_lshrrev_b32 v2, 6, v0')
    k('s_and_b32 s40, s2, 7')
    k('v_readfirstlane_b32 s44, v2')
    k('s_lshr_b32 s41, s2, 3')
    k('s_lshr_b32 s42, s40, 2')
    k('s_lshl_b32 s42, s42, 2')
    k('s_lshr_b32 s43, s41, 3')
    k('s_add_u32 s42, s42, s43')
    k('s_and_b32 s43, s40, 3')
    k('s_lshl_b32 s43, s43, 3')
    k('s_and_b32 s41, s41, 7')
    k('s_add_u32 s43, s43, s41')
    vW = 8; vX = 12; vA = 16; tmp = 32
    wd = wdma_regs(k, vW, LP, 7168, 14, tmp, 1, 44)
    k('s_lshl_b32 s47, s42, 4')
    k('s_lshl_b32 s48, s44, 2')
    k('s_add_u32 s47, s47, s48')
    k('s_lshl_b32 s48, s47, 10')
    k(f'v_lshl_add_u32 v{vX}, v1, 4, s48')
    k(f'v_add_u32 v{vX+1}, 0x20000, v{vX}')
    k('s_mul_i32 s50, s43, 224')
    k('s_mov_b32 s51, 0')
    k('s_lshl_b32 s52, s44, 12')
    k('v_lshrrev_b32 v5, 4, v1')
    k('v_lshlrev_b32 v4, 3, v5')
    k('s_waitcnt lgkmcnt(0)')
    k.srd(12, 4, 1024 * 7168)
    srd_off(k, 16, 8, WS_Y, 4 * MB)
    k.srd(20, 6, 7168)
    BP = 40; BI = 64; acc0 = 96
    for a in range(NA):
        k(f'buffer_load_dwordx2 {R2("v", BP + 2*a)}, v4, s[20:23], s50 offen offset:{a*32}')
    g = Gemm(k, NA, NB, LP, S, PD, RA, K // 64,
             acc=lambda a, b: R4('v', acc0 + (a * NB + b) * 4),
             aring=lambda s: ('a', 32 * S + 4 * s),
             bring=lambda st, ks, b: R4('a', st * 32 + (ks * NB + b) * 4),
             vA=[[vA + a for a in range(NA)], [vA + 8 + a for a in range(NA)]], lds_base=0,
             srdW=12, sW=50, wpitch=7168, wdma=wd, sM0=52, srdX=16, sX=51, vX=[vX, vX + 1],
             cinit=lambda a, b: R4('v', BI + 4 * a))
    g.prologue_loads(0, 4)
    tr_addr_regs(k, vA, NA, LP, tmp, 1)
    for a in range(NA): k(f'v_add_u32 v{vA+8+a}, 0x10000, v{vA+a}')
    k(f's_waitcnt vmcnt({4*g.nops})')
    g.prologue_loads(4, S - 1)
    for a in range(NA):
        for j in range(2):
            k(f'v_lshlrev_b32 v{BI+4*a+2*j}, 16, v{BP+2*a+j}')
            k(f'v_and_b32 v{BI+4*a+2*j+1}, 0xffff0000, v{BP+2*a+j}')
    g.stamp_first = 1
    g.emit(loop_sreg=None)
    k.stamp(2)
    srd_off(k, 24, 8, WS_HH, 2048 * 3584 * 2)
    c1 = -2.0 * math.log2(math.e) * math.sqrt(2.0 / math.pi); c2 = c1 * 0.044715
    C1, C2, ONE = 40, 42, 44
    for (r, v) in ((C1, c1), (C2, c2), (ONE, 1.0)):
        k(f'v_mov_b32 v{r}, 0x{f2u(v):08x}'); k(f'v_mov_b32 v{r+1}, 0x{f2u(v):08x}')
    k('v_lshlrev_b32 v6, 4, v1')
    k('s_mul_i32 s54, s43, 7')
    k('s_lshr_b32 s55, s54, 1')
    k('s_lshl_b32 s55, s55, 7')
    k('s_add_u32 s55, s55, s47')
    k('s_lshl_b32 s55, s55, 10')
    for j in range(1, 4): k(f's_add_u32 s{55+j}, s55, {j*131072}')
    k('s_nop 4')
    T = 48
    def gelu_tile(A, dst):
        for h in range(2):
            x = R2('v', A + 2 * h); t = R2('v', T + 2 * h)
            k(f'v_pk_mul_f32 {t}, {x}, {x}')
            k(f'v_pk_fma_f32 {t}, {t}, {R2("v", C2)}, {R2("v", C1)}')
            k(f'v_pk_mul_f32 {t}, {t}, {x}')
        for r in range(4): k(f'v_exp_f32 v{T+r}, v{T+r}')
        for h in range(2):
            t = R2('v', T + 2 * h)
            k(f'v_pk_add_f32 {t}, {t}, {R2("v", ONE)}')
        for r in range(4): k(f'v_rcp_f32 v{T+r}, v{T+r}')
        for h in range(2):
            x = R2('v', A + 2 * h); t = R2('v', T + 2 * h)
            k(f'v_pk_mul_f32 {x}, {x}, {t}')
        for h in range(2):
            k(f'v_cvt_pk_bf16_f32 v{dst+h}, v{A+2*h}, v{A+2*h+1}')
    Lodd = k.label('odd')
    k('s_bitcmp1_b32 s43, 0')
    k(f's_cbranch_scc1 {Lodd}')
    for odd in range(2):
        if odd: k(f'{Lodd}:')
        n = 0
        for b in range(NB):
            for blk in range(4):
                aa = [a for a in range(NA) if (a + odd) >> 1 == blk]
                D = 56 + (n % 2) * 4; n += 1
                for a in aa:
                    gelu_tile(acc0 + (a * NB + b) * 4, D + 2 * ((a + odd) & 1))
                if len(aa) == 2:
                    k(f'buffer_store_dwordx4 {R4("v", D)}, v6, s[24:27], s{55+blk} offen offset:{b*1024}')
                else:
                    hf = (aa[0] + odd) & 1
                    k(f'buffer_store_dwordx2 {R2("v", D + 2*hf)}, v6, s[24:27], s{55+blk} offen offset:{b*1024 + 8*hf}')
        k.nstamp = 3
        k.stamp_out(5)
        k('s_endpgm')
    k(f'{Lend}:')
    k('s_endpgm')
    return k
```

```python
from asmgen import *

MB = 1 << 20
WS_MOD32 = 0
WS_MOD16 = 32768
WS_H = 1 * MB
WS_O = 8 * MB
WS_X1 = 24 * MB
WS_Y = 28 * MB
WS_HH = 32 * MB
A_X, A_K, A_V, A_WQ, A_WO, A_BX, A_W1, A_B1, A_W2, A_B2, A_C, A_WMOD, A_OUT, A_DBG, A_WS = [8 * i for i in range(15)]

def srd_off(k, d, base, off, nbytes):
    k(f's_add_u32 s{d}, s{base}, {off}')
    k(f's_addc_u32 s{d+1}, s{base+1}, 0')
    k(f's_and_b32 s{d+1}, s{d+1}, 0xffff')
    k(f's_mov_b32 s{d+2}, {nbytes}')
    k(f's_mov_b32 s{d+3}, 0x20000')

def round_pair(k, a, b, tmp):
    k(f'v_cvt_pk_bf16_f32 v{tmp}, v{a}, v{b}')
    k(f'v_lshlrev_b32 v{a}, 16, v{tmp}')
    k(f'v_and_b32 v{b}, 0xffff0000, v{tmp}')

def wave_sum(k, v, t):
    k('s_nop 1')
    k(f'v_add_f32_dpp v{v}, v{v}, v{v} quad_perm:[1,0,3,2] row_mask:0xf bank_mask:0xf')
    k('s_nop 1')
    k(f'v_add_f32_dpp v{v}, v{v}, v{v} quad_perm:[2,3,0,1] row_mask:0xf bank_mask:0xf')
    k('s_nop 1')
    k(f'v_add_f32_dpp v{v}, v{v}, v{v} row_half_mirror row_mask:0xf bank_mask:0xf')
    k('s_nop 1')
    k(f'v_add_f32_dpp v{v}, v{v}, v{v} row_mirror row_mask:0xf bank_mask:0xf')
    k(f'v_mov_b32 v{t}, v{v}')
    k('s_nop 1')
    k(f'v_permlane16_swap_b32 v{v}, v{t}')
    k(f'v_add_f32 v{v}, v{v}, v{t}')
    k(f'v_mov_b32 v{t}, v{v}')
    k('s_nop 1')
    k(f'v_permlane32_swap_b32 v{v}, v{t}')
    k(f'v_add_f32 v{v}, v{v}, v{t}')

def gen_mod():
    k = Kern('mod_kernel', (192, 1, 1), (512, 1, 1), 4096 + 16384 + 2048, vgpr=64, sgpr=40)
    Lend = k.label('end')
    k('s_cmp_ge_u32 s2, 192')
    k(f's_cbranch_scc1 {Lend}')
    k.stamp(0)
    k(f's_load_dwordx4 s[4:7], s[0:1], {A_C}')
    k(f's_load_dwordx2 s[8:9], s[0:1], {A_WS}')
    k('s_and_b32 s20, s2, 7')
    k('s_mul_i32 s20, s20, 24')
    k('s_lshr_b32 s21, s2, 3')
    k('s_add_u32 s20, s20, s21')
    k('s_lshl_b32 s21, s20, 6')
    k('v_lshrrev_b32 v1, 2, v0')
    k('v_and_b32 v2, 3, v0')
    k('s_mov_b32 s22, 12288')
    k('v_mul_lo_u32 v3, v1, s22')
    k('v_lshl_add_u32 v3, v2, 4, v3')
    k('v_lshlrev_b32 v4, 2, v0')
    k('s_waitcnt lgkmcnt(0)')
    k.srd(12, 6, 1024 * 6144 * 2)
    k.srd(16, 4, 2048)
    k('buffer_load_dword v5, v4, s[16:19], 0 offen')
    for p in range(8):
        k(f'buffer_load_dwordx4 v[{16+4*p}:{16+4*p+3}], v3, s[12:15], s21 offen')
        if p < 7: k(f's_add_u32 s21, s21, {128*12288}')
    k('s_waitcnt vmcnt(8)')
    k('v_lshlrev_b32 v6, 16, v5')
    k('v_and_b32 v7, 0xffff0000, v5')
    k('s_mov_b32 s23, 0xbfb8aa3b')
    for v in (6, 7):
        k(f'v_mul_f32 v8, s23, v{v}')
        k('v_exp_f32 v8, v8')
        k('s_nop 0')
        k('v_add_f32 v8, 1.0, v8')
        k('v_rcp_f32 v8, v8')
        k('s_nop 0')
        k(f'v_mul_f32 v{v}, v{v}, v8')
    round_pair(k, 6, 7, 8)
    k('v_lshlrev_b32 v9, 3, v0')
    k('ds_write_b64 v9, v[6:7]')
    k('s_waitcnt lgkmcnt(0)')
    k('s_barrier')
    k('v_lshlrev_b32 v9, 2, v1')
    for p in range(8):
        k(f'ds_read_b32 v{48+p}, v9 offset:{p*512}')
    for j in range(8): k(f'v_mov_b32 v{8+j}, 0')
    k('s_waitcnt lgkmcnt(0)')
    for p in range(8):
        k(f's_waitcnt vmcnt({7-p})')
        for j in range(4):
            w = 16 + 4 * p + j
            k(f'v_lshlrev_b32 v56, 16, v{w}')
            k(f'v_and_b32 v57, 0xffff0000, v{w}')
            k(f'v_fmac_f32 v{8+2*j}, v56, v{48+p}')
            k(f'v_fmac_f32 v{9+2*j}, v57, v{48+p}')
    k('v_lshlrev_b32 v4, 5, v0')
    k('ds_write_b128 v4, v[8:11] offset:4096')
    k('ds_write_b128 v4, v[12:15] offset:4112')
    k('s_waitcnt lgkmcnt(0)')
    k('s_barrier')
    k('v_and_b32 v1, 31, v0')
    k('v_lshrrev_b32 v2, 5, v0')
    k('v_lshlrev_b32 v3, 10, v2')
    k('v_lshl_add_u32 v3, v1, 2, v3')
    for j in range(8): k(f'ds_read_b32 v{8+j}, v3 offset:{4096+j*128}')
    k('s_waitcnt lgkmcnt(0)')
    for j in range(1, 8): k(f'v_add_f32 v8, v8, v{8+j}')
    k('v_lshlrev_b32 v4, 2, v0')
    k(f'ds_write_b32 v4, v8 offset:{4096+16384}')
    k('s_waitcnt lgkmcnt(0)')
    k('s_barrier')
    k('v_cmp_gt_u32 vcc, 32, v0')
    k('s_and_saveexec_b64 s[24:25], vcc')
    k(f's_cbranch_execz {Lend}')
    for j in range(16): k(f'ds_read_b32 v{8+j}, v4 offset:{4096+16384+j*128}')
    k('s_waitcnt lgkmcnt(0)')
    for j in range(1, 16): k(f'v_add_f32 v8, v8, v{8+j}')
    round_pair(k, 8, 9, 10)
    k('s_lshr_b32 s22, s20, 5')
    k('s_cmp_eq_u32 s22, 1')
    k('s_cselect_b32 s23, 1.0, 0')
    k('s_cmp_eq_u32 s22, 4')
    k('s_cselect_b32 s23, 1.0, s23')
    k('v_add_f32 v8, s23, v8')
    round_pair(k, 8, 9, 10)
    k.srd(12, 8, 65536)
    k('s_lshl_b32 s21, s20, 7')
    k('buffer_store_dword v8, v4, s[12:15], s21 offen')
    k('s_lshl_b32 s21, s20, 6')
    k(f's_add_u32 s21, s21, {WS_MOD16}')
    k('v_lshlrev_b32 v4, 1, v0')
    k('buffer_store_short v10, v4, s[12:15], s21 offen')
    k.stamp_out(0)
    k(f'{Lend}:')
    k('s_endpgm')
    return k

def ln_core(k, X, T, sc):
    t0, t1, t2, t3 = T, T + 1, T + 2, T + 3
    k(f'v_add_f32 v{t0}, v{X}, v{X+1}')
    for j in range(2, 16): k(f'v_add_f32 v{t0}, v{t0}, v{X+j}')
    wave_sum(k, t0, t1)
    k(f'v_mul_f32 v{t0}, s{sc}, v{t0}')
    k(f'v_sub_f32 v{t2}, v{X}, v{t0}')
    k(f'v_mul_f32 v{t1}, v{t2}, v{t2}')
    for j in range(1, 16):
        k(f'v_sub_f32 v{t2}, v{X+j}, v{t0}')
        k(f'v_fmac_f32 v{t1}, v{t2}, v{t2}')
    wave_sum(k, t1, t2)
    k(f'v_mul_f32 v{t1}, s{sc}, v{t1}')
    round_pair(k, t0, t1, t2)
    k(f'v_add_f32 v{t1}, 0x3727c5ac, v{t1}')
    round_pair(k, t1, t3, t2)
    k(f'v_sqrt_f32 v{t1}, v{t1}')
    k('s_nop 0')
    round_pair(k, t1, t3, t2)
    k(f'v_rcp_f32 v{t1}, v{t1}')
    for j in range(0, 16, 2):
        k(f'v_sub_f32 v{X+j}, v{X+j}, v{t0}')
        k(f'v_sub_f32 v{X+j+1}, v{X+j+1}, v{t0}')
        round_pair(k, X + j, X + j + 1, t2)
    for j in range(0, 16, 2):
        k(f'v_mul_f32 v{X+j}, v{X+j}, v{t1}')
        k(f'v_mul_f32 v{X+j+1}, v{X+j+1}, v{t1}')
        round_pair(k, X + j, X + j + 1, t2)

def unpack8(k, dst, src):
    for j in range(4):
        k(f'v_lshlrev_b32 v{dst+2*j}, 16, v{src+j}')
        k(f'v_and_b32 v{dst+2*j+1}, 0xffff0000, v{src+j}')

def gen_ln(second):
    name = 'ln2_kernel' if second else 'ln1_kernel'
    k = Kern(name, (256, 1, 1), (512, 1, 1), 16384 + 512, vgpr=96, sgpr=40)
    Lend = k.label('end')
    k('s_cmp_ge_u32 s2, 256')
    k(f's_cbranch_scc1 {Lend}')
    k.stamp(0)
    k(f's_load_dwordx2 s[4:5], s[0:1], {A_X}')
    k(f's_load_dwordx2 s[8:9], s[0:1], {A_WS}')
    k('v_and_b32 v1, 63, v0')
    k('v_lshrrev_b32 v2, 6, v0')
    k('v_lshlrev_b32 v3, 4, v1')
    k('v_lshl_add_u32 v4, v2, 11, v3')
    k('s_lshl_b32 s20, s2, 14')
    k('s_waitcnt lgkmcnt(0)')
    if second:
        srd_off(k, 12, 8, WS_X1, 4 * MB)
    else:
        k.srd(12, 4, 4 * MB)
    srd_off(k, 16, 8, WS_MOD16, 12288)
    k('buffer_load_dwordx4 v[8:11], v4, s[12:15], s20 offen')
    k('buffer_load_dwordx4 v[12:15], v4, s[12:15], s20 offen offset:1024')
    sh = 3 * 2048 if second else 0
    k(f's_mov_b32 s21, {sh}')
    k('buffer_load_dwordx4 v[16:19], v3, s[16:19], s21 offen')
    k('buffer_load_dwordx4 v[20:23], v3, s[16:19], s21 offen offset:1024')
    k('buffer_load_dwordx4 v[24:27], v3, s[16:19], s21 offen offset:2048')
    k('buffer_load_dwordx4 v[28:31], v3, s[16:19], s21 offen offset:3072')
    srd_off(k, 24, 8, WS_Y if second else WS_H, 4 * MB)
    k('s_mov_b32 s22, 0x3a800000')
    X = 32
    k('s_waitcnt vmcnt(4)')
    unpack8(k, X, 8); unpack8(k, X + 8, 12)
    ln_core(k, X, 80, 22)
    k('s_waitcnt vmcnt(0)')
    unpack8(k, 48, 16); unpack8(k, 56, 20)
    unpack8(k, 64, 24); unpack8(k, 72, 28)
    for j in range(0, 16, 2):
        k(f'v_mul_f32 v{X+j}, v{X+j}, v{64+j}')
        k(f'v_mul_f32 v{X+j+1}, v{X+j+1}, v{64+j+1}')
        round_pair(k, X + j, X + j + 1, 82)
    for j in range(0, 16, 2):
        k(f'v_add_f32 v{X+j}, v{X+j}, v{48+j}')
        k(f'v_add_f32 v{X+j+1}, v{X+j+1}, v{48+j+1}')
        if second: round_pair(k, X + j, X + j + 1, 82)
    if second:
        ln_core(k, X, 80, 22)
    for j in range(8):
        k(f'v_cvt_pk_bf16_f32 v{8+j}, v{X+2*j}, v{X+2*j+1}')
    k('v_lshrrev_b32 v5, 2, v1')
    k('v_lshlrev_b32 v5, 9, v5')
    k('v_and_b32 v6, 1, v1')
    k('v_lshl_add_u32 v5, v6, 8, v5')
    k('v_bfe_u32 v6, v1, 1, 1')
    k('v_lshl_add_u32 v5, v6, 3, v5')
    k('v_lshl_add_u32 v5, v2, 4, v5')
    k('ds_write_b64 v5, v[8:9]')
    k('ds_write_b64 v5, v[10:11] offset:128')
    k('ds_write_b64 v5, v[12:13] offset:8192')
    k('ds_write_b64 v5, v[14:15] offset:8320')
    k('s_waitcnt lgkmcnt(0)')
    k('s_barrier')
    k('v_lshlrev_b32 v5, 4, v0')
    k('ds_read_b128 v[8:11], v5')
    k('ds_read_b128 v[12:15], v5 offset:8192')
    k('v_lshrrev_b32 v6, 5, v0')
    k('v_lshlrev_b32 v6, 17, v6')
    k('v_bfe_u32 v7, v0, 3, 2')
    k('v_lshl_add_u32 v6, v7, 8, v6')
    k('v_and_b32 v7, 7, v0')
    k('v_lshl_add_u32 v6, v7, 4, v6')
    k('s_lshr_b32 s20, s2, 1')
    k('s_lshl_b32 s20, s20, 10')
    k('s_and_b32 s21, s2, 1')
    k('s_lshl_b32 s21, s21, 7')
    k('s_add_u32 s20, s20, s21')
    k(f's_add_u32 s21, s20, {16*131072}')
    k('s_waitcnt lgkmcnt(1)')
    k('buffer_store_dwordx4 v[8:11], v6, s[24:27], s20 offen')
    k('s_waitcnt lgkmcnt(0)')
    k('buffer_store_dwordx4 v[12:15], v6, s[24:27], s21 offen')
    k.stamp_out(4 if second else 1)
    k(f'{Lend}:')
    k('s_endpgm')
    return k
```

```python
import re

def regs_of(tok):
    tok = tok.strip()
    neg = tok.lstrip('-')
    m = re.fullmatch(r'(?:abs\()?([vas])(\d+)\)?', neg)
    if m: return [(m.group(1), int(m.group(2)))]
    m = re.fullmatch(r'([vas])\[(\d+):(\d+)\]', neg)
    if m: return [(m.group(1), i) for i in range(int(m.group(2)), int(m.group(3)) + 1)]
    if neg == 'vcc': return [('s', 'vcc')]
    if neg == 'exec': return [('s', 'exec')]
    if neg == 'm0': return [('s', 'm0')]
    return []

TRANS = ('v_exp_f32', 'v_log_f32', 'v_rcp_f32', 'v_rsq_f32', 'v_sqrt_f32', 'v_sin_f32', 'v_cos_f32')

class Ins:
    def __init__(self, text):
        self.text = text
        t = text.split(';')[0].strip()
        parts = t.split(None, 1)
        self.op = parts[0]
        rest = parts[1] if len(parts) > 1 else ''
        ops = []; cur = ''; depth = 0
        for ch in rest:
            if ch in '[(': depth += 1
            if ch in '])': depth -= 1
            if ch == ',' and depth == 0:
                ops.append(cur.strip()); cur = ''
            else: cur += ch
        if cur.strip(): ops.append(cur.strip())
        self.mods = ''
        if ops:
            sp = ops[-1].split(None, 1)
            ops[-1] = sp[0]
            if len(sp) > 1: self.mods = sp[1]
        self.ops = ops
        op = self.op
        self.w = []; self.r = []
        self.kind = 'other'
        R = lambda i: regs_of(ops[i]) if i < len(ops) else []
        if op.startswith('v_mfma'):
            self.kind = 'mfma'
            self.w = R(0); self.A = R(1); self.B = R(2); self.C = R(3)
            self.r = self.A + self.B + self.C
            self.passes = 4 if '16x16x32' in op else 8
        elif op.startswith('v_cmp'):
            self.kind = 'valu'; self.w = R(0); self.r = R(1) + R(2)
        elif op in ('v_readfirstlane_b32', 'v_readlane_b32'):
            self.kind = 'valu'; self.w = R(0); self.r = R(1) + R(2)
        elif op.startswith('v_permlane') and 'swap' in op:
            self.kind = 'valu'; self.w = R(0) + R(1); self.r = R(0) + R(1)
        elif op.startswith('v_'):
            self.kind = 'valu'
            self.w = R(0)
            st = 1
            if op.startswith(('v_add_co', 'v_sub_co', 'v_addc_co', 'v_subb_co', 'v_div_scale', 'v_mad_u64')):
                self.w += R(1); st = 2
            for i in range(st, len(ops)): self.r += R(i)
            if op.startswith(('v_fmac', 'v_dot2c', 'v_pk_fmac')) or 'dpp' in op or op == 'v_writelane_b32': self.r += R(0)
            if op.startswith('v_cndmask') and len(ops) == 3: self.r += [('s', 'vcc')]
        elif op.startswith('ds_'):
            self.kind = 'ds'
            if op.startswith(('ds_read', 'ds_bpermute', 'ds_permute', 'ds_swizzle')):
                self.w = R(0)
                for i in range(1, len(ops)): self.r += R(i)
            else:
                for i in range(len(ops)): self.r += R(i)
        elif op.startswith('buffer_') or op.startswith('global_'):
            self.kind = 'vmem'
            lds = ' lds' in (' ' + self.mods) or op.startswith('global_load_lds')
            self.lds = lds
            if 'load' in op and not lds:
                self.w = R(0)
                for i in range(1, len(ops)): self.r += R(i)
            else:
                for i in range(len(ops)): self.r += R(i)
                if lds: self.r += [('s', 'm0')]
            self.store = 'store' in op or 'atomic' in op
            self.wide = self.store and ('x3' in op or 'x4' in op)
            if self.store:
                self.data = R(0) if op.startswith('buffer_') else R(1)
        elif op.startswith('s_load') or op in ('s_memtime', 's_memrealtime') or op.startswith('s_buffer_load'):
            self.kind = 'smem'; self.w = R(0)
            for i in range(1, len(ops)): self.r += R(i)
        elif op in ('s_waitcnt', 's_nop', 's_barrier', 's_endpgm', 's_setprio', 's_branch', 's_sleep') or op.startswith('s_cbranch'):
            self.kind = 'ctl'
            if op == 's_cbranch_vccnz' or op == 's_cbranch_vccz': self.r = [('s', 'vcc')]
        elif op.startswith('s_cmp') or op.startswith('s_bitcmp'):
            self.kind = 'salu'
            for i in range(len(ops)): self.r += R(i)
        elif op.startswith('s_setpc'):
            self.kind = 'ctl'; self.r = R(0)
        elif op.startswith('s_'):
            self.kind = 'salu'; self.w = R(0)
            for i in range(1, len(ops)): self.r += R(i)
            if 'saveexec' in op: self.w += [('s', 'exec')]
        self.ws = 1
        if op == 's_nop': self.ws = int(ops[0]) + 1
        self.W = set(self.w); self.Rd = set(self.r)

def lint_seq(seq, name='', verbose=True, check_cnt=True):
    ins = [Ins(s) for s in seq if not s.strip().endswith(':') and s.strip() and not s.strip().startswith(('.', ';'))]
    errs = []
    n = len(ins)
    for j, c in enumerate(ins):
        dist = 0
        for i in range(j - 1, max(-1, j - 24), -1):
            p = ins[i]
            need = 0; why = ''
            if p.kind == 'valu':
                vw = {x for x in p.W if x[0] in 'va'}
                sw = {x for x in p.W if x[0] == 's'}
                if c.kind == 'mfma' and vw & c.Rd: need, why = 2, 'valu->mfma'
                if p.op in TRANS and c.kind in ('valu',) and c.op not in TRANS and vw & c.Rd: need, why = max(need, 1), 'trans->valu'
                if p.op in TRANS and c.kind in ('vmem', 'ds', 'mfma') and vw & c.Rd: need, why = max(need, 2), 'trans->mem/mfma(pad)'
                if c.op.startswith('v_permlane') and vw & c.Rd: need, why = max(need, 2), 'valu->permlane'
                if 'dpp' in c.op and vw & c.Rd: need, why = max(need, 2), 'valu->dpp'
                if c.op in ('v_readfirstlane_b32', 'v_readlane_b32') and vw & c.Rd: need, why = max(need, 1), 'valu->readlane'
                if sw & c.Rd:
                    if c.kind == 'valu': need, why = max(need, 2), 'valu sgpr->valu'
                    if c.kind == 'vmem': need, why = max(need, 5), 'valu sgpr->vmem'
                    if c.op in ('v_readlane_b32', 'v_writelane_b32'): need, why = max(need, 4), 'valu sgpr->lanesel'
                if ('s', 'exec') in sw and c.kind == 'mfma': need, why = max(need, 4), 'valu exec->mfma'
            if p.kind == 'mfma':
                big = {4: 8, 8: 12}[p.passes]; ovl = {4: 6, 8: 10}[p.passes]; war = {4: 3, 8: 7}[p.passes]
                if c.kind == 'mfma':
                    if p.W & (set(c.A) | set(c.B)): need, why = big, 'mfma D->mfma AB'
                    if p.W & set(c.C) and not (p.w == c.C and p.passes == c.passes): need, why = max(need, ovl), 'mfma D->mfma C overlap'
                    if p.W & c.W and not (p.w == c.w): need, why = max(need, ovl), 'mfma D->mfma D overlap(pad)'
                elif c.kind in ('valu', 'vmem', 'ds'):
                    if p.W & (c.Rd | c.W): need, why = big, 'mfma D->valu/mem'
                    if c.kind == 'valu' and set(p.C) & c.W: need, why = max(need, war), 'mfma C WAR'
            if p.kind == 'salu' and ('s', 'm0') in p.W and c.kind == 'vmem' and getattr(c, 'lds', False): need, why = 1, 'm0->dma'
            if p.kind == 'vmem' and getattr(p, 'wide', False) and set(p.data) & c.W: need, why = 2, 'wide store WAR'
            if need > dist:
                errs.append(f'{name}: hazard {why} need {need} have {dist}: [{i}] {p.text}  -> [{j}] {c.text}')
            dist += p.ws
            if dist > 20: break
    if check_cnt:
        vm = []
        lg = []
        for j, c in enumerate(ins):
            if c.op == 's_waitcnt':
                m = re.search(r'vmcnt\((\d+)\)', c.text)
                if m:
                    k = int(m.group(1)); vm = vm[len(vm) - k:] if k < len(vm) and k > 0 else ([] if k == 0 else vm)
                m = re.search(r'lgkmcnt\((\d+)\)', c.text)
                if m:
                    k = int(m.group(1))
                    if k > 0 and any(x[1] for x in lg):
                        errs.append(f'{name}: counted lgkmcnt with smem outstanding [{j}] {c.text}')
                    lg = lg[len(lg) - k:] if k < len(lg) and k > 0 else ([] if k == 0 else lg)
                continue
            touched = c.Rd | c.W
            for (d, t) in vm:
                if d & touched: errs.append(f'{name}: vm reg not waited: [{j}] {c.text} (from {t})')
            for (d, sm, t) in lg:
                if d & touched: errs.append(f'{name}: lgkm reg not waited: [{j}] {c.text} (from {t})')
            if c.kind == 'vmem':
                vm.append((set() if '; pf' in c.text else set(c.W), c.text))
                if len(vm) > 63: errs.append(f'{name}: vmcnt overflow at [{j}] {c.text}')
            if c.kind == 'ds': lg.append((set(c.W), False, c.text))
            if c.kind == 'smem': lg.append((set(c.W), True, c.text))
    if verbose:
        for e in errs[:40]: print(e)
        if len(errs) > 40: print('...', len(errs), 'errors')
    return len(errs)

def lint_kernel(k, loops=True):
    lines = k.lines
    labels = {l[:-1]: i for i, l in enumerate(lines) if l.endswith(':')}
    seq = []
    for i, l in enumerate(lines):
        seq.append(l)
        p = l.split()
        if loops and p[0].startswith(('s_cbranch', 's_branch')) and p[1] in labels and labels[p[1]] < i and not getattr(k, 'noreplay', set()) & {p[1]}:
            seq += lines[labels[p[1]]: i + 1]
    return lint_seq(seq, k.name)
```

```python
import sys
from asmgen import *
from gen_small import *
from gen_gk import *
from gen_attn import *
import lint
Kern.STAMP = 'stamp' in sys.argv
th = 48
for a in sys.argv:
    if a.startswith('th='): th = float(a[3:])
ks = [gen_mod(), gen_ln(False), gen_attn(thresh_log2=th), gen_resid(False), gen_ln(True), gen_mlp1(), gen_resid(True)]
ne = 0
for k in ks: ne += lint.lint_kernel(k)
print('lint errors', ne)
emit(sys.argv[1] if len(sys.argv) > 1 else 'k.s', ks)
```

```python
NAME = 'adaLN_cond__mha_block_cached__mixer_channel_mlp__prompt'

HEADER = open('cdna_kernels/' + NAME + '.s.ref').read().split('; Override launch')[0]

class Kern:
    def __init__(self, name, grid, block, lds, vgpr, agpr=0, sgpr=102, wgid_y=False):
        self.name = name; self.grid = grid; self.block = block; self.lds = lds
        self.vgpr = vgpr; self.agpr = agpr; self.sgpr = sgpr; self.wgid_y = wgid_y
        self.lines = []
        self.nlabel = 0
    def __call__(self, s):
        for l in s.split('\n'):
            l = l.strip()
            if l:
                if l.startswith('buffer_store_dwordx4') and Kern.STORE_MOD and not getattr(self, 'plain_stores', False): l += Kern.STORE_MOD
                self.lines.append(l)
    def label(self, base='L'):
        self.nlabel += 1
        return f'{self.name}_{base}{self.nlabel}'
    def srd(self, d, base, nbytes):
        if d != base: self(f's_mov_b32 s{d}, s{base}')
        self(f's_and_b32 s{d+1}, s{base+1}, 0xffff')
        self(f's_mov_b32 s{d+2}, {nbytes}')
        self(f's_mov_b32 s{d+3}, 0x20000')
    STAMP = False
    STORE_MOD = ''
    def stamp(self, i):
        if not Kern.STAMP: return
        self.sgpr = 102
        self.nstamp = max(getattr(self, 'nstamp', 0), i + 1)
        self(f'{"s_memtime" if Kern.STAMP == "cyc" else "s_memrealtime"} s[{78+2*i}:{79+2*i}]')
        self('s_waitcnt lgkmcnt(0)')
    def stamp_out(self, kidx, vtmp=0):
        if not Kern.STAMP: return
        self(f's_load_dwordx2 s[90:91], s[0:1], 112')
        self('s_waitcnt lgkmcnt(0) vmcnt(0)')
        self.stamp(self.nstamp)
        self(f's_add_u32 s92, s90, {200*1048576 + kidx*65536}')
        self('s_addc_u32 s93, s91, 0')
        self('s_and_b32 s93, s93, 0xffff')
        self('s_mov_b32 s94, 65536')
        self('s_mov_b32 s95, 0x20000')
        self('s_lshl_b32 s96, s2, 6')
        self('s_mov_b64 exec, 1')
        self(f'v_mov_b32 v{vtmp+1}, 0')
        for i in range(self.nstamp):
            self(f'v_mov_b32 v{vtmp}, s{78+2*i}')
            self(f'buffer_store_dword v{vtmp}, v{vtmp+1}, s[92:95], s96 offen offset:{4*i}')
    def text(self):
        out = [f'.globl {self.name}', '.p2align 8', f'.type {self.name},@function', f'{self.name}:']
        for l in self.lines:
            out.append(l if l.endswith(':') else '  ' + l)
        return '\n'.join(out) + '\n'
    def desc(self):
        acc = (self.vgpr + 3) // 4 * 4
        nfv = acc + self.agpr if self.agpr else self.vgpr
        s = f'''.p2align 6
.amdhsa_kernel {self.name}
  .amdhsa_next_free_vgpr {nfv}
  .amdhsa_next_free_sgpr {self.sgpr}
  .amdhsa_accum_offset {acc}
  .amdhsa_group_segment_fixed_size 0
  .amdhsa_kernarg_size 120
  .amdhsa_user_sgpr_count 2
  .amdhsa_user_sgpr_kernarg_segment_ptr 1
  .amdhsa_system_sgpr_workgroup_id_x 1
'''
        if self.wgid_y:
            s += '  .amdhsa_system_sgpr_workgroup_id_y 1\n'
        s += '.end_amdhsa_kernel\n'
        return s
    def launch_line(self):
        g = self.grid; b = self.block
        return f'; @launch kernel={self.name} grid=({g[0]},{g[1]},{g[2]}) block=({b[0]},{b[1]},{b[2]}) lds={self.lds}'

def emit(path, launches):
    uniq = []
    for k in launches:
        if k not in uniq:
            uniq.append(k)
    s = HEADER
    for k in launches:
        s += k.launch_line() + '\n'
    s += '.amdgcn_target "amdgcn-amd-amdhsa--gfx950"\n.text\n'
    for k in uniq:
        s += k.text()
    s += '.section .rodata,"a"\n'
    for k in uniq:
        s += k.desc()
    open(path, 'w').write(s)
```

```python
from gen_gk import *
from gen_front import mod_finalize

THRESH_LOG2 = 48

def gen_attn(thresh_log2=THRESH_LOG2, lead=27, E0=58, bias=32, pf=True, sched=(2, [1, 2, 1, 2])):
    k = Kern('attn_kernel', (256, 1, 1), (256, 1, 1), 160 * 1024, vgpr=256, agpr=256, sgpr=80)
    Lend = k.label('end')
    k('s_cmp_ge_u32 s2, 256')
    k(f's_cbranch_scc1 {Lend}')
    k.stamp(0)
    k(f's_load_dwordx4 s[4:7], s[0:1], {A_K}')
    k(f's_load_dwordx2 s[8:9], s[0:1], {A_WQ}')
    k(f's_load_dwordx2 s[10:11], s[0:1], {A_WS}')
    k(f's_load_dwordx2 s[32:33], s[0:1], {A_WO}')
    k(f's_load_dwordx2 s[36:37], s[0:1], {A_W1}')
    k(f's_load_dwordx2 s[60:61], s[0:1], {A_W2}')
    vKA, vVA, vKD, vVD = 8, 12, 20, 24
    tmp = 26
    vL = 32; vTA2 = 32; vWD = 40; vX = 44
    vQ, vS, vP, vNM, vE, vONE, vT = 64, 128, 192, 224, 240, 248, 252
    aO, aF = 0, 128
    sHEAD, sQT, sWAVE, sMB0, sW, sX, sM0, sK, sV, sCNT, sTH, sFIRST = 40, 41, 44, 47, 50, 51, 52, 53, 54, 55, 57, 58
    k('v_and_b32 v1, 63, v0')
    k('v_lshrrev_b32 v2, 6, v0')
    k('s_and_b32 s42, s2, 7')
    k(f'v_readfirstlane_b32 s{sWAVE}, v2')
    k('s_lshl_b32 s42, s42, 2')
    k('s_bfe_u32 s43, s2, 0x20003')
    k(f's_add_u32 s{sHEAD}, s42, s43')
    k(f's_lshr_b32 s{sQT}, s2, 5')
    wd = wdma_regs(k, vWD, 256, 8192, 16, tmp, 1, sWAVE)
    k(f's_lshl_b32 s{sMB0}, s{sQT}, 4')
    k(f's_lshl_b32 s48, s{sWAVE}, 2')
    k(f's_add_u32 s{sMB0}, s{sMB0}, s48')
    k(f's_lshl_b32 s48, s{sMB0}, 10')
    k(f'v_lshl_add_u32 v{vX}, v1, 4, s48')
    k(f'v_add_u32 v{vX+1}, 0x20000, v{vX}')
    k(f's_lshl_b32 s{sW}, s{sHEAD}, 8')
    k(f's_mov_b32 s{sX}, 0')
    k(f's_lshl_b32 s{sM0}, s{sWAVE}, 12')
    k('s_waitcnt lgkmcnt(0)')
    k.srd(12, 8, 1024 * 8192)
    srd_off(k, 16, 10, WS_H, 4 * MB)
    S = 6
    SL = lambda i: i * 16384
    stage_off = [SL(6), SL(7), SL(8), SL(9), SL(4), SL(5)]
    bbase = {4: 0, 5: 32, 0: 64, 1: 96, 2: 128, 3: 160}
    def kdma(slot):
        return [[f's_add_u32 m0, s{sM0}, {SL(slot)}'], ['s_nop 0']] + \
               [[f'buffer_load_dwordx4 v{vKD+n}, s[20:23], s{sK} offen offset:{n*1024} lds'] for n in range(4)] + \
               [[f's_add_u32 s{sK}, s{sK}, 16384']]
    def vdma(slot):
        return [[f's_add_u32 m0, s{sM0}, {SL(4+slot)}'], ['s_nop 0']] + \
               [[f'buffer_load_dwordx4 v{vVD+(n&1)}, s[24:27], s{sV} offen offset:{n*1024} lds'] for n in range(4)] + \
               [[f's_add_u32 s{sV}, s{sV}, 16384']]
    def zero(base):
        return [[f'v_accvgpr_write_b32 a{base+i}, 0'] for i in range(32)]
    def extra(t):
        if t == 11: return kdma(0) + kdma(1) + vdma(0) + zero(0)
        if t == 12: return kdma(2) + vdma(1) + zero(32)
        if t == 13: return kdma(3) + vdma(2) + zero(64)
        if t == 14: return zero(96)
        return []
    def extra_p(t):
        return {12: 12, 13: 20, 14: 28}.get(t, 0)
    acc0 = 128
    g = Gemm(k, 8, 4, 256, S, 4, 8, 16,
             acc=lambda a, b: R4('v', acc0 + (a * 4 + b) * 4),
             aring=lambda s: ('a', 192 + 4 * s),
             bring=lambda st, ks, b: R4('a', bbase[st] + (ks * 4 + b) * 4),
             vA=[None, [vVA + a for a in range(8)], [vTA2 + a for a in range(8)]], lds_base=0,
             srdW=12, sW=sW, wpitch=8192, wdma=wd, sM0=sM0, srdX=16, sX=sX, vX=[vX, vX + 1],
             extra_loads=extra, stage_off=stage_off)
    g.make_sched(*sched)
    fin = mod_finalize(k, 10, 64, 48, 1)
    g.vq += ['m'] * 4
    g.prologue_loads()
    tr_addr_regs(k, vVA, 8, 256, tmp, 1, add=0x10000)
    for a in range(8): k(f'v_add_u32 v{vTA2+a}, 0x10000, v{vVA+a}')
    k(f'v_and_b32 v{tmp}, 15, v1')
    k(f'v_lshrrev_b32 v{tmp+1}, 4, v1')
    k(f'v_xor_b32 v{tmp+2}, v{tmp}, v{tmp+1}')
    k(f'v_lshlrev_b32 v{tmp+3}, 8, v{tmp}')
    for ds in range(4):
        k(f'v_xor_b32 v{tmp+4}, {4*ds}, v{tmp+2}')
        k(f'v_lshl_add_u32 v{vKA+ds}, v{tmp+4}, 4, v{tmp+3}')
    k(f'v_lshlrev_b32 v{tmp+3}, 8, v{tmp+1}')
    k(f'v_add_u32 v{tmp+3}, s{sM0}, v{tmp+3}')
    for n in range(4):
        k(f'v_xor_b32 v{tmp+4}, {4*n}, v{tmp+2}')
        k(f'v_lshl_add_u32 v{vKD+n}, v{tmp+4}, 4, v{tmp+3}')
    k(f'v_lshlrev_b32 v{tmp+4}, 1, v{tmp+1}')
    k(f'v_xor_b32 v{tmp+4}, v{tmp+4}, v{tmp}')
    k(f'v_lshl_add_u32 v{vVD}, v{tmp+4}, 4, v{tmp+3}')
    k(f'v_xor_b32 v{tmp+4}, 8, v{tmp+4}')
    k(f'v_lshl_add_u32 v{vVD+1}, v{tmp+4}, 4, v{tmp+3}')
    k(f's_lshl_b32 s48, s{sHEAD}, 19')
    srd_off(k, 20, 4, 's48', 524288)
    srd_off(k, 24, 6, 's48', 524288)
    srd_off(k, 28, 10, WS_O, 16 * MB)
    k(f's_mov_b32 s{sK}, 0')
    k(f's_mov_b32 s{sV}, 0')
    k.srd(32, 32, 4096 * 2048); k.srd(36, 36, 1024 * 7168); k.srd(60, 60, 3584 * 2048)
    sPF, sST0, sST2, sL1 = 59, 56, 49, 46
    vPF, vD0, vD2, vS1, vD1, vN1, vJ1 = 7, 54, 55, 56, 57, 58, 59
    srd_off(k, 72, 10, WS_WO, 24 * MB)
    k(f's_mov_b32 s{sPF}, 0')
    k(f's_mov_b32 s{sL1}, 0')
    k(f's_mov_b32 s{sST0}, 0x70000000')
    k(f's_mov_b32 s{sST2}, 0x70000000')
    k('s_lshl_b32 s48, s2, 12')
    k(f'v_lshl_add_u32 v{vPF}, v0, 4, s48')
    k(f's_lshl_b32 s42, s2, 2')
    k(f's_add_u32 s42, s42, s{sWAVE}')
    k('s_lshr_b32 s43, s42, 1')
    k('s_and_b32 s45, s42, 1')
    k('s_and_b32 s48, s43, 7')
    k('s_lshl_b32 s48, s48, 1')
    k(f'v_xor_b32 v{tmp+4}, s48, v{tmp}')
    k(f'v_lshlrev_b32 v{tmp+4}, 4, v{tmp+4}')
    k(f'v_lshl_add_u32 v{vD0}, v{tmp+1}, 20, v{tmp+4}')
    k('s_lshl_b32 s48, s45, 22')
    k('s_lshl_b32 s62, s43, 8')
    k('s_add_u32 s48, s48, s62')
    k(f'v_add_u32 v{vD0}, s48, v{vD0}')
    k('s_bfe_u32 s48, s43, 0x20001')
    k('s_lshl_b32 s48, s48, 1')
    k(f'v_and_b32 v{tmp+4}, 7, v1')
    k(f'v_xor_b32 v{tmp+4}, s48, v{tmp+4}')
    k(f'v_lshrrev_b32 v{tmp+5}, 3, v1')
    k(f'v_mul_u32_u24 v{tmp+5}, {3584*128}, v{tmp+5}')
    k(f'v_lshl_add_u32 v{vD2}, v{tmp+4}, 4, v{tmp+5}')
    k(f's_mul_i32 s48, s45, {8*3584*128}')
    k('s_lshl_b32 s62, s43, 7')
    k('s_add_u32 s48, s48, s62')
    k(f's_add_u32 s48, s48, {WS_W2 - WS_WO}')
    k(f'v_add_u32 v{vD2}, s48, v{vD2}')
    k('s_mul_i32 s48, s42, 7168')
    k(f'v_lshl_add_u32 v{vS1}, v1, 4, s48')
    k(f'v_mul_u32_u24 v{tmp+4}, 74, v1')
    k(f'v_lshrrev_b32 v{tmp+4}, 10, v{tmp+4}')
    k(f'v_mul_u32_u24 v{tmp+5}, 14, v{tmp+4}')
    k(f'v_sub_u32 v{vJ1}, v1, v{tmp+5}')
    k(f'v_mul_u32_u24 v{tmp+4}, {1024*224}, v{tmp+4}')
    k(f'v_lshl_add_u32 v{vN1}, v{vJ1}, 4, v{tmp+4}')
    k('s_mul_i32 s48, s42, 224')
    k(f's_add_u32 s48, s48, {WS_W1 - WS_WO}')
    k(f'v_add_u32 v{vN1}, s48, v{vN1}')
    k(f'v_mov_b32 v{vD1}, 0x70000000')
    k(f'v_mov_b32 v60, {1024*224 - 224}')
    k('s_mov_b32 s62, 3584 * 2048')
    k(f's_mov_b32 s{sTH}, 0x{f2u(2.0**thresh_log2):08x}')
    g.stamp_first = 1
    g.emit(loop_sreg=None)
    k.stamp(2)
    fin()
    g.vq.append('st')
    k('s_waitcnt vmcnt(17)')
    k('s_barrier')
    Kfr = lambda kb, ds: aF + 32 + (4 * kb + ds) * 4
    Vfr = lambda db: aF + 4 * db
    def kread(unit, kb, ds, dst=None):
        off = SL((unit >> 1) & 3) + ((unit & 1) * 32 + kb * 16) * 256
        return f'ds_read_b128 {R4("a", Kfr(kb, ds) if dst is None else dst)}, v{vKA+ds} offset:{off}'
    def vread(unit, db, hf):
        off = SL((unit >> 1) & 3) + ((unit & 1) * 32 + hf * 16) * 256
        return f'ds_read_b64_tr_b16 {R2("a", Vfr(db) + 2*hf)}, v{vVA+db} offset:{off}'
    for kb in range(2):
        for ds in range(4): k(kread(0, kb, ds, dst=Vfr(4 * kb + ds)))
    sc = math.log2(math.e) / math.sqrt(128.0)
    k(f'v_mov_b32 v{tmp}, 0x{f2u(sc):08x}'); k(f'v_mov_b32 v{tmp+1}, 0x{f2u(sc):08x}')
    Qf = lambda qb, ds: vQ + (qb * 4 + ds) * 4
    for u in range(4):
        for qb in range(4):
            p = Qf(qb, u)
            for h in range(2):
                A = acc0 + ((2 * u + h) * 4 + qb) * 4
                k(f'v_pk_mul_f32 {R2("v", A)}, {R2("v", A)}, {R2("v", tmp)}')
                k(f'v_pk_mul_f32 {R2("v", A+2)}, {R2("v", A+2)}, {R2("v", tmp)}')
                k(f'v_cvt_pk_bf16_f32 v{p+2*h}, v{A}, v{A+1}')
                k(f'v_cvt_pk_bf16_f32 v{p+2*h+1}, v{A+2}, v{A+3}')
        for sw in ('32', '16'):
            for qb in range(4):
                p = Qf(qb, u)
                k(f'v_permlane{sw}_swap_b32 v{p}, v{p+2}')
                k(f'v_permlane{sw}_swap_b32 v{p+1}, v{p+3}')
    k('s_waitcnt lgkmcnt(0)')
    for kb in range(2):
        for ds in range(4): k(kread(1, kb, ds))
    Sb = lambda N, kb, qb: vS + 32 * (N & 1) + (kb * 4 + qb) * 4
    Pb = lambda N, qb: vP + 16 * (N & 1) + 4 * qb
    Lb = lambda qb: vL + 4 * qb
    NM = lambda qb: vNM + 4 * qb
    for i in range(16): k(f'v_mov_b32 v{vL+i}, 0')
    for i in range(4): k(f'v_mov_b32 v{vONE+i}, 0x3f803f80')
    def qk(N, kb, ds, qb, fr=None, czero=False):
        d = R4('v', Sb(N, kb, qb))
        c = ('0' if czero else R4('v', NM(qb))) if ds == 0 else d
        return f'{MF} {d}, {R4("a", Kfr(kb, ds) if fr is None else fr)}, {R4("v", Qf(qb, ds))}, {c}'
    def pv(N, db, qb):
        d = R4('a', aO + (db * 4 + qb) * 4)
        return f'{MF} {d}, {R4("a", Vfr(db))}, {R4("v", Pb(N, qb))}, {d}'
    def ones(N, qb):
        return f'{MF} {R4("v", Lb(qb))}, {R4("v", vONE)}, {R4("v", Pb(N, qb))}, {R4("v", Lb(qb))}'
    def E(N, i):
        return f'v_exp_f32 v{vE + (i & 7)}, v{Sb(N, i >> 4, (i >> 2) & 3) + (i & 3)}'
    def C(N, j):
        i = 2 * j
        return f'v_cvt_pk_bf16_f32 v{Pb(N, (i >> 2) & 3) + 2 * (i >> 4) + ((i >> 1) & 1)}, v{vE + (i & 7)}, v{vE + (i & 7) + 1}'
    def xmax(D, X):
        for sw in ('16', '32'):
            k(f'v_mov_b32 v{X}, v{D}')
            k('s_nop 1')
            k(f'v_permlane{sw}_swap_b32 v{D}, v{X}')
            k(f'v_max_f32 v{D}, v{D}, v{X}')
    for kb in range(2):
        for ds in range(4):
            for qb in range(4): k(qk(0, kb, ds, qb, fr=Vfr(4 * kb + ds), czero=True))
    k('s_waitcnt lgkmcnt(0)')
    for kb in range(2):
        for ds in range(4):
            for qb in range(4): k(qk(1, kb, ds, qb, czero=True))

    NG = 68
    def build_iter(N):
        T = (N - 1) >> 1
        first_in_pair = (N & 1) == 1
        mf = [pv(N - 1, db, qb) for db in range(8) for qb in range(4)]
        mf += [ones(N - 1, qb) for qb in range(4)]
        mf += [qk(N + 1, kb, ds, qb) for kb in range(2) for ds in range(4) for qb in range(4)]
        first = [[] for _ in range(NG)]; rest = [[] for _ in range(NG)]; cost = [0] * NG
        def put(g, ins, mem=False, c=1):
            (first if mem else rest)[g].append(ins); cost[g] += c
        for i in range(32):
            gp = E0 + 2 * i
            if gp < NG: put(gp, E(N + 1, i), c=2)
            else: put(gp - NG, E(N, i), c=2)
        for j in range(16):
            gp = E0 + 2 * (2 * j + 1) + 1
            if gp < NG: put(gp, C(N + 1, j))
            else: put(gp - NG, C(N, j))
        rd = []
        for db in range(8):
            for hf in range(2):
                gp = 4 * db - lead + 2 * hf
                rd.append((gp % NG, vread(N - 1 if gp >= 0 else N, db, hf), ('V', db) if gp >= 0 else ('Vn', db)))
        for i in range(8):
            gp = 36 + 4 * i - lead
            rd.append((gp, kread(N + 1, i >> 2, i & 3), ('K', i)))
        rd.sort(key=lambda x: x[0])
        for gp, ins, tag in rd: put(gp, ins, mem=True)
        cyc = [(gp - NG, 'V' if tag[0] == 'Vn' else 'old', tag[1]) for gp, _, tag in rd] + \
              [(gp, tag[0], tag[1]) for gp, _, tag in rd]
        waits = {}
        for at, kind, hi in ((0, 'V', 3), (16, 'V', 7), (36, 'K', 3), (52, 'K', 7)):
            lastidx = max(i for i, x in enumerate(cyc) if x[1] == kind and x[2] == hi)
            n_after = sum(1 for i, x in enumerate(cyc) if i > lastidx and x[0] < at)
            assert cyc[lastidx][0] < at
            waits[at] = n_after
        for at in (16, 36, 52): put(at - 1, f's_waitcnt lgkmcnt({waits[at]})')
        put(NG - 1, f's_waitcnt lgkmcnt({waits[0]})')
        BG = (0 - lead) % NG - 2
        if not first_in_pair:
            npf = (2 if (T - 1) % 4 < 3 else 0) + (2 if T % 4 < 3 else 0)
            put(BG, f's_waitcnt vmcnt({12 + npf})'); put(BG, 's_barrier')
            dma = [x[0] for x in kdma(T % 4) if x[0] != 's_nop 0']; gp = BG + 1
        else:
            dma = [x[0] for x in vdma((T + 3) % 4) if x[0] != 's_nop 0']; gp = 0
            if T % 4 == 0:
                dma += [f'buffer_store_dwordx4 a[192:195], v{vD0}, s[72:75], s{sST0} offen',
                        f'buffer_load_dwordx4 a[192:195], v{vPF}, s[32:35], s{sPF} offen']
            if T % 4 == 1:
                dma += [f'buffer_store_dwordx4 a[196:199], v{vD1}, s[72:75], 0 offen',
                        f'buffer_load_dwordx4 a[196:199], v{vS1}, s[36:39], s{sL1} offen',
                        f'v_mov_b32 v{vD1}, v{vN1}',
                        f'v_add_u32 v{vJ1}, 8, v{vJ1}',
                        f'v_add_u32 v{vN1}, {4*1024*224 + 128}, v{vN1}',
                        f'v_cmp_lt_u32 vcc, 13, v{vJ1}',
                        f's_add_u32 s{sL1}, s{sL1}, 1024',
                        f'v_cndmask_b32 v61, 0, v60, vcc',
                        f'v_cndmask_b32 v62, 0, 14, vcc',
                        f'v_add_u32 v{vN1}, v61, v{vN1}',
                        f'v_sub_u32 v{vJ1}, v{vJ1}, v62']
            if T % 4 == 2:
                dma += [f'buffer_store_dwordx4 a[200:203], v{vD2}, s[72:75], s{sST2} offen',
                        f'buffer_load_dwordx4 a[200:203], v{vPF}, s[60:63], s{sPF} offen']
            if T % 4 == 3:
                dma += [f's_lshr_b32 s{sST0}, s{sPF}, 3', f's_lshr_b32 s{sST2}, s{sPF}, 4', f's_add_u32 s{sPF}, s{sPF}, 0x100000']
        for ins in dma:
            while cost[gp] >= 2: gp += 1
            put(gp, ins, mem=ins.startswith('buffer'))
            if not ins.startswith('buffer_load'): gp += 1
        out = []
        for gi in range(NG):
            out.append(mf[gi]); out += first[gi] + rest[gi]
            if cost[gi] > 2: print('gap over', N, gi, cost[gi], first[gi] + rest[gi])
        return out, waits[0], rd

    for gp, ins, tag in build_iter(0)[2]:
        if tag[0] == 'Vn': k(ins)
    D, X = vT, vT + 1
    for qb in range(4):
        regs = [Sb(M, kb, qb) + r for M in (0, 1) for kb in range(2) for r in range(4)]
        k(f'v_max3_f32 v{D}, v{regs[0]}, v{regs[1]}, v{regs[2]}')
        for i in range(3, 15, 2): k(f'v_max3_f32 v{D}, v{D}, v{regs[i]}, v{regs[i+1]}')
        k(f'v_max_f32 v{D}, v{D}, v{regs[15]}')
        xmax(D, X)
        k(f'v_sub_f32 v{NM(qb)}, 0x{f2u(-float(bias)):08x}, v{D}')
        for r in range(1, 4): k(f'v_mov_b32 v{NM(qb)+r}, v{NM(qb)}')
        for r in regs[::2]: k(f'v_pk_add_f32 {R2("v", r)}, {R2("v", r)}, {R2("v", NM(qb))}')
    for i in range(0, 32, 2):
        k(E(0, i)); k(E(0, i + 1))
        if i: k(C(0, (i >> 1) - 1))
    k('s_nop 0')
    k(C(0, 15))
    for i in range(32):
        if E0 + 2 * i < NG: k(E(1, i)); k('s_nop 0')
        if i & 1 and E0 + 2 * i + 1 < NG: k(C(1, i >> 1))
    k(f's_mov_b32 s{sCNT}, 8')
    k(f's_waitcnt lgkmcnt({build_iter(1)[1]})')
    k.stamp(3)
    Lloop = k.label('loop'); Ltail = k.label('tail'); Lslow = k.label('slow'); Lepi = k.label('epi')
    k(f'{Lloop}:')
    for N in range(1, 9):
        ins, w0, _ = build_iter(N)
        cnt = 0
        for idx, x in enumerate(ins):
            if x.startswith(MF):
                if N == 7 and cnt == 34: k(f's_sub_u32 s{sCNT}, s{sCNT}, 1')
                if N == 7 and cnt == 35: k(f's_cmp_eq_u32 s{sCNT}, 0')
                if N == 7 and cnt == 36:
                    k(f's_cbranch_scc1 {Ltail}')
                    tail_rest = ins[idx:]
                cnt += 1
            if N == 7 and cnt == 36: assert not (x.startswith('s_') and not x.startswith('s_waitcnt')), x
            k(x)
    k(f's_branch {Lloop}')
    k(f'{Ltail}:')
    k.stamp(4)
    N = 7
    k(f'buffer_store_dwordx4 a[192:195], v{vD0}, s[72:75], s{sST0} offen')
    for db in range(8):
        for hf in range(2): k(vread(N, db, hf))
    for x in tail_rest:
        if x.startswith('v_exp') and any(x == E(N, i) for i in range(32)): k(x); k('s_nop 0')
        elif x.startswith('v_cvt') and any(x == C(N, j) for j in range(16)): k(x)
    k('s_waitcnt lgkmcnt(0)')
    k('s_nop 0')
    for qb in range(4): k(ones(N, qb))
    for db in range(8):
        for qb in range(4): k(pv(N, db, qb))
    k(f'v_max3_f32 v{vT}, v{Lb(0)}, v{Lb(1)}, v{Lb(2)}')
    k(f'v_max_f32 v{vT}, v{vT}, v{Lb(3)}')
    k(f'v_cmp_nge_f32 vcc, s{sTH}, v{vT}')
    k(f's_cbranch_vccnz {Lslow}')
    k(f'{Lepi}:')
    RC = vE
    for qb in range(4):
        k(f'v_rcp_f32 v{RC+2*qb}, v{Lb(qb)}')
        k('s_nop 0')
        k(f'v_mov_b32 v{RC+2*qb+1}, v{RC+2*qb}')
    k('v_lshlrev_b32 v6, 4, v1')
    k(f's_lshl_b32 s48, s{sHEAD}, 9')
    k(f's_add_u32 s48, s48, s{sMB0}')
    k('s_lshl_b32 s48, s48, 10')
    n = 0
    for u in range(4):
        for qb in range(4):
            X = vS + (n % 4) * 8; D = vP + (n % 4) * 4; n += 1
            for h in range(2):
                a = aO + ((2 * u + h) * 4 + qb) * 4
                for r in range(4): k(f'v_accvgpr_read_b32 v{X+4*h+r}, a{a+r}')
            for j in range(4): k(f'v_pk_mul_f32 {R2("v", X+2*j)}, {R2("v", X+2*j)}, {R2("v", RC+2*qb)}')
            for j in range(4): k(f'v_cvt_pk_bf16_f32 v{D+j}, v{X+2*j}, v{X+2*j+1}')
            k(f'buffer_store_dwordx4 {R4("v", D)}, v6, s[28:31], s48 offen offset:{qb*1024}')
        if u < 3: k('s_add_u32 s48, s48, 131072')
    k.stamp_out(2)
    k(f'{Lend}:')
    k('s_endpgm')

    k(f'{Lslow}:')
    k('s_waitcnt vmcnt(0)')
    MX = vL + 16
    vKG = vL + 20
    vVP = vL + 22
    vVG = vL + 30
    k(f'v_and_b32 v{tmp}, 15, v1')
    k(f'v_lshrrev_b32 v{tmp+1}, 4, v1')
    k(f'v_lshlrev_b32 v{vKG}, 8, v{tmp}')
    k(f'v_lshl_add_u32 v{vKG}, v{tmp+1}, 4, v{vKG}')
    k(f'v_add_u32 v{vKG+1}, 4096, v{vKG}')
    k(f's_lshl_b32 s48, s{sWAVE}, 13')
    k(f's_add_u32 s48, s48, {SL(8)}')
    k(f's_sub_u32 s49, s48, 0x10000')
    for db in range(8): k(f'v_add_u32 v{vVP+db}, s49, v{vVA+db}')
    for j in range(2): k(f'v_subrev_u32 v{vVG+j}, s{sM0}, v{vVD+j}')
    for qb in range(4): k(f'v_mov_b32 v{MX+qb}, 0xff7fffff')
    for i in range(16): k(f'v_mov_b32 v{vNM+i}, 0')
    k(f's_mov_b32 s{sFIRST}, 0')
    Lp = k.label('spass'); Lu = k.label('sunit'); Lp1 = k.label('sp1'); Lnx = k.label('snext'); Lnov = k.label('snov')
    k(f'{Lp}:')
    k(f's_mov_b32 s{sK}, 0')
    k(f'{Lu}:')
    for kb in range(2):
        for ds in range(4):
            k(f'buffer_load_dwordx4 {R4("a", Kfr(kb, ds))}, v{vKG+kb}, s[20:23], s{sK} offen offset:{ds*64}')
    k(f's_cmp_eq_u32 s{sFIRST}, 0')
    k(f's_cbranch_scc1 {Lnov}')
    for half in range(2):
        k(f's_add_u32 m0, s48, {half*4096}')
        k(f's_add_u32 s49, s{sK}, {half*4096}')
        for n in range(4):
            k(f'buffer_load_dwordx4 v{vVG+(n&1)}, s[24:27], s49 offen offset:{n*1024} lds')
    k(f'{Lnov}:')
    k('s_waitcnt vmcnt(0)')
    for kb in range(2):
        for ds in range(4):
            for qb in range(4): k(qk(0, kb, ds, qb))
    k('s_nop 7')
    k(f's_cmp_eq_u32 s{sFIRST}, 0')
    k(f's_cbranch_scc0 {Lp1}')
    for qb in range(4):
        regs = [Sb(0, kb, qb) + r for kb in range(2) for r in range(4)]
        for i in range(0, 8, 2): k(f'v_max3_f32 v{MX+qb}, v{MX+qb}, v{regs[i]}, v{regs[i+1]}')
    k(f's_branch {Lnx}')
    k(f'{Lp1}:')
    for db in range(8):
        for hf in range(2):
            k(f'ds_read_b64_tr_b16 {R2("a", Vfr(db) + 2*hf)}, v{vVP+db} offset:{hf*4096}')
    for i in range(0, 32, 2):
        k(E(0, i)); k(E(0, i + 1)); k('s_nop 0'); k(C(0, i >> 1))
    k('s_waitcnt lgkmcnt(0)')
    k('s_nop 0')
    for qb in range(4): k(ones(0, qb))
    for db in range(8):
        for qb in range(4): k(pv(0, db, qb))
    k(f'{Lnx}:')
    k(f's_add_u32 s{sK}, s{sK}, 8192')
    k(f's_cmp_lt_u32 s{sK}, 524288')
    k(f's_cbranch_scc1 {Lu}')
    k('s_nop 7')
    k(f's_cmp_eq_u32 s{sFIRST}, 0')
    k(f's_cbranch_scc0 {Lepi}')
    for qb in range(4):
        xmax(MX + qb, vT)
        for r in range(4): k(f'v_sub_f32 v{NM(qb)+r}, 0, v{MX+qb}')
    for i in range(16): k(f'v_mov_b32 v{vL+i}, 0')
    for i in range(128): k(f'v_accvgpr_write_b32 a{aO+i}, 0')
    k(f's_mov_b32 s{sFIRST}, 1')
    k(f's_branch {Lp}')
    k.noreplay = {Lepi, Lp}
    return k
```

```python
from gen_small import *
WS_MP = 65536

def R4(kind, i): return f'{kind}[{i}:{i+3}]'
def R2(kind, i): return f'{kind}[{i}:{i+1}]'

def gemv_body(k, s_unit, nunits_x, colgrp0, nthreads, Lend):
    nsub = nthreads // 256
    k(f's_and_b32 s20, s{s_unit}, 7')
    k(f's_lshr_b32 s21, s{s_unit}, 3')
    k('s_and_b32 s22, s21, 3')
    k('s_lshr_b32 s21, s21, 2')
    k(f's_mul_i32 s20, s20, {nunits_x // 4}')
    k('s_add_u32 s20, s20, s21')
    if nsub == 2: k('s_lshl_b32 s20, s20, 1')
    k(f's_add_u32 s20, s20, {colgrp0}')
    k('v_and_b32 v5, 255, v0')
    k('v_lshrrev_b32 v1, 2, v5')
    k('v_and_b32 v2, 3, v0')
    k('s_mov_b32 s23, 12288')
    k('v_mul_lo_u32 v3, v1, s23')
    k('v_lshl_add_u32 v3, v2, 4, v3')
    if nsub == 2:
        k('v_lshrrev_b32 v6, 8, v0')
        k('v_lshl_add_u32 v3, v6, 6, v3')
    k('v_lshlrev_b32 v4, 1, v1')
    k(f's_mul_i32 s24, s22, {256*12288}')
    k('s_lshl_b32 s21, s20, 6')
    k('s_add_u32 s21, s21, s24')
    k('s_lshl_b32 s24, s22, 9')
    k('s_waitcnt lgkmcnt(0)')
    k.srd(12, 6, 1024 * 6144 * 2)
    k.srd(16, 4, 2048)
    for p in range(4):
        k(f'buffer_load_ushort v{40+p}, v4, s[16:19], s24 offen offset:{p*128}')
    for p in range(4):
        k(f'buffer_load_dwordx4 v[{16+4*p}:{16+4*p+3}], v3, s[12:15], s21 offen')
        if p < 3: k(f's_add_u32 s21, s21, {64*12288}')

def gemv_finish(k, nthreads, Lend, npf=0):
    k('s_mov_b32 s23, 0xbfb8aa3b')
    k(f's_waitcnt vmcnt({4+npf})')
    for p in range(4): k(f'v_lshlrev_b32 v{40+p}, 16, v{40+p}')
    for p in range(4): k(f'v_mul_f32 v{44+p}, s23, v{40+p}')
    for p in range(4): k(f'v_exp_f32 v{44+p}, v{44+p}')
    for p in range(4): k(f'v_add_f32 v{44+p}, 1.0, v{44+p}')
    for p in range(4): k(f'v_rcp_f32 v{44+p}, v{44+p}')
    for p in range(4): k(f'v_mul_f32 v{40+p}, v{40+p}, v{44+p}')
    round_pair(k, 40, 41, 44); round_pair(k, 42, 43, 45)
    for p in range(4):
        k(f's_waitcnt vmcnt({3-p+npf})')
        for j in range(4):
            w = 16 + 4 * p + j
            k(f'v_lshlrev_b32 v46, 16, v{w}')
            k(f'v_and_b32 v47, 0xffff0000, v{w}')
            op = 'v_mul_f32' if p == 0 else 'v_fmac_f32'
            k(f'{op} v{8+2*j}, v46, v{40+p}')
            k(f'{op} v{9+2*j}, v47, v{40+p}')
    for sh in (4, 8):
        for j in range(8):
            k(f'v_add_f32_dpp v{8+j}, v{8+j}, v{8+j} row_ror:{sh} row_mask:0xf bank_mask:0xf')
    for j in range(0, 8, 2): k(f'v_permlane16_swap_b32 v{8+j}, v{9+j}')
    for j in range(0, 8, 2): k(f'v_add_f32 v{8+j}, v{8+j}, v{9+j}')
    k('s_nop 0')
    k('v_permlane32_swap_b32 v8, v10')
    k('v_permlane32_swap_b32 v12, v14')
    k('v_add_f32 v8, v8, v10')
    k('v_add_f32 v9, v12, v14')
    k('v_and_b32 v1, 63, v0')
    k('v_lshrrev_b32 v3, 4, v1')
    k('v_lshl_add_u32 v3, v2, 3, v3')
    k('v_lshrrev_b32 v4, 6, v0')
    k('v_lshl_add_u32 v3, v4, 5, v3')
    k('v_lshlrev_b32 v3, 2, v3')
    k('ds_write2_b32 v3, v8, v9 offset0:0 offset1:4')
    k('s_waitcnt lgkmcnt(0)')
    k('s_barrier')
    ncol = 32 * (nthreads // 256)
    k(f'v_cmp_gt_u32 vcc, {ncol}, v0')
    k('s_and_saveexec_b64 s[24:25], vcc')
    k(f's_cbranch_execz {Lend}')
    k('v_and_b32 v1, 31, v0')
    k('v_lshrrev_b32 v2, 5, v0')
    k('v_lshlrev_b32 v3, 9, v2')
    k('v_lshl_add_u32 v3, v1, 2, v3')
    k('ds_read2_b32 v[8:9], v3 offset0:0 offset1:32')
    k('ds_read2_b32 v[10:11], v3 offset0:64 offset1:96')
    srd_off(k, 12, 8, WS_MP, 4 * 6144 * 4)
    k('s_mul_i32 s22, s22, 24576')
    k('s_lshl_b32 s21, s20, 7')
    k('s_add_u32 s21, s21, s22')
    k('v_lshlrev_b32 v4, 2, v0')
    k('s_waitcnt lgkmcnt(0)')
    k('v_add_f32 v8, v8, v9')
    k('v_add_f32 v10, v10, v11')
    k('v_add_f32 v8, v8, v10')
    k('buffer_store_dword v8, v4, s[12:15], s21 offen')

def gen_mod(pf=True):
    k = Kern('mod_kernel', (256, 1, 1), (256, 1, 1), 1024, vgpr=64, sgpr=40)
    Lend = k.label('end')
    k('s_cmp_ge_u32 s2, 256')
    k(f's_cbranch_scc1 {Lend}')
    k.stamp(0)
    k(f's_load_dwordx4 s[4:7], s[0:1], {A_C}')
    k(f's_load_dwordx2 s[8:9], s[0:1], {A_WS}')
    if pf: k(f's_load_dwordx2 s[28:29], s[0:1], {A_WQ}')
    gemv_body(k, 2, 32, 0, 256, Lend)
    npf = 0
    if pf:
        k.srd(28, 28, 1024 * 8192)
        k('v_lshrrev_b32 v6, 6, v0')
        k('v_and_b32 v7, 63, v0')
        k('v_lshlrev_b32 v6, 13, v6')
        k('v_lshl_add_u32 v6, v7, 4, v6')
        k('s_and_b32 s26, s2, 7')
        k('s_lshl_b32 s26, s26, 10')
        k('s_lshr_b32 s27, s2, 3')
        k('s_lshl_b32 s27, s27, 18')
        k('s_add_u32 s26, s26, s27')
        for j in range(8):
            k(f'buffer_load_dwordx4 v[48:51], v6, s[28:31], s26 offen ; pf')
            if j < 7: k('s_add_u32 s26, s26, 32768')
        npf = 8
    gemv_finish(k, 256, Lend, npf)
    k.stamp_out(0)
    k(f'{Lend}:')
    k('s_endpgm')
    return k

def store_porder(k, X_packed, srd, wave, lane):
    P = X_packed
    k(f'v_lshrrev_b32 v5, 2, v{lane}')
    k('v_mul_u32_u24 v5, 528, v5')
    k(f'v_and_b32 v6, 1, v{lane}')
    k('v_lshl_add_u32 v5, v6, 8, v5')
    k(f'v_bfe_u32 v6, v{lane}, 1, 1')
    k('v_lshl_add_u32 v5, v6, 3, v5')
    k(f'v_lshl_add_u32 v5, v{wave}, 4, v5')
    k(f'ds_write_b64 v5, {R2("v", P)}')
    k(f'ds_write_b64 v5, {R2("v", P+2)} offset:128')
    k(f'ds_write_b64 v5, {R2("v", P+4)} offset:{16*528}')
    k(f'ds_write_b64 v5, {R2("v", P+6)} offset:{16*528+128}')
    k('v_lshrrev_b32 v6, 5, v0')
    k('v_and_b32 v7, 31, v0')
    k('v_mul_u32_u24 v5, 528, v6')
    k('v_lshl_add_u32 v5, v7, 4, v5')
    k('v_lshlrev_b32 v6, 17, v6')
    k('v_bfe_u32 v7, v0, 3, 2')
    k('v_lshl_add_u32 v6, v7, 8, v6')
    k('v_and_b32 v7, 7, v0')
    k('v_lshl_add_u32 v6, v7, 4, v6')
    k('s_lshr_b32 s20, s2, 1')
    k('s_lshl_b32 s20, s20, 10')
    k('s_and_b32 s21, s2, 1')
    k('s_lshl_b32 s21, s21, 7')
    k('s_add_u32 s20, s20, s21')
    k(f's_add_u32 s21, s20, {16*131072}')
    k('s_waitcnt lgkmcnt(0)')
    k('s_barrier')
    k(f'ds_read_b128 {R4("v", P)}, v5')
    k(f'ds_read_b128 {R4("v", P+4)}, v5 offset:{16*528}')
    k('s_waitcnt lgkmcnt(1)')
    k(f'buffer_store_dwordx4 {R4("v", P)}, v6, s[{srd}:{srd+3}], s20 offen')
    k('s_waitcnt lgkmcnt(0)')
    k(f'buffer_store_dwordx4 {R4("v", P+4)}, v6, s[{srd}:{srd+3}], s21 offen')

def gen_ln1():
    MODL = 17408
    k = Kern('ln1_kernel', (512, 1, 1), (512, 1, 1), MODL + 8192, vgpr=96, sgpr=40)
    Lend = k.label('end'); Lg = k.label('gemv')
    k('s_cmp_ge_u32 s2, 256')
    k(f's_cbranch_scc1 {Lg}')
    k.stamp(0)
    k(f's_load_dwordx2 s[4:5], s[0:1], {A_X}')
    k(f's_load_dwordx2 s[8:9], s[0:1], {A_WS}')
    k('v_and_b32 v1, 63, v0')
    k('v_lshrrev_b32 v2, 6, v0')
    k('v_lshlrev_b32 v3, 4, v1')
    k('v_lshl_add_u32 v4, v2, 11, v3')
    k('v_lshlrev_b32 v7, 4, v0')
    k('s_lshl_b32 s20, s2, 14')
    k('s_waitcnt lgkmcnt(0)')
    k.srd(12, 4, 4 * MB)
    srd_off(k, 16, 8, WS_MP, 4 * 6144 * 4)
    k('buffer_load_dwordx4 v[8:11], v4, s[12:15], s20 offen')
    k('buffer_load_dwordx4 v[12:15], v4, s[12:15], s20 offen offset:1024')
    for p in range(4):
        k(f's_mov_b32 s21, {p*24576}')
        k(f'buffer_load_dwordx4 {R4("v", 16+4*p)}, v7, s[16:19], s21 offen')
    srd_off(k, 24, 8, WS_H, 4 * MB)
    k('s_mov_b32 s22, 0x3a800000')
    k('s_waitcnt vmcnt(0)')
    for p in range(1, 4):
        for h in range(2): k(f'v_pk_add_f32 {R2("v", 16+2*h)}, {R2("v", 16+2*h)}, {R2("v", 16+4*p+2*h)}')
    round_pair(k, 16, 17, 20); round_pair(k, 18, 19, 21)
    k('v_cmp_lt_u32 vcc, 255, v0')
    k('s_nop 1')
    k('v_cndmask_b32 v22, 0, 1.0, vcc')
    for j in range(4): k(f'v_add_f32 v{16+j}, v{16+j}, v22')
    round_pair(k, 16, 17, 20); round_pair(k, 18, 19, 21)
    k(f'ds_write_b128 v7, v[16:19] offset:{MODL}')
    X = 32
    unpack8(k, X, 8); unpack8(k, X + 8, 12)
    ln_core(k, X, 80, 22)
    k('s_waitcnt lgkmcnt(0)')
    k('s_barrier')
    k('v_lshlrev_b32 v5, 5, v1')
    for sec, base in ((0, 48), (1, 64)):
        for h in range(2):
            for q in range(2):
                k(f'ds_read_b128 {R4("v", base + 8*h + 4*q)}, v5 offset:{MODL + sec*4096 + h*2048 + q*16}')
    k('s_waitcnt lgkmcnt(0)')
    for j in range(0, 16, 2):
        k(f'v_pk_mul_f32 {R2("v", X+j)}, {R2("v", X+j)}, {R2("v", 64+j)}')
        round_pair(k, X + j, X + j + 1, 82)
    for j in range(0, 16, 2):
        k(f'v_pk_add_f32 {R2("v", X+j)}, {R2("v", X+j)}, {R2("v", 48+j)}')
    for j in range(8): k(f'v_cvt_pk_bf16_f32 v{8+j}, v{X+2*j}, v{X+2*j+1}')
    store_porder(k, 8, 24, 2, 1)
    k.stamp_out(1)
    k('s_endpgm')
    k(f'{Lg}:')
    k('s_cmp_ge_u32 s2, 512')
    k(f's_cbranch_scc1 {Lend}')
    k(f's_load_dwordx4 s[4:7], s[0:1], {A_C}')
    k(f's_load_dwordx2 s[8:9], s[0:1], {A_WS}')
    k('s_sub_u32 s30, s2, 256')
    gemv_body(k, 30, 32, 64, 512, Lend)
    gemv_finish(k, 512, Lend)
    k(f'{Lend}:')
    k('s_endpgm')
    return k

def mod_finalize(k, s_ws, sbase, vbase, lane):
    srd_off(k, sbase, s_ws, 0, WS_MP + 4 * 6144 * 4)
    k(f'v_and_b32 v{vbase}, 15, v{lane}')
    k(f'v_lshlrev_b32 v{vbase}, 2, v{vbase}')
    k(f's_lshl_b32 s{sbase+4}, s2, 6')
    k(f's_add_u32 s{sbase+4}, s{sbase+4}, 8192')
    for p in range(4):
        k(f's_add_u32 s{sbase+5}, s{sbase+4}, {WS_MP + p*24576}')
        k(f'buffer_load_dword v{vbase+1+p}, v{vbase}, s[{sbase}:{sbase+3}], s{sbase+5} offen')
    def fin():
        a = vbase + 1
        k(f'v_add_f32 v{a}, v{a}, v{a+1}')
        k(f'v_add_f32 v{a+2}, v{a+2}, v{a+3}')
        k(f'v_add_f32 v{a}, v{a}, v{a+2}')
        round_pair(k, a, a + 1, a + 2)
        k(f's_lshr_b32 s{sbase+5}, s2, 6')
        k(f's_cmp_eq_u32 s{sbase+5}, 2')
        k(f's_cselect_b32 s{sbase+5}, 1.0, 0')
        k(f'v_add_f32 v{a}, s{sbase+5}, v{a}')
        round_pair(k, a, a + 1, a + 2)
        k(f'buffer_store_dword v{a}, v{vbase}, s[{sbase}:{sbase+3}], s{sbase+4} offen')
    return fin

def wave_sum2(k, v, t):
    wave_sum(k, v, t)

def ln_fast(k, X, T, sc):
    t0, t2 = T, T + 2
    k(f'v_pk_add_f32 {R2("v", t0)}, {R2("v", X)}, {R2("v", X+2)}')
    for j in range(4, 16, 2): k(f'v_pk_add_f32 {R2("v", t0)}, {R2("v", t0)}, {R2("v", X+j)}')
    k(f'v_add_f32 v{t0}, v{t0}, v{t0+1}')
    wave_sum(k, t0, t2)
    k(f'v_mul_f32 v{t0}, s{sc+1}, v{t0}')
    k(f'v_mov_b32 v{t0+1}, v{t0}')
    for j in range(0, 16, 2): k(f'v_pk_add_f32 {R2("v", X+j)}, {R2("v", X+j)}, {R2("v", t0)}')
    k(f'v_pk_mul_f32 {R2("v", t0)}, {R2("v", X)}, {R2("v", X)}')
    for j in range(2, 16, 2): k(f'v_pk_fma_f32 {R2("v", t0)}, {R2("v", X+j)}, {R2("v", X+j)}, {R2("v", t0)}')
    k(f'v_add_f32 v{t0}, v{t0}, v{t0+1}')
    wave_sum(k, t0, t2)
    k(f'v_mov_b32 v{t2}, 0x3727c5ac')
    k(f'v_fmac_f32 v{t2}, s{sc}, v{t0}')
    k(f'v_rsq_f32 v{t0}, v{t2}')
    k('s_nop 0')
    k(f'v_mov_b32 v{t0+1}, v{t0}')

def gen_ln2():
    k = Kern('ln2_kernel', (256, 1, 1), (512, 1, 1), 17408, vgpr=128, sgpr=40)
    Lend = k.label('end')
    k('s_cmp_ge_u32 s2, 256')
    k(f's_cbranch_scc1 {Lend}')
    k.stamp(0)
    k(f's_load_dwordx2 s[4:5], s[0:1], {A_X}')
    k(f's_load_dwordx2 s[8:9], s[0:1], {A_WS}')
    k('v_and_b32 v1, 63, v0')
    k('v_lshrrev_b32 v2, 6, v0')
    k('v_lshlrev_b32 v3, 4, v1')
    k('v_lshl_add_u32 v4, v2, 11, v3')
    k('v_lshlrev_b32 v3, 5, v1')
    k('s_lshl_b32 s20, s2, 14')
    k(f's_add_u32 s23, s20, {4*MB}')
    k('s_waitcnt lgkmcnt(0)')
    srd_off(k, 28, 8, WS_P, 8 * MB)
    k('buffer_load_dwordx4 v[16:19], v4, s[28:31], s20 offen')
    k('buffer_load_dwordx4 v[20:23], v4, s[28:31], s20 offen offset:1024')
    k('buffer_load_dwordx4 v[24:27], v4, s[28:31], s23 offen')
    k('buffer_load_dwordx4 v[28:31], v4, s[28:31], s23 offen offset:1024')
    k.srd(12, 4, 4 * MB)
    k('buffer_load_dwordx4 v[8:11], v4, s[12:15], s20 offen')
    k('buffer_load_dwordx4 v[12:15], v4, s[12:15], s20 offen offset:1024')
    srd_off(k, 16, 8, WS_MOD32, 24576)
    GA, SB, CB = 80, 96, 112
    for base, sec in ((GA, 2), (CB, 4), (SB, 3)):
        k(f's_mov_b32 s21, {sec*4096}')
        for h in range(2):
            for q in range(2):
                k(f'buffer_load_dwordx4 {R4("v", base + 8*h + 4*q)}, v3, s[16:19], s21 offen offset:{h*2048 + q*16}')
    srd_off(k, 24, 8, WS_Y, 4 * MB)
    srd_off(k, 32, 8, WS_X1, 4 * MB)
    k('s_mov_b32 s36, 0x3a800000')
    k('s_mov_b32 s37, 0xba800000')
    X = 32
    k('s_waitcnt vmcnt(14)')
    unpack8(k, 48, 16); unpack8(k, 56, 20); unpack8(k, 64, 24); unpack8(k, 72, 28)
    for j in range(0, 16, 2): k(f'v_pk_add_f32 {R2("v", 48+j)}, {R2("v", 48+j)}, {R2("v", 64+j)}')
    k('s_waitcnt vmcnt(12)')
    unpack8(k, X, 8); unpack8(k, X + 8, 12)
    k('s_waitcnt vmcnt(8)')
    for j in range(0, 16, 2): k(f'v_pk_fma_f32 {R2("v", X+j)}, {R2("v", 48+j)}, {R2("v", GA+j)}, {R2("v", X+j)}')
    for j in range(8): k(f'v_cvt_pk_bf16_f32 v{8+j}, v{X+2*j}, v{X+2*j+1}')
    k('buffer_store_dwordx4 v[8:11], v4, s[32:35], s20 offen')
    k('buffer_store_dwordx4 v[12:15], v4, s[32:35], s20 offen offset:1024')
    T = 16
    ln_fast(k, X, T, 36)
    k('s_waitcnt vmcnt(2)')
    for j in range(0, 16, 2): k(f'v_pk_mul_f32 {R2("v", X+j)}, {R2("v", X+j)}, {R2("v", T)}')
    for j in range(0, 16, 2): k(f'v_pk_fma_f32 {R2("v", X+j)}, {R2("v", X+j)}, {R2("v", CB+j)}, {R2("v", SB+j)}')
    ln_fast(k, X, T, 36)
    for j in range(0, 16, 2): k(f'v_pk_mul_f32 {R2("v", X+j)}, {R2("v", X+j)}, {R2("v", T)}')
    for j in range(8): k(f'v_cvt_pk_bf16_f32 v{24+j}, v{X+2*j}, v{X+2*j+1}')
    store_porder(k, 24, 24, 2, 1)
    k.stamp_out(4)
    k(f'{Lend}:')
    k('s_endpgm')
    return k
```

```python
from asmgen import *
from gen_small import *

def R4(kind, i): return f'{kind}[{i}:{i+3}]'
def R2(kind, i): return f'{kind}[{i}:{i+1}]'
MF = 'v_mfma_f32_16x16x32_bf16'

class Gemm:
    def __init__(self, k, NA, NB, LP, S, PD, RA, ntiles, acc, aring, bring, vA, lds_base,
                 srdW, sW, wpitch, wdma, sM0, srdX, sX, vX, cinit=None, wait_every=1, extra_loads=None, stage_off=None, extra_pending=None, aimm=0, tile_bytes=None):
        self.__dict__.update(locals())
        self.tile_bytes = tile_bytes or 64 * LP
        self.nops = len(wdma) + 2 * NB
        if stage_off is None: self.stage_off = [lds_base + i * self.tile_bytes for i in range(S)]
        self.vq = []
        self.make_sched(S - 1, [])

    def loads(self, t):
        st = t % self.S
        bl = []
        for ks in range(2):
            for b in range(self.NB):
                bl.append([f'buffer_load_dwordx4 {self.bring(st, ks, b)}, v{self.vX[ks]}, s[{self.srdX}:{self.srdX+3}], s{self.sX} offen offset:{b*1024}'])
        g = [[f's_add_u32 m0, s{self.sM0}, {self.stage_off[st]}'], bl[0]]
        for (voff, ioff) in self.wdma:
            g.append([f'buffer_load_dwordx4 v{voff}, s[{self.srdW}:{self.srdW+3}], s{self.sW} offen offset:{ioff} lds'])
        dbg = getattr(self, 'dbg', None) or ''
        g.append([f's_add_u32 s{self.sW}, s{self.sW}, {64 * self.wpitch}'] + ([f's_sub_u32 s{self.sW}, s{self.sW}, {4 * 64 * self.wpitch}'] if 'wrapW' in dbg and t % 4 == 3 else []))
        g += bl[1:]
        if t >= self.S - 1:
            if 'noW' in dbg: g = [x for x in g if not x[0].endswith(' lds')]
            if 'noX' in dbg: g = [x for x in g if not (x[0].startswith('buffer') and not x[0].endswith(' lds'))]
            if 'noX' in dbg and 'noW' not in dbg: g.insert(1, ['s_nop 0'])
        g.append([f's_add_u32 s{self.sX}, s{self.sX}, 262144'] + ([f's_sub_u32 s{self.sX}, s{self.sX}, {4 * 262144}'] if 'wrapX' in dbg and t % 4 == 3 else []))
        return g

    def reads(self, t, f):
        ks, a = divmod(f, self.NA)
        slot = (t * 2 * self.NA + f) % self.RA
        kind, base = self.aring(slot)
        r = []
        for hf in range(2):
            off = self.stage_off[t % self.S] + (32 * ks + 16 * hf) * self.LP
            off += a * self.aimm
            va = self.vA[off >> 16][a]
            r.append(f'ds_read_b64_tr_b16 {R2(kind, base + 2 * hf)}, v{va} offset:{off & 0xffff}')
        if 'nods' in (getattr(self, 'dbg', None) or '') and t > 0: r = ['s_nop 0', 's_nop 0']
        return r

    def mfmas(self, t, f):
        ks, a = divmod(f, self.NA)
        slot = (t * 2 * self.NA + f) % self.RA
        kind, base = self.aring(slot)
        r = []
        for b in range(self.NB):
            c = self.acc(a, b)
            if t == 0 and ks == 0:
                c = self.cinit(a, b) if self.cinit else '0'
            r.append(f'{MF} {self.acc(a, b)}, {R4(kind, base)}, {self.bring(t % self.S, ks, b)}, {c}')
        return r

    def _track(self, ins, tag):
        if ins.startswith('buffer_'): self.vq.append(tag)

    def prologue_loads(self, tiles=None):
        for t in (self.sched.get(-2, []) if tiles is None else tiles):
            for g in self.loads(t):
                for i in g:
                    self.k(i); self._track(i, t)

    def pending(self, tile):
        idx = max(i for i, x in enumerate(self.vq) if x == tile)
        return len(self.vq) - 1 - idx

    def body(self, t, pending_after=None, ldtiles=None):
        k = self.k; NA2 = 2 * self.NA; PD = self.PD; nt = self.ntiles
        has_next = t + 1 < nt
        if has_next:
            dbg = getattr(self, 'dbg', None) or ''
            if pending_after is None: pending_after = self.pending(t + 1) if (t + 1) in self.vq else 63
            assert pending_after <= 63
            k(f's_waitcnt vmcnt({pending_after})')
            if not ('nobar' in dbg and t >= 0): k('s_barrier')
            if t == -1 and getattr(self, 'stamp_first', None): k.stamp(self.stamp_first)
        ld = []
        for tau in (self.sched.get(t, []) if ldtiles is None else ldtiles):
            assert tau < self.S - 1 + max(t, 0) + 1 and (tau < self.S or tau - self.S + 1 <= t), (t, tau)
            ld += [(x, tau) for x in self.loads(tau)]
        if self.extra_loads: ld += [(x, 'x') for x in self.extra_loads(t)]
        groups = []
        for i in range(NA2):
            if i < PD: groups.append((t, NA2 - PD + i) if t >= 0 else None)
            else: groups.append((t + 1, i - PD) if has_next else None)
        queue = [(t, NA2 - PD + i) for i in range(PD)] if t >= 0 else []
        queue = queue[getattr(self, '_carry', 0):] if t >= 0 else []
        nfree = sum(self.NB - 1 if (g and has_next) else (self.NB if g else 0) for g in groups)
        li = 0; seen = 0
        for i, g in enumerate(groups):
            rd = self.reads(t + 1, i) if has_next else []
            if g is None:
                for r in rd: k(r)
                if rd: queue.append((t + 1, i))
                continue
            if g in queue:
                idx = queue.index(g)
                upto = min(idx + self.wait_every - 1, len(queue) - 1)
                remain = len(queue) - 1 - upto
                k(f's_waitcnt lgkmcnt({2 * remain})')
                queue = queue[upto + 1:]
            mf = self.mfmas(*g)
            for b, m in enumerate(mf):
                k(m)
                if b == 0 and rd:
                    for r in rd: k(r)
                    queue.append((t + 1, i))
                else:
                    seen += 1
                    want = (seen * len(ld) + nfree - 1) // nfree if nfree else 0
                    while li < min(want, len(ld)):
                        for x in ld[li][0]: k(x); self._track(x, ld[li][1])
                        li += 1
        while li < len(ld):
            for x in ld[li][0]:
                k(x); self._track(x, ld[li][1])
            li += 1
        self._carry = PD - len(queue) if has_next else 0

    def make_sched(self, first, ramp):
        S, nt = self.S, self.ntiles
        sched = {-2: list(range(first))}
        nxt = first
        t = -1
        while nxt < nt:
            n = ramp[t + 1] if t + 1 < len(ramp) else 1
            lim = max(t, 0) + S - 1 if t >= 0 else S - 2
            tl = [x for x in range(nxt, min(nxt + n, lim + 1, nt))]
            sched[t] = tl; nxt += len(tl); t += 1
        self.sched = sched

    def emit(self, loop_sreg=None):
        k = self.k; S = self.S; nt = self.ntiles
        self.body(-1)
        t = 0
        steady = lambda t: self.sched.get(t) == [t + S - 1]
        if loop_sreg is not None:
            while t < nt and not (steady(t) and (t == 0 or steady(t - 1) or True) and self.pending(t + 1) == (S - 3) * self.nops):
                self.body(t); t += 1
            nsteady = nt - S + 1 - t
            trips = nsteady // S
            if trips >= 2:
                c0 = self._carry
                k(f's_mov_b32 s{loop_sreg}, {trips}')
                L = k.label('gloop')
                k(f'{L}:')
                for u in range(S):
                    self.body(t + u)
                assert self._carry == c0
                k(f's_sub_u32 s{loop_sreg}, s{loop_sreg}, 1')
                k(f's_cmp_lg_u32 s{loop_sreg}, 0')
                k(f's_cbranch_scc1 {L}')
                sh = (trips - 1) * S
                self.vq = [x + sh if isinstance(x, int) else x for x in self.vq]
                t += trips * S
        while t < nt:
            self.body(t)
            t += 1

def tr_addr_regs(k, vbase, NA, LP, tmp, lane, add=0):
    t0, t1, t2 = tmp, tmp + 1, tmp + 2
    k(f'v_lshrrev_b32 v{t0}, 2, v{lane}')
    k(f'v_and_b32 v{t1}, 3, v{lane}')
    if LP == 256:
        k(f'v_and_b32 v{t2}, 7, v{t0}')
        sh = 8
    else:
        k(f'v_bfe_u32 v{t2}, v{t0}, 1, 2')
        sh = 7
    k(f'v_lshlrev_b32 v{t0}, {sh}, v{t0}')
    k(f'v_lshl_add_u32 v{t0}, v{t1}, 3, v{t0}')
    if add: k(f'v_add_u32 v{t0}, {add}, v{t0}')
    for a in range(NA):
        k(f'v_xor_b32 v{t1}, {a}, v{t2}')
        k(f'v_lshl_add_u32 v{vbase+a}, v{t1}, 5, v{t0}')

def wdma_regs(k, vbase, LP, pitch, nchunks, tmp, lane, swave):
    t0, t1, t2, t3 = tmp, tmp + 1, tmp + 2, tmp + 3
    res = []
    if LP == 256:
        n_ins, rows_per, shl, msk = 4, 4, 4, 15
    else:
        n_ins, rows_per, shl, msk = 2, 8, 3, 7
    k(f'v_lshrrev_b32 v{t0}, {shl}, v{lane}')
    k(f'v_and_b32 v{t1}, {msk}, v{lane}')
    k(f's_lshl_b32 s{swave+1}, s{swave}, 4')
    k(f's_mov_b32 s{swave+2}, {pitch}')
    for n in range(n_ins):
        k(f'v_add_u32 v{t2}, {n * rows_per}, v{t0}')
        if LP == 256:
            k(f'v_and_b32 v{t3}, 7, v{t2}')
        else:
            k(f'v_bfe_u32 v{t3}, v{t2}, 1, 2')
        k(f'v_lshlrev_b32 v{t3}, 1, v{t3}')
        k(f'v_xor_b32 v{t3}, v{t3}, v{t1}')
        k(f'v_add_u32 v{t2}, s{swave+1}, v{t2}')
        k(f'v_mul_lo_u32 v{t2}, v{t2}, s{swave+2}')
        k(f'v_lshl_add_u32 v{vbase+n}, v{t3}, 4, v{t2}')
        if n: k(f'v_subrev_u32 v{vbase+n}, {n*1024}, v{vbase+n}')
        if nchunks <= msk:
            k(f'v_cmp_le_u32 vcc, {nchunks}, v{t3}')
            k(f'v_mov_b32 v{t2}, 0x7ff00000')
            k('s_nop 0')
            k(f'v_cndmask_b32 v{vbase+n}, v{vbase+n}, v{t2}, vcc')
        res.append((vbase + n, n * 1024))
    return res
```

```python
from gen_gemm import *
import math, struct
def f2u(x): return struct.unpack('<I', struct.pack('<f', x))[0]

def swap_pair(k, x, y):
    k(f'v_permlane32_swap_b32 v{x}, v{y}')
    k('s_nop 1')
    k(f'v_permlane16_swap_b32 v{x}, v{y}')

def gen_resid(second, S=8, PD=4, name=None, dbg=None, kidx=None, sched=(4, [1, 2, 2, 2])):
    name = name or ('mlp2_kernel' if second else 'oproj_kernel')
    K = 3584 if second else 4096
    KB = K // 32
    NA, NB, LP, RA = 4, 2, 128, 8
    k = Kern(name, (256, 1, 1), (256, 1, 1), S * 8192, vgpr=128, agpr=16 * S + 32, sgpr=64)
    Lend = k.label('end')
    k('s_cmp_ge_u32 s2, 256')
    k(f's_cbranch_scc1 {Lend}')
    k.stamp(0)
    k(f's_load_dwordx2 s[6:7], s[0:1], {A_WS}')
    k(f's_load_dwordx2 s[8:9], s[0:1], {A_OUT if second else A_X}')
    if second: k(f's_load_dwordx2 s[10:11], s[0:1], {A_B2}')
    k('v_and_b32 v1, 63, v0')
    k('v_lshrrev_b32 v2, 6, v0')
    k('s_and_b32 s40, s2, 7')
    k('v_readfirstlane_b32 s44, v2')
    k('s_lshr_b32 s41, s2, 3')
    k('s_lshr_b32 s42, s40, 1')
    k('s_lshl_b32 s42, s42, 2')
    k('s_lshr_b32 s43, s41, 3')
    k('s_add_u32 s42, s42, s43')
    k('s_and_b32 s43, s40, 1')
    k('s_lshl_b32 s43, s43, 3')
    k('s_and_b32 s41, s41, 7')
    k('s_add_u32 s43, s43, s41')
    vW = 8; vA = 12; vX = 16; tmp = 20; vA2 = 120
    k('s_lshl_b32 s52, s44, 11')
    k(f'v_lshl_add_u32 v{vW}, v1, 4, s52')
    wd = [(vW, 0), (vW, 1024)]
    k('s_lshl_b32 s47, s42, 3')
    k('s_lshl_b32 s48, s44, 1')
    k('s_add_u32 s47, s47, s48')
    k('s_lshl_b32 s48, s47, 10')
    k(f'v_lshl_add_u32 v{vX}, v1, 4, s48')
    k(f'v_add_u32 v{vX+1}, 0x20000, v{vX}')
    k(f's_mul_i32 s50, s43, {K*128}')
    k('s_mov_b32 s51, 0')
    k('s_waitcnt lgkmcnt(0)')
    srd_off(k, 12, 6, WS_W2, K * 2048)
    srd_off(k, 16, 6, WS_HH if second else WS_O, 2048 * K * 2)
    acc0 = 64
    g = Gemm(k, NA, NB, LP, S, PD, RA, K // 64,
             acc=lambda a, b: R4('v', acc0 + (a * NB + b) * 4),
             aring=lambda s: ('a', 16 * S + 4 * s),
             bring=lambda st, ks, b: R4('a', st * 16 + (ks * NB + b) * 4),
             vA=[[vA + a for a in range(NA)], [vA2 + a for a in range(NA)]], lds_base=0,
             srdW=12, sW=50, wpitch=128, wdma=wd, sM0=52, srdX=16, sX=51, vX=[vX, vX + 1], wait_every=2)
    g.dbg = dbg
    g.make_sched(*sched)
    g.prologue_loads()
    tr_addr_regs(k, vA, NA, LP, tmp, 1)
    for a in range(NA): k(f'v_add_u32 v{vA2+a}, 0x10000, v{vA+a}')
    if second:
        srd_off(k, 20, 6, WS_X1, 4 * MB)
        k.srd(24, 8, 4 * MB)
        k.srd(32, 10, 2048)
    else:
        k.srd(20, 8, 4 * MB)
        srd_off(k, 24, 6, WS_X1, 4 * MB)
    srd_off(k, 28, 6, WS_MOD32 + (5 if second else 2) * 4096, 4096)
    k('v_and_b32 v4, 15, v1')
    k('v_lshrrev_b32 v5, 4, v1')
    k('v_lshlrev_b32 v6, 11, v4')
    k('v_lshl_add_u32 v7, v5, 4, v6')
    k('v_lshl_add_u32 v6, v5, 3, v6')
    k('s_lshl_b32 s48, s47, 15')
    k('s_lshl_b32 s49, s43, 7')
    k('s_add_u32 s48, s48, s49')
    k('s_add_u32 s49, s48, 32768')
    XR = 24
    for b in range(NB):
        for a in range(NA):
            k(f'buffer_load_dwordx2 {R2("v", XR + (a*NB+b)*2)}, v6, s[20:23], s{48+b} offen offset:{a*32}')
    GR = 40
    k('v_lshlrev_b32 v4, 4, v5')
    k('s_lshl_b32 s54, s43, 8')
    for a in range(NA):
        k(f'buffer_load_dwordx4 {R4("v", GR + 4*a)}, v4, s[28:31], s54 offen offset:{a*64}')
    BR = 56
    if second:
        k('v_lshlrev_b32 v4, 3, v5')
        k('s_lshl_b32 s54, s43, 7')
        for a in range(NA):
            k(f'buffer_load_dwordx2 {R2("v", BR + 2*a)}, v4, s[32:35], s54 offen offset:{a*32}')
    g.vq += ['e'] * (12 + (4 if second else 0))
    g.stamp_first = 1
    g.emit(loop_sreg=53)
    k.stamp(2)
    k('s_nop 4')
    T = 96
    for a in range(NA):
        if second:
            for j in range(2):
                k(f'v_lshlrev_b32 v{T+4+2*j}, 16, v{BR+2*a+j}')
                k(f'v_and_b32 v{T+5+2*j}, 0xffff0000, v{BR+2*a+j}')
        for b in range(NB):
            A = acc0 + (a * NB + b) * 4; xr = XR + (a * NB + b) * 2
            for j in range(2):
                k(f'v_lshlrev_b32 v{T+2*j}, 16, v{xr+j}')
                k(f'v_and_b32 v{T+2*j+1}, 0xffff0000, v{xr+j}')
            for r in range(4):
                if second: k(f'v_add_f32 v{A+r}, v{A+r}, v{T+4+r}')
                k(f'v_fma_f32 v{A+r}, v{A+r}, v{GR+4*a+r}, v{T+r}')
    P = 104
    for b in range(NB):
        for u in range(2):
            p = P + (b * 2 + u) * 4
            A0 = acc0 + ((2 * u) * NB + b) * 4; A1 = acc0 + ((2 * u + 1) * NB + b) * 4
            k(f'v_cvt_pk_bf16_f32 v{p}, v{A0}, v{A0+1}')
            k(f'v_cvt_pk_bf16_f32 v{p+1}, v{A0+2}, v{A0+3}')
            k(f'v_cvt_pk_bf16_f32 v{p+2}, v{A1}, v{A1+1}')
            k(f'v_cvt_pk_bf16_f32 v{p+3}, v{A1+2}, v{A1+3}')
            k('s_nop 1')
            k(f'v_permlane32_swap_b32 v{p}, v{p+2}')
            k(f'v_permlane32_swap_b32 v{p+1}, v{p+3}')
            k('s_nop 0')
            k(f'v_permlane16_swap_b32 v{p}, v{p+2}')
            k(f'v_permlane16_swap_b32 v{p+1}, v{p+3}')
            k(f'buffer_store_dwordx4 {R4("v", p)}, v7, s[24:27], s{48+b} offen offset:{u*64}')
    k.stamp_out(kidx if kidx is not None else (6 if second else 3))
    k(f'{Lend}:')
    k('s_endpgm')
    return k

def gen_mlp1(S=6, PD=4, sched=(2, [1, 2, 1, 2]), name='mlp1_kernel', kidx=5, dbg=None):
    K = 1024; KB = 32
    NA, NB, LP, RA = 7, 4, 224, 7
    k = Kern(name, (256, 1, 1), (256, 1, 1), S * 16384, vgpr=256, agpr=32 * S + 28, sgpr=64)
    Lend = k.label('end')
    k('s_cmp_ge_u32 s2, 256')
    k(f's_cbranch_scc1 {Lend}')
    k.stamp(0)
    k(f's_load_dwordx4 s[4:7], s[0:1], {A_W1}')
    k(f's_load_dwordx2 s[8:9], s[0:1], {A_WS}')
    k('v_and_b32 v1, 63, v0')
    k('v_lshrrev_b32 v2, 6, v0')
    k('s_and_b32 s40, s2, 7')
    k('v_readfirstlane_b32 s44, v2')
    k('s_lshr_b32 s41, s2, 3')
    k('s_lshr_b32 s42, s40, 2')
    k('s_lshl_b32 s42, s42, 2')
    k('s_lshr_b32 s43, s41, 3')
    k('s_add_u32 s42, s42, s43')
    k('s_and_b32 s43, s40, 3')
    k('s_lshl_b32 s43, s43, 3')
    k('s_and_b32 s41, s41, 7')
    k('s_add_u32 s43, s43, s41')
    vW = 8; vX = 12; vA = 16; tmp = 32
    k('s_lshl_b32 s52, s44, 12')
    k(f'v_lshl_add_u32 v{vW}, v1, 4, s52')
    k('s_cmp_eq_u32 s44, 3')
    k('s_cselect_b32 s45, 0x7ff00000, 0')
    k(f'v_add_u32 v{vW+1}, s45, v{vW}')
    wd = [(vW, 0), (vW, 1024), (vW + 1, 2048), (vW + 1, 3072)]
    k('s_lshl_b32 s47, s42, 4')
    k('s_lshl_b32 s48, s44, 2')
    k('s_add_u32 s47, s47, s48')
    k('s_lshl_b32 s48, s47, 10')
    k(f'v_lshl_add_u32 v{vX}, v1, 4, s48')
    k(f'v_add_u32 v{vX+1}, 0x20000, v{vX}')
    k('s_mul_i32 s46, s43, 224')
    k('s_lshl_b32 s50, s46, 10')
    k('s_mov_b32 s51, 0')
    k('v_lshrrev_b32 v5, 4, v1')
    k('v_lshlrev_b32 v4, 3, v5')
    k('s_waitcnt lgkmcnt(0)')
    srd_off(k, 12, 8, WS_W1, 1024 * 7168)
    srd_off(k, 16, 8, WS_Y, 4 * MB)
    k.srd(20, 6, 7168)
    BP = 40; BI = 64; acc0 = 96
    for a in range(NA):
        k(f'buffer_load_dwordx2 {R2("v", BP + 2*a)}, v4, s[20:23], s46 offen offset:{a*32}')
    g = Gemm(k, NA, NB, LP, S, PD, RA, K // 64,
             acc=lambda a, b: R4('v', acc0 + (a * NB + b) * 4),
             aring=lambda s: ('a', 32 * S + 4 * s),
             bring=lambda st, ks, b: R4('a', st * 32 + (ks * NB + b) * 4),
             vA=[[vA] * NA, [vA + 1] * NA], lds_base=0, aimm=32, tile_bytes=16384,
             srdW=12, sW=50, wpitch=224, wdma=wd, sM0=52, srdX=16, sX=51, vX=[vX, vX + 1],
             cinit=lambda a, b: R4('v', BI + 4 * a))
    g.make_sched(*sched)
    g.dbg = dbg
    g.prologue_loads()
    k(f'v_lshrrev_b32 v{tmp}, 2, v1')
    k(f'v_mul_u32_u24 v{tmp}, 224, v{tmp}')
    k(f'v_and_b32 v{tmp+1}, 3, v1')
    k(f'v_lshl_add_u32 v{vA}, v{tmp+1}, 3, v{tmp}')
    k(f'v_add_u32 v{vA+1}, 0x10000, v{vA}')
    k(f's_waitcnt vmcnt({len(g.vq)})')
    for a in range(NA):
        for j in range(2):
            k(f'v_lshlrev_b32 v{BI+4*a+2*j}, 16, v{BP+2*a+j}')
            k(f'v_and_b32 v{BI+4*a+2*j+1}, 0xffff0000, v{BP+2*a+j}')
    g.stamp_first = 1
    g.emit(loop_sreg=None)
    k.stamp(2)
    srd_off(k, 24, 8, WS_HH, 2048 * 3584 * 2)
    c1 = -2.0 * math.log2(math.e) * math.sqrt(2.0 / math.pi); c2 = c1 * 0.044715
    C1, C2, ONE = 40, 42, 44
    for (r, v) in ((C1, c1), (C2, c2), (ONE, 1.0)):
        k(f'v_mov_b32 v{r}, 0x{f2u(v):08x}'); k(f'v_mov_b32 v{r+1}, 0x{f2u(v):08x}')
    k('v_lshlrev_b32 v6, 4, v1')
    k('s_mul_i32 s54, s43, 7')
    k('s_lshr_b32 s55, s54, 1')
    k('s_lshl_b32 s55, s55, 7')
    k('s_add_u32 s55, s55, s47')
    k('s_lshl_b32 s55, s55, 10')
    for j in range(1, 4): k(f's_add_u32 s{55+j}, s55, {j*131072}')
    k('s_nop 4')
    T = 48
    def gelu_tile(A, dst):
        for h in range(2):
            x = R2('v', A + 2 * h); t = R2('v', T + 2 * h)
            k(f'v_pk_mul_f32 {t}, {x}, {x}')
            k(f'v_pk_fma_f32 {t}, {t}, {R2("v", C2)}, {R2("v", C1)}')
            k(f'v_pk_mul_f32 {t}, {t}, {x}')
        for r in range(4): k(f'v_exp_f32 v{T+r}, v{T+r}')
        for h in range(2):
            t = R2('v', T + 2 * h)
            k(f'v_pk_add_f32 {t}, {t}, {R2("v", ONE)}')
        for r in range(4): k(f'v_rcp_f32 v{T+r}, v{T+r}')
        for h in range(2):
            x = R2('v', A + 2 * h); t = R2('v', T + 2 * h)
            k(f'v_pk_mul_f32 {x}, {x}, {t}')
        for h in range(2):
            k(f'v_cvt_pk_bf16_f32 v{dst+h}, v{A+2*h}, v{A+2*h+1}')
    Lodd = k.label('odd')
    k('s_bitcmp1_b32 s43, 0')
    k(f's_cbranch_scc1 {Lodd}')
    for odd in range(2):
        if odd: k(f'{Lodd}:')
        n = 0
        for b in range(NB):
            for blk in range(4):
                aa = [a for a in range(NA) if (a + odd) >> 1 == blk]
                D = 56 + (n % 2) * 4; n += 1
                for a in aa:
                    gelu_tile(acc0 + (a * NB + b) * 4, D + 2 * ((a + odd) & 1))
                if len(aa) == 2:
                    k(f'buffer_store_dwordx4 {R4("v", D)}, v6, s[24:27], s{55+blk} offen offset:{b*1024}')
                else:
                    hf = (aa[0] + odd) & 1
                    k(f'buffer_store_dwordx2 {R2("v", D + 2*hf)}, v6, s[24:27], s{55+blk} offen offset:{b*1024 + 8*hf}')
        k.nstamp = 3
        k.stamp_out(kidx)
        k('s_endpgm')
    k(f'{Lend}:')
    k('s_endpgm')
    return k

def gen_oproj(S=8, PD=4, name='oproj_kernel', kidx=3, store_mod='', sched=(3, [1, 2, 2, 2, 2]), dbg=None):
    NA, NB, LP, RA = 8, 2, 256, 8
    k = Kern(name, (256, 1, 1), (256, 1, 1), S * 16384, vgpr=128, agpr=16 * S + 32, sgpr=64)
    Lend = k.label('end')
    k('s_cmp_ge_u32 s2, 256')
    k(f's_cbranch_scc1 {Lend}')
    k.stamp(0)
    k(f's_load_dwordx2 s[6:7], s[0:1], {A_WS}')
    k('v_and_b32 v1, 63, v0')
    k('v_lshrrev_b32 v2, 6, v0')
    k('s_bfe_u32 s40, s2, 0x10002')
    k('v_readfirstlane_b32 s44, v2')
    k('s_bfe_u32 s42, s2, 0x10001')
    k('s_lshl_b32 s42, s42, 3')
    k('s_lshr_b32 s43, s2, 5')
    k('s_add_u32 s42, s42, s43')
    k('s_and_b32 s43, s2, 1')
    k('s_lshl_b32 s43, s43, 2')
    k('s_bfe_u32 s41, s2, 0x20003')
    k('s_add_u32 s43, s43, s41')
    vW = 8; vX = 12; vA = 16; vA2 = 24; tmp = 32
    k('s_lshl_b32 s52, s44, 12')
    k(f'v_lshl_add_u32 v{vW}, v1, 4, s52')
    wd = [(vW, n * 1024) for n in range(4)]
    k('s_lshl_b32 s47, s42, 3')
    k('s_lshl_b32 s48, s44, 1')
    k('s_add_u32 s47, s47, s48')
    k('s_lshl_b32 s48, s47, 10')
    k(f'v_lshl_add_u32 v{vX}, v1, 4, s48')
    k(f'v_add_u32 v{vX+1}, 0x20000, v{vX}')
    k('s_lshl_b32 s50, s43, 20')
    k('s_lshl_b32 s48, s40, 19')
    k('s_add_u32 s50, s50, s48')
    k('s_lshl_b32 s51, s40, 23')
    k('s_waitcnt lgkmcnt(0)')
    srd_off(k, 12, 6, WS_WO, 8 * MB)
    srd_off(k, 16, 6, WS_O, 16 * MB)
    acc0 = 64
    g = Gemm(k, NA, NB, LP, S, PD, RA, 32,
             acc=lambda a, b: R4('v', acc0 + (a * NB + b) * 4),
             aring=lambda s: ('a', 16 * S + 4 * s),
             bring=lambda st, ks, b: R4('a', st * 16 + (ks * NB + b) * 4),
             vA=[[vA + a for a in range(NA)], [vA2 + a for a in range(NA)]], lds_base=0,
             srdW=12, sW=50, wpitch=256, wdma=wd, sM0=52, srdX=16, sX=51, vX=[vX, vX + 1], wait_every=2)
    g.make_sched(*sched)
    g.dbg = dbg
    g.prologue_loads()
    tr_addr_regs(k, vA, NA, LP, tmp, 1)
    for a in range(NA): k(f'v_add_u32 v{vA2+a}, 0x10000, v{vA+a}')
    srd_off(k, 24, 6, WS_P, 8 * MB)
    k('v_and_b32 v4, 15, v1')
    k('v_lshrrev_b32 v5, 4, v1')
    k('v_lshlrev_b32 v6, 11, v4')
    k('v_lshl_add_u32 v7, v5, 4, v6')
    k('s_lshl_b32 s48, s47, 15')
    k('s_lshl_b32 s49, s43, 8')
    k('s_add_u32 s48, s48, s49')
    k('s_lshl_b32 s49, s40, 22')
    k('s_add_u32 s48, s48, s49')
    k('s_add_u32 s49, s48, 32768')
    g.stamp_first = 1
    g.emit(loop_sreg=53)
    k.stamp(2)
    k('s_nop 7')
    n = 0
    for u in range(4):
        ps = []
        for b in range(NB):
            p = 32 + (n % 8) * 4; n += 1
            ps.append(p)
            A0 = acc0 + ((2 * u) * NB + b) * 4; A1 = acc0 + ((2 * u + 1) * NB + b) * 4
            k(f'v_cvt_pk_bf16_f32 v{p}, v{A0}, v{A0+1}')
            k(f'v_cvt_pk_bf16_f32 v{p+1}, v{A0+2}, v{A0+3}')
            k(f'v_cvt_pk_bf16_f32 v{p+2}, v{A1}, v{A1+1}')
            k(f'v_cvt_pk_bf16_f32 v{p+3}, v{A1+2}, v{A1+3}')
        for sw in ('32', '16'):
            for p in ps:
                k(f'v_permlane{sw}_swap_b32 v{p}, v{p+2}')
                k(f'v_permlane{sw}_swap_b32 v{p+1}, v{p+3}')
        for b, p in enumerate(ps):
            k(f'buffer_store_dwordx4 {R4("v", p)}, v7, s[24:27], s{48+b} offen offset:{u*64}{store_mod}')
    k.stamp_out(kidx)
    k(f'{Lend}:')
    k('s_endpgm')
    return k
```

```python
from asmgen import *

MB = 1 << 20
WS_MOD32 = 0
WS_MOD16 = 32768
WS_H = 1 * MB
WS_O = 8 * MB
WS_X1 = 92 * MB
WS_Y = 1 * MB
WS_HH = 8 * MB
WS_P = 92 * MB
WS_WO = 64 * MB
WS_W1 = 72 * MB
WS_W2 = 80 * MB
WS_XB = 88 * MB
A_X, A_K, A_V, A_WQ, A_WO, A_BX, A_W1, A_B1, A_W2, A_B2, A_C, A_WMOD, A_OUT, A_DBG, A_WS = [8 * i for i in range(15)]

def srd_off(k, d, base, off, nbytes):
    k(f's_add_u32 s{d}, s{base}, {off}')
    k(f's_addc_u32 s{d+1}, s{base+1}, 0')
    k(f's_and_b32 s{d+1}, s{d+1}, 0xffff')
    k(f's_mov_b32 s{d+2}, {nbytes}')
    k(f's_mov_b32 s{d+3}, 0x20000')

def round_pair(k, a, b, tmp):
    k(f'v_cvt_pk_bf16_f32 v{tmp}, v{a}, v{b}')
    k(f'v_lshlrev_b32 v{a}, 16, v{tmp}')
    k(f'v_and_b32 v{b}, 0xffff0000, v{tmp}')

def wave_sum(k, v, t):
    k('s_nop 1')
    k(f'v_add_f32_dpp v{v}, v{v}, v{v} quad_perm:[1,0,3,2] row_mask:0xf bank_mask:0xf')
    k('s_nop 1')
    k(f'v_add_f32_dpp v{v}, v{v}, v{v} quad_perm:[2,3,0,1] row_mask:0xf bank_mask:0xf')
    k('s_nop 1')
    k(f'v_add_f32_dpp v{v}, v{v}, v{v} row_half_mirror row_mask:0xf bank_mask:0xf')
    k('s_nop 1')
    k(f'v_add_f32_dpp v{v}, v{v}, v{v} row_mirror row_mask:0xf bank_mask:0xf')
    k(f'v_mov_b32 v{t}, v{v}')
    k('s_nop 1')
    k(f'v_permlane16_swap_b32 v{v}, v{t}')
    k(f'v_add_f32 v{v}, v{v}, v{t}')
    k(f'v_mov_b32 v{t}, v{v}')
    k('s_nop 1')
    k(f'v_permlane32_swap_b32 v{v}, v{t}')
    k(f'v_add_f32 v{v}, v{v}, v{t}')

def gen_mod():
    k = Kern('mod_kernel', (192, 1, 1), (512, 1, 1), 4096 + 16384 + 2048, vgpr=64, sgpr=40)
    Lend = k.label('end')
    k('s_cmp_ge_u32 s2, 192')
    k(f's_cbranch_scc1 {Lend}')
    k.stamp(0)
    k(f's_load_dwordx4 s[4:7], s[0:1], {A_C}')
    k(f's_load_dwordx2 s[8:9], s[0:1], {A_WS}')
    k('s_and_b32 s20, s2, 7')
    k('s_mul_i32 s20, s20, 24')
    k('s_lshr_b32 s21, s2, 3')
    k('s_add_u32 s20, s20, s21')
    k('s_lshl_b32 s21, s20, 6')
    k('v_lshrrev_b32 v1, 2, v0')
    k('v_and_b32 v2, 3, v0')
    k('s_mov_b32 s22, 12288')
    k('v_mul_lo_u32 v3, v1, s22')
    k('v_lshl_add_u32 v3, v2, 4, v3')
    k('v_lshlrev_b32 v4, 2, v0')
    k('s_waitcnt lgkmcnt(0)')
    k.srd(12, 6, 1024 * 6144 * 2)
    k.srd(16, 4, 2048)
    k('buffer_load_dword v5, v4, s[16:19], 0 offen')
    for p in range(8):
        k(f'buffer_load_dwordx4 v[{16+4*p}:{16+4*p+3}], v3, s[12:15], s21 offen')
        if p < 7: k(f's_add_u32 s21, s21, {128*12288}')
    k('s_waitcnt vmcnt(8)')
    k('v_lshlrev_b32 v6, 16, v5')
    k('v_and_b32 v7, 0xffff0000, v5')
    k('s_mov_b32 s23, 0xbfb8aa3b')
    for v in (6, 7):
        k(f'v_mul_f32 v8, s23, v{v}')
        k('v_exp_f32 v8, v8')
        k('s_nop 0')
        k('v_add_f32 v8, 1.0, v8')
        k('v_rcp_f32 v8, v8')
        k('s_nop 0')
        k(f'v_mul_f32 v{v}, v{v}, v8')
    round_pair(k, 6, 7, 8)
    k('v_lshlrev_b32 v9, 3, v0')
    k('ds_write_b64 v9, v[6:7]')
    k('s_waitcnt lgkmcnt(0)')
    k('s_barrier')
    k('v_lshlrev_b32 v9, 2, v1')
    for p in range(8):
        k(f'ds_read_b32 v{48+p}, v9 offset:{p*512}')
    for j in range(8): k(f'v_mov_b32 v{8+j}, 0')
    k('s_waitcnt lgkmcnt(0)')
    for p in range(8):
        k(f's_waitcnt vmcnt({7-p})')
        for j in range(4):
            w = 16 + 4 * p + j
            k(f'v_lshlrev_b32 v56, 16, v{w}')
            k(f'v_and_b32 v57, 0xffff0000, v{w}')
            k(f'v_fmac_f32 v{8+2*j}, v56, v{48+p}')
            k(f'v_fmac_f32 v{9+2*j}, v57, v{48+p}')
    k('v_lshlrev_b32 v4, 5, v0')
    k('ds_write_b128 v4, v[8:11] offset:4096')
    k('ds_write_b128 v4, v[12:15] offset:4112')
    k('s_waitcnt lgkmcnt(0)')
    k('s_barrier')
    k('v_and_b32 v1, 31, v0')
    k('v_lshrrev_b32 v2, 5, v0')
    k('v_lshlrev_b32 v3, 10, v2')
    k('v_lshl_add_u32 v3, v1, 2, v3')
    for j in range(8): k(f'ds_read_b32 v{8+j}, v3 offset:{4096+j*128}')
    k('s_waitcnt lgkmcnt(0)')
    for j in range(1, 8): k(f'v_add_f32 v8, v8, v{8+j}')
    k('v_lshlrev_b32 v4, 2, v0')
    k(f'ds_write_b32 v4, v8 offset:{4096+16384}')
    k('s_waitcnt lgkmcnt(0)')
    k('s_barrier')
    k('v_cmp_gt_u32 vcc, 32, v0')
    k('s_and_saveexec_b64 s[24:25], vcc')
    k(f's_cbranch_execz {Lend}')
    for j in range(16): k(f'ds_read_b32 v{8+j}, v4 offset:{4096+16384+j*128}')
    k('s_waitcnt lgkmcnt(0)')
    for j in range(1, 16): k(f'v_add_f32 v8, v8, v{8+j}')
    round_pair(k, 8, 9, 10)
    k('s_lshr_b32 s22, s20, 5')
    k('s_cmp_eq_u32 s22, 1')
    k('s_cselect_b32 s23, 1.0, 0')
    k('s_cmp_eq_u32 s22, 4')
    k('s_cselect_b32 s23, 1.0, s23')
    k('v_add_f32 v8, s23, v8')
    round_pair(k, 8, 9, 10)
    k.srd(12, 8, 65536)
    k('s_lshl_b32 s21, s20, 7')
    k('buffer_store_dword v8, v4, s[12:15], s21 offen')
    k('s_lshl_b32 s21, s20, 6')
    k(f's_add_u32 s21, s21, {WS_MOD16}')
    k('v_lshlrev_b32 v4, 1, v0')
    k('buffer_store_short v10, v4, s[12:15], s21 offen')
    k.stamp_out(0)
    k(f'{Lend}:')
    k('s_endpgm')
    return k

def ln_core(k, X, T, sc):
    t0, t1, t2, t3 = T, T + 1, T + 2, T + 3
    k(f'v_add_f32 v{t0}, v{X}, v{X+1}')
    for j in range(2, 16): k(f'v_add_f32 v{t0}, v{t0}, v{X+j}')
    wave_sum(k, t0, t1)
    k(f'v_mul_f32 v{t0}, s{sc}, v{t0}')
    k(f'v_sub_f32 v{t2}, v{X}, v{t0}')
    k(f'v_mul_f32 v{t1}, v{t2}, v{t2}')
    for j in range(1, 16):
        k(f'v_sub_f32 v{t2}, v{X+j}, v{t0}')
        k(f'v_fmac_f32 v{t1}, v{t2}, v{t2}')
    wave_sum(k, t1, t2)
    k(f'v_mul_f32 v{t1}, s{sc}, v{t1}')
    round_pair(k, t0, t1, t2)
    k(f'v_add_f32 v{t1}, 0x3727c5ac, v{t1}')
    round_pair(k, t1, t3, t2)
    k(f'v_sqrt_f32 v{t1}, v{t1}')
    k('s_nop 0')
    round_pair(k, t1, t3, t2)
    k(f'v_rcp_f32 v{t1}, v{t1}')
    for j in range(0, 16, 2):
        k(f'v_sub_f32 v{X+j}, v{X+j}, v{t0}')
        k(f'v_sub_f32 v{X+j+1}, v{X+j+1}, v{t0}')
        round_pair(k, X + j, X + j + 1, t2)
    for j in range(0, 16, 2):
        k(f'v_mul_f32 v{X+j}, v{X+j}, v{t1}')
        k(f'v_mul_f32 v{X+j+1}, v{X+j+1}, v{t1}')
        round_pair(k, X + j, X + j + 1, t2)

def unpack8(k, dst, src):
    for j in range(4):
        k(f'v_lshlrev_b32 v{dst+2*j}, 16, v{src+j}')
        k(f'v_and_b32 v{dst+2*j+1}, 0xffff0000, v{src+j}')

def gen_ln(second):
    name = 'ln2_kernel' if second else 'ln1_kernel'
    k = Kern(name, (256, 1, 1), (512, 1, 1), 16384 + 512, vgpr=112 if second else 96, sgpr=40)
    Lend = k.label('end')
    k('s_cmp_ge_u32 s2, 256')
    k(f's_cbranch_scc1 {Lend}')
    k.stamp(0)
    k(f's_load_dwordx2 s[4:5], s[0:1], {A_X}')
    k(f's_load_dwordx2 s[8:9], s[0:1], {A_WS}')
    k('v_and_b32 v1, 63, v0')
    k('v_lshrrev_b32 v2, 6, v0')
    k('v_lshlrev_b32 v3, 4, v1')
    k('v_lshl_add_u32 v4, v2, 11, v3')
    k('s_lshl_b32 s20, s2, 14')
    k('s_waitcnt lgkmcnt(0)')
    k.srd(12, 4, 4 * MB)
    srd_off(k, 16, 8, WS_MOD16, 12288)
    k('buffer_load_dwordx4 v[8:11], v4, s[12:15], s20 offen')
    k('buffer_load_dwordx4 v[12:15], v4, s[12:15], s20 offen offset:1024')
    if second:
        srd_off(k, 28, 8, WS_P, 8 * MB)
        k(f's_add_u32 s23, s20, {4*MB}')
        k('s_mov_b32 s21, 4096')
        k('buffer_load_dwordx4 v[84:87], v4, s[28:31], s20 offen')
        k('buffer_load_dwordx4 v[88:91], v4, s[28:31], s20 offen offset:1024')
        k('buffer_load_dwordx4 v[92:95], v4, s[28:31], s23 offen')
        k('buffer_load_dwordx4 v[96:99], v4, s[28:31], s23 offen offset:1024')
        k('buffer_load_dwordx4 v[100:103], v3, s[16:19], s21 offen')
        k('buffer_load_dwordx4 v[104:107], v3, s[16:19], s21 offen offset:1024')
    sh = 3 * 2048 if second else 0
    k(f's_mov_b32 s21, {sh}')
    k('buffer_load_dwordx4 v[16:19], v3, s[16:19], s21 offen')
    k('buffer_load_dwordx4 v[20:23], v3, s[16:19], s21 offen offset:1024')
    k('buffer_load_dwordx4 v[24:27], v3, s[16:19], s21 offen offset:2048')
    k('buffer_load_dwordx4 v[28:31], v3, s[16:19], s21 offen offset:3072')
    srd_off(k, 24, 8, WS_Y if second else WS_H, 4 * MB)
    k('s_mov_b32 s22, 0x3a800000')
    X = 32
    k('s_waitcnt vmcnt(4)')
    unpack8(k, X, 8); unpack8(k, X + 8, 12)
    if second:
        srd_off(k, 32, 8, WS_X1, 4 * MB)
        unpack8(k, 48, 84); unpack8(k, 56, 88); unpack8(k, 64, 92); unpack8(k, 72, 96)
        for j in range(16): k(f'v_add_f32 v{48+j}, v{48+j}, v{64+j}')
        unpack8(k, 64, 100); unpack8(k, 72, 104)
        for j in range(16): k(f'v_fmac_f32 v{X+j}, v{48+j}, v{64+j}')
        for j in range(8): k(f'v_cvt_pk_bf16_f32 v{8+j}, v{X+2*j}, v{X+2*j+1}')
        k('buffer_store_dwordx4 v[8:11], v4, s[32:35], s20 offen')
        k('buffer_store_dwordx4 v[12:15], v4, s[32:35], s20 offen offset:1024')
        unpack8(k, X, 8); unpack8(k, X + 8, 12)
    ln_core(k, X, 80, 22)
    k('s_waitcnt vmcnt(2)' if second else 's_waitcnt vmcnt(0)')
    unpack8(k, 48, 16); unpack8(k, 56, 20)
    unpack8(k, 64, 24); unpack8(k, 72, 28)
    for j in range(0, 16, 2):
        k(f'v_mul_f32 v{X+j}, v{X+j}, v{64+j}')
        k(f'v_mul_f32 v{X+j+1}, v{X+j+1}, v{64+j+1}')
        round_pair(k, X + j, X + j + 1, 82)
    for j in range(0, 16, 2):
        k(f'v_add_f32 v{X+j}, v{X+j}, v{48+j}')
        k(f'v_add_f32 v{X+j+1}, v{X+j+1}, v{48+j+1}')
        if second: round_pair(k, X + j, X + j + 1, 82)
    if second:
        ln_core(k, X, 80, 22)
    for j in range(8):
        k(f'v_cvt_pk_bf16_f32 v{8+j}, v{X+2*j}, v{X+2*j+1}')
    k('v_lshrrev_b32 v5, 2, v1')
    k('v_lshlrev_b32 v5, 9, v5')
    k('v_and_b32 v6, 1, v1')
    k('v_lshl_add_u32 v5, v6, 8, v5')
    k('v_bfe_u32 v6, v1, 1, 1')
    k('v_lshl_add_u32 v5, v6, 3, v5')
    k('v_lshl_add_u32 v5, v2, 4, v5')
    k('ds_write_b64 v5, v[8:9]')
    k('ds_write_b64 v5, v[10:11] offset:128')
    k('ds_write_b64 v5, v[12:13] offset:8192')
    k('ds_write_b64 v5, v[14:15] offset:8320')
    k('s_waitcnt lgkmcnt(0)')
    k('s_barrier')
    k('v_lshlrev_b32 v5, 4, v0')
    k('ds_read_b128 v[8:11], v5')
    k('ds_read_b128 v[12:15], v5 offset:8192')
    k('v_lshrrev_b32 v6, 5, v0')
    k('v_lshlrev_b32 v6, 17, v6')
    k('v_bfe_u32 v7, v0, 3, 2')
    k('v_lshl_add_u32 v6, v7, 8, v6')
    k('v_and_b32 v7, 7, v0')
    k('v_lshl_add_u32 v6, v7, 4, v6')
    k('s_lshr_b32 s20, s2, 1')
    k('s_lshl_b32 s20, s20, 10')
    k('s_and_b32 s21, s2, 1')
    k('s_lshl_b32 s21, s21, 7')
    k('s_add_u32 s20, s20, s21')
    k(f's_add_u32 s21, s20, {16*131072}')
    k('s_waitcnt lgkmcnt(1)')
    k('buffer_store_dwordx4 v[8:11], v6, s[24:27], s20 offen')
    k('s_waitcnt lgkmcnt(0)')
    k('buffer_store_dwordx4 v[12:15], v6, s[24:27], s21 offen')
    k.stamp_out(4 if second else 1)
    k(f'{Lend}:')
    k('s_endpgm')
    return k
```

```python
import sys
from asmgen import *
from gen_small import *
from gen_gk import *
from gen_attn import *
from gen_front import *
import lint
Kern.STAMP = 'cyc' if 'cyc' in sys.argv else ('stamp' in sys.argv)
th = 48
for a in sys.argv:
    if a.startswith('sm='): Kern.STORE_MOD = ' ' + a[3:].replace('+', ' ')
for a in sys.argv:
    if a.startswith('th='): th = float(a[3:])
ks = [gen_mod(), gen_ln1(), gen_attn(thresh_log2=th), gen_oproj(), gen_ln2(), gen_mlp1(), gen_resid(True)]
ne = 0
for k in ks: ne += lint.lint_kernel(k)
print('lint errors', ne)
emit(sys.argv[1] if len(sys.argv) > 1 else 'k.s', ks)
```

```python
NAME = 'adaLN_cond__mha_block_cached__mixer_channel_mlp__prompt'

HEADER = open('cdna_kernels/' + NAME + '.s.ref').read().split('; Override launch')[0]

class Kern:
    def __init__(self, name, grid, block, lds, vgpr, agpr=0, sgpr=102, wgid_y=False):
        self.name = name; self.grid = grid; self.block = block; self.lds = lds
        self.vgpr = vgpr; self.agpr = agpr; self.sgpr = sgpr; self.wgid_y = wgid_y
        self.lines = []
        self.nlabel = 0
    def __call__(self, s):
        for l in s.split('\n'):
            l = l.strip()
            if l:
                if l.startswith('buffer_store_dwordx4') and Kern.STORE_MOD and not getattr(self, 'plain_stores', False) and ' sc1' not in l: l += Kern.STORE_MOD
                self.lines.append(l)
    def label(self, base='L'):
        self.nlabel += 1
        return f'{self.name}_{base}{self.nlabel}'
    def srd(self, d, base, nbytes):
        if d != base: self(f's_mov_b32 s{d}, s{base}')
        self(f's_and_b32 s{d+1}, s{base+1}, 0xffff')
        self(f's_mov_b32 s{d+2}, {nbytes}')
        self(f's_mov_b32 s{d+3}, 0x20000')
    def code_srd(self, d, target):
        L = self.label('pc')
        self(f's_getpc_b64 s[{d}:{d+1}]')
        self(f'{L}:')
        self(f's_add_u32 s{d}, s{d}, {target}-{L}')
        self(f's_addc_u32 s{d+1}, s{d+1}, 0')
        self(f's_and_b32 s{d+1}, s{d+1}, 0xffff')
        self(f's_mov_b32 s{d+2}, code_end-{target}')
        self(f's_mov_b32 s{d+3}, 0x20000')
    STAMP = False
    STORE_MOD = ''
    def stamp(self, i):
        if not Kern.STAMP: return
        self.sgpr = 102
        self.nstamp = max(getattr(self, 'nstamp', 0), i + 1)
        self(f'{"s_memtime" if Kern.STAMP == "cyc" else "s_memrealtime"} s[{78+2*i}:{79+2*i}]')
        self('s_waitcnt lgkmcnt(0)')
    def stamp_out(self, kidx, vtmp=0):
        if not Kern.STAMP: return
        self(f's_load_dwordx2 s[90:91], s[0:1], 112')
        self('s_waitcnt lgkmcnt(0) vmcnt(0)')
        self.stamp(self.nstamp)
        self(f's_add_u32 s92, s90, {200*1048576 + kidx*65536}')
        self('s_addc_u32 s93, s91, 0')
        self('s_and_b32 s93, s93, 0xffff')
        self('s_mov_b32 s94, 65536')
        self('s_mov_b32 s95, 0x20000')
        self('s_lshl_b32 s96, s2, 6')
        self('s_mov_b64 exec, 1')
        self(f'v_mov_b32 v{vtmp+1}, 0')
        for i in range(self.nstamp):
            self(f'v_mov_b32 v{vtmp}, s{78+2*i}')
            self(f'buffer_store_dword v{vtmp}, v{vtmp+1}, s[92:95], s96 offen offset:{4*i}')
    def text(self):
        out = [f'.globl {self.name}', '.p2align 8', f'.type {self.name},@function', f'{self.name}:']
        for l in self.lines:
            out.append(l if l.endswith(':') else '  ' + l)
        return '\n'.join(out) + '\n'
    def desc(self):
        acc = (self.vgpr + 3) // 4 * 4
        nfv = acc + self.agpr if self.agpr else self.vgpr
        s = f'''.p2align 6
.amdhsa_kernel {self.name}
  .amdhsa_next_free_vgpr {nfv}
  .amdhsa_next_free_sgpr {self.sgpr}
  .amdhsa_accum_offset {acc}
  .amdhsa_group_segment_fixed_size 0
  .amdhsa_kernarg_size 120
  .amdhsa_user_sgpr_count 2
  .amdhsa_user_sgpr_kernarg_segment_ptr 1
  .amdhsa_system_sgpr_workgroup_id_x 1
'''
        if self.wgid_y:
            s += '  .amdhsa_system_sgpr_workgroup_id_y 1\n'
        s += '.end_amdhsa_kernel\n'
        return s
    def launch_line(self):
        g = self.grid; b = self.block
        return f'; @launch kernel={self.name} grid=({g[0]},{g[1]},{g[2]}) block=({b[0]},{b[1]},{b[2]}) lds={self.lds}'

def emit(path, launches):
    uniq = []
    for k in launches:
        if k not in uniq:
            uniq.append(k)
    s = HEADER
    for k in launches:
        s += k.launch_line() + '\n'
    s += '.amdgcn_target "amdgcn-amd-amdhsa--gfx950"\n.text\n'
    for k in uniq:
        s += k.text()
    s += 'code_end:\n  s_endpgm\n'
    s += '.section .rodata,"a"\n'
    for k in uniq:
        s += k.desc()
    open(path, 'w').write(s)
```

```python
from gen_gk import *
from gen_front import *

THRESH_LOG2 = 48

def gen_attn(thresh_log2=THRESH_LOG2, lead=27, E0=58, bias=32, pf=True, sched=(2, [1, 2, 1, 2]), name='attn_kernel', kidx=2, dbg=''):
    k = Kern(name, (256, 1, 1), (256, 1, 1), 160 * 1024, vgpr=256, agpr=256, sgpr=80)
    Lend = k.label('end')
    k('s_cmp_ge_u32 s2, 256')
    k(f's_cbranch_scc1 {Lend}')
    k.stamp(0)
    k(f's_load_dwordx4 s[4:7], s[0:1], {A_K}')
    k(f's_load_dwordx2 s[8:9], s[0:1], {A_WQ}')
    k(f's_load_dwordx2 s[10:11], s[0:1], {A_WS}')
    k(f's_load_dwordx2 s[32:33], s[0:1], {A_WO}')
    k(f's_load_dwordx2 s[36:37], s[0:1], {A_W1}')
    k(f's_load_dwordx2 s[60:61], s[0:1], {A_W2}')
    k(f's_load_dwordx2 s[64:65], s[0:1], {A_WMOD}')
    Lloop = k.label('loop'); Ltail = k.label('tail'); Lslow = k.label('slow'); Lepi = k.label('epi')
    vKA, vVA, vKD, vVD = 8, 12, 20, 24
    tmp = 26
    vL = 32; vTA2 = 32; vWD = 40; vX = 44
    vQ, vS, vP, vNM, vE, vONE, vT = 64, 128, 192, 224, 240, 248, 252
    aO, aF = 0, 128
    sHEAD, sQT, sWAVE, sMB0, sW, sX, sM0, sK, sV, sCNT, sTH, sFIRST = 40, 41, 44, 47, 50, 51, 52, 53, 54, 55, 57, 58
    k('v_and_b32 v1, 63, v0')
    k('v_lshrrev_b32 v2, 6, v0')
    k('s_and_b32 s42, s2, 7')
    k(f'v_readfirstlane_b32 s{sWAVE}, v2')
    k('s_lshl_b32 s42, s42, 2')
    k('s_bfe_u32 s43, s2, 0x20003')
    k(f's_add_u32 s{sHEAD}, s42, s43')
    k(f's_lshr_b32 s{sQT}, s2, 5')
    wd = wdma_regs(k, vWD, 256, 8192, 16, tmp, 1, sWAVE)
    k(f's_lshl_b32 s{sMB0}, s{sQT}, 4')
    k(f's_lshl_b32 s48, s{sWAVE}, 2')
    k(f's_add_u32 s{sMB0}, s{sMB0}, s48')
    k(f's_lshl_b32 s48, s{sMB0}, 10')
    k(f'v_lshl_add_u32 v{vX}, v1, 4, s48')
    k(f'v_add_u32 v{vX+1}, 0x20000, v{vX}')
    k(f's_lshl_b32 s{sW}, s{sHEAD}, 8')
    k(f's_mov_b32 s{sX}, 0')
    k(f's_lshl_b32 s{sM0}, s{sWAVE}, 12')
    k('s_waitcnt lgkmcnt(0)')
    k.srd(12, 8, 1024 * 8192)
    srd_off(k, 16, 10, WS_H, 4 * MB)
    S = 6
    SL = lambda i: i * 16384
    stage_off = [SL(6), SL(7), SL(8), SL(9), SL(4), SL(5)]
    bbase = {4: 0, 5: 32, 0: 64, 1: 96, 2: 128, 3: 160}
    def kdma(slot):
        return [[f's_add_u32 m0, s{sM0}, {SL(slot)}'], ['s_nop 0']] + \
               [[f'buffer_load_dwordx4 v{vKD+n}, s[20:23], s{sK} offen offset:{n*1024} lds'] for n in range(4)] + \
               [[f's_add_u32 s{sK}, s{sK}, 16384']]
    def vdma(slot):
        return [[f's_add_u32 m0, s{sM0}, {SL(4+slot)}'], ['s_nop 0']] + \
               [[f'buffer_load_dwordx4 v{vVD+(n&1)}, s[24:27], s{sV} offen offset:{n*1024} lds'] for n in range(4)] + \
               [[f's_add_u32 s{sV}, s{sV}, 16384']]
    def zero(base):
        return [[f'v_accvgpr_write_b32 a{base+i}, 0'] for i in range(32)]
    def extra(t):
        if t == 10: return [[x] for x in gld]
        if t == 11: return kdma(0) + kdma(1) + vdma(0) + zero(0)
        if t == 12: return kdma(2) + vdma(1) + zero(32)
        if t == 13: return kdma(3) + vdma(2) + zero(64)
        if t == 14: return zero(96)
        return []
    def extra_p(t):
        return {12: 12, 13: 20, 14: 28}.get(t, 0)
    acc0 = 128
    g = Gemm(k, 8, 4, 256, S, 4, 8, 16,
             acc=lambda a, b: R4('v', acc0 + (a * 4 + b) * 4),
             aring=lambda s: ('a', 192 + 4 * s),
             bring=lambda st, ks, b: R4('a', bbase[st] + (ks * 4 + b) * 4),
             vA=[None, [vVA + a for a in range(8)], [vTA2 + a for a in range(8)]], lds_base=0,
             srdW=12, sW=sW, wpitch=8192, wdma=wd, sM0=sM0, srdX=16, sX=sX, vX=[vX, vX + 1],
             extra_loads=extra, stage_off=stage_off)
    g.make_sched(*sched)
    g.prologue_loads()
    tr_addr_regs(k, vVA, 8, 256, tmp, 1, add=0x10000)
    for a in range(8): k(f'v_add_u32 v{vTA2+a}, 0x10000, v{vVA+a}')
    k(f'v_and_b32 v{tmp}, 15, v1')
    k(f'v_lshrrev_b32 v{tmp+1}, 4, v1')
    k(f'v_xor_b32 v{tmp+2}, v{tmp}, v{tmp+1}')
    k(f'v_lshlrev_b32 v{tmp+3}, 8, v{tmp}')
    for ds in range(4):
        k(f'v_xor_b32 v{tmp+4}, {4*ds}, v{tmp+2}')
        k(f'v_lshl_add_u32 v{vKA+ds}, v{tmp+4}, 4, v{tmp+3}')
    k(f'v_lshlrev_b32 v{tmp+3}, 8, v{tmp+1}')
    k(f'v_add_u32 v{tmp+3}, s{sM0}, v{tmp+3}')
    for n in range(4):
        k(f'v_xor_b32 v{tmp+4}, {4*n}, v{tmp+2}')
        k(f'v_lshl_add_u32 v{vKD+n}, v{tmp+4}, 4, v{tmp+3}')
    k(f'v_lshlrev_b32 v{tmp+4}, 1, v{tmp+1}')
    k(f'v_xor_b32 v{tmp+4}, v{tmp+4}, v{tmp}')
    k(f'v_lshl_add_u32 v{vVD}, v{tmp+4}, 4, v{tmp+3}')
    k(f'v_xor_b32 v{tmp+4}, 8, v{tmp+4}')
    k(f'v_lshl_add_u32 v{vVD+1}, v{tmp+4}, 4, v{tmp+3}')
    k(f's_lshl_b32 s48, s{sHEAD}, 19')
    srd_off(k, 20, 4, 's48', 524288)
    srd_off(k, 24, 6, 's48', 524288)
    srd_off(k, 28, 10, WS_O, 16 * MB)
    k(f's_mov_b32 s{sK}, 0')
    k(f's_mov_b32 s{sV}, 0')
    k.srd(32, 32, 4096 * 2048); k.srd(36, 36, 1024 * 7168); k.srd(60, 60, 3584 * 2048)
    sPF, sST0, sST2, sL1 = 59, 56, 49, 46
    vPF, vD0, vD2, vS1, vD1, vN1, vJ1 = 7, 54, 55, 56, 57, 58, 59
    srd_off(k, 72, 10, WS_WO, 24 * MB)
    k(f's_mov_b32 s{sPF}, 0')
    k(f's_mov_b32 s{sL1}, 0')
    k(f's_mov_b32 s{sST0}, 0x70000000')
    k(f's_mov_b32 s{sST2}, 0x70000000')
    k('s_lshl_b32 s48, s2, 12')
    k(f'v_lshl_add_u32 v{vPF}, v0, 4, s48')
    k(f's_lshl_b32 s42, s2, 2')
    k(f's_add_u32 s42, s42, s{sWAVE}')
    k('s_lshr_b32 s43, s42, 1')
    k('s_and_b32 s45, s42, 1')
    k('s_and_b32 s48, s43, 7')
    k('s_lshl_b32 s48, s48, 1')
    k(f'v_xor_b32 v{tmp+4}, s48, v{tmp}')
    k(f'v_lshlrev_b32 v{tmp+4}, 4, v{tmp+4}')
    k(f'v_lshl_add_u32 v{vD0}, v{tmp+1}, 20, v{tmp+4}')
    k('s_lshl_b32 s48, s45, 22')
    k('s_lshl_b32 s62, s43, 8')
    k('s_add_u32 s48, s48, s62')
    k(f'v_add_u32 v{vD0}, s48, v{vD0}')
    k('s_bfe_u32 s48, s43, 0x20001')
    k('s_lshl_b32 s48, s48, 1')
    k(f'v_and_b32 v{tmp+4}, 7, v1')
    k(f'v_xor_b32 v{tmp+4}, s48, v{tmp+4}')
    k(f'v_lshrrev_b32 v{tmp+5}, 3, v1')
    k(f'v_mul_u32_u24 v{tmp+5}, {3584*128}, v{tmp+5}')
    k(f'v_lshl_add_u32 v{vD2}, v{tmp+4}, 4, v{tmp+5}')
    k(f's_mul_i32 s48, s45, {8*3584*128}')
    k('s_lshl_b32 s62, s43, 7')
    k('s_add_u32 s48, s48, s62')
    k(f's_add_u32 s48, s48, {WS_W2 - WS_WO}')
    k(f'v_add_u32 v{vD2}, s48, v{vD2}')
    k('s_mul_i32 s48, s42, 7168')
    k(f'v_lshl_add_u32 v{vS1}, v1, 4, s48')
    k(f'v_mul_u32_u24 v{tmp+4}, 74, v1')
    k(f'v_lshrrev_b32 v{tmp+4}, 10, v{tmp+4}')
    k(f'v_mul_u32_u24 v{tmp+5}, 14, v{tmp+4}')
    k(f'v_sub_u32 v{vJ1}, v1, v{tmp+5}')
    k(f'v_mul_u32_u24 v{tmp+4}, {1024*224}, v{tmp+4}')
    k(f'v_lshl_add_u32 v{vN1}, v{vJ1}, 4, v{tmp+4}')
    k('s_mul_i32 s48, s42, 224')
    k(f's_add_u32 s48, s48, {WS_W1 - WS_WO}')
    k(f'v_add_u32 v{vN1}, s48, v{vN1}')
    k(f'v_mov_b32 v{vD1}, 0x70000000')
    k(f'v_mov_b32 v60, {1024*224 - 224}')
    k('s_mov_b32 s62, 3584 * 2048')
    GA = [48, 49, 50, 51, 52, 53, 63, 2]; vGW, vGS, vGT0, vGT1, vGA, vGB = 28, 27, 26, 3, 4, 5
    sGW, sGS = 76, 77
    k.srd(64, 64, 1024 * 12288)
    srd_off(k, 68, 10, 0, WS_MP2 + 16 * 16384)
    k(f'v_lshrrev_b32 v{vGB}, 3, v1')
    k(f'v_mul_u32_u24 v{vGA}, 12288, v{vGB}')
    k(f'v_and_b32 v{vGT1}, 7, v1')
    k(f'v_lshl_add_u32 v{vGA}, v{vGT1}, 4, v{vGA}')
    k(f'v_lshlrev_b32 v{vGB}, 2, v{vGB}')
    k('s_and_b32 s48, s42, 15')
    k(f's_mul_i32 s{sGW}, s48, {64*12288}')
    k('s_lshr_b32 s43, s2, 2')
    k('s_lshl_b32 s45, s43, 7')
    k(f's_add_u32 s{sGW}, s{sGW}, s45')
    k(f's_add_u32 s{sGW}, s{sGW}, 4096')
    k(f's_lshl_b32 s{sGS}, s48, 8')
    k(f's_add_u32 s{sGS}, s{sGS}, {WS_SC}')
    k('s_lshl_b32 s48, s48, 14')
    k('s_lshl_b32 s43, s43, 8')
    k('s_add_u32 s43, s43, s48')
    k(f's_add_u32 s43, s43, {WS_MP2}')
    for r in GA: k(f'v_mov_b32 v{r}, 0')
    k.code_srd(4, Ltail)
    k('s_lshr_b32 s8, s2, 3')
    k('s_lshl_b32 s8, s8, 12')
    k('v_lshlrev_b32 v6, 4, v0')
    gld = [f'buffer_load_dwordx4 {R4("v", vGW)}, v{vGA}, s[64:67], s{sGW} offen',
           f'buffer_load_dword v{vGS}, v{vGB}, s[68:71], s{sGS} offen',
           f's_add_u32 s{sGW}, s{sGW}, {8*12288}', f's_add_u32 s{sGS}, s{sGS}, 32']
    gfma = []
    for j in range(4):
        gfma += [f'v_lshlrev_b32 v{vGT0}, 16, v{vGW+j}', f'v_and_b32 v{vGT1}, 0xffff0000, v{vGW+j}',
                 f'v_fmac_f32 v{GA[2*j]}, v{vGT0}, v{vGS}', f'v_fmac_f32 v{GA[2*j+1]}, v{vGT1}, v{vGS}']
    k(f's_mov_b32 s{sTH}, 0x{f2u(2.0**thresh_log2):08x}')
    g.stamp_first = 1
    g.emit(loop_sreg=None)
    k.stamp(2)
    k('s_waitcnt vmcnt(16)')
    k('s_barrier')
    Kfr = lambda kb, ds: aF + 32 + (4 * kb + ds) * 4
    Vfr = lambda db: aF + 4 * db
    def kread(unit, kb, ds, dst=None):
        off = SL((unit >> 1) & 3) + ((unit & 1) * 32 + kb * 16) * 256
        return f'ds_read_b128 {R4("a", Kfr(kb, ds) if dst is None else dst)}, v{vKA+ds} offset:{off}'
    def vread(unit, db, hf):
        off = SL((unit >> 1) & 3) + ((unit & 1) * 32 + hf * 16) * 256
        return f'ds_read_b64_tr_b16 {R2("a", Vfr(db) + 2*hf)}, v{vVA+db} offset:{off}'
    for kb in range(2):
        for ds in range(4): k(kread(0, kb, ds, dst=Vfr(4 * kb + ds)))
    sc = math.log2(math.e) / math.sqrt(128.0)
    k(f'v_mov_b32 v46, 0x{f2u(sc):08x}'); k(f'v_mov_b32 v47, 0x{f2u(sc):08x}')
    Qf = lambda qb, ds: vQ + (qb * 4 + ds) * 4
    for u in range(4):
        for qb in range(4):
            p = Qf(qb, u)
            for h in range(2):
                A = acc0 + ((2 * u + h) * 4 + qb) * 4
                k(f'v_pk_mul_f32 {R2("v", A)}, {R2("v", A)}, {R2("v", 46)}')
                k(f'v_pk_mul_f32 {R2("v", A+2)}, {R2("v", A+2)}, {R2("v", 46)}')
                k(f'v_cvt_pk_bf16_f32 v{p+2*h}, v{A}, v{A+1}')
                k(f'v_cvt_pk_bf16_f32 v{p+2*h+1}, v{A+2}, v{A+3}')
        for sw in ('32', '16'):
            for qb in range(4):
                p = Qf(qb, u)
                k(f'v_permlane{sw}_swap_b32 v{p}, v{p+2}')
                k(f'v_permlane{sw}_swap_b32 v{p+1}, v{p+3}')
    k('s_waitcnt lgkmcnt(0)')
    for kb in range(2):
        for ds in range(4): k(kread(1, kb, ds))
    Sb = lambda N, kb, qb: vS + 32 * (N & 1) + (kb * 4 + qb) * 4
    Pb = lambda N, qb: vP + 16 * (N & 1) + 4 * qb
    Lb = lambda qb: vL + 4 * qb
    NM = lambda qb: vNM + 4 * qb
    for i in range(16): k(f'v_mov_b32 v{vL+i}, 0')
    for i in range(4): k(f'v_mov_b32 v{vONE+i}, 0x3f803f80')
    def qk(N, kb, ds, qb, fr=None, czero=False):
        d = R4('v', Sb(N, kb, qb))
        c = ('0' if czero else R4('v', NM(qb))) if ds == 0 else d
        return f'{MF} {d}, {R4("a", Kfr(kb, ds) if fr is None else fr)}, {R4("v", Qf(qb, ds))}, {c}'
    def pv(N, db, qb):
        d = R4('a', aO + (db * 4 + qb) * 4)
        return f'{MF} {d}, {R4("a", Vfr(db))}, {R4("v", Pb(N, qb))}, {d}'
    def ones(N, qb):
        return f'{MF} {R4("v", Lb(qb))}, {R4("v", vONE)}, {R4("v", Pb(N, qb))}, {R4("v", Lb(qb))}'
    def E(N, i):
        return f'v_exp_f32 v{vE + (i & 7)}, v{Sb(N, i >> 4, (i >> 2) & 3) + (i & 3)}'
    def C(N, j):
        i = 2 * j
        return f'v_cvt_pk_bf16_f32 v{Pb(N, (i >> 2) & 3) + 2 * (i >> 4) + ((i >> 1) & 1)}, v{vE + (i & 7)}, v{vE + (i & 7) + 1}'
    def xmax(D, X):
        for sw in ('16', '32'):
            k(f'v_mov_b32 v{X}, v{D}')
            k('s_nop 1')
            k(f'v_permlane{sw}_swap_b32 v{D}, v{X}')
            k(f'v_max_f32 v{D}, v{D}, v{X}')
    for kb in range(2):
        for ds in range(4):
            for qb in range(4): k(qk(0, kb, ds, qb, fr=Vfr(4 * kb + ds), czero=True))
    k('s_waitcnt lgkmcnt(0)')
    for kb in range(2):
        for ds in range(4):
            for qb in range(4): k(qk(1, kb, ds, qb, czero=True))

    NG = 68
    def build_iter(N):
        T = (N - 1) >> 1
        first_in_pair = (N & 1) == 1
        mf = [pv(N - 1, db, qb) for db in range(8) for qb in range(4)]
        mf += [ones(N - 1, qb) for qb in range(4)]
        mf += [qk(N + 1, kb, ds, qb) for kb in range(2) for ds in range(4) for qb in range(4)]
        first = [[] for _ in range(NG)]; rest = [[] for _ in range(NG)]; cost = [0] * NG
        def put(g, ins, mem=False, c=1):
            (first if mem else rest)[g].append(ins); cost[g] += c
        for i in range(32):
            gp = E0 + 2 * i
            if gp < NG: put(gp, E(N + 1, i), c=2)
            else: put(gp - NG, E(N, i), c=2)
        for j in range(16):
            gp = E0 + 2 * (2 * j + 1) + 1
            if gp < NG: put(gp, C(N + 1, j))
            else: put(gp - NG, C(N, j))
        rd = []
        for db in range(8):
            for hf in range(2):
                gp = 4 * db - lead + 2 * hf
                rd.append((gp % NG, vread(N - 1 if gp >= 0 else N, db, hf), ('V', db) if gp >= 0 else ('Vn', db)))
        for i in range(8):
            gp = 36 + 4 * i - lead
            rd.append((gp, kread(N + 1, i >> 2, i & 3), ('K', i)))
        rd.sort(key=lambda x: x[0])
        for gp, ins, tag in rd: put(gp, ins, mem=True)
        cyc = [(gp - NG, 'V' if tag[0] == 'Vn' else 'old', tag[1]) for gp, _, tag in rd] + \
              [(gp, tag[0], tag[1]) for gp, _, tag in rd]
        waits = {}
        for at, kind, hi in ((0, 'V', 3), (16, 'V', 7), (36, 'K', 3), (52, 'K', 7)):
            lastidx = max(i for i, x in enumerate(cyc) if x[1] == kind and x[2] == hi)
            n_after = sum(1 for i, x in enumerate(cyc) if i > lastidx and x[0] < at)
            assert cyc[lastidx][0] < at
            waits[at] = n_after
        for at in (16, 36, 52): put(at - 1, f's_waitcnt lgkmcnt({waits[at]})')
        put(NG - 1, f's_waitcnt lgkmcnt({waits[0]})')
        BG = (0 - lead) % NG - 2
        if not first_in_pair:
            X = lambda T: (2 if T % 4 < 3 else 1) + (2 if T % 4 == 1 else 0)
            npf = X(T - 1) + X(T)
            if T % 4 == 0: npf -= 1
            put(BG, f's_waitcnt vmcnt({12 + npf})'); put(BG, 's_barrier')
            pre = gfma[:10] if T % 4 == 0 else (gfma[10:] + gld if T % 4 == 1 else [])
            gp = 0
            for ins in pre:
                while cost[gp] >= 2: gp += 1
                assert gp < BG
                put(gp, ins, mem=ins.startswith('buffer') and not rest[gp])
            dma = [x[0] for x in kdma(T % 4) if x[0] != 's_nop 0']; gp = BG + 1
        else:
            dma = [x[0] for x in vdma((T + 3) % 4) if x[0] != 's_nop 0']; gp = 0
            if T % 4 == 0:
                dma += [f'buffer_store_dwordx4 a[192:195], v{vD0}, s[72:75], s{sST0} offen',
                        f'buffer_load_dwordx4 a[192:195], v{vPF}, s[32:35], s{sPF} offen']
            if T % 4 == 1:
                dma += [f'buffer_store_dwordx4 a[196:199], v{vD1}, s[72:75], 0 offen',
                        f'buffer_load_dwordx4 a[196:199], v{vS1}, s[36:39], s{sL1} offen',
                        f'v_mov_b32 v{vD1}, v{vN1}',
                        f'v_add_u32 v{vJ1}, 8, v{vJ1}',
                        f'v_add_u32 v{vN1}, {4*1024*224 + 128}, v{vN1}',
                        f'v_cmp_lt_u32 vcc, 13, v{vJ1}',
                        f's_add_u32 s{sL1}, s{sL1}, 1024',
                        f'v_cndmask_b32 v61, 0, v60, vcc',
                        f'v_cndmask_b32 v62, 0, 14, vcc',
                        f'v_add_u32 v{vN1}, v61, v{vN1}',
                        f'v_sub_u32 v{vJ1}, v{vJ1}, v62']
            if T % 4 == 2:
                dma += [f'buffer_store_dwordx4 a[200:203], v{vD2}, s[72:75], s{sST2} offen',
                        f'buffer_load_dwordx4 a[200:203], v{vPF}, s[60:63], s{sPF} offen']
            if T % 4 == 3:
                dma += ['buffer_load_dwordx4 a[204:207], v6, s[4:7], s8 offen ; pf', f's_lshr_b32 s{sST0}, s{sPF}, 3', f's_lshr_b32 s{sST2}, s{sPF}, 4', f's_add_u32 s{sPF}, s{sPF}, 0x100000']
        for ins in dma:
            while cost[gp] >= 2: gp += 1
            put(gp, ins, mem=ins.startswith('buffer'))
            if not ins.startswith('buffer_load'): gp += 1
        out = []
        for gi in range(NG):
            fl = first[gi] + rest[gi]
            if 'nobar' in dbg: fl = [x for x in fl if x != 's_barrier']
            if 'novm' in dbg: fl = [x for x in fl if not x.startswith(('buffer_', 's_waitcnt vmcnt'))]
            if 'nods' in dbg: fl = [x for x in fl if not x.startswith(('ds_', 's_waitcnt lgkm'))]
            if 'noexp' in dbg: fl = [x for x in fl if not x.startswith('v_exp')]
            if 'nocvt' in dbg: fl = [x for x in fl if not x.startswith('v_cvt')]
            out.append(mf[gi]); out += fl
            if cost[gi] > 2: print('gap over', N, gi, cost[gi], first[gi] + rest[gi])
        return out, waits[0], rd

    for gp, ins, tag in build_iter(0)[2]:
        if tag[0] == 'Vn': k(ins)
    D, X = vT, vT + 1
    for qb in range(4):
        regs = [Sb(M, kb, qb) + r for M in (0, 1) for kb in range(2) for r in range(4)]
        k(f'v_max3_f32 v{D}, v{regs[0]}, v{regs[1]}, v{regs[2]}')
        for i in range(3, 15, 2): k(f'v_max3_f32 v{D}, v{D}, v{regs[i]}, v{regs[i+1]}')
        k(f'v_max_f32 v{D}, v{D}, v{regs[15]}')
        xmax(D, X)
        k(f'v_sub_f32 v{NM(qb)}, 0x{f2u(-float(bias)):08x}, v{D}')
        for r in range(1, 4): k(f'v_mov_b32 v{NM(qb)+r}, v{NM(qb)}')
        for r in regs[::2]: k(f'v_pk_add_f32 {R2("v", r)}, {R2("v", r)}, {R2("v", NM(qb))}')
    for i in range(0, 32, 2):
        k(E(0, i)); k(E(0, i + 1))
        if i: k(C(0, (i >> 1) - 1))
    k('s_nop 0')
    k(C(0, 15))
    for i in range(32):
        if E0 + 2 * i < NG: k(E(1, i)); k('s_nop 0')
        if i & 1 and E0 + 2 * i + 1 < NG: k(C(1, i >> 1))
    k(f's_mov_b32 s{sCNT}, 8')
    k(f's_waitcnt lgkmcnt({build_iter(1)[1]})')
    k.stamp(3)
    k(f'{Lloop}:')
    for N in range(1, 9):
        ins, w0, _ = build_iter(N)
        cnt = 0
        for idx, x in enumerate(ins):
            if x.startswith(MF):
                if N == 7 and cnt == 34: k(f's_sub_u32 s{sCNT}, s{sCNT}, 1')
                if N == 7 and cnt == 35: k(f's_cmp_eq_u32 s{sCNT}, 0')
                if N == 7 and cnt == 36:
                    k(f's_cbranch_scc1 {Ltail}')
                    tail_rest = ins[idx:]
                cnt += 1
            if N == 7 and cnt == 36: assert not (x.startswith('s_') and not x.startswith('s_waitcnt')), x
            k(x)
    k(f's_branch {Lloop}')
    k(f'{Ltail}:')
    k.stamp(4)
    N = 7
    k(f'buffer_store_dwordx4 a[192:195], v{vD0}, s[72:75], s{sST0} offen')
    for db in range(8):
        for hf in range(2): k(vread(N, db, hf))
    for x in tail_rest:
        if x.startswith('v_exp') and any(x == E(N, i) for i in range(32)): k(x); k('s_nop 0')
        elif x.startswith('v_cvt') and any(x == C(N, j) for j in range(16)): k(x)
    k('s_waitcnt lgkmcnt(0)')
    k('s_nop 0')
    red = [f'v_add_f32_dpp v{r}, v{r}, v{r} row_ror:8 row_mask:0xf bank_mask:0xf' for r in GA]
    red += [f'v_permlane16_swap_b32 v{GA[j]}, v{GA[j+1]}' for j in range(0, 8, 2)]
    red += [f'v_add_f32 v{GA[j]}, v{GA[j]}, v{GA[j+1]}' for j in range(0, 8, 2)]
    red += [f'v_and_b32 v{vGA}, 7, v1', f'v_lshrrev_b32 v{vGB}, 4, v1']
    red += [f'v_permlane32_swap_b32 v{GA[0]}, v{GA[2]}', f'v_permlane32_swap_b32 v{GA[4]}, v{GA[6]}']
    red += [f'v_add_f32 v{GA[0]}, v{GA[0]}, v{GA[2]}', f'v_add_f32 v{GA[4]}, v{GA[4]}, v{GA[6]}']
    red += [f'v_lshl_add_u32 v{vGA}, v{vGA}, 3, v{vGB}', f'v_lshlrev_b32 v{vGA}, 2, v{vGA}']
    red += [f'buffer_store_dword v{GA[0]}, v{vGA}, s[68:71], s43 offen', f'buffer_store_dword v{GA[4]}, v{vGA}, s[68:71], s43 offen offset:16']
    for qb in range(4): k(ones(N, qb))
    for db in range(8):
        for qb in range(4):
            k(pv(N, db, qb))
            if red: k(red.pop(0))
    assert not red
    k(f'v_max3_f32 v{vT}, v{Lb(0)}, v{Lb(1)}, v{Lb(2)}')
    k(f'v_max_f32 v{vT}, v{vT}, v{Lb(3)}')
    k(f'v_cmp_nge_f32 vcc, s{sTH}, v{vT}')
    k(f's_cbranch_vccnz {Lslow}')
    k(f'{Lepi}:')
    RC = vE
    for qb in range(4):
        k(f'v_rcp_f32 v{RC+2*qb}, v{Lb(qb)}')
        k('s_nop 0')
        k(f'v_mov_b32 v{RC+2*qb+1}, v{RC+2*qb}')
    k('v_lshlrev_b32 v6, 4, v1')
    k(f's_lshl_b32 s48, s{sHEAD}, 9')
    k(f's_add_u32 s48, s48, s{sMB0}')
    k('s_lshl_b32 s48, s48, 10')
    n = 0
    for u in range(4):
        for qb in range(4):
            X = vS + (n % 4) * 8; D = vP + (n % 4) * 4; n += 1
            for h in range(2):
                a = aO + ((2 * u + h) * 4 + qb) * 4
                for r in range(4): k(f'v_accvgpr_read_b32 v{X+4*h+r}, a{a+r}')
            for j in range(4): k(f'v_pk_mul_f32 {R2("v", X+2*j)}, {R2("v", X+2*j)}, {R2("v", RC+2*qb)}')
            for j in range(4): k(f'v_cvt_pk_bf16_f32 v{D+j}, v{X+2*j}, v{X+2*j+1}')
            k(f'buffer_store_dwordx4 {R4("v", D)}, v6, s[28:31], s48 offen offset:{qb*1024}')
        if u < 3: k('s_add_u32 s48, s48, 131072')
    k.stamp_out(kidx)
    k(f'{Lend}:')
    k('s_endpgm')

    k(f'{Lslow}:')
    k('s_waitcnt vmcnt(0)')
    MX = vL + 16
    vKG = vL + 20
    vVP = vL + 22
    vVG = vL + 30
    k(f'v_and_b32 v{tmp}, 15, v1')
    k(f'v_lshrrev_b32 v{tmp+1}, 4, v1')
    k(f'v_lshlrev_b32 v{vKG}, 8, v{tmp}')
    k(f'v_lshl_add_u32 v{vKG}, v{tmp+1}, 4, v{vKG}')
    k(f'v_add_u32 v{vKG+1}, 4096, v{vKG}')
    k(f's_lshl_b32 s48, s{sWAVE}, 13')
    k(f's_add_u32 s48, s48, {SL(8)}')
    k(f's_sub_u32 s49, s48, 0x10000')
    for db in range(8): k(f'v_add_u32 v{vVP+db}, s49, v{vVA+db}')
    for j in range(2): k(f'v_subrev_u32 v{vVG+j}, s{sM0}, v{vVD+j}')
    for qb in range(4): k(f'v_mov_b32 v{MX+qb}, 0xff7fffff')
    for i in range(16): k(f'v_mov_b32 v{vNM+i}, 0')
    k(f's_mov_b32 s{sFIRST}, 0')
    Lp = k.label('spass'); Lu = k.label('sunit'); Lp1 = k.label('sp1'); Lnx = k.label('snext'); Lnov = k.label('snov')
    k(f'{Lp}:')
    k(f's_mov_b32 s{sK}, 0')
    k(f'{Lu}:')
    for kb in range(2):
        for ds in range(4):
            k(f'buffer_load_dwordx4 {R4("a", Kfr(kb, ds))}, v{vKG+kb}, s[20:23], s{sK} offen offset:{ds*64}')
    k(f's_cmp_eq_u32 s{sFIRST}, 0')
    k(f's_cbranch_scc1 {Lnov}')
    for half in range(2):
        k(f's_add_u32 m0, s48, {half*4096}')
        k(f's_add_u32 s49, s{sK}, {half*4096}')
        for n in range(4):
            k(f'buffer_load_dwordx4 v{vVG+(n&1)}, s[24:27], s49 offen offset:{n*1024} lds')
    k(f'{Lnov}:')
    k('s_waitcnt vmcnt(0)')
    for kb in range(2):
        for ds in range(4):
            for qb in range(4): k(qk(0, kb, ds, qb))
    k('s_nop 7')
    k(f's_cmp_eq_u32 s{sFIRST}, 0')
    k(f's_cbranch_scc0 {Lp1}')
    for qb in range(4):
        regs = [Sb(0, kb, qb) + r for kb in range(2) for r in range(4)]
        for i in range(0, 8, 2): k(f'v_max3_f32 v{MX+qb}, v{MX+qb}, v{regs[i]}, v{regs[i+1]}')
    k(f's_branch {Lnx}')
    k(f'{Lp1}:')
    for db in range(8):
        for hf in range(2):
            k(f'ds_read_b64_tr_b16 {R2("a", Vfr(db) + 2*hf)}, v{vVP+db} offset:{hf*4096}')
    for i in range(0, 32, 2):
        k(E(0, i)); k(E(0, i + 1)); k('s_nop 0'); k(C(0, i >> 1))
    k('s_waitcnt lgkmcnt(0)')
    k('s_nop 0')
    for qb in range(4): k(ones(0, qb))
    for db in range(8):
        for qb in range(4): k(pv(0, db, qb))
    k(f'{Lnx}:')
    k(f's_add_u32 s{sK}, s{sK}, 8192')
    k(f's_cmp_lt_u32 s{sK}, 524288')
    k(f's_cbranch_scc1 {Lu}')
    k('s_nop 7')
    k(f's_cmp_eq_u32 s{sFIRST}, 0')
    k(f's_cbranch_scc0 {Lepi}')
    for qb in range(4):
        xmax(MX + qb, vT)
        for r in range(4): k(f'v_sub_f32 v{NM(qb)+r}, 0, v{MX+qb}')
    for i in range(16): k(f'v_mov_b32 v{vL+i}, 0')
    for i in range(128): k(f'v_accvgpr_write_b32 a{aO+i}, 0')
    k(f's_mov_b32 s{sFIRST}, 1')
    k(f's_branch {Lp}')
    k.noreplay = {Lepi, Lp}
    return k
```

```python
from gen_small import *
WS_MP = 65536
WS_SC = 49152
WS_MP2 = 262144

CPF = True
def R4(kind, i): return f'{kind}[{i}:{i+3}]'
def R2(kind, i): return f'{kind}[{i}:{i+1}]'

def gemv_body(k, s_unit, nunits_x, colgrp0, nthreads, Lend):
    nsub = nthreads // 256
    k(f's_and_b32 s20, s{s_unit}, 7')
    k(f's_lshr_b32 s21, s{s_unit}, 3')
    k('s_and_b32 s22, s21, 3')
    k('s_lshr_b32 s21, s21, 2')
    k(f's_mul_i32 s20, s20, {nunits_x // 4}')
    k('s_add_u32 s20, s20, s21')
    if nsub == 2: k('s_lshl_b32 s20, s20, 1')
    k(f's_add_u32 s20, s20, {colgrp0}')
    k('v_and_b32 v5, 255, v0')
    k('v_lshrrev_b32 v1, 2, v5')
    k('v_and_b32 v2, 3, v0')
    k('s_mov_b32 s23, 12288')
    k('v_mul_lo_u32 v3, v1, s23')
    k('v_lshl_add_u32 v3, v2, 4, v3')
    if nsub == 2:
        k('v_lshrrev_b32 v6, 8, v0')
        k('v_lshl_add_u32 v3, v6, 6, v3')
    k('v_lshlrev_b32 v4, 1, v1')
    k(f's_mul_i32 s24, s22, {256*12288}')
    k('s_lshl_b32 s21, s20, 6')
    k('s_add_u32 s21, s21, s24')
    k('s_lshl_b32 s24, s22, 9')
    k('s_waitcnt lgkmcnt(0)')
    k.srd(12, 6, 1024 * 6144 * 2)
    k.srd(16, 4, 2048)
    for p in range(4):
        k(f'buffer_load_ushort v{40+p}, v4, s[16:19], s24 offen offset:{p*128}')
    for p in range(4):
        k(f'buffer_load_dwordx4 v[{16+4*p}:{16+4*p+3}], v3, s[12:15], s21 offen')
        if p < 3: k(f's_add_u32 s21, s21, {64*12288}')

def gemv_finish(k, nthreads, Lend, npf=0, table=False):
    k('s_mov_b32 s23, 0xbfb8aa3b')
    k(f's_waitcnt vmcnt({4+npf})')
    for p in range(4): k(f'v_lshlrev_b32 v{40+p}, 16, v{40+p}')
    for p in range(4): k(f'v_mul_f32 v{44+p}, s23, v{40+p}')
    for p in range(4): k(f'v_exp_f32 v{44+p}, v{44+p}')
    for p in range(4): k(f'v_add_f32 v{44+p}, 1.0, v{44+p}')
    for p in range(4): k(f'v_rcp_f32 v{44+p}, v{44+p}')
    for p in range(4): k(f'v_mul_f32 v{40+p}, v{40+p}, v{44+p}')
    round_pair(k, 40, 41, 44); round_pair(k, 42, 43, 45)
    if table:
        srd_off(k, 32, 8, WS_SC, 4096)
        k('s_lshl_b32 s26, s22, 10')
        k('s_cmp_eq_u32 s20, 0')
        k('s_cselect_b32 s26, s26, 0x10000')
        k('v_lshlrev_b32 v7, 2, v1')
        for p in range(4): k(f'buffer_store_dword v{40+p}, v7, s[32:35], s26 offen offset:{p*256}')
        npf += 4
    for p in range(4):
        k(f's_waitcnt vmcnt({3-p+npf})')
        for j in range(4):
            w = 16 + 4 * p + j
            k(f'v_lshlrev_b32 v46, 16, v{w}')
            k(f'v_and_b32 v47, 0xffff0000, v{w}')
            op = 'v_mul_f32' if p == 0 else 'v_fmac_f32'
            k(f'{op} v{8+2*j}, v46, v{40+p}')
            k(f'{op} v{9+2*j}, v47, v{40+p}')
    for sh in (4, 8):
        for j in range(8):
            k(f'v_add_f32_dpp v{8+j}, v{8+j}, v{8+j} row_ror:{sh} row_mask:0xf bank_mask:0xf')
    for j in range(0, 8, 2): k(f'v_permlane16_swap_b32 v{8+j}, v{9+j}')
    for j in range(0, 8, 2): k(f'v_add_f32 v{8+j}, v{8+j}, v{9+j}')
    k('s_nop 0')
    k('v_permlane32_swap_b32 v8, v10')
    k('v_permlane32_swap_b32 v12, v14')
    k('v_add_f32 v8, v8, v10')
    k('v_add_f32 v9, v12, v14')
    k('v_and_b32 v1, 63, v0')
    k('v_lshrrev_b32 v3, 4, v1')
    k('v_lshl_add_u32 v3, v2, 3, v3')
    k('v_lshrrev_b32 v4, 6, v0')
    k('v_lshl_add_u32 v3, v4, 5, v3')
    k('v_lshlrev_b32 v3, 2, v3')
    k('ds_write2_b32 v3, v8, v9 offset0:0 offset1:4')
    k('s_waitcnt lgkmcnt(0)')
    k('s_barrier')
    ncol = 32 * (nthreads // 256)
    k(f'v_cmp_gt_u32 vcc, {ncol}, v0')
    k('s_and_saveexec_b64 s[24:25], vcc')
    k(f's_cbranch_execz {Lend}')
    k('v_and_b32 v1, 31, v0')
    k('v_lshrrev_b32 v2, 5, v0')
    k('v_lshlrev_b32 v3, 9, v2')
    k('v_lshl_add_u32 v3, v1, 2, v3')
    k('ds_read2_b32 v[8:9], v3 offset0:0 offset1:32')
    k('ds_read2_b32 v[10:11], v3 offset0:64 offset1:96')
    srd_off(k, 12, 8, WS_MP, 4 * 6144 * 4)
    k('s_mul_i32 s22, s22, 24576')
    k('s_lshl_b32 s21, s20, 7')
    k('s_add_u32 s21, s21, s22')
    k('v_lshlrev_b32 v4, 2, v0')
    k('s_waitcnt lgkmcnt(0)')
    k('v_add_f32 v8, v8, v9')
    k('v_add_f32 v10, v10, v11')
    k('v_add_f32 v8, v8, v10')
    k('buffer_store_dword v8, v4, s[12:15], s21 offen')

def gen_mod(pf=True):
    k = Kern('mod_kernel', (256, 1, 1), (256, 1, 1), 1024, vgpr=64, sgpr=48)
    Lend = k.label('end')
    k('s_cmp_ge_u32 s2, 256')
    k(f's_cbranch_scc1 {Lend}')
    k.stamp(0)
    k(f's_load_dwordx4 s[4:7], s[0:1], {A_C}')
    k(f's_load_dwordx2 s[8:9], s[0:1], {A_WS}')
    if pf: k(f's_load_dwordx2 s[28:29], s[0:1], {A_X}')
    gemv_body(k, 2, 32, 0, 256, Lend)
    npf = 0
    if pf:
        k.srd(28, 28, 4 * MB)
        k('v_lshlrev_b32 v6, 4, v0')
        k('s_lshl_b32 s26, s2, 14')
        for j in range(4):
            k(f'buffer_load_dwordx4 v[48:51], v6, s[28:31], s26 offen ; pf')
            if j < 3: k('s_add_u32 s26, s26, 4096')
        npf = 4
        if CPF:
            k.code_srd(36, 'ln1_kernel')
            k('s_lshr_b32 s26, s2, 3')
            k('s_lshl_b32 s26, s26, 12')
            k('buffer_load_dwordx4 v[48:51], v6, s[36:39], s26 offen ; pf')
            npf = 5
    gemv_finish(k, 256, Lend, npf, table=True)
    k.stamp_out(0)
    k(f'{Lend}:')
    k('s_endpgm')
    return k

def store_porder(k, X_packed, srd, wave, lane):
    P = X_packed
    k(f'v_lshrrev_b32 v5, 2, v{lane}')
    k('v_mul_u32_u24 v5, 528, v5')
    k(f'v_and_b32 v6, 1, v{lane}')
    k('v_lshl_add_u32 v5, v6, 8, v5')
    k(f'v_bfe_u32 v6, v{lane}, 1, 1')
    k('v_lshl_add_u32 v5, v6, 3, v5')
    k(f'v_lshl_add_u32 v5, v{wave}, 4, v5')
    k(f'ds_write_b64 v5, {R2("v", P)}')
    k(f'ds_write_b64 v5, {R2("v", P+2)} offset:128')
    k(f'ds_write_b64 v5, {R2("v", P+4)} offset:{16*528}')
    k(f'ds_write_b64 v5, {R2("v", P+6)} offset:{16*528+128}')
    k('v_lshrrev_b32 v6, 5, v0')
    k('v_and_b32 v7, 31, v0')
    k('v_mul_u32_u24 v5, 528, v6')
    k('v_lshl_add_u32 v5, v7, 4, v5')
    k('v_lshlrev_b32 v6, 17, v6')
    k('v_bfe_u32 v7, v0, 3, 2')
    k('v_lshl_add_u32 v6, v7, 8, v6')
    k('v_and_b32 v7, 7, v0')
    k('v_lshl_add_u32 v6, v7, 4, v6')
    k('s_lshr_b32 s20, s2, 1')
    k('s_lshl_b32 s20, s20, 10')
    k('s_and_b32 s21, s2, 1')
    k('s_lshl_b32 s21, s21, 7')
    k('s_add_u32 s20, s20, s21')
    k(f's_add_u32 s21, s20, {16*131072}')
    k('s_waitcnt lgkmcnt(0)')
    k('s_barrier')
    k(f'ds_read_b128 {R4("v", P)}, v5')
    k(f'ds_read_b128 {R4("v", P+4)}, v5 offset:{16*528}')
    k('s_waitcnt lgkmcnt(1)')
    k(f'buffer_store_dwordx4 {R4("v", P)}, v6, s[{srd}:{srd+3}], s20 offen')
    k('s_waitcnt lgkmcnt(0)')
    k(f'buffer_store_dwordx4 {R4("v", P+4)}, v6, s[{srd}:{srd+3}], s21 offen')

def ln_core_pk(k, X, T, sc):
    t0, t2, C = T, T + 2, T + 8
    k(f'v_pk_add_f32 {R2("v", t0)}, {R2("v", X)}, {R2("v", X+2)}')
    k(f'v_pk_add_f32 {R2("v", t2)}, {R2("v", X+4)}, {R2("v", X+6)}')
    for j in range(8, 16, 4):
        k(f'v_pk_add_f32 {R2("v", t0)}, {R2("v", t0)}, {R2("v", X+j)}')
        k(f'v_pk_add_f32 {R2("v", t2)}, {R2("v", t2)}, {R2("v", X+j+2)}')
    k(f'v_pk_add_f32 {R2("v", t0)}, {R2("v", t0)}, {R2("v", t2)}')
    k(f'v_add_f32 v{t0}, v{t0}, v{t0+1}')
    wave_sum(k, t0, t2)
    k(f'v_mul_f32 v{t0}, s{sc+1}, v{t0}')
    k(f'v_mov_b32 v{t0+1}, v{t0}')
    for j in range(0, 16, 2): k(f'v_pk_add_f32 {R2("v", C+j)}, {R2("v", X+j)}, {R2("v", t0)}')
    k(f'v_pk_mul_f32 {R2("v", t2)}, {R2("v", C)}, {R2("v", C)}')
    k(f'v_pk_mul_f32 {R2("v", T+4)}, {R2("v", C+2)}, {R2("v", C+2)}')
    for j in range(4, 16, 4):
        k(f'v_pk_fma_f32 {R2("v", t2)}, {R2("v", C+j)}, {R2("v", C+j)}, {R2("v", t2)}')
        k(f'v_pk_fma_f32 {R2("v", T+4)}, {R2("v", C+j+2)}, {R2("v", C+j+2)}, {R2("v", T+4)}')
    k(f'v_pk_add_f32 {R2("v", t2)}, {R2("v", t2)}, {R2("v", T+4)}')
    k(f'v_add_f32 v{t2}, v{t2}, v{t2+1}')
    round_pair(k, t0, t0 + 1, T + 4)
    for j in range(0, 16, 2): k(f'v_pk_add_f32 {R2("v", X+j)}, {R2("v", X+j)}, {R2("v", t0)}')
    wave_sum(k, t2, T + 4)
    for j in range(0, 16, 2): k(f'v_cvt_pk_bf16_f32 v{C+j}, v{X+j}, v{X+j+1}')
    k(f'v_mul_f32 v{t2}, s{sc}, v{t2}')
    round_pair(k, t2, t2 + 1, T + 4)
    k(f'v_add_f32 v{t2}, 0x3727c5ac, v{t2}')
    round_pair(k, t2, t2 + 1, T + 4)
    k(f'v_sqrt_f32 v{t2}, v{t2}')
    for j in range(0, 16, 2):
        k(f'v_lshlrev_b32 v{X+j}, 16, v{C+j}')
        k(f'v_and_b32 v{X+j+1}, 0xffff0000, v{C+j}')
    round_pair(k, t2, t2 + 1, T + 4)
    k(f'v_rcp_f32 v{t2}, v{t2}')
    k('s_nop 0')
    k(f'v_mov_b32 v{t2+1}, v{t2}')
    for j in range(0, 16, 2): k(f'v_pk_mul_f32 {R2("v", X+j)}, {R2("v", X+j)}, {R2("v", t2)}')
    round16(k, X, C)

def round16(k, X, C):
    for j in range(0, 16, 2): k(f'v_cvt_pk_bf16_f32 v{C+j}, v{X+j}, v{X+j+1}')
    for j in range(0, 16, 2):
        k(f'v_lshlrev_b32 v{X+j}, 16, v{C+j}')
        k(f'v_and_b32 v{X+j+1}, 0xffff0000, v{C+j}')

def gen_ln1(npf=4):
    MODL = 17408
    k = Kern('ln1_kernel', (512, 1, 1), (512, 1, 1), MODL + 8192, vgpr=96, sgpr=40)
    Lend = k.label('end'); Lg = k.label('gemv')
    k('s_cmp_ge_u32 s2, 256')
    k(f's_cbranch_scc1 {Lg}')
    k.stamp(0)
    k(f's_load_dwordx2 s[4:5], s[0:1], {A_X}')
    k(f's_load_dwordx2 s[8:9], s[0:1], {A_WS}')
    k('v_and_b32 v1, 63, v0')
    k('v_lshrrev_b32 v2, 6, v0')
    k('v_lshlrev_b32 v3, 4, v1')
    k('v_lshl_add_u32 v4, v2, 11, v3')
    k('v_lshlrev_b32 v7, 4, v0')
    k('s_lshl_b32 s20, s2, 14')
    k('s_waitcnt lgkmcnt(0)')
    k.stamp(1)
    k.srd(12, 4, 4 * MB)
    srd_off(k, 16, 8, WS_MP, 4 * 6144 * 4)
    k('buffer_load_dwordx4 v[8:11], v4, s[12:15], s20 offen')
    k('buffer_load_dwordx4 v[12:15], v4, s[12:15], s20 offen offset:1024')
    for p in range(4):
        k(f's_mov_b32 s21, {p*24576}')
        k(f'buffer_load_dwordx4 {R4("v", 16+4*p)}, v7, s[16:19], s21 offen')
    srd_off(k, 24, 8, WS_H, 4 * MB)
    k('s_mov_b32 s22, 0x3a800000')
    k('s_mov_b32 s23, 0xba800000')
    k('s_waitcnt vmcnt(0)')
    k.stamp(2)
    for p in range(1, 4):
        for h in range(2): k(f'v_pk_add_f32 {R2("v", 16+2*h)}, {R2("v", 16+2*h)}, {R2("v", 16+4*p+2*h)}')
    round_pair(k, 16, 17, 20); round_pair(k, 18, 19, 21)
    k('v_cmp_lt_u32 vcc, 255, v0')
    k('s_nop 1')
    k('v_cndmask_b32 v22, 0, 1.0, vcc')
    for j in range(4): k(f'v_add_f32 v{16+j}, v{16+j}, v22')
    round_pair(k, 16, 17, 20); round_pair(k, 18, 19, 21)
    k(f'ds_write_b128 v7, v[16:19] offset:{MODL}')
    X = 32
    unpack8(k, X, 8); unpack8(k, X + 8, 12)
    k('s_waitcnt lgkmcnt(0)')
    k('s_barrier')
    k('v_lshlrev_b32 v5, 5, v1')
    for sec, base in ((1, 64), (0, 48)):
        for h in range(2):
            for q in range(2):
                k(f'ds_read_b128 {R4("v", base + 8*h + 4*q)}, v5 offset:{MODL + sec*4096 + h*2048 + q*16}')
    ln_core_pk(k, X, 8, 22)
    k('s_waitcnt lgkmcnt(0)')
    for j in range(0, 16, 2): k(f'v_pk_mul_f32 {R2("v", X+j)}, {R2("v", X+j)}, {R2("v", 64+j)}')
    round16(k, X, 16)
    for j in range(0, 16, 2): k(f'v_pk_add_f32 {R2("v", X+j)}, {R2("v", X+j)}, {R2("v", 48+j)}')
    for j in range(8): k(f'v_cvt_pk_bf16_f32 v{8+j}, v{X+2*j}, v{X+2*j+1}')
    k.stamp(3)
    store_porder(k, 8, 24, 2, 1)
    k.stamp(4)
    k.stamp_out(1)
    k('s_endpgm')
    k(f'{Lg}:')
    k('s_cmp_ge_u32 s2, 512')
    k(f's_cbranch_scc1 {Lend}')
    k(f's_load_dwordx2 s[28:29], s[0:1], {A_WQ}')
    k('v_and_b32 v1, 63, v0')
    k('v_lshrrev_b32 v2, 6, v0')
    k('v_lshlrev_b32 v6, 18, v2')
    k('v_lshl_add_u32 v6, v1, 4, v6')
    k('s_and_b32 s32, s2, 7')
    k('s_lshl_b32 s32, s32, 10')
    k('s_bfe_u32 s33, s2, 0x50003')
    k('s_lshl_b32 s33, s33, 13')
    k('s_add_u32 s32, s32, s33')
    k('s_waitcnt lgkmcnt(0)')
    k.srd(28, 28, 1024 * 8192)
    for j in range(npf):
        k(f'buffer_load_dwordx4 v[84:87], v6, s[28:31], s32 offen ; pf')
        if j < npf - 1: k(f's_add_u32 s32, s32, {256*8192}')
    k(f'{Lend}:')
    k('s_endpgm')
    return k

def mod_finalize(k, s_ws, sbase, vbase, lane):
    srd_off(k, sbase, s_ws, 0, WS_MP2 + 16 * 16384)
    k(f'v_and_b32 v{vbase}, 15, v{lane}')
    k(f'v_lshlrev_b32 v{vbase}, 2, v{vbase}')
    k(f'v_lshrrev_b32 v{vbase+5}, 4, v{lane}')
    k(f'v_lshl_add_u32 v{vbase+5}, v{vbase+5}, 16, v{vbase}')
    k(f's_lshl_b32 s{sbase+4}, s2, 6')
    for p in range(4):
        k(f's_add_u32 s{sbase+5}, s{sbase+4}, {WS_MP2 + p*16384}')
        k(f'buffer_load_dword v{vbase+1+p}, v{vbase+5}, s[{sbase}:{sbase+3}], s{sbase+5} offen')
    def fin():
        a = vbase + 1
        k(f'v_add_f32 v{a}, v{a}, v{a+1}')
        k(f'v_add_f32 v{a+2}, v{a+2}, v{a+3}')
        k(f'v_add_f32 v{a}, v{a}, v{a+2}')
        for sw in ('16', '32'):
            k(f'v_mov_b32 v{a+1}, v{a}')
            k('s_nop 1')
            k(f'v_permlane{sw}_swap_b32 v{a}, v{a+1}')
            k(f'v_add_f32 v{a}, v{a}, v{a+1}')
        round_pair(k, a, a + 1, a + 2)
        k(f's_lshr_b32 s{sbase+5}, s2, 6')
        k(f's_cmp_eq_u32 s{sbase+5}, 2')
        k(f's_cselect_b32 s{sbase+5}, 1.0, 0')
        k(f'v_add_f32 v{a}, s{sbase+5}, v{a}')
        round_pair(k, a, a + 1, a + 2)
        k(f'v_and_b32 v{a+1}, 12, v{vbase}')
        k(f'v_bfe_u32 v{a+2}, v{vbase}, 4, 1')
        k(f'v_lshl_add_u32 v{a+1}, v{a+2}, 10, v{a+1}')
        k(f'v_bfe_u32 v{a+2}, v{vbase}, 5, 1')
        k(f'v_lshl_add_u32 v{a+1}, v{a+2}, 4, v{a+1}')
        k(f's_and_b32 s{sbase+5}, s2, 31')
        k(f's_lshl_b32 s{sbase+5}, s{sbase+5}, 5')
        k(f's_lshr_b32 s{sbase+6}, s2, 5')
        k(f's_lshl_b32 s{sbase+6}, s{sbase+6}, 11')
        k(f's_add_u32 s{sbase+5}, s{sbase+5}, s{sbase+6}')
        k('s_cmp_ge_u32 s2, 192')
        k(f's_cselect_b32 s{sbase+4}, s{sbase+4}, s{sbase+5}')
        k('s_cselect_b64 vcc, -1, 0')
        k(f's_add_u32 s{sbase+4}, s{sbase+4}, 8192')
        k(f'v_cndmask_b32 v{a+1}, v{a+1}, v{vbase}, vcc')
        k(f'buffer_store_dword v{a}, v{a+1}, s[{sbase}:{sbase+3}], s{sbase+4} offen')
    return fin

def wave_sum2(k, v, t):
    wave_sum(k, v, t)

def ln_fast(k, X, T, sc):
    t0, t2 = T, T + 2
    k(f'v_pk_add_f32 {R2("v", t0)}, {R2("v", X)}, {R2("v", X+2)}')
    for j in range(4, 16, 2): k(f'v_pk_add_f32 {R2("v", t0)}, {R2("v", t0)}, {R2("v", X+j)}')
    k(f'v_add_f32 v{t0}, v{t0}, v{t0+1}')
    wave_sum(k, t0, t2)
    k(f'v_mul_f32 v{t0}, s{sc+1}, v{t0}')
    k(f'v_mov_b32 v{t0+1}, v{t0}')
    for j in range(0, 16, 2): k(f'v_pk_add_f32 {R2("v", X+j)}, {R2("v", X+j)}, {R2("v", t0)}')
    k(f'v_pk_mul_f32 {R2("v", t0)}, {R2("v", X)}, {R2("v", X)}')
    for j in range(2, 16, 2): k(f'v_pk_fma_f32 {R2("v", t0)}, {R2("v", X+j)}, {R2("v", X+j)}, {R2("v", t0)}')
    k(f'v_add_f32 v{t0}, v{t0}, v{t0+1}')
    wave_sum(k, t0, t2)
    k(f'v_mov_b32 v{t2}, 0x3727c5ac')
    k(f'v_fmac_f32 v{t2}, s{sc}, v{t0}')
    k(f'v_rsq_f32 v{t0}, v{t2}')
    k('s_nop 0')
    k(f'v_mov_b32 v{t0+1}, v{t0}')

def gen_ln2():
    k = Kern('ln2_kernel', (256, 1, 1), (512, 1, 1), 17408 + 16384, vgpr=128, sgpr=40)
    Lend = k.label('end')
    k('s_cmp_ge_u32 s2, 256')
    k(f's_cbranch_scc1 {Lend}')
    k.stamp(0)
    k(f's_load_dwordx2 s[4:5], s[0:1], {A_X}')
    k(f's_load_dwordx2 s[8:9], s[0:1], {A_WS}')
    k('v_and_b32 v1, 63, v0')
    k('v_lshrrev_b32 v2, 6, v0')
    k('v_lshlrev_b32 v3, 4, v1')
    k('v_lshl_add_u32 v4, v2, 11, v3')
    k('s_lshl_b32 s20, s2, 14')
    k(f's_add_u32 s23, s20, {4*MB}')
    k('s_waitcnt lgkmcnt(0)')
    k.stamp(1)
    srd_off(k, 28, 8, WS_P, 8 * MB)
    k('buffer_load_dwordx4 v[16:19], v4, s[28:31], s20 offen')
    k('buffer_load_dwordx4 v[20:23], v4, s[28:31], s20 offen offset:1024')
    k('buffer_load_dwordx4 v[24:27], v4, s[28:31], s23 offen')
    k('buffer_load_dwordx4 v[28:31], v4, s[28:31], s23 offen offset:1024')
    k.srd(12, 4, 4 * MB)
    k('buffer_load_dwordx4 v[8:11], v4, s[12:15], s20 offen')
    k('buffer_load_dwordx4 v[12:15], v4, s[12:15], s20 offen offset:1024')
    srd_off(k, 16, 8, WS_MOD32 + 8192, 12288)
    GA, SB, CB = 80, 96, 112
    MODL = 17408
    k('v_readfirstlane_b32 s21, v2')
    k('s_lshl_b32 s21, s21, 11')
    k(f's_add_u32 m0, s21, {MODL}')
    k('s_nop 2')
    k('buffer_load_dwordx4 v3, s[16:19], s21 offen lds')
    k('buffer_load_dwordx4 v3, s[16:19], s21 offen offset:1024 lds')
    srd_off(k, 24, 8, WS_Y, 4 * MB)
    srd_off(k, 32, 8, WS_X1, 4 * MB)
    k('s_mov_b32 s36, 0x3a800000')
    k('s_mov_b32 s37, 0xba800000')
    X = 32
    k('s_waitcnt vmcnt(4)')
    unpack8(k, 48, 16); unpack8(k, 56, 20); unpack8(k, 64, 24); unpack8(k, 72, 28)
    for j in range(0, 16, 2): k(f'v_pk_add_f32 {R2("v", 48+j)}, {R2("v", 48+j)}, {R2("v", 64+j)}')
    k('s_waitcnt vmcnt(0)')
    k('s_barrier')
    for base, sec in ((GA, 0), (CB, 2), (SB, 1)):
        for h in range(2):
            for q in range(2):
                k(f'ds_read_b128 {R4("v", base + 8*h + 4*q)}, v3 offset:{MODL + sec*4096 + h*2048 + q*1024}')
    unpack8(k, X, 8); unpack8(k, X + 8, 12)
    k('s_waitcnt lgkmcnt(8)')
    k.stamp(2)
    for j in range(0, 16, 2): k(f'v_pk_fma_f32 {R2("v", X+j)}, {R2("v", 48+j)}, {R2("v", GA+j)}, {R2("v", X+j)}')
    for j in range(8): k(f'v_cvt_pk_bf16_f32 v{8+j}, v{X+2*j}, v{X+2*j+1}')
    k('buffer_store_dwordx4 v[8:11], v4, s[32:35], s20 offen')
    k('buffer_store_dwordx4 v[12:15], v4, s[32:35], s20 offen offset:1024')
    T = 16
    ln_fast(k, X, T, 36)
    k('s_waitcnt lgkmcnt(0)')
    for j in range(0, 16, 2): k(f'v_pk_mul_f32 {R2("v", X+j)}, {R2("v", X+j)}, {R2("v", T)}')
    for j in range(0, 16, 2): k(f'v_pk_fma_f32 {R2("v", X+j)}, {R2("v", X+j)}, {R2("v", CB+j)}, {R2("v", SB+j)}')
    ln_fast(k, X, T, 36)
    for j in range(0, 16, 2): k(f'v_pk_mul_f32 {R2("v", X+j)}, {R2("v", X+j)}, {R2("v", T)}')
    for j in range(8): k(f'v_cvt_pk_bf16_f32 v{24+j}, v{X+2*j}, v{X+2*j+1}')
    k.stamp(3)
    store_porder(k, 24, 24, 2, 1)
    k.stamp(4)
    k.stamp_out(4)
    k(f'{Lend}:')
    k('s_endpgm')
    return k
```

```python
from gen_gemm import *
from gen_front import mod_finalize
import math, struct
def f2u(x): return struct.unpack('<I', struct.pack('<f', x))[0]

def swap_pair(k, x, y):
    k(f'v_permlane32_swap_b32 v{x}, v{y}')
    k('s_nop 1')
    k(f'v_permlane16_swap_b32 v{x}, v{y}')

def gen_resid(second, S=8, PD=4, name=None, dbg=None, kidx=None, sched=(4, [1, 2, 2, 2])):
    name = name or ('mlp2_kernel' if second else 'oproj_kernel')
    K = 3584 if second else 4096
    KB = K // 32
    NA, NB, LP, RA = 4, 2, 128, 8
    k = Kern(name, (256, 1, 1), (256, 1, 1), S * 8192, vgpr=128, agpr=16 * S + 32, sgpr=64)
    Lend = k.label('end')
    k('s_cmp_ge_u32 s2, 256')
    k(f's_cbranch_scc1 {Lend}')
    k.stamp(0)
    k(f's_load_dwordx2 s[6:7], s[0:1], {A_WS}')
    k(f's_load_dwordx2 s[8:9], s[0:1], {A_OUT if second else A_X}')
    if second: k(f's_load_dwordx2 s[10:11], s[0:1], {A_B2}')
    k('v_and_b32 v1, 63, v0')
    k('v_lshrrev_b32 v2, 6, v0')
    k('s_and_b32 s40, s2, 7')
    k('v_readfirstlane_b32 s44, v2')
    k('s_lshr_b32 s41, s2, 3')
    k('s_lshr_b32 s42, s40, 1')
    k('s_lshl_b32 s42, s42, 2')
    k('s_lshr_b32 s43, s41, 3')
    k('s_add_u32 s42, s42, s43')
    k('s_and_b32 s43, s40, 1')
    k('s_lshl_b32 s43, s43, 3')
    k('s_and_b32 s41, s41, 7')
    k('s_add_u32 s43, s43, s41')
    vW = 8; vA = 12; vX = 16; tmp = 20; vA2 = 120
    k('s_lshl_b32 s52, s44, 11')
    k(f'v_lshl_add_u32 v{vW}, v1, 4, s52')
    wd = [(vW, 0), (vW, 1024)]
    k('s_lshl_b32 s47, s42, 3')
    k('s_lshl_b32 s48, s44, 1')
    k('s_add_u32 s47, s47, s48')
    k('s_lshl_b32 s48, s47, 10')
    k(f'v_lshl_add_u32 v{vX}, v1, 4, s48')
    k(f'v_add_u32 v{vX+1}, 0x20000, v{vX}')
    k(f's_mul_i32 s50, s43, {K*128}')
    k('s_mov_b32 s51, 0')
    k('s_waitcnt lgkmcnt(0)')
    srd_off(k, 12, 6, WS_W2, K * 2048)
    srd_off(k, 16, 6, WS_HH if second else WS_O, 2048 * K * 2)
    acc0 = 64
    g = Gemm(k, NA, NB, LP, S, PD, RA, K // 64,
             acc=lambda a, b: R4('v', acc0 + (a * NB + b) * 4),
             aring=lambda s: ('a', 16 * S + 4 * s),
             bring=lambda st, ks, b: R4('a', st * 16 + (ks * NB + b) * 4),
             vA=[[vA + a for a in range(NA)], [vA2 + a for a in range(NA)]], lds_base=0,
             srdW=12, sW=50, wpitch=128, wdma=wd, sM0=52, srdX=16, sX=51, vX=[vX, vX + 1], wait_every=2)
    g.dbg = dbg
    g.make_sched(*sched)
    g.prologue_loads()
    tr_addr_regs(k, vA, NA, LP, tmp, 1)
    for a in range(NA): k(f'v_add_u32 v{vA2+a}, 0x10000, v{vA+a}')
    if second:
        srd_off(k, 20, 6, WS_X1, 4 * MB)
        k.srd(24, 8, 4 * MB)
        k.srd(32, 10, 2048)
    else:
        k.srd(20, 8, 4 * MB)
        srd_off(k, 24, 6, WS_X1, 4 * MB)
    srd_off(k, 28, 6, WS_MOD32 + (5 if second else 2) * 4096, 4096)
    k('v_and_b32 v4, 15, v1')
    k('v_lshrrev_b32 v5, 4, v1')
    k('v_lshlrev_b32 v6, 11, v4')
    k('v_lshl_add_u32 v7, v5, 4, v6')
    k('v_lshl_add_u32 v6, v5, 3, v6')
    k('s_lshl_b32 s48, s47, 15')
    k('s_lshl_b32 s49, s43, 7')
    k('s_add_u32 s48, s48, s49')
    k('s_add_u32 s49, s48, 32768')
    XR = 24
    for b in range(NB):
        for a in range(NA):
            k(f'buffer_load_dwordx2 {R2("v", XR + (a*NB+b)*2)}, v6, s[20:23], s{48+b} offen offset:{a*32}')
    GR = 40
    k('v_lshlrev_b32 v4, 4, v5')
    k('s_lshl_b32 s54, s43, 8')
    for a in range(NA):
        k(f'buffer_load_dwordx4 {R4("v", GR + 4*a)}, v4, s[28:31], s54 offen offset:{a*64}')
    BR = 56
    if second:
        k('v_lshlrev_b32 v4, 3, v5')
        k('s_lshl_b32 s54, s43, 7')
        for a in range(NA):
            k(f'buffer_load_dwordx2 {R2("v", BR + 2*a)}, v4, s[32:35], s54 offen offset:{a*32}')
    g.vq += ['e'] * (12 + (4 if second else 0))
    g.stamp_first = 1
    g.emit(loop_sreg=53)
    k.stamp(2)
    k('s_nop 4')
    T = 96
    for a in range(NA):
        if second:
            for j in range(2):
                k(f'v_lshlrev_b32 v{T+4+2*j}, 16, v{BR+2*a+j}')
                k(f'v_and_b32 v{T+5+2*j}, 0xffff0000, v{BR+2*a+j}')
        for b in range(NB):
            A = acc0 + (a * NB + b) * 4; xr = XR + (a * NB + b) * 2
            for j in range(2):
                k(f'v_lshlrev_b32 v{T+2*j}, 16, v{xr+j}')
                k(f'v_and_b32 v{T+2*j+1}, 0xffff0000, v{xr+j}')
            for r in range(4):
                if second: k(f'v_add_f32 v{A+r}, v{A+r}, v{T+4+r}')
                k(f'v_fma_f32 v{A+r}, v{A+r}, v{GR+4*a+r}, v{T+r}')
    P = 104
    for b in range(NB):
        for u in range(2):
            p = P + (b * 2 + u) * 4
            A0 = acc0 + ((2 * u) * NB + b) * 4; A1 = acc0 + ((2 * u + 1) * NB + b) * 4
            k(f'v_cvt_pk_bf16_f32 v{p}, v{A0}, v{A0+1}')
            k(f'v_cvt_pk_bf16_f32 v{p+1}, v{A0+2}, v{A0+3}')
            k(f'v_cvt_pk_bf16_f32 v{p+2}, v{A1}, v{A1+1}')
            k(f'v_cvt_pk_bf16_f32 v{p+3}, v{A1+2}, v{A1+3}')
            k('s_nop 1')
            k(f'v_permlane32_swap_b32 v{p}, v{p+2}')
            k(f'v_permlane32_swap_b32 v{p+1}, v{p+3}')
            k('s_nop 0')
            k(f'v_permlane16_swap_b32 v{p}, v{p+2}')
            k(f'v_permlane16_swap_b32 v{p+1}, v{p+3}')
            k(f'buffer_store_dwordx4 {R4("v", p)}, v7, s[24:27], s{48+b} offen offset:{u*64}')
    k.stamp_out(kidx if kidx is not None else (6 if second else 3))
    k(f'{Lend}:')
    k('s_endpgm')
    return k

def gen_mlp1(S=6, PD=4, sched=(2, [1, 2, 1, 2]), name='mlp1_kernel', kidx=5, dbg=None):
    K = 1024; KB = 32
    NA, NB, LP, RA = 7, 4, 224, 7
    k = Kern(name, (256, 1, 1), (256, 1, 1), S * 16384, vgpr=256, agpr=32 * S + 28, sgpr=64)
    Lend = k.label('end')
    k('s_cmp_ge_u32 s2, 256')
    k(f's_cbranch_scc1 {Lend}')
    k.stamp(0)
    k(f's_load_dwordx4 s[4:7], s[0:1], {A_W1}')
    k(f's_load_dwordx2 s[8:9], s[0:1], {A_WS}')
    k('v_and_b32 v1, 63, v0')
    k('v_lshrrev_b32 v2, 6, v0')
    k('s_and_b32 s40, s2, 7')
    k('v_readfirstlane_b32 s44, v2')
    k('s_lshr_b32 s41, s2, 3')
    k('s_lshr_b32 s42, s40, 2')
    k('s_lshl_b32 s42, s42, 2')
    k('s_lshr_b32 s43, s41, 3')
    k('s_add_u32 s42, s42, s43')
    k('s_and_b32 s43, s40, 3')
    k('s_lshl_b32 s43, s43, 3')
    k('s_and_b32 s41, s41, 7')
    k('s_add_u32 s43, s43, s41')
    vW = 8; vX = 12; vA = 16; tmp = 32
    k('s_lshl_b32 s52, s44, 12')
    k(f'v_lshl_add_u32 v{vW}, v1, 4, s52')
    k('s_cmp_eq_u32 s44, 3')
    k('s_cselect_b32 s45, 0x7ff00000, 0')
    k(f'v_add_u32 v{vW+1}, s45, v{vW}')
    wd = [(vW, 0), (vW, 1024), (vW + 1, 2048), (vW + 1, 3072)]
    k('s_lshl_b32 s47, s42, 4')
    k('s_lshl_b32 s48, s44, 2')
    k('s_add_u32 s47, s47, s48')
    k('s_lshl_b32 s48, s47, 10')
    k(f'v_lshl_add_u32 v{vX}, v1, 4, s48')
    k(f'v_add_u32 v{vX+1}, 0x20000, v{vX}')
    k('s_mul_i32 s46, s43, 224')
    k('s_lshl_b32 s50, s46, 10')
    k('s_mov_b32 s51, 0')
    k('v_lshrrev_b32 v5, 4, v1')
    k('v_lshlrev_b32 v4, 3, v5')
    k('s_waitcnt lgkmcnt(0)')
    srd_off(k, 12, 8, WS_W1, 1024 * 7168)
    srd_off(k, 16, 8, WS_Y, 4 * MB)
    k.srd(20, 6, 7168)
    BP = 40; BI = 64; acc0 = 96
    for a in range(NA):
        k(f'buffer_load_dwordx2 {R2("v", BP + 2*a)}, v4, s[20:23], s46 offen offset:{a*32}')
    g = Gemm(k, NA, NB, LP, S, PD, RA, K // 64,
             acc=lambda a, b: R4('v', acc0 + (a * NB + b) * 4),
             aring=lambda s: ('a', 32 * S + 4 * s),
             bring=lambda st, ks, b: R4('a', st * 32 + (ks * NB + b) * 4),
             vA=[[vA] * NA, [vA + 1] * NA], lds_base=0, aimm=32, tile_bytes=16384,
             srdW=12, sW=50, wpitch=224, wdma=wd, sM0=52, srdX=16, sX=51, vX=[vX, vX + 1],
             cinit=lambda a, b: R4('v', BI + 4 * a),
             extra_loads=lambda t: [['buffer_load_dwordx4 v[56:59], v60, s[32:35], s53 offen ; pf']] if t == 11 else [])
    Lepi = k.label('epi')
    k.code_srd(32, Lepi)
    k('s_lshr_b32 s53, s2, 3')
    k('s_lshl_b32 s53, s53, 12')
    k('v_lshlrev_b32 v60, 4, v0')
    g.make_sched(*sched)
    g.dbg = dbg
    g.prologue_loads()
    k(f'v_lshrrev_b32 v{tmp}, 2, v1')
    k(f'v_mul_u32_u24 v{tmp}, 224, v{tmp}')
    k(f'v_and_b32 v{tmp+1}, 3, v1')
    k(f'v_lshl_add_u32 v{vA}, v{tmp+1}, 3, v{tmp}')
    k(f'v_add_u32 v{vA+1}, 0x10000, v{vA}')
    k(f's_waitcnt vmcnt({len(g.vq)})')
    for a in range(NA):
        for j in range(2):
            k(f'v_lshlrev_b32 v{BI+4*a+2*j}, 16, v{BP+2*a+j}')
            k(f'v_and_b32 v{BI+4*a+2*j+1}, 0xffff0000, v{BP+2*a+j}')
    g.stamp_first = 1
    g.emit(loop_sreg=None)
    k.stamp(2)
    k(f'{Lepi}:')
    k('s_waitcnt vmcnt(0)')
    srd_off(k, 24, 8, WS_HH, 2048 * 3584 * 2)
    c1 = -2.0 * math.log2(math.e) * math.sqrt(2.0 / math.pi); c2 = c1 * 0.044715
    C1, C2, ONE = 40, 42, 44
    for (r, v) in ((C1, c1), (C2, c2), (ONE, 1.0)):
        k(f'v_mov_b32 v{r}, 0x{f2u(v):08x}'); k(f'v_mov_b32 v{r+1}, 0x{f2u(v):08x}')
    k('v_lshlrev_b32 v6, 4, v1')
    k('s_mul_i32 s54, s43, 7')
    k('s_lshr_b32 s55, s54, 1')
    k('s_lshl_b32 s55, s55, 7')
    k('s_add_u32 s55, s55, s47')
    k('s_lshl_b32 s55, s55, 10')
    for j in range(1, 4): k(f's_add_u32 s{55+j}, s55, {j*131072}')
    k('s_nop 4')
    T = 48
    def gelu_tile(A, dst):
        for h in range(2):
            x = R2('v', A + 2 * h); t = R2('v', T + 2 * h)
            k(f'v_pk_mul_f32 {t}, {x}, {x}')
            k(f'v_pk_fma_f32 {t}, {t}, {R2("v", C2)}, {R2("v", C1)}')
            k(f'v_pk_mul_f32 {t}, {t}, {x}')
        for r in range(4): k(f'v_exp_f32 v{T+r}, v{T+r}')
        for h in range(2):
            t = R2('v', T + 2 * h)
            k(f'v_pk_add_f32 {t}, {t}, {R2("v", ONE)}')
        for r in range(4): k(f'v_rcp_f32 v{T+r}, v{T+r}')
        for h in range(2):
            x = R2('v', A + 2 * h); t = R2('v', T + 2 * h)
            k(f'v_pk_mul_f32 {x}, {x}, {t}')
        for h in range(2):
            k(f'v_cvt_pk_bf16_f32 v{dst+h}, v{A+2*h}, v{A+2*h+1}')
    Lodd = k.label('odd')
    k('s_bitcmp1_b32 s43, 0')
    k(f's_cbranch_scc1 {Lodd}')
    for odd in range(2):
        if odd: k(f'{Lodd}:')
        n = 0
        for b in range(NB):
            for blk in range(4):
                aa = [a for a in range(NA) if (a + odd) >> 1 == blk]
                D = 56 + (n % 2) * 4; n += 1
                for a in aa:
                    gelu_tile(acc0 + (a * NB + b) * 4, D + 2 * ((a + odd) & 1))
                if len(aa) == 2:
                    k(f'buffer_store_dwordx4 {R4("v", D)}, v6, s[24:27], s{55+blk} offen offset:{b*1024}')
                else:
                    hf = (aa[0] + odd) & 1
                    k(f'buffer_store_dwordx2 {R2("v", D + 2*hf)}, v6, s[24:27], s{55+blk} offen offset:{b*1024 + 8*hf}')
        k.nstamp = 3
        k.stamp_out(kidx)
        k('s_endpgm')
    k(f'{Lend}:')
    k('s_endpgm')
    return k

def gen_oproj(S=8, PD=4, name='oproj_kernel', kidx=3, store_mod='', sched=(3, [1, 2, 2, 2, 2]), dbg=None, xpf=True):
    NA, NB, LP, RA = 8, 2, 256, 8
    k = Kern(name, (256, 1, 1), (256, 1, 1), S * 16384, vgpr=128, agpr=16 * S + 32, sgpr=64)
    Lend = k.label('end')
    k('s_cmp_ge_u32 s2, 256')
    k(f's_cbranch_scc1 {Lend}')
    k.stamp(0)
    k(f's_load_dwordx2 s[6:7], s[0:1], {A_WS}')
    k(f's_load_dwordx2 s[28:29], s[0:1], {A_X}')
    k('v_and_b32 v1, 63, v0')
    k('v_lshrrev_b32 v2, 6, v0')
    k('s_bfe_u32 s40, s2, 0x10002')
    k('v_readfirstlane_b32 s44, v2')
    k('s_bfe_u32 s42, s2, 0x10001')
    k('s_lshl_b32 s42, s42, 3')
    k('s_lshr_b32 s43, s2, 5')
    k('s_add_u32 s42, s42, s43')
    k('s_and_b32 s43, s2, 1')
    k('s_lshl_b32 s43, s43, 2')
    k('s_bfe_u32 s41, s2, 0x20003')
    k('s_add_u32 s43, s43, s41')
    vW = 8; vX = 12; vA = 16; vA2 = 24; tmp = 32
    k('s_lshl_b32 s52, s44, 12')
    k(f'v_lshl_add_u32 v{vW}, v1, 4, s52')
    wd = [(vW, n * 1024) for n in range(4)]
    k('s_lshl_b32 s47, s42, 3')
    k('s_lshl_b32 s48, s44, 1')
    k('s_add_u32 s47, s47, s48')
    k('s_lshl_b32 s48, s47, 10')
    k(f'v_lshl_add_u32 v{vX}, v1, 4, s48')
    k(f'v_add_u32 v{vX+1}, 0x20000, v{vX}')
    k('s_lshl_b32 s50, s43, 20')
    k('s_lshl_b32 s48, s40, 19')
    k('s_add_u32 s50, s50, s48')
    k('s_lshl_b32 s51, s40, 23')
    k('s_waitcnt lgkmcnt(0)')
    srd_off(k, 12, 6, WS_WO, 8 * MB)
    srd_off(k, 16, 6, WS_O, 16 * MB)
    acc0 = 64
    g = Gemm(k, NA, NB, LP, S, PD, RA, 32,
             acc=lambda a, b: R4('v', acc0 + (a * NB + b) * 4),
             aring=lambda s: ('a', 16 * S + 4 * s),
             bring=lambda st, ks, b: R4('a', st * 16 + (ks * NB + b) * 4),
             vA=[[vA + a for a in range(NA)], [vA2 + a for a in range(NA)]], lds_base=0,
             srdW=12, sW=50, wpitch=256, wdma=wd, sM0=52, srdX=16, sX=51, vX=[vX, vX + 1], wait_every=2,
             extra_loads=lambda t: [[f'buffer_load_dwordx4 v[48:51], v{vW}, s[28:31], s54 offen offset:{(t-26)*1024} ; pf']] if xpf and 26 <= t < 30 else
             ([['buffer_load_dwordx4 v[48:51], v52, s[32:35], s55 offen ; pf']] if t == 25 else []))
    k.code_srd(32, 'ln2_kernel')
    k('s_lshr_b32 s55, s2, 3')
    k('s_lshl_b32 s55, s55, 12')
    k('v_lshlrev_b32 v52, 4, v0')
    k.srd(28, 28, 4 * MB)
    k('s_lshl_b32 s54, s2, 14')
    g.make_sched(*sched)
    g.dbg = dbg
    g.prologue_loads()
    tr_addr_regs(k, vA, NA, LP, tmp, 1)
    for a in range(NA): k(f'v_add_u32 v{vA2+a}, 0x10000, v{vA+a}')
    fin = mod_finalize(k, 6, 56, 40, 1)
    g.vq += ['m'] * 4
    srd_off(k, 24, 6, WS_P, 8 * MB)
    k('v_and_b32 v4, 15, v1')
    k('v_lshrrev_b32 v5, 4, v1')
    k('v_lshlrev_b32 v6, 11, v4')
    k('v_lshl_add_u32 v7, v5, 4, v6')
    k('s_lshl_b32 s48, s47, 15')
    k('s_lshl_b32 s49, s43, 8')
    k('s_add_u32 s48, s48, s49')
    k('s_lshl_b32 s49, s40, 22')
    k('s_add_u32 s48, s48, s49')
    k('s_add_u32 s49, s48, 32768')
    g.stamp_first = 1
    g.emit(loop_sreg=53)
    k.stamp(2)
    fin()
    k('s_nop 1')
    n = 0
    for u in range(4):
        ps = []
        for b in range(NB):
            p = 8 + (n % 8) * 4; n += 1
            ps.append(p)
            A0 = acc0 + ((2 * u) * NB + b) * 4; A1 = acc0 + ((2 * u + 1) * NB + b) * 4
            k(f'v_cvt_pk_bf16_f32 v{p}, v{A0}, v{A0+1}')
            k(f'v_cvt_pk_bf16_f32 v{p+1}, v{A0+2}, v{A0+3}')
            k(f'v_cvt_pk_bf16_f32 v{p+2}, v{A1}, v{A1+1}')
            k(f'v_cvt_pk_bf16_f32 v{p+3}, v{A1+2}, v{A1+3}')
        for sw in ('32', '16'):
            for p in ps:
                k(f'v_permlane{sw}_swap_b32 v{p}, v{p+2}')
                k(f'v_permlane{sw}_swap_b32 v{p+1}, v{p+3}')
        for b, p in enumerate(ps):
            k(f'buffer_store_dwordx4 {R4("v", p)}, v7, s[24:27], s{48+b} offen offset:{u*64}{store_mod}')
    k.stamp_out(kidx)
    k(f'{Lend}:')
    k('s_endpgm')
    return k
```

```python
import sys
from asmgen import *
from gen_small import *
from gen_gk import *
from gen_attn import *
from gen_front import *
from gen_back import gen_back
import lint
Kern.STAMP = 'cyc' if 'cyc' in sys.argv else ('stamp' in sys.argv)
th = 16
NPF = 4
for a in sys.argv:
    if a.startswith('npf='): NPF = int(a[4:])
for a in sys.argv:
    if a.startswith('sm='): Kern.STORE_MOD = ' ' + a[3:].replace('+', ' ')
for a in sys.argv:
    if a.startswith('th='): th = float(a[3:])
ks = [gen_mod(wq=4 - NPF), gen_ln1(npf=NPF), gen_attn(thresh_log2=th, split2='nosplit' not in sys.argv, wqpf=0), *([gen_oproj(), gen_ln2()] if 'nofuse' in sys.argv else [gen_opln()]), (gen_mlp1_w8(prio='prio' in sys.argv) if 'w8' in sys.argv else gen_mlp1()), (gen_resid(True) if 'nosplit' in sys.argv else gen_mlp2s(WAITOWN='nowait' not in sys.argv, POLL1='poll1' in sys.argv))]
if 'nomega' in sys.argv: ks = ks[:3] + [gen_back()]
elif 'noln1' in sys.argv: ks = ks[:2] + [gen_attn(thresh_log2=th, then=lambda k: gen_back(kidx=2, k=k))]
else: ks = (ks[:1] if 'one' not in sys.argv else []) + [gen_attn(thresh_log2=th, ln1=True, then=lambda k: gen_back(kidx=2, k=k))]
ne = 0
for k in ks: ne += lint.lint_kernel(k)
print('lint errors', ne)
emit(sys.argv[1] if len(sys.argv) > 1 else 'k.s', ks)
```

```python
from gen_gk import *
from gen_front import *

THRESH_LOG2 = 16

def gen_attn(thresh_log2=THRESH_LOG2, lead=27, E0=58, bias=100, ufl=0x4000, pf=True, sched=(2, [1, 2, 1, 2]), name='attn_kernel', kidx=2, dbg='', excl=True, split2=True):
    k = Kern(name, (256, 1, 1), (256, 1, 1), 160 * 1024, vgpr=256, agpr=256, sgpr=80)
    Lend = k.label('end')
    k('s_cmp_ge_u32 s2, 256')
    k(f's_cbranch_scc1 {Lend}')
    k.stamp(0)
    k(f's_load_dwordx4 s[4:7], s[0:1], {A_K}')
    k(f's_load_dwordx2 s[8:9], s[0:1], {A_WQ}')
    k(f's_load_dwordx2 s[10:11], s[0:1], {A_WS}')
    k(f's_load_dwordx2 s[32:33], s[0:1], {A_WO}')
    k(f's_load_dwordx2 s[36:37], s[0:1], {A_W1}')
    k(f's_load_dwordx2 s[60:61], s[0:1], {A_W2}')
    k(f's_load_dwordx2 s[64:65], s[0:1], {A_WMOD}')
    Lloop = k.label('loop'); Ltail = k.label('tail'); Lslow = k.label('slow'); Lepi = k.label('epi')
    vKA, vVA, vKD, vVD = 8, 12, 20, 24
    tmp = 26
    vL = 32; vTA2 = 32; vWD = 40; vX = 44
    vQ, vS, vP, vNM, vE, vONE, vT = 64, 128, 192, 224, 240, 248, 252
    aO, aF = 0, 128
    sHEAD, sQT, sWAVE, sMB0, sW, sX, sM0, sK, sV, sCNT, sTH, sFIRST = 40, 41, 44, 47, 50, 51, 52, 53, 54, 55, 57, 58
    k('v_and_b32 v1, 63, v0')
    k('v_lshrrev_b32 v2, 6, v0')
    k('s_and_b32 s42, s2, 7')
    k(f'v_readfirstlane_b32 s{sWAVE}, v2')
    k('s_lshl_b32 s42, s42, 2')
    k('s_bfe_u32 s43, s2, 0x20003')
    k(f's_add_u32 s{sHEAD}, s42, s43')
    k(f's_lshr_b32 s{sQT}, s2, 5')
    wd = wdma_regs(k, vWD, 256, 8192, 16, tmp, 1, sWAVE)
    k(f's_lshl_b32 s{sMB0}, s{sQT}, 4')
    k(f's_lshl_b32 s48, s{sWAVE}, 2')
    k(f's_add_u32 s{sMB0}, s{sMB0}, s48')
    k(f's_lshl_b32 s48, s{sMB0}, 10')
    k(f'v_lshl_add_u32 v{vX}, v1, 4, s48')
    k(f'v_add_u32 v{vX+1}, 0x20000, v{vX}')
    k(f's_lshl_b32 s{sW}, s{sHEAD}, 8')
    k(f's_mov_b32 s{sX}, 0')
    k(f's_lshl_b32 s{sM0}, s{sWAVE}, 12')
    k('s_waitcnt lgkmcnt(0)')
    k.srd(12, 8, 1024 * 8192)
    srd_off(k, 16, 10, WS_H, 4 * MB)
    S = 6
    SL = lambda i: i * 16384
    stage_off = [SL(6), SL(7), SL(8), SL(9), SL(4), SL(5)]
    bbase = {4: 0, 5: 32, 0: 64, 1: 96, 2: 128, 3: 160}
    def kdma(slot):
        return [[f's_add_u32 m0, s{sM0}, {SL(slot)}'], ['s_nop 0']] + \
               [[f'buffer_load_dwordx4 v{vKD+n}, s[20:23], s{sK} offen offset:{n*1024} lds'] for n in range(4)] + \
               [[f's_add_u32 s{sK}, s{sK}, 16384']]
    def vdma(slot):
        return [[f's_add_u32 m0, s{sM0}, {SL(4+slot)}'], ['s_nop 0']] + \
               [[f'buffer_load_dwordx4 v{vVD+(n&1)}, s[24:27], s{sV} offen offset:{n*1024} lds'] for n in range(4)] + \
               [[f's_add_u32 s{sV}, s{sV}, 16384']]
    def zero(base):
        return [[f'v_accvgpr_write_b32 a{base+i}, 0'] for i in range(32)]
    def extra(t):
        if t == 10: return [[x] for x in gld]
        if t == 11: return kdma(0) + kdma(1) + vdma(0) + zero(0)
        if t == 12: return kdma(2) + vdma(1) + zero(32)
        if t == 13: return kdma(3) + vdma(2) + zero(64)
        if t == 14: return zero(96)
        return []
    def extra_p(t):
        return {12: 12, 13: 20, 14: 28}.get(t, 0)
    acc0 = 128
    g = Gemm(k, 8, 4, 256, S, 4, 8, 16,
             acc=lambda a, b: R4('v', acc0 + (a * 4 + b) * 4),
             aring=lambda s: ('a', 192 + 4 * s),
             bring=lambda st, ks, b: R4('a', bbase[st] + (ks * 4 + b) * 4),
             vA=[None, [vVA + a for a in range(8)], [vTA2 + a for a in range(8)]], lds_base=0,
             srdW=12, sW=sW, wpitch=8192, wdma=wd, sM0=sM0, srdX=16, sX=sX, vX=[vX, vX + 1],
             extra_loads=extra, stage_off=stage_off)
    g.make_sched(*sched)
    g.prologue_loads()
    tr_addr_regs(k, vVA, 8, 256, tmp, 1, add=0x10000)
    for a in range(8): k(f'v_add_u32 v{vTA2+a}, 0x10000, v{vVA+a}')
    k(f'v_and_b32 v{tmp}, 15, v1')
    k(f'v_lshrrev_b32 v{tmp+1}, 4, v1')
    k(f'v_xor_b32 v{tmp+2}, v{tmp}, v{tmp+1}')
    k(f'v_lshlrev_b32 v{tmp+3}, 8, v{tmp}')
    for ds in range(4):
        k(f'v_xor_b32 v{tmp+4}, {4*ds}, v{tmp+2}')
        k(f'v_lshl_add_u32 v{vKA+ds}, v{tmp+4}, 4, v{tmp+3}')
    k(f'v_lshlrev_b32 v{tmp+3}, 8, v{tmp+1}')
    k(f'v_add_u32 v{tmp+3}, s{sM0}, v{tmp+3}')
    for n in range(4):
        k(f'v_xor_b32 v{tmp+4}, {4*n}, v{tmp+2}')
        k(f'v_lshl_add_u32 v{vKD+n}, v{tmp+4}, 4, v{tmp+3}')
    k(f'v_lshlrev_b32 v{tmp+4}, 1, v{tmp+1}')
    k(f'v_xor_b32 v{tmp+4}, v{tmp+4}, v{tmp}')
    k(f'v_lshl_add_u32 v{vVD}, v{tmp+4}, 4, v{tmp+3}')
    k(f'v_xor_b32 v{tmp+4}, 8, v{tmp+4}')
    k(f'v_lshl_add_u32 v{vVD+1}, v{tmp+4}, 4, v{tmp+3}')
    k(f's_lshl_b32 s48, s{sHEAD}, 19')
    srd_off(k, 20, 4, 's48', 524288)
    srd_off(k, 24, 6, 's48', 524288)
    srd_off(k, 28, 10, WS_O, 16 * MB)
    k(f's_mov_b32 s{sK}, 0')
    k(f's_mov_b32 s{sV}, 0')
    k.srd(32, 32, 4096 * 2048); k.srd(36, 36, 1024 * 7168); k.srd(60, 60, 3584 * 2048)
    sPF, sST0, sST2, sL1, sXB = 59, 56, 49, 46, 41
    vPF, vD0, vD2, vS1, vD1, vN1, vJ1 = 7, 54, 55, 56, 57, 58, 59
    srd_off(k, 72, 10, WS_WO, 36 * MB)
    k(f's_mov_b32 s{sPF}, 0')
    k(f's_mov_b32 s{sL1}, 0')
    k(f's_mov_b32 s{sST0}, 0x70000000')
    k(f's_mov_b32 s{sST2}, 0x70000000')
    k('s_lshl_b32 s48, s2, 12')
    k(f'v_lshl_add_u32 v{vPF}, v0, 4, s48')
    k(f's_lshl_b32 s42, s2, 2')
    k(f's_add_u32 s42, s42, s{sWAVE}')
    k('s_lshr_b32 s43, s42, 1')
    k('s_and_b32 s45, s42, 1')
    k('s_and_b32 s48, s43, 7')
    k('s_lshl_b32 s48, s48, 1')
    k(f'v_xor_b32 v{tmp+4}, s48, v{tmp}')
    k(f'v_lshlrev_b32 v{tmp+4}, 4, v{tmp+4}')
    k(f'v_lshl_add_u32 v{vD0}, v{tmp+1}, 20, v{tmp+4}')
    k('s_lshl_b32 s48, s45, 22')
    k('s_lshl_b32 s62, s43, 8')
    k('s_add_u32 s48, s48, s62')
    k(f'v_add_u32 v{vD0}, s48, v{vD0}')
    if split2:
        k(f'v_mul_u32_u24 v{tmp+5}, {3584*256}, v{tmp+1}')
        k(f'v_add_u32 v{vD2}, v{tmp+4}, v{tmp+5}')
        k(f's_mul_i32 s48, s45, {4*3584*256}')
        k('s_add_u32 s48, s48, s62')
        k(f's_add_u32 s48, s48, {WS_W2 - WS_WO}')
        k(f'v_add_u32 v{vD2}, s48, v{vD2}')
        k(f's_mov_b32 s{sXB}, {WS_XB - WS_WO}')
    else:
        k('s_bfe_u32 s48, s43, 0x20001')
        k('s_lshl_b32 s48, s48, 1')
        k(f'v_and_b32 v{tmp+4}, 7, v1')
        k(f'v_xor_b32 v{tmp+4}, s48, v{tmp+4}')
        k(f'v_lshrrev_b32 v{tmp+5}, 3, v1')
        k(f'v_mul_u32_u24 v{tmp+5}, {3584*128}, v{tmp+5}')
        k(f'v_lshl_add_u32 v{vD2}, v{tmp+4}, 4, v{tmp+5}')
        k(f's_mul_i32 s48, s45, {8*3584*128}')
        k('s_lshl_b32 s62, s43, 7')
        k('s_add_u32 s48, s48, s62')
        k(f's_add_u32 s48, s48, {WS_W2 - WS_WO}')
        k(f'v_add_u32 v{vD2}, s48, v{vD2}')
    k('s_mul_i32 s48, s42, 7168')
    k(f'v_lshl_add_u32 v{vS1}, v1, 4, s48')
    k(f'v_mul_u32_u24 v{tmp+4}, 74, v1')
    k(f'v_lshrrev_b32 v{tmp+4}, 10, v{tmp+4}')
    k(f'v_mul_u32_u24 v{tmp+5}, 14, v{tmp+4}')
    k(f'v_sub_u32 v{vJ1}, v1, v{tmp+5}')
    k(f'v_mul_u32_u24 v{tmp+4}, {1024*224}, v{tmp+4}')
    k(f'v_lshl_add_u32 v{vN1}, v{vJ1}, 4, v{tmp+4}')
    k('s_mul_i32 s48, s42, 224')
    k(f's_add_u32 s48, s48, {WS_W1 - WS_WO}')
    k(f'v_add_u32 v{vN1}, s48, v{vN1}')
    k(f'v_mov_b32 v{vD1}, 0x70000000')
    k(f'v_mov_b32 v60, {1024*224 - 224}')
    k('s_mov_b32 s62, 3584 * 2048')
    GA = [48, 49, 50, 51, 52, 53, 63, 2]; vGW, vGS, vGT0, vGT1, vGA, vGB = 28, 27, 26, 3, 4, 5
    sGW, sGS = 76, 77
    k.srd(64, 64, 1024 * 12288)
    srd_off(k, 68, 10, 0, WS_MP2 + 16 * 16384)
    k(f'v_lshrrev_b32 v{vGB}, 3, v1')
    k(f'v_mul_u32_u24 v{vGA}, 12288, v{vGB}')
    k(f'v_and_b32 v{vGT1}, 7, v1')
    k(f'v_lshl_add_u32 v{vGA}, v{vGT1}, 4, v{vGA}')
    k(f'v_lshlrev_b32 v{vGB}, 2, v{vGB}')
    k('s_and_b32 s48, s42, 15')
    k(f's_mul_i32 s{sGW}, s48, {64*12288}')
    k('s_lshr_b32 s43, s2, 2')
    k('s_lshl_b32 s45, s43, 7')
    k(f's_add_u32 s{sGW}, s{sGW}, s45')
    k(f's_add_u32 s{sGW}, s{sGW}, 4096')
    k(f's_lshl_b32 s{sGS}, s48, 8')
    k(f's_add_u32 s{sGS}, s{sGS}, {WS_SC}')
    k('s_lshl_b32 s48, s48, 14')
    k('s_lshl_b32 s43, s43, 8')
    k('s_add_u32 s43, s43, s48')
    k(f's_add_u32 s43, s43, {WS_MP2}')
    for r in GA: k(f'v_mov_b32 v{r}, 0')
    k.code_srd(4, Ltail)
    k('s_lshr_b32 s8, s2, 3')
    k('s_lshl_b32 s8, s8, 12')
    k('v_lshlrev_b32 v6, 4, v0')
    gld = [f'buffer_load_dwordx4 {R4("v", vGW)}, v{vGA}, s[64:67], s{sGW} offen',
           f'buffer_load_dword v{vGS}, v{vGB}, s[68:71], s{sGS} offen',
           f's_add_u32 s{sGW}, s{sGW}, {8*12288}', f's_add_u32 s{sGS}, s{sGS}, 32']
    gfma = []
    for j in range(4):
        gfma += [f'v_lshlrev_b32 v{vGT0}, 16, v{vGW+j}', f'v_and_b32 v{vGT1}, 0xffff0000, v{vGW+j}',
                 f'v_fmac_f32 v{GA[2*j]}, v{vGT0}, v{vGS}', f'v_fmac_f32 v{GA[2*j+1]}, v{vGT1}, v{vGS}']
    k(f's_mov_b32 s{sTH}, 0x{f2u(2.0**thresh_log2):08x}')
    g.stamp_first = 1
    g.emit(loop_sreg=None)
    k.stamp(2)
    k('s_waitcnt vmcnt(16)')
    k('s_barrier')
    Kfr = lambda kb, ds: aF + 32 + (4 * kb + ds) * 4
    Vfr = lambda db: aF + 4 * db
    def kread(unit, kb, ds, dst=None):
        off = SL((unit >> 1) & 3) + ((unit & 1) * 32 + kb * 16) * 256
        return f'ds_read_b128 {R4("a", Kfr(kb, ds) if dst is None else dst)}, v{vKA+ds} offset:{off}'
    def vread(unit, db, hf):
        off = SL((unit >> 1) & 3) + ((unit & 1) * 32 + hf * 16) * 256
        return f'ds_read_b64_tr_b16 {R2("a", Vfr(db) + 2*hf)}, v{vVA+db} offset:{off}'
    for kb in range(2):
        for ds in range(4): k(kread(0, kb, ds, dst=Vfr(4 * kb + ds)))
    sc = math.log2(math.e) / math.sqrt(128.0)
    k(f'v_mov_b32 v46, 0x{f2u(sc):08x}'); k(f'v_mov_b32 v47, 0x{f2u(sc):08x}')
    Qf = lambda qb, ds: vQ + (qb * 4 + ds) * 4
    for u in range(4):
        for qb in range(4):
            p = Qf(qb, u)
            for h in range(2):
                A = acc0 + ((2 * u + h) * 4 + qb) * 4
                k(f'v_pk_mul_f32 {R2("v", A)}, {R2("v", A)}, {R2("v", 46)}')
                k(f'v_pk_mul_f32 {R2("v", A+2)}, {R2("v", A+2)}, {R2("v", 46)}')
                k(f'v_cvt_pk_bf16_f32 v{p+2*h}, v{A}, v{A+1}')
                k(f'v_cvt_pk_bf16_f32 v{p+2*h+1}, v{A+2}, v{A+3}')
        for sw in ('32', '16'):
            for qb in range(4):
                p = Qf(qb, u)
                k(f'v_permlane{sw}_swap_b32 v{p}, v{p+2}')
                k(f'v_permlane{sw}_swap_b32 v{p+1}, v{p+3}')
    k('s_waitcnt lgkmcnt(0)')
    for kb in range(2):
        for ds in range(4): k(kread(1, kb, ds))
    Sb = lambda N, kb, qb: vS + 32 * (N & 1) + (kb * 4 + qb) * 4
    Pb = lambda N, qb: vP + 16 * (N & 1) + 4 * qb
    Lb = lambda qb: vL + 4 * qb
    NM = lambda qb: vNM + 4 * qb
    def qk(N, kb, ds, qb, fr=None, czero=False):
        d = R4('v', Sb(N, kb, qb))
        c = ('0' if czero else R4('v', NM(qb))) if ds == 0 else d
        return f'{MF} {d}, {R4("a", Kfr(kb, ds) if fr is None else fr)}, {R4("v", Qf(qb, ds))}, {c}'
    def pv(N, db, qb):
        d = R4('a', aO + (db * 4 + qb) * 4)
        return f'{MF} {d}, {R4("a", Vfr(db))}, {R4("v", Pb(N, qb))}, {d}'
    def ones(N, qb):
        return f'{MF} {R4("v", Lb(qb))}, {R4("v", vONE)}, {R4("v", Pb(N, qb))}, {R4("v", Lb(qb))}'
    def E(N, i):
        return f'v_exp_f32 v{vE + (i & 7)}, v{Sb(N, i >> 4, (i >> 2) & 3) + (i & 3)}'
    def C(N, j):
        i = 2 * j
        return f'v_cvt_pk_bf16_f32 v{Pb(N, (i >> 2) & 3) + 2 * (i >> 4) + ((i >> 1) & 1)}, v{vE + (i & 7)}, v{vE + (i & 7) + 1}'
    def xmax(D, X):
        for sw in ('16', '32'):
            k(f'v_mov_b32 v{X}, v{D}')
            k('s_nop 1')
            k(f'v_permlane{sw}_swap_b32 v{D}, v{X}')
            k(f'v_max_f32 v{D}, v{D}, v{X}')
    def interleave(mf, fill, cap=2):
        fi = 0
        for gi, m in enumerate(mf):
            k(m)
            used = 0
            while fi < len(fill) and fill[fi][2] <= gi and used + fill[fi][1] <= cap:
                k(fill[fi][0]); used += fill[fi][1]; fi += 1
        for x in fill[fi:]: k(x[0])

    NG = 68
    def build_iter(N):
        T = (N - 1) >> 1
        first_in_pair = (N & 1) == 1
        mf = [pv(N - 1, db, qb) for db in range(8) for qb in range(4)]
        mf += [ones(N - 1, qb) for qb in range(4)]
        import sys
        if 'nochain' in sys.argv: mf += [qk(N + 1, kb, ds, qb) for kb in range(2) for ds in range(4) for qb in range(4)]
        else: mf += [qk(N + 1, kb, ds, qb) for kb in range(2) for qb in range(4) for ds in range(4)]
        first = [[] for _ in range(NG)]; rest = [[] for _ in range(NG)]; cost = [0] * NG
        def put(g, ins, mem=False, c=1):
            (first if mem else rest)[g].append(ins); cost[g] += c
        for i in range(32):
            gp = E0 + 2 * i
            if gp < NG: put(gp, E(N + 1, i), c=2)
            else: put(gp - NG, E(N, i), c=2)
        for j in range(16):
            gp = E0 + 2 * (2 * j + 1) + 1
            if gp < NG: put(gp, C(N + 1, j))
            else: put(gp - NG, C(N, j))
        rd = []
        for db in range(8):
            for hf in range(2):
                gp = 4 * db - lead + 2 * hf
                rd.append((gp % NG, vread(N - 1 if gp >= 0 else N, db, hf), ('V', db) if gp >= 0 else ('Vn', db)))
        for i in range(8):
            gp = 36 + 4 * i - lead
            rd.append((gp, kread(N + 1, i >> 2, i & 3), ('K', i)))
        rd.sort(key=lambda x: x[0])
        for gp, ins, tag in rd: put(gp, ins, mem=True)
        cyc = [(gp - NG, 'V' if tag[0] == 'Vn' else 'old', tag[1]) for gp, _, tag in rd] + \
              [(gp, tag[0], tag[1]) for gp, _, tag in rd]
        waits = {}
        for at, kind, hi in ((0, 'V', 3), (16, 'V', 7), (36, 'K', 3), (52, 'K', 7)):
            lastidx = max(i for i, x in enumerate(cyc) if x[1] == kind and x[2] == hi)
            n_after = sum(1 for i, x in enumerate(cyc) if i > lastidx and x[0] < at)
            assert cyc[lastidx][0] < at
            waits[at] = n_after
        for at in (16, 36, 52): put(at - 1, f's_waitcnt lgkmcnt({waits[at]})')
        put(NG - 1, f's_waitcnt lgkmcnt({waits[0]})')
        def putv(gp, ins):
            assert cost[gp] == 0, (N, gp, first[gp], rest[gp])
            put(gp, ins, mem=True, c=2 if excl else 1)
        def puts(gp, seq, hi=NG):
            for ins in seq:
                while cost[gp] >= 2: gp += 1
                assert gp < hi, (N, ins)
                put(gp, ins)
                if ins.startswith('v_cmp'): gp += 2
        if not first_in_pair:
            X = lambda T: (2 if T % 4 < 3 else 1) + (2 if T % 4 == 1 else 0) + (2 if T % 4 == 2 and split2 else 0)
            npf = X(T - 1) + X(T)
            if T % 4 == 0: npf -= 1
            put(19, f's_waitcnt vmcnt({12 + npf})'); put(19, 's_barrier')
            d = [x[0] for x in kdma(T % 4) if x[0] != 's_nop 0']
            put(15, d[0])
            for gp, ins in zip((23, 27, 31, 39), d[1:5]): putv(gp, ins)
            if T % 4 == 1:
                putv(7, gld[0]); putv(11, gld[1]); puts(35, gld[2:])
            if T % 4 == 2 and split2:
                putv(7, f'buffer_store_dwordx4 a[208:211], v{vPF}, s[72:75], s{sXB} offen'); putv(11, f'buffer_store_dwordx4 a[208:211], v{vT+3}, s[72:75], s{sXB} offen'); put(35, f's_add_u32 s{sXB}, s{sXB}, 0x100000')
            puts(43, d[5:])
            if T % 4 == 0: puts(0, gfma)
        else:
            d = [x[0] for x in vdma((T + 3) % 4) if x[0] != 's_nop 0']
            put(5, d[0])
            for gp, ins in zip((7, 11, 19, 23), d[1:5]): putv(gp, ins)
            puts(43, d[5:])
            if T % 4 == 0:
                putv(27, f'buffer_store_dwordx4 a[192:195], v{vD0}, s[72:75], s{sST0} offen')
                putv(31, f'buffer_load_dwordx4 a[192:195], v{vPF}, s[32:35], s{sPF} offen')
            if T % 4 == 1:
                putv(27, f'buffer_store_dwordx4 a[196:199], v{vD1}, s[72:75], 0 offen')
                putv(31, f'buffer_load_dwordx4 a[196:199], v{vS1}, s[36:39], s{sL1} offen')
                puts(35, [f'v_mov_b32 v{vD1}, v{vN1}',
                        f'v_add_u32 v{vJ1}, 8, v{vJ1}',
                        f'v_add_u32 v{vN1}, {4*1024*224 + 128}, v{vN1}',
                        f'v_cmp_lt_u32 vcc, 13, v{vJ1}',
                        f's_add_u32 s{sL1}, s{sL1}, 1024',
                        f'v_cndmask_b32 v61, 0, v60, vcc',
                        f'v_cndmask_b32 v62, 0, 14, vcc',
                        f'v_add_u32 v{vN1}, v61, v{vN1}',
                        f'v_sub_u32 v{vJ1}, v{vJ1}, v62'])
            if T % 4 == 2:
                putv(27, f'buffer_store_dwordx4 a[200:203], v{vD2}, s[72:75], s{sST2} offen')
                putv(31, f'buffer_load_dwordx4 a[200:203], v{vPF}, s[60:63], s{sPF} offen')
            if T % 4 == 3:
                putv(27, 'buffer_load_dwordx4 a[204:207], v6, s[4:7], s8 offen ; pf')
                put(3, f's_lshr_b32 s{sST0}, s{sPF}, 3'); put(15, f's_lshr_b32 s{sST2}, s{sPF}, {3 if split2 else 4}')
                put(31, f's_add_u32 s{sPF}, s{sPF}, 0x100000')
                put(31, f's_sub_u32 s{sCNT}, s{sCNT}, 1')
        out = []
        for gi in range(NG):
            fl = first[gi] + rest[gi]
            if 'nobar' in dbg: fl = [x for x in fl if x != 's_barrier']
            if 'novm' in dbg: fl = [x for x in fl if not x.startswith(('buffer_', 's_waitcnt vmcnt'))]
            if 'nopack' in dbg: fl = [x for x in fl if not (x.startswith('buffer_') and not x.endswith(' lds'))]
            if 'nopack' in dbg: fl = ['s_waitcnt vmcnt(12)' if x.startswith('s_waitcnt vmcnt') else x for x in fl]
            for md in ('sc1', 'nt', 'sc0'):
                if 'kv' + md in dbg: fl = [x.replace(' lds', f' {md} lds') if x.endswith(' lds') else x for x in fl]
            if 'nods' in dbg: fl = [x for x in fl if not x.startswith(('ds_', 's_waitcnt lgkm'))]
            if 'noexp' in dbg: fl = [x for x in fl if not x.startswith('v_exp')]
            if 'nocvt' in dbg: fl = [x for x in fl if not x.startswith('v_cvt')]
            out.append(mf[gi]); out += fl
            if cost[gi] > 2: print('gap over', N, gi, cost[gi], first[gi] + rest[gi])
        return out, waits[0], rd

    mf0 = [qk(0, kb, ds, qb, fr=Vfr(4 * kb + ds), czero=True) for kb in range(2) for ds in range(4) for qb in range(4)]
    D = lambda qb: vE + qb
    X = lambda qb: vE + 4 + qb
    k(f's_mov_b32 s9, 0x{f2u(-float(bias)):08x}')
    f0 = [(f'v_add_u32 v{vT+3}, 0x800000, v{vPF}', 1, 0)] + [(f'v_accvgpr_write_b32 a{208+i}, -1', 1, 0) for i in range(4)] + [(f'v_mov_b32 v{vL+i}, 0', 1, 0) for i in range(16)] + [(f'v_mov_b32 v{vONE+i}, 0x3f803f80', 1, 0) for i in range(4)]
    for qb in range(4): f0.append((f'v_max3_f32 v{D(qb)}, v{Sb(0,0,qb)}, v{Sb(0,0,qb)+1}, v{Sb(0,0,qb)+2}', 1, 22))
    for qb in range(4): f0.append((f'v_max_f32 v{D(qb)}, v{D(qb)}, v{Sb(0,0,qb)+3}', 1, 0))
    interleave(mf0, f0)
    k('s_waitcnt lgkmcnt(0)')
    mf1 = [qk(1, kb, ds, qb, czero=True) for kb in range(2) for ds in range(4) for qb in range(4)]
    vn = [ins for gp, ins, tag in build_iter(0)[2] if tag[0] == 'Vn']
    f1 = [(x, 1, 0) for x in vn]
    for (M, kb, mg) in ((0, 1, 8), (1, 0, 20)):
        for h in range(2):
            for qb in range(4):
                f1.append((f'v_max3_f32 v{D(qb)}, v{D(qb)}, v{Sb(M,kb,qb)+2*h}, v{Sb(M,kb,qb)+2*h+1}', 1, mg + qb // 2))
    for sw in ('16', '32'):
        for qb in range(4): f1.append((f'v_mov_b32 v{X(qb)}, v{D(qb)}', 1, 0))
        for qb in range(4): f1.append((f'v_permlane{sw}_swap_b32 v{D(qb)}, v{X(qb)}', 1, 0))
        for qb in range(4): f1.append((f'v_max_f32 v{D(qb)}, v{D(qb)}, v{X(qb)}', 1, 0))
    for r in range(4):
        for qb in range(4): f1.append((f'v_sub_f32 v{NM(qb)+r}, s9, v{D(qb)}', 1, 0))
    interleave(mf1, f1)
    for M in range(2):
        for kb in range(2):
            for qb in range(4):
                for h in range(2):
                    r = Sb(M, kb, qb) + 2 * h
                    k(f'v_pk_add_f32 {R2("v", r)}, {R2("v", r)}, {R2("v", NM(qb))}')
    for i in range(0, 32, 2):
        k(E(0, i)); k(E(0, i + 1))
        if i: k(C(0, (i >> 1) - 1))
    k('s_nop 0')
    k(C(0, 15))
    for i in range(32):
        if E0 + 2 * i < NG: k(E(1, i)); k('s_nop 0')
        if i & 1 and E0 + 2 * i + 1 < NG: k(C(1, i >> 1))
    k(f's_mov_b32 s{sCNT}, 7')
    k(f's_waitcnt lgkmcnt({build_iter(1)[1]})')
    k.stamp(3)
    k(f'{Lloop}:')
    for N in range(1, 9):
        ins, w0, _ = build_iter(N)
        cnt = 0
        for idx, x in enumerate(ins):
            if x.startswith(MF):
                if N == 7 and cnt == 36:
                    k(f's_cbranch_scc1 {Ltail}')
                    tail_rest = ins[idx:]
                cnt += 1
            if N == 7 and 33 <= cnt <= 36: assert not (x.startswith('s_') and not x.startswith('s_waitcnt')), x
            k(x)
    k(f's_branch {Lloop}')
    k(f'{Ltail}:')
    k.stamp(4)
    N = 7
    k(f'buffer_store_dwordx4 a[192:195], v{vD0}, s[72:75], s{sST0} offen')
    for db in range(8):
        for hf in range(2): k(vread(N, db, hf))
    for x in tail_rest:
        if x.startswith('v_exp') and any(x == E(N, i) for i in range(32)): k(x); k('s_nop 0')
        elif x.startswith('v_cvt') and any(x == C(N, j) for j in range(16)): k(x)
    k('s_waitcnt lgkmcnt(0)')
    k('s_nop 0')
    red = [f'v_add_f32_dpp v{r}, v{r}, v{r} row_ror:8 row_mask:0xf bank_mask:0xf' for r in GA]
    red += [f'v_permlane16_swap_b32 v{GA[j]}, v{GA[j+1]}' for j in range(0, 8, 2)]
    red += [f'v_add_f32 v{GA[j]}, v{GA[j]}, v{GA[j+1]}' for j in range(0, 8, 2)]
    red += [f'v_and_b32 v{vGA}, 7, v1', f'v_lshrrev_b32 v{vGB}, 4, v1']
    red += [f'v_permlane32_swap_b32 v{GA[0]}, v{GA[2]}', f'v_permlane32_swap_b32 v{GA[4]}, v{GA[6]}']
    red += [f'v_add_f32 v{GA[0]}, v{GA[0]}, v{GA[2]}', f'v_add_f32 v{GA[4]}, v{GA[4]}, v{GA[6]}']
    red += [f'v_lshl_add_u32 v{vGA}, v{vGA}, 3, v{vGB}', f'v_lshlrev_b32 v{vGA}, 2, v{vGA}']
    red += [f'buffer_store_dword v{GA[0]}, v{vGA}, s[68:71], s43 offen', f'buffer_store_dword v{GA[4]}, v{vGA}, s[68:71], s43 offen offset:16']
    for qb in range(4): k(ones(N, qb))
    for db in range(8):
        for qb in range(4):
            k(pv(N, db, qb))
            if red: k(red.pop(0))
    assert not red
    k(f'v_max3_f32 v{vT}, v{Lb(0)}, v{Lb(1)}, v{Lb(2)}')
    k(f'v_max_f32 v{vT}, v{vT}, v{Lb(3)}')
    k(f'v_cmp_nge_f32 vcc, s{sTH}, v{vT}')
    k(f's_cbranch_vccnz {Lslow}')
    k('s_mov_b64 s[66:67], -1')
    k(f'{Lepi}:')
    k('s_setreg_imm32_b32 hwreg(HW_REG_MODE, 4, 2), 3')
    RC = vE
    for qb in range(4):
        k(f'v_rcp_f32 v{RC+2*qb}, v{Lb(qb)}')
        k('s_nop 0')
        k(f'v_mov_b32 v{RC+2*qb+1}, v{RC+2*qb}')
    k('v_lshlrev_b32 v6, 4, v1')
    k(f's_lshl_b32 s48, s{sHEAD}, 9')
    k(f's_add_u32 s48, s48, s{sMB0}')
    k('s_lshl_b32 s48, s48, 10')
    n = 0
    for u in range(4):
        for qb in range(4):
            X = vS + (n % 4) * 8; D = vP + (n % 4) * 4; n += 1
            for h in range(2):
                a = aO + ((2 * u + h) * 4 + qb) * 4
                for r in range(4): k(f'v_accvgpr_read_b32 v{X+4*h+r}, a{a+r}')
            if u == 0:
                k(f'v_max3_f32 v{vT+1}, abs(v{X}), abs(v{X+1}), abs(v{X+2})')
                k(f'v_max3_f32 v{vT+1}, v{vT+1}, abs(v{X+3}), abs(v{X+4})')
                k(f'v_max3_f32 v{vT+1}, v{vT+1}, abs(v{X+5}), abs(v{X+6})')
                k(f'v_mov_b32 v{vT}, v{vT+1}' if qb == 0 else f'v_min_f32 v{vT}, v{vT}, v{vT+1}')
            for j in range(4): k(f'v_pk_mul_f32 {R2("v", X+2*j)}, {R2("v", X+2*j)}, {R2("v", RC+2*qb)}')
            for j in range(4): k(f'v_cvt_pk_bf16_f32 v{D+j}, v{X+2*j}, v{X+2*j+1}')
            k(f'buffer_store_dwordx4 {R4("v", D)}, v6, s[28:31], s48 offen offset:{qb*1024}')
        if u == 0:
            k(f'v_cmp_gt_f32 vcc, 0x{ufl:08x}, v{vT}')
            k('s_and_b64 vcc, vcc, s[66:67]')
            k(f's_cbranch_vccnz {Lslow}')
        if u < 3: k('s_add_u32 s48, s48, 131072')
    k.stamp_out(kidx)
    k(f'{Lend}:')
    k('s_endpgm')

    k(f'{Lslow}:')
    k('s_waitcnt vmcnt(0)')
    k('s_mov_b64 s[66:67], 0')
    MX = vL + 16
    vKG = vL + 20
    vVP = vL + 22
    vVG = vL + 30
    k(f'v_and_b32 v{tmp}, 15, v1')
    k(f'v_lshrrev_b32 v{tmp+1}, 4, v1')
    k(f'v_lshlrev_b32 v{vKG}, 8, v{tmp}')
    k(f'v_lshl_add_u32 v{vKG}, v{tmp+1}, 4, v{vKG}')
    k(f'v_add_u32 v{vKG+1}, 4096, v{vKG}')
    k(f's_lshl_b32 s48, s{sWAVE}, 13')
    k(f's_add_u32 s48, s48, {SL(8)}')
    k(f's_sub_u32 s49, s48, 0x10000')
    for db in range(8): k(f'v_add_u32 v{vVP+db}, s49, v{vVA+db}')
    for j in range(2): k(f'v_subrev_u32 v{vVG+j}, s{sM0}, v{vVD+j}')
    for qb in range(4): k(f'v_mov_b32 v{MX+qb}, 0xff7fffff')
    for i in range(16): k(f'v_mov_b32 v{vNM+i}, 0')
    k(f's_mov_b32 s{sFIRST}, 0')
    Lp = k.label('spass'); Lu = k.label('sunit'); Lp1 = k.label('sp1'); Lnx = k.label('snext'); Lnov = k.label('snov')
    k(f'{Lp}:')
    k(f's_mov_b32 s{sK}, 0')
    k(f'{Lu}:')
    for kb in range(2):
        for ds in range(4):
            k(f'buffer_load_dwordx4 {R4("a", Kfr(kb, ds))}, v{vKG+kb}, s[20:23], s{sK} offen offset:{ds*64}')
    k(f's_cmp_eq_u32 s{sFIRST}, 0')
    k(f's_cbranch_scc1 {Lnov}')
    for half in range(2):
        k(f's_add_u32 m0, s48, {half*4096}')
        k(f's_add_u32 s49, s{sK}, {half*4096}')
        for n in range(4):
            k(f'buffer_load_dwordx4 v{vVG+(n&1)}, s[24:27], s49 offen offset:{n*1024} lds')
    k(f'{Lnov}:')
    k('s_waitcnt vmcnt(0)')
    for kb in range(2):
        for ds in range(4):
            for qb in range(4): k(qk(0, kb, ds, qb))
    k('s_nop 7')
    k(f's_cmp_eq_u32 s{sFIRST}, 0')
    k(f's_cbranch_scc0 {Lp1}')
    for qb in range(4):
        regs = [Sb(0, kb, qb) + r for kb in range(2) for r in range(4)]
        for i in range(0, 8, 2): k(f'v_max3_f32 v{MX+qb}, v{MX+qb}, v{regs[i]}, v{regs[i+1]}')
    k(f's_branch {Lnx}')
    k(f'{Lp1}:')
    for db in range(8):
        for hf in range(2):
            k(f'ds_read_b64_tr_b16 {R2("a", Vfr(db) + 2*hf)}, v{vVP+db} offset:{hf*4096}')
    for i in range(0, 32, 2):
        k(E(0, i)); k(E(0, i + 1)); k('s_nop 0'); k(C(0, i >> 1))
    k('s_waitcnt lgkmcnt(0)')
    k('s_nop 0')
    for qb in range(4): k(ones(0, qb))
    for db in range(8):
        for qb in range(4): k(pv(0, db, qb))
    k(f'{Lnx}:')
    k(f's_add_u32 s{sK}, s{sK}, 8192')
    k(f's_cmp_lt_u32 s{sK}, 524288')
    k(f's_cbranch_scc1 {Lu}')
    k('s_nop 7')
    k(f's_cmp_eq_u32 s{sFIRST}, 0')
    k(f's_cbranch_scc0 {Lepi}')
    for qb in range(4):
        xmax(MX + qb, vT)
        for r in range(4): k(f'v_sub_f32 v{NM(qb)+r}, 0, v{MX+qb}')
    for i in range(16): k(f'v_mov_b32 v{vL+i}, 0')
    for i in range(128): k(f'v_accvgpr_write_b32 a{aO+i}, 0')
    k(f's_mov_b32 s{sFIRST}, 1')
    k(f's_branch {Lp}')
    k.noreplay = {Lepi, Lp}
    return k
```

```python
from gen_small import *
WS_MP = 65536
WS_SC = 49152
WS_MP2 = 262144

CPF = True
def R4(kind, i): return f'{kind}[{i}:{i+3}]'
def R2(kind, i): return f'{kind}[{i}:{i+1}]'

def gemv_body(k, s_unit, nunits_x, colgrp0, nthreads, Lend):
    nsub = nthreads // 256
    k(f's_and_b32 s20, s{s_unit}, 7')
    k(f's_lshr_b32 s21, s{s_unit}, 3')
    k('s_and_b32 s22, s21, 3')
    k('s_lshr_b32 s21, s21, 2')
    k(f's_mul_i32 s20, s20, {nunits_x // 4}')
    k('s_add_u32 s20, s20, s21')
    if nsub == 2: k('s_lshl_b32 s20, s20, 1')
    k(f's_add_u32 s20, s20, {colgrp0}')
    k('v_and_b32 v5, 255, v0')
    k('v_lshrrev_b32 v1, 2, v5')
    k('v_and_b32 v2, 3, v0')
    k('s_mov_b32 s23, 12288')
    k('v_mul_lo_u32 v3, v1, s23')
    k('v_lshl_add_u32 v3, v2, 4, v3')
    if nsub == 2:
        k('v_lshrrev_b32 v6, 8, v0')
        k('v_lshl_add_u32 v3, v6, 6, v3')
    k('v_lshlrev_b32 v4, 1, v1')
    k(f's_mul_i32 s24, s22, {256*12288}')
    k('s_lshl_b32 s21, s20, 6')
    k('s_add_u32 s21, s21, s24')
    k('s_lshl_b32 s24, s22, 9')
    k('s_waitcnt lgkmcnt(0)')
    k.srd(12, 6, 1024 * 6144 * 2)
    k.srd(16, 4, 2048)
    for p in range(4):
        k(f'buffer_load_ushort v{40+p}, v4, s[16:19], s24 offen offset:{p*128}')
    for p in range(4):
        k(f'buffer_load_dwordx4 v[{16+4*p}:{16+4*p+3}], v3, s[12:15], s21 offen')
        if p < 3: k(f's_add_u32 s21, s21, {64*12288}')

def gemv_finish(k, nthreads, Lend, npf=0, table=False):
    k('s_mov_b32 s23, 0xbfb8aa3b')
    k(f's_waitcnt vmcnt({4+npf})')
    for p in range(4): k(f'v_lshlrev_b32 v{40+p}, 16, v{40+p}')
    for p in range(4): k(f'v_mul_f32 v{44+p}, s23, v{40+p}')
    for p in range(4): k(f'v_exp_f32 v{44+p}, v{44+p}')
    for p in range(4): k(f'v_add_f32 v{44+p}, 1.0, v{44+p}')
    for p in range(4): k(f'v_rcp_f32 v{44+p}, v{44+p}')
    for p in range(4): k(f'v_mul_f32 v{40+p}, v{40+p}, v{44+p}')
    round_pair(k, 40, 41, 44); round_pair(k, 42, 43, 45)
    if table:
        srd_off(k, 32, 8, WS_SC, 4096)
        k('s_lshl_b32 s26, s22, 10')
        k('s_cmp_eq_u32 s20, 0')
        k('s_cselect_b32 s26, s26, 0x10000')
        k('v_lshlrev_b32 v7, 2, v1')
        for p in range(4): k(f'buffer_store_dword v{40+p}, v7, s[32:35], s26 offen offset:{p*256}')
        npf += 4
        srd_off(k, 40, 8, WS_MOD32 + 8192, 12288)
        k('s_lshl_b32 s26, s2, 10')
        k('v_lshlrev_b32 v7, 2, v0')
        k('v_mov_b32 v52, -1')
        k('buffer_store_dword v52, v7, s[40:43], s26 offen')
        npf += 1
    for p in range(4):
        k(f's_waitcnt vmcnt({3-p+npf})')
        for j in range(4):
            w = 16 + 4 * p + j
            k(f'v_lshlrev_b32 v46, 16, v{w}')
            k(f'v_and_b32 v47, 0xffff0000, v{w}')
            op = 'v_mul_f32' if p == 0 else 'v_fmac_f32'
            k(f'{op} v{8+2*j}, v46, v{40+p}')
            k(f'{op} v{9+2*j}, v47, v{40+p}')
    for sh in (4, 8):
        for j in range(8):
            k(f'v_add_f32_dpp v{8+j}, v{8+j}, v{8+j} row_ror:{sh} row_mask:0xf bank_mask:0xf')
    for j in range(0, 8, 2): k(f'v_permlane16_swap_b32 v{8+j}, v{9+j}')
    for j in range(0, 8, 2): k(f'v_add_f32 v{8+j}, v{8+j}, v{9+j}')
    k('s_nop 0')
    k('v_permlane32_swap_b32 v8, v10')
    k('v_permlane32_swap_b32 v12, v14')
    k('v_add_f32 v8, v8, v10')
    k('v_add_f32 v9, v12, v14')
    k('v_and_b32 v1, 63, v0')
    k('v_lshrrev_b32 v3, 4, v1')
    k('v_lshl_add_u32 v3, v2, 3, v3')
    k('v_lshrrev_b32 v4, 6, v0')
    k('v_lshl_add_u32 v3, v4, 5, v3')
    k('v_lshlrev_b32 v3, 2, v3')
    k('ds_write2_b32 v3, v8, v9 offset0:0 offset1:4')
    k('s_waitcnt lgkmcnt(0)')
    k('s_barrier')
    ncol = 32 * (nthreads // 256)
    k(f'v_cmp_gt_u32 vcc, {ncol}, v0')
    k('s_and_saveexec_b64 s[24:25], vcc')
    k(f's_cbranch_execz {Lend}')
    k('v_and_b32 v1, 31, v0')
    k('v_lshrrev_b32 v2, 5, v0')
    k('v_lshlrev_b32 v3, 9, v2')
    k('v_lshl_add_u32 v3, v1, 2, v3')
    k('ds_read2_b32 v[8:9], v3 offset0:0 offset1:32')
    k('ds_read2_b32 v[10:11], v3 offset0:64 offset1:96')
    srd_off(k, 12, 8, WS_MP, 4 * 6144 * 4)
    k('s_mul_i32 s22, s22, 24576')
    k('s_lshl_b32 s21, s20, 7')
    k('s_add_u32 s21, s21, s22')
    k('v_lshlrev_b32 v4, 2, v0')
    k('s_waitcnt lgkmcnt(0)')
    k('v_add_f32 v8, v8, v9')
    k('v_add_f32 v10, v10, v11')
    k('v_add_f32 v8, v8, v10')
    k('buffer_store_dword v8, v4, s[12:15], s21 offen')

def gen_mod(pf=True):
    k = Kern('mod_kernel', (256, 1, 1), (256, 1, 1), 1024, vgpr=64, sgpr=48)
    Lend = k.label('end')
    k('s_cmp_ge_u32 s2, 256')
    k(f's_cbranch_scc1 {Lend}')
    k.stamp(0)
    k(f's_load_dwordx4 s[4:7], s[0:1], {A_C}')
    k(f's_load_dwordx2 s[8:9], s[0:1], {A_WS}')
    if pf: k(f's_load_dwordx2 s[28:29], s[0:1], {A_X}')
    gemv_body(k, 2, 32, 0, 256, Lend)
    npf = 0
    if pf:
        k.srd(28, 28, 4 * MB)
        k('v_lshlrev_b32 v6, 4, v0')
        k('s_lshl_b32 s26, s2, 14')
        for j in range(4):
            k(f'buffer_load_dwordx4 v[48:51], v6, s[28:31], s26 offen ; pf')
            if j < 3: k('s_add_u32 s26, s26, 4096')
        npf = 4
        if CPF:
            k.code_srd(36, 'ln1_kernel')
            k('s_lshr_b32 s26, s2, 3')
            k('s_lshl_b32 s26, s26, 12')
            k('buffer_load_dwordx4 v[48:51], v6, s[36:39], s26 offen ; pf')
            npf = 5
    gemv_finish(k, 256, Lend, npf, table=True)
    k.stamp_out(0)
    k(f'{Lend}:')
    k('s_endpgm')
    return k

def store_porder(k, X_packed, srd, wave, lane):
    P = X_packed
    k(f'v_lshrrev_b32 v5, 2, v{lane}')
    k('v_mul_u32_u24 v5, 528, v5')
    k(f'v_and_b32 v6, 1, v{lane}')
    k('v_lshl_add_u32 v5, v6, 8, v5')
    k(f'v_bfe_u32 v6, v{lane}, 1, 1')
    k('v_lshl_add_u32 v5, v6, 3, v5')
    k(f'v_lshl_add_u32 v5, v{wave}, 4, v5')
    k(f'ds_write_b64 v5, {R2("v", P)}')
    k(f'ds_write_b64 v5, {R2("v", P+2)} offset:128')
    k(f'ds_write_b64 v5, {R2("v", P+4)} offset:{16*528}')
    k(f'ds_write_b64 v5, {R2("v", P+6)} offset:{16*528+128}')
    k('v_lshrrev_b32 v6, 5, v0')
    k('v_and_b32 v7, 31, v0')
    k('v_mul_u32_u24 v5, 528, v6')
    k('v_lshl_add_u32 v5, v7, 4, v5')
    k('v_lshlrev_b32 v6, 17, v6')
    k('v_bfe_u32 v7, v0, 3, 2')
    k('v_lshl_add_u32 v6, v7, 8, v6')
    k('v_and_b32 v7, 7, v0')
    k('v_lshl_add_u32 v6, v7, 4, v6')
    k('s_lshr_b32 s20, s2, 1')
    k('s_lshl_b32 s20, s20, 10')
    k('s_and_b32 s21, s2, 1')
    k('s_lshl_b32 s21, s21, 7')
    k('s_add_u32 s20, s20, s21')
    k(f's_add_u32 s21, s20, {16*131072}')
    k('s_waitcnt lgkmcnt(0)')
    k('s_barrier')
    k(f'ds_read_b128 {R4("v", P)}, v5')
    k(f'ds_read_b128 {R4("v", P+4)}, v5 offset:{16*528}')
    k('s_waitcnt lgkmcnt(1)')
    k(f'buffer_store_dwordx4 {R4("v", P)}, v6, s[{srd}:{srd+3}], s20 offen')
    k('s_waitcnt lgkmcnt(0)')
    k(f'buffer_store_dwordx4 {R4("v", P+4)}, v6, s[{srd}:{srd+3}], s21 offen')

def ln_core_pk(k, X, T, sc):
    t0, t2, C = T, T + 2, T + 8
    k(f'v_pk_add_f32 {R2("v", t0)}, {R2("v", X)}, {R2("v", X+2)}')
    k(f'v_pk_add_f32 {R2("v", t2)}, {R2("v", X+4)}, {R2("v", X+6)}')
    for j in range(8, 16, 4):
        k(f'v_pk_add_f32 {R2("v", t0)}, {R2("v", t0)}, {R2("v", X+j)}')
        k(f'v_pk_add_f32 {R2("v", t2)}, {R2("v", t2)}, {R2("v", X+j+2)}')
    k(f'v_pk_add_f32 {R2("v", t0)}, {R2("v", t0)}, {R2("v", t2)}')
    k(f'v_add_f32 v{t0}, v{t0}, v{t0+1}')
    wave_sum(k, t0, t2)
    k(f'v_mul_f32 v{t0}, s{sc+1}, v{t0}')
    k(f'v_mov_b32 v{t0+1}, v{t0}')
    for j in range(0, 16, 2): k(f'v_pk_add_f32 {R2("v", C+j)}, {R2("v", X+j)}, {R2("v", t0)}')
    k(f'v_pk_mul_f32 {R2("v", t2)}, {R2("v", C)}, {R2("v", C)}')
    k(f'v_pk_mul_f32 {R2("v", T+4)}, {R2("v", C+2)}, {R2("v", C+2)}')
    for j in range(4, 16, 4):
        k(f'v_pk_fma_f32 {R2("v", t2)}, {R2("v", C+j)}, {R2("v", C+j)}, {R2("v", t2)}')
        k(f'v_pk_fma_f32 {R2("v", T+4)}, {R2("v", C+j+2)}, {R2("v", C+j+2)}, {R2("v", T+4)}')
    k(f'v_pk_add_f32 {R2("v", t2)}, {R2("v", t2)}, {R2("v", T+4)}')
    k(f'v_add_f32 v{t2}, v{t2}, v{t2+1}')
    round_pair(k, t0, t0 + 1, T + 4)
    for j in range(0, 16, 2): k(f'v_pk_add_f32 {R2("v", X+j)}, {R2("v", X+j)}, {R2("v", t0)}')
    wave_sum(k, t2, T + 4)
    for j in range(0, 16, 2): k(f'v_cvt_pk_bf16_f32 v{C+j}, v{X+j}, v{X+j+1}')
    k(f'v_mul_f32 v{t2}, s{sc}, v{t2}')
    round_pair(k, t2, t2 + 1, T + 4)
    k(f'v_add_f32 v{t2}, 0x3727c5ac, v{t2}')
    round_pair(k, t2, t2 + 1, T + 4)
    k(f'v_sqrt_f32 v{t2}, v{t2}')
    for j in range(0, 16, 2):
        k(f'v_lshlrev_b32 v{X+j}, 16, v{C+j}')
        k(f'v_and_b32 v{X+j+1}, 0xffff0000, v{C+j}')
    round_pair(k, t2, t2 + 1, T + 4)
    k(f'v_rcp_f32 v{t2}, v{t2}')
    k('s_nop 0')
    k(f'v_mov_b32 v{t2+1}, v{t2}')
    for j in range(0, 16, 2): k(f'v_pk_mul_f32 {R2("v", X+j)}, {R2("v", X+j)}, {R2("v", t2)}')
    round16(k, X, C)

def round16(k, X, C):
    for j in range(0, 16, 2): k(f'v_cvt_pk_bf16_f32 v{C+j}, v{X+j}, v{X+j+1}')
    for j in range(0, 16, 2):
        k(f'v_lshlrev_b32 v{X+j}, 16, v{C+j}')
        k(f'v_and_b32 v{X+j+1}, 0xffff0000, v{C+j}')

def gen_ln1(npf=4):
    MODL = 17408
    k = Kern('ln1_kernel', (512, 1, 1), (512, 1, 1), MODL + 8192, vgpr=96, sgpr=40)
    Lend = k.label('end'); Lg = k.label('gemv')
    k('s_cmp_ge_u32 s2, 256')
    k(f's_cbranch_scc1 {Lg}')
    k.stamp(0)
    k(f's_load_dwordx2 s[4:5], s[0:1], {A_X}')
    k(f's_load_dwordx2 s[8:9], s[0:1], {A_WS}')
    k('v_and_b32 v1, 63, v0')
    k('v_lshrrev_b32 v2, 6, v0')
    k('v_lshlrev_b32 v3, 4, v1')
    k('v_lshl_add_u32 v4, v2, 11, v3')
    k('v_lshlrev_b32 v7, 4, v0')
    k('s_lshl_b32 s20, s2, 14')
    k('s_waitcnt lgkmcnt(0)')
    k.stamp(1)
    k.srd(12, 4, 4 * MB)
    srd_off(k, 16, 8, WS_MP, 4 * 6144 * 4)
    k('buffer_load_dwordx4 v[8:11], v4, s[12:15], s20 offen')
    k('buffer_load_dwordx4 v[12:15], v4, s[12:15], s20 offen offset:1024')
    for p in range(4):
        k(f's_mov_b32 s21, {p*24576}')
        k(f'buffer_load_dwordx4 {R4("v", 16+4*p)}, v7, s[16:19], s21 offen')
    srd_off(k, 24, 8, WS_H, 4 * MB)
    k('s_mov_b32 s22, 0x3a800000')
    k('s_mov_b32 s23, 0xba800000')
    k('s_waitcnt vmcnt(0)')
    k.stamp(2)
    for p in range(1, 4):
        for h in range(2): k(f'v_pk_add_f32 {R2("v", 16+2*h)}, {R2("v", 16+2*h)}, {R2("v", 16+4*p+2*h)}')
    round_pair(k, 16, 17, 20); round_pair(k, 18, 19, 21)
    k('v_cmp_lt_u32 vcc, 255, v0')
    k('s_nop 1')
    k('v_cndmask_b32 v22, 0, 1.0, vcc')
    for j in range(4): k(f'v_add_f32 v{16+j}, v{16+j}, v22')
    round_pair(k, 16, 17, 20); round_pair(k, 18, 19, 21)
    k(f'ds_write_b128 v7, v[16:19] offset:{MODL}')
    X = 32
    unpack8(k, X, 8); unpack8(k, X + 8, 12)
    k('s_waitcnt lgkmcnt(0)')
    k('s_barrier')
    k('v_lshlrev_b32 v5, 5, v1')
    for sec, base in ((1, 64), (0, 48)):
        for h in range(2):
            for q in range(2):
                k(f'ds_read_b128 {R4("v", base + 8*h + 4*q)}, v5 offset:{MODL + sec*4096 + h*2048 + q*16}')
    ln_core_pk(k, X, 8, 22)
    k('s_waitcnt lgkmcnt(0)')
    for j in range(0, 16, 2): k(f'v_pk_mul_f32 {R2("v", X+j)}, {R2("v", X+j)}, {R2("v", 64+j)}')
    round16(k, X, 16)
    for j in range(0, 16, 2): k(f'v_pk_add_f32 {R2("v", X+j)}, {R2("v", X+j)}, {R2("v", 48+j)}')
    for j in range(8): k(f'v_cvt_pk_bf16_f32 v{8+j}, v{X+2*j}, v{X+2*j+1}')
    k.stamp(3)
    store_porder(k, 8, 24, 2, 1)
    k.stamp(4)
    k.stamp_out(1)
    k('s_endpgm')
    k(f'{Lg}:')
    k('s_cmp_ge_u32 s2, 512')
    k(f's_cbranch_scc1 {Lend}')
    k(f's_load_dwordx2 s[28:29], s[0:1], {A_WQ}')
    k('v_and_b32 v1, 63, v0')
    k('v_lshrrev_b32 v2, 6, v0')
    k('v_lshlrev_b32 v6, 18, v2')
    k('v_lshl_add_u32 v6, v1, 4, v6')
    k('s_and_b32 s32, s2, 7')
    k('s_lshl_b32 s32, s32, 10')
    k('s_bfe_u32 s33, s2, 0x50003')
    k('s_lshl_b32 s33, s33, 13')
    k('s_add_u32 s32, s32, s33')
    k('s_waitcnt lgkmcnt(0)')
    k.srd(28, 28, 1024 * 8192)
    for j in range(npf):
        k(f'buffer_load_dwordx4 v[84:87], v6, s[28:31], s32 offen ; pf')
        if j < npf - 1: k(f's_add_u32 s32, s32, {256*8192}')
    k(f'{Lend}:')
    k('s_endpgm')
    return k

def mod_finalize(k, s_ws, sbase, vbase, lane):
    srd_off(k, sbase, s_ws, 0, WS_MP2 + 16 * 16384)
    k(f'v_and_b32 v{vbase}, 15, v{lane}')
    k(f'v_lshlrev_b32 v{vbase}, 2, v{vbase}')
    k(f'v_lshrrev_b32 v{vbase+5}, 4, v{lane}')
    k(f'v_lshl_add_u32 v{vbase+5}, v{vbase+5}, 16, v{vbase}')
    k(f's_lshl_b32 s{sbase+4}, s2, 6')
    for p in range(4):
        k(f's_add_u32 s{sbase+5}, s{sbase+4}, {WS_MP2 + p*16384}')
        k(f'buffer_load_dword v{vbase+1+p}, v{vbase+5}, s[{sbase}:{sbase+3}], s{sbase+5} offen')
    def fin(k=k):
        a = vbase + 1
        k(f'v_add_f32 v{a}, v{a}, v{a+1}')
        k(f'v_add_f32 v{a+2}, v{a+2}, v{a+3}')
        k(f'v_add_f32 v{a}, v{a}, v{a+2}')
        for sw in ('16', '32'):
            k(f'v_mov_b32 v{a+1}, v{a}')
            k('s_nop 1')
            k(f'v_permlane{sw}_swap_b32 v{a}, v{a+1}')
            k(f'v_add_f32 v{a}, v{a}, v{a+1}')
        round_pair(k, a, a + 1, a + 2)
        k(f's_lshr_b32 s{sbase+5}, s2, 6')
        k(f's_cmp_eq_u32 s{sbase+5}, 2')
        k(f's_cselect_b32 s{sbase+5}, 1.0, 0')
        k(f'v_add_f32 v{a}, s{sbase+5}, v{a}')
        round_pair(k, a, a + 1, a + 2)
        k(f'v_and_b32 v{a+1}, 12, v{vbase}')
        k(f'v_bfe_u32 v{a+2}, v{vbase}, 4, 1')
        k(f'v_lshl_add_u32 v{a+1}, v{a+2}, 10, v{a+1}')
        k(f'v_bfe_u32 v{a+2}, v{vbase}, 5, 1')
        k(f'v_lshl_add_u32 v{a+1}, v{a+2}, 4, v{a+1}')
        k(f's_and_b32 s{sbase+5}, s2, 31')
        k(f's_lshl_b32 s{sbase+5}, s{sbase+5}, 5')
        k(f's_lshr_b32 s{sbase+6}, s2, 5')
        k(f's_lshl_b32 s{sbase+6}, s{sbase+6}, 11')
        k(f's_add_u32 s{sbase+5}, s{sbase+5}, s{sbase+6}')
        k('s_cmp_ge_u32 s2, 192')
        k(f's_cselect_b32 s{sbase+4}, s{sbase+4}, s{sbase+5}')
        k('s_cselect_b64 vcc, -1, 0')
        k(f's_add_u32 s{sbase+4}, s{sbase+4}, 8192')
        k(f'v_cndmask_b32 v{a+1}, v{a+1}, v{vbase}, vcc')
        k(f'buffer_store_dword v{a}, v{a+1}, s[{sbase}:{sbase+3}], s{sbase+4} offen sc1')
    return fin

def wave_sum2(k, v, t):
    wave_sum(k, v, t)

def ln_fast(k, X, T, sc):
    t0, t2 = T, T + 2
    k(f'v_pk_add_f32 {R2("v", t0)}, {R2("v", X)}, {R2("v", X+2)}')
    for j in range(4, 16, 2): k(f'v_pk_add_f32 {R2("v", t0)}, {R2("v", t0)}, {R2("v", X+j)}')
    k(f'v_add_f32 v{t0}, v{t0}, v{t0+1}')
    wave_sum(k, t0, t2)
    k(f'v_mul_f32 v{t0}, s{sc+1}, v{t0}')
    k(f'v_mov_b32 v{t0+1}, v{t0}')
    for j in range(0, 16, 2): k(f'v_pk_add_f32 {R2("v", X+j)}, {R2("v", X+j)}, {R2("v", t0)}')
    k(f'v_pk_mul_f32 {R2("v", t0)}, {R2("v", X)}, {R2("v", X)}')
    for j in range(2, 16, 2): k(f'v_pk_fma_f32 {R2("v", t0)}, {R2("v", X+j)}, {R2("v", X+j)}, {R2("v", t0)}')
    k(f'v_add_f32 v{t0}, v{t0}, v{t0+1}')
    wave_sum(k, t0, t2)
    k(f'v_mov_b32 v{t2}, 0x3727c5ac')
    k(f'v_fmac_f32 v{t2}, s{sc}, v{t0}')
    k(f'v_rsq_f32 v{t0}, v{t2}')
    k('s_nop 0')
    k(f'v_mov_b32 v{t0+1}, v{t0}')

def gen_ln2():
    k = Kern('ln2_kernel', (256, 1, 1), (512, 1, 1), 17408 + 16384, vgpr=128, sgpr=40)
    Lend = k.label('end')
    k('s_cmp_ge_u32 s2, 256')
    k(f's_cbranch_scc1 {Lend}')
    k.stamp(0)
    k(f's_load_dwordx2 s[4:5], s[0:1], {A_X}')
    k(f's_load_dwordx2 s[8:9], s[0:1], {A_WS}')
    k('v_and_b32 v1, 63, v0')
    k('v_lshrrev_b32 v2, 6, v0')
    k('v_lshlrev_b32 v3, 4, v1')
    k('v_lshl_add_u32 v4, v2, 11, v3')
    k('s_lshl_b32 s20, s2, 14')
    k(f's_add_u32 s23, s20, {4*MB}')
    k('s_waitcnt lgkmcnt(0)')
    k.stamp(1)
    srd_off(k, 28, 8, WS_P, 8 * MB)
    k('buffer_load_dwordx4 v[16:19], v4, s[28:31], s20 offen')
    k('buffer_load_dwordx4 v[20:23], v4, s[28:31], s20 offen offset:1024')
    k('buffer_load_dwordx4 v[24:27], v4, s[28:31], s23 offen')
    k('buffer_load_dwordx4 v[28:31], v4, s[28:31], s23 offen offset:1024')
    k.srd(12, 4, 4 * MB)
    k('buffer_load_dwordx4 v[8:11], v4, s[12:15], s20 offen')
    k('buffer_load_dwordx4 v[12:15], v4, s[12:15], s20 offen offset:1024')
    srd_off(k, 16, 8, WS_MOD32 + 8192, 12288)
    GA, SB, CB = 80, 96, 112
    MODL = 17408
    k('v_readfirstlane_b32 s21, v2')
    k('s_lshl_b32 s21, s21, 11')
    k(f's_add_u32 m0, s21, {MODL}')
    k('s_nop 2')
    k('buffer_load_dwordx4 v3, s[16:19], s21 offen lds')
    k('buffer_load_dwordx4 v3, s[16:19], s21 offen offset:1024 lds')
    srd_off(k, 24, 8, WS_Y, 4 * MB)
    srd_off(k, 32, 8, WS_X1, 4 * MB)
    k('s_mov_b32 s36, 0x3a800000')
    k('s_mov_b32 s37, 0xba800000')
    X = 32
    k('s_waitcnt vmcnt(4)')
    unpack8(k, 48, 16); unpack8(k, 56, 20); unpack8(k, 64, 24); unpack8(k, 72, 28)
    for j in range(0, 16, 2): k(f'v_pk_add_f32 {R2("v", 48+j)}, {R2("v", 48+j)}, {R2("v", 64+j)}')
    k('s_waitcnt vmcnt(0)')
    k('s_barrier')
    for base, sec in ((GA, 0), (CB, 2), (SB, 1)):
        for h in range(2):
            for q in range(2):
                k(f'ds_read_b128 {R4("v", base + 8*h + 4*q)}, v3 offset:{MODL + sec*4096 + h*2048 + q*1024}')
    unpack8(k, X, 8); unpack8(k, X + 8, 12)
    k('s_waitcnt lgkmcnt(8)')
    k.stamp(2)
    for j in range(0, 16, 2): k(f'v_pk_fma_f32 {R2("v", X+j)}, {R2("v", 48+j)}, {R2("v", GA+j)}, {R2("v", X+j)}')
    for j in range(8): k(f'v_cvt_pk_bf16_f32 v{8+j}, v{X+2*j}, v{X+2*j+1}')
    k('buffer_store_dwordx4 v[8:11], v4, s[32:35], s20 offen')
    k('buffer_store_dwordx4 v[12:15], v4, s[32:35], s20 offen offset:1024')
    T = 16
    ln_fast(k, X, T, 36)
    k('s_waitcnt lgkmcnt(0)')
    for j in range(0, 16, 2): k(f'v_pk_mul_f32 {R2("v", X+j)}, {R2("v", X+j)}, {R2("v", T)}')
    for j in range(0, 16, 2): k(f'v_pk_fma_f32 {R2("v", X+j)}, {R2("v", X+j)}, {R2("v", CB+j)}, {R2("v", SB+j)}')
    ln_fast(k, X, T, 36)
    for j in range(0, 16, 2): k(f'v_pk_mul_f32 {R2("v", X+j)}, {R2("v", X+j)}, {R2("v", T)}')
    for j in range(8): k(f'v_cvt_pk_bf16_f32 v{24+j}, v{X+2*j}, v{X+2*j+1}')
    k.stamp(3)
    store_porder(k, 24, 24, 2, 1)
    k.stamp(4)
    k.stamp_out(4)
    k(f'{Lend}:')
    k('s_endpgm')
    return k
```

```python
from asmgen import *
from gen_small import *

def R4(kind, i): return f'{kind}[{i}:{i+3}]'
def R2(kind, i): return f'{kind}[{i}:{i+1}]'
MF = 'v_mfma_f32_16x16x32_bf16'

class Gemm:
    def __init__(self, k, NA, NB, LP, S, PD, RA, ntiles, acc, aring, bring, vA, lds_base,
                 srdW, sW, wpitch, wdma, sM0, srdX, sX, vX, cinit=None, wait_every=1, extra_loads=None, stage_off=None, extra_pending=None, aimm=0, tile_bytes=None, NS=2, chain=True):
        self.__dict__.update(locals())
        import sys
        if 'nochain' in sys.argv: self.chain = False
        self.tile_bytes = tile_bytes or 64 * LP
        self.nops = len(wdma) + NS * NB
        if stage_off is None: self.stage_off = [lds_base + i * self.tile_bytes for i in range(S)]
        self.vq = []
        self.make_sched(S - 1, [])

    def loads(self, t):
        st = t % self.S
        bl = []
        for ks in range(self.NS):
            for b in range(self.NB):
                bl.append([f'buffer_load_dwordx4 {self.bring(st, ks, b)}, v{self.vX[ks]}, s[{self.srdX}:{self.srdX+3}], s{self.sX} offen offset:{b*1024}'])
        g = [bl[0], [f's_add_u32 m0, s{self.sM0}, {self.stage_off[st]}'], bl[1]]
        for (voff, ioff) in self.wdma:
            g.append([f'buffer_load_dwordx4 v{voff}, s[{self.srdW}:{self.srdW+3}], s{self.sW} offen offset:{ioff} lds'])
        dbg = getattr(self, 'dbg', None) or ''
        g.append([f's_add_u32 s{self.sW}, s{self.sW}, {64 * self.wpitch}'] + ([f's_sub_u32 s{self.sW}, s{self.sW}, {4 * 64 * self.wpitch}'] if 'wrapW' in dbg and t % 4 == 3 else []))
        g += bl[2:]
        if t >= self.S - 1:
            if 'noW' in dbg: g = [x for x in g if not x[0].endswith(' lds')]
            if 'noX' in dbg: g = [x for x in g if not (x[0].startswith('buffer') and not x[0].endswith(' lds'))]
            if 'noX' in dbg and 'noW' not in dbg: g.insert(1, ['s_nop 0'])
        g.append([f's_add_u32 s{self.sX}, s{self.sX}, 262144'] + ([f's_sub_u32 s{self.sX}, s{self.sX}, {4 * 262144}'] if 'wrapX' in dbg and t % 4 == 3 else []))
        return g

    def fidx(self, f):
        if self.chain:
            a, ks = divmod(f, 2)
            return ks, a
        return divmod(f, self.NA)

    def reads(self, t, f):
        ks, a = self.fidx(f)
        slot = (t * self.NS * self.NA + f) % self.RA
        kind, base = self.aring(slot)
        r = []
        for hf in range(2):
            off = self.stage_off[t % self.S] + (32 * ks + 16 * hf) * self.LP
            off += a * self.aimm
            va = self.vA[off >> 16][a]
            r.append(f'ds_read_b64_tr_b16 {R2(kind, base + 2 * hf)}, v{va} offset:{off & 0xffff}')
        if 'nods' in (getattr(self, 'dbg', None) or '') and t > 0: r = ['s_nop 0', 's_nop 0']
        return r

    def mfmas(self, t, f):
        ks, a = self.fidx(f)
        slot = (t * self.NS * self.NA + f) % self.RA
        kind, base = self.aring(slot)
        r = []
        for b in range(self.NB):
            c = self.acc(a, b)
            if t == 0 and ks == 0:
                c = self.cinit(a, b) if self.cinit else '0'
            r.append(f'{MF} {self.acc(a, b)}, {R4(kind, base)}, {self.bring(t % self.S, ks, b)}, {c}')
        return r

    def _track(self, ins, tag):
        if ins.startswith('buffer_'): self.vq.append(tag)

    def prologue_loads(self, tiles=None):
        for t in (self.sched.get(-2, []) if tiles is None else tiles):
            for g in self.loads(t):
                for i in g:
                    self.k(i); self._track(i, t)

    def pending(self, tile):
        idx = max(i for i, x in enumerate(self.vq) if x == tile)
        return len(self.vq) - 1 - idx

    def body(self, t, pending_after=None, ldtiles=None):
        k = self.k; NA2 = self.NS * self.NA; PD = self.PD; nt = self.ntiles
        has_next = t + 1 < nt
        if has_next:
            dbg = getattr(self, 'dbg', None) or ''
            if pending_after is None: pending_after = self.pending(t + 1) if (t + 1) in self.vq else 63
            assert pending_after <= 63
            k(f's_waitcnt vmcnt({pending_after})')
            widx = len(k.lines) - 1
            if not ('nobar' in dbg and t >= 0): k('s_barrier')
            if t == -1 and getattr(self, 'stamp_first', None): k.stamp(self.stamp_first)
        ld = []
        for tau in (self.sched.get(t, []) if ldtiles is None else ldtiles):
            assert tau < self.S - 1 + max(t, 0) + 1 and (tau < self.S or tau - self.S + 1 <= t), (t, tau)
            ld += [(x, tau) for x in self.loads(tau)]
        if self.extra_loads: ld += [(x, 'x') for x in self.extra_loads(t)]
        groups = []
        for i in range(NA2):
            if i < PD: groups.append((t, NA2 - PD + i) if t >= 0 else None)
            else: groups.append((t + 1, i - PD) if has_next else None)
        queue = [(t, NA2 - PD + i) for i in range(PD)] if t >= 0 else []
        queue = queue[getattr(self, '_carry', 0):] if t >= 0 else []
        sk = []
        step = 2 if self.chain else 1
        we = max(self.wait_every, step)
        for i in range(0, NA2, step):
            gs = groups[i:i + step]
            rds = [self.reads(t + 1, i + j) if has_next else [] for j in range(step)]
            if gs[0] is None:
                for j, rd in enumerate(rds):
                    for r in rd: sk.append(['i', r])
                    if rd: queue.append((t + 1, i + j))
                continue
            if gs[-1] in queue:
                idx = queue.index(gs[0]) if gs[0] in queue else 0
                upto = min(idx + we - 1, len(queue) - 1)
                remain = len(queue) - 1 - upto
                if sk and sk[-1][0] == 'gap': sk[-1][1] = False
                sk.append(['i', f's_waitcnt lgkmcnt({2 * remain})'])
                queue = queue[upto + 1:]
            mfs = [self.mfmas(*g) for g in gs]
            mf = [mfs[j][b] for b in range(self.NB) for j in range(step)]
            for n, m in enumerate(mf):
                sk.append(['i', m])
                j, rem = divmod(n, self.NB)
                if rem == 0 and rds[j]:
                    for r in rds[j]: sk.append(['i', r])
                    queue.append((t + 1, i + j))
                else:
                    sk.append(['gap', True])
        if sk and sk[-1][0] == 'gap': sk[-1][1] = False
        if has_next and sk and sk[0][0] == 'i' and sk[0][1].startswith('s_waitcnt lgkmcnt'):
            k.lines[widx] += ' ' + sk[0][1].split()[1]
            sk = sk[1:]
        items = [(x, tag) for grp, tag in ld for x in grp]
        isv = lambda x: x.startswith('buffer_')
        gaps = [e for e in sk if e[0] == 'gap']
        nclean = sum(1 for e in gaps if e[1])
        nv = sum(1 for x, _ in items if isv(x))
        use_clean_only = nv <= nclean
        li = 0; seen_c = 0; seen = 0; done_v = 0
        for e in sk:
            if e[0] == 'i':
                k(e[1]); continue
            seen += 1
            if e[1]: seen_c += 1
            room = 2 if e[1] else 1
            if use_clean_only and nv:
                want_v = (seen_c * nv + nclean - 1) // nclean
            else:
                want_v = (seen * nv + len(gaps) - 1) // len(gaps) if nv else 0
            want_all = (seen * len(items) + len(gaps) - 1) // len(gaps)
            placed_v = False
            while li < len(items) and room > 0:
                x, tag = items[li]
                if isv(x):
                    if placed_v and use_clean_only: break
                    if (use_clean_only and not e[1]) or done_v >= want_v: break
                    if use_clean_only and room < 2: break
                    k(x); self._track(x, tag); li += 1; done_v += 1; placed_v = True
                    room -= 2 if use_clean_only else 1
                else:
                    if nv == 0 and li >= want_all: break
                    if e[1] and use_clean_only and (nclean - seen_c) < (nv - done_v) and not x.startswith('s_add_u32 m0'):
                        k(x); li += 1; continue
                    k(x); li += 1; room -= 1
                    if x.startswith('s_add_u32 m0') and li < len(items) and items[li][0].endswith(' lds'): break
        while li < len(items):
            x, tag = items[li]
            k(x); self._track(x, tag); li += 1
        self._carry = PD - len(queue) if has_next else 0

    def make_sched(self, first, ramp):
        S, nt = self.S, self.ntiles
        sched = {-2: list(range(first))}
        nxt = first
        t = -1
        while nxt < nt:
            n = ramp[t + 1] if t + 1 < len(ramp) else 1
            lim = max(t, 0) + S - 1 if t >= 0 else S - 2
            tl = [x for x in range(nxt, min(nxt + n, lim + 1, nt))]
            sched[t] = tl; nxt += len(tl); t += 1
        self.sched = sched

    def emit(self, loop_sreg=None):
        k = self.k; S = self.S; nt = self.ntiles
        self.body(-1)
        t = 0
        steady = lambda t: self.sched.get(t) == [t + S - 1]
        if loop_sreg is not None:
            while t < nt and not (steady(t) and (t > 0 or (self.NS == 2 and not self.chain)) and (S - 3) * self.nops <= self.pending(t + 1) <= (S - 3) * self.nops + 1 and not (self.extra_loads and self.extra_loads(t))):
                self.body(t); t += 1
            nsteady = nt - S + 1 - t
            trips = nsteady // S
            if trips >= 2:
                c0 = self._carry
                k(f's_mov_b32 s{loop_sreg}, {trips}')
                L = k.label('gloop')
                k(f'{L}:')
                for u in range(trips * S): assert not (self.extra_loads and self.extra_loads(t + u)), t + u
                for u in range(S):
                    self.body(t + u, pending_after=(S - 3) * self.nops)
                assert self._carry == c0
                k(f's_sub_u32 s{loop_sreg}, s{loop_sreg}, 1')
                k(f's_cmp_lg_u32 s{loop_sreg}, 0')
                k(f's_cbranch_scc1 {L}')
                sh = (trips - 1) * S
                self.vq = [x + sh if isinstance(x, int) else x for x in self.vq]
                t += trips * S
        while t < nt:
            self.body(t)
            t += 1

def tr_addr_regs(k, vbase, NA, LP, tmp, lane, add=0, xor_s=None):
    t0, t1, t2 = tmp, tmp + 1, tmp + 2
    k(f'v_lshrrev_b32 v{t0}, 2, v{lane}')
    k(f'v_and_b32 v{t1}, 3, v{lane}')
    if LP == 256:
        k(f'v_and_b32 v{t2}, 7, v{t0}')
        sh = 8
    else:
        k(f'v_bfe_u32 v{t2}, v{t0}, 1, 2')
        sh = 7
    if xor_s is not None: k(f'v_xor_b32 v{t2}, s{xor_s}, v{t2}')
    k(f'v_lshlrev_b32 v{t0}, {sh}, v{t0}')
    k(f'v_lshl_add_u32 v{t0}, v{t1}, 3, v{t0}')
    if add: k(f'v_add_u32 v{t0}, {add}, v{t0}')
    for a in range(NA):
        k(f'v_xor_b32 v{t1}, {a}, v{t2}')
        k(f'v_lshl_add_u32 v{vbase+a}, v{t1}, 5, v{t0}')

def wdma_regs(k, vbase, LP, pitch, nchunks, tmp, lane, swave):
    t0, t1, t2, t3 = tmp, tmp + 1, tmp + 2, tmp + 3
    res = []
    if LP == 256:
        n_ins, rows_per, shl, msk = 4, 4, 4, 15
    else:
        n_ins, rows_per, shl, msk = 2, 8, 3, 7
    k(f'v_lshrrev_b32 v{t0}, {shl}, v{lane}')
    k(f'v_and_b32 v{t1}, {msk}, v{lane}')
    k(f's_lshl_b32 s{swave+1}, s{swave}, 4')
    k(f's_mov_b32 s{swave+2}, {pitch}')
    for n in range(n_ins):
        k(f'v_add_u32 v{t2}, {n * rows_per}, v{t0}')
        if LP == 256:
            k(f'v_and_b32 v{t3}, 7, v{t2}')
        else:
            k(f'v_bfe_u32 v{t3}, v{t2}, 1, 2')
        k(f'v_lshlrev_b32 v{t3}, 1, v{t3}')
        k(f'v_xor_b32 v{t3}, v{t3}, v{t1}')
        k(f'v_add_u32 v{t2}, s{swave+1}, v{t2}')
        k(f'v_mul_lo_u32 v{t2}, v{t2}, s{swave+2}')
        k(f'v_lshl_add_u32 v{vbase+n}, v{t3}, 4, v{t2}')
        if n: k(f'v_subrev_u32 v{vbase+n}, {n*1024}, v{vbase+n}')
        if nchunks <= msk:
            k(f'v_cmp_le_u32 vcc, {nchunks}, v{t3}')
            k(f'v_mov_b32 v{t2}, 0x7ff00000')
            k('s_nop 0')
            k(f'v_cndmask_b32 v{vbase+n}, v{vbase+n}, v{t2}, vcc')
        res.append((vbase + n, n * 1024))
    return res
```

```python
from gen_gemm import *
from gen_front import *
import math, struct
def f2u(x): return struct.unpack('<I', struct.pack('<f', x))[0]

def swap_pair(k, x, y):
    k(f'v_permlane32_swap_b32 v{x}, v{y}')
    k('s_nop 1')
    k(f'v_permlane16_swap_b32 v{x}, v{y}')

def gen_resid(second, S=8, PD=4, name=None, dbg=None, kidx=None, sched=(4, [1, 2, 2, 2])):
    name = name or ('mlp2_kernel' if second else 'oproj_kernel')
    K = 3584 if second else 4096
    KB = K // 32
    NA, NB, LP, RA = 4, 2, 128, 8
    k = Kern(name, (256, 1, 1), (256, 1, 1), S * 8192, vgpr=128, agpr=16 * S + 32, sgpr=64)
    Lend = k.label('end')
    k('s_cmp_ge_u32 s2, 256')
    k(f's_cbranch_scc1 {Lend}')
    k.stamp(0)
    k(f's_load_dwordx2 s[6:7], s[0:1], {A_WS}')
    k(f's_load_dwordx2 s[8:9], s[0:1], {A_OUT if second else A_X}')
    if second: k(f's_load_dwordx2 s[10:11], s[0:1], {A_B2}')
    k('v_and_b32 v1, 63, v0')
    k('v_lshrrev_b32 v2, 6, v0')
    k('s_and_b32 s40, s2, 7')
    k('v_readfirstlane_b32 s44, v2')
    k('s_lshr_b32 s41, s2, 3')
    k('s_lshr_b32 s42, s40, 1')
    k('s_lshl_b32 s42, s42, 2')
    k('s_lshr_b32 s43, s41, 3')
    k('s_add_u32 s42, s42, s43')
    k('s_and_b32 s43, s40, 1')
    k('s_lshl_b32 s43, s43, 3')
    k('s_and_b32 s41, s41, 7')
    k('s_add_u32 s43, s43, s41')
    vW = 8; vA = 12; vX = 16; tmp = 20; vA2 = 120
    k('s_lshl_b32 s52, s44, 11')
    k(f'v_lshl_add_u32 v{vW}, v1, 4, s52')
    wd = [(vW, 0), (vW, 1024)]
    k('s_lshl_b32 s47, s42, 3')
    k('s_lshl_b32 s48, s44, 1')
    k('s_add_u32 s47, s47, s48')
    k('s_lshl_b32 s48, s47, 10')
    k(f'v_lshl_add_u32 v{vX}, v1, 4, s48')
    k(f'v_add_u32 v{vX+1}, 0x20000, v{vX}')
    k(f's_mul_i32 s50, s43, {K*128}')
    k('s_mov_b32 s51, 0')
    k('s_waitcnt lgkmcnt(0)')
    srd_off(k, 12, 6, WS_W2, K * 2048)
    srd_off(k, 16, 6, WS_HH if second else WS_O, 2048 * K * 2)
    acc0 = 64
    g = Gemm(k, NA, NB, LP, S, PD, RA, K // 64,
             acc=lambda a, b: R4('v', acc0 + (a * NB + b) * 4),
             aring=lambda s: ('a', 16 * S + 4 * s),
             bring=lambda st, ks, b: R4('a', st * 16 + (ks * NB + b) * 4),
             vA=[[vA + a for a in range(NA)], [vA2 + a for a in range(NA)]], lds_base=0,
             srdW=12, sW=50, wpitch=128, wdma=wd, sM0=52, srdX=16, sX=51, vX=[vX, vX + 1], wait_every=2)
    g.dbg = dbg
    g.make_sched(*sched)
    g.prologue_loads()
    tr_addr_regs(k, vA, NA, LP, tmp, 1)
    for a in range(NA): k(f'v_add_u32 v{vA2+a}, 0x10000, v{vA+a}')
    if second:
        srd_off(k, 20, 6, WS_X1, 4 * MB)
        k.srd(24, 8, 4 * MB)
        k.srd(32, 10, 2048)
    else:
        k.srd(20, 8, 4 * MB)
        srd_off(k, 24, 6, WS_X1, 4 * MB)
    srd_off(k, 28, 6, WS_MOD32 + (5 if second else 2) * 4096, 4096)
    k('v_and_b32 v4, 15, v1')
    k('v_lshrrev_b32 v5, 4, v1')
    k('v_lshlrev_b32 v6, 11, v4')
    k('v_lshl_add_u32 v7, v5, 4, v6')
    k('v_lshl_add_u32 v6, v5, 3, v6')
    k('s_lshl_b32 s48, s47, 15')
    k('s_lshl_b32 s49, s43, 7')
    k('s_add_u32 s48, s48, s49')
    k('s_add_u32 s49, s48, 32768')
    XR = 24
    for b in range(NB):
        for a in range(NA):
            k(f'buffer_load_dwordx2 {R2("v", XR + (a*NB+b)*2)}, v6, s[20:23], s{48+b} offen offset:{a*32}')
    GR = 40
    k('v_lshlrev_b32 v4, 4, v5')
    k('s_lshl_b32 s54, s43, 8')
    for a in range(NA):
        k(f'buffer_load_dwordx4 {R4("v", GR + 4*a)}, v4, s[28:31], s54 offen offset:{a*64}')
    BR = 56
    if second:
        k('v_lshlrev_b32 v4, 3, v5')
        k('s_lshl_b32 s54, s43, 7')
        for a in range(NA):
            k(f'buffer_load_dwordx2 {R2("v", BR + 2*a)}, v4, s[32:35], s54 offen offset:{a*32}')
    g.vq += ['e'] * (12 + (4 if second else 0))
    g.stamp_first = 1
    g.emit(loop_sreg=53)
    k.stamp(2)
    k('s_nop 4')
    T = 96
    for a in range(NA):
        if second:
            for j in range(2):
                k(f'v_lshlrev_b32 v{T+4+2*j}, 16, v{BR+2*a+j}')
                k(f'v_and_b32 v{T+5+2*j}, 0xffff0000, v{BR+2*a+j}')
        for b in range(NB):
            A = acc0 + (a * NB + b) * 4; xr = XR + (a * NB + b) * 2
            for j in range(2):
                k(f'v_lshlrev_b32 v{T+2*j}, 16, v{xr+j}')
                k(f'v_and_b32 v{T+2*j+1}, 0xffff0000, v{xr+j}')
            for r in range(4):
                if second: k(f'v_add_f32 v{A+r}, v{A+r}, v{T+4+r}')
                k(f'v_fma_f32 v{A+r}, v{A+r}, v{GR+4*a+r}, v{T+r}')
    P = 104
    for b in range(NB):
        for u in range(2):
            p = P + (b * 2 + u) * 4
            A0 = acc0 + ((2 * u) * NB + b) * 4; A1 = acc0 + ((2 * u + 1) * NB + b) * 4
            k(f'v_cvt_pk_bf16_f32 v{p}, v{A0}, v{A0+1}')
            k(f'v_cvt_pk_bf16_f32 v{p+1}, v{A0+2}, v{A0+3}')
            k(f'v_cvt_pk_bf16_f32 v{p+2}, v{A1}, v{A1+1}')
            k(f'v_cvt_pk_bf16_f32 v{p+3}, v{A1+2}, v{A1+3}')
            k('s_nop 1')
            k(f'v_permlane32_swap_b32 v{p}, v{p+2}')
            k(f'v_permlane32_swap_b32 v{p+1}, v{p+3}')
            k('s_nop 0')
            k(f'v_permlane16_swap_b32 v{p}, v{p+2}')
            k(f'v_permlane16_swap_b32 v{p+1}, v{p+3}')
            k(f'buffer_store_dwordx4 {R4("v", p)}, v7, s[24:27], s{48+b} offen offset:{u*64}')
    k.stamp_out(kidx if kidx is not None else (6 if second else 3))
    k(f'{Lend}:')
    k('s_endpgm')
    return k

def gen_mlp1(S=6, PD=4, sched=(2, [1, 2, 1, 2]), name='mlp1_kernel', kidx=5, dbg=None):
    K = 1024; KB = 32
    NA, NB, LP, RA = 7, 4, 224, 7
    k = Kern(name, (256, 1, 1), (256, 1, 1), S * 16384, vgpr=256, agpr=32 * S + 28, sgpr=64)
    Lend = k.label('end')
    k('s_cmp_ge_u32 s2, 256')
    k(f's_cbranch_scc1 {Lend}')
    k.stamp(0)
    k(f's_load_dwordx4 s[4:7], s[0:1], {A_W1}')
    k(f's_load_dwordx2 s[8:9], s[0:1], {A_WS}')
    k('v_and_b32 v1, 63, v0')
    k('v_lshrrev_b32 v2, 6, v0')
    k('s_and_b32 s40, s2, 7')
    k('v_readfirstlane_b32 s44, v2')
    k('s_lshr_b32 s41, s2, 3')
    k('s_lshr_b32 s42, s40, 2')
    k('s_lshl_b32 s42, s42, 2')
    k('s_lshr_b32 s43, s41, 3')
    k('s_add_u32 s42, s42, s43')
    k('s_and_b32 s43, s40, 3')
    k('s_lshl_b32 s43, s43, 3')
    k('s_and_b32 s41, s41, 7')
    k('s_add_u32 s43, s43, s41')
    vW = 8; vX = 12; vA = 16; tmp = 32
    k('s_lshl_b32 s52, s44, 12')
    k(f'v_lshl_add_u32 v{vW}, v1, 4, s52')
    k('s_cmp_eq_u32 s44, 3')
    k('s_cselect_b32 s45, 0x7ff00000, 0')
    k(f'v_add_u32 v{vW+1}, s45, v{vW}')
    wd = [(vW, 0), (vW, 1024), (vW + 1, 2048), (vW + 1, 3072)]
    k('s_lshl_b32 s47, s42, 4')
    k('s_lshl_b32 s48, s44, 2')
    k('s_add_u32 s47, s47, s48')
    k('s_lshl_b32 s48, s47, 10')
    k(f'v_lshl_add_u32 v{vX}, v1, 4, s48')
    k(f'v_add_u32 v{vX+1}, 0x20000, v{vX}')
    k('s_mul_i32 s46, s43, 224')
    k('s_lshl_b32 s50, s46, 10')
    k('s_mov_b32 s51, 0')
    k('v_lshrrev_b32 v5, 4, v1')
    k('v_lshlrev_b32 v4, 3, v5')
    k('s_waitcnt lgkmcnt(0)')
    srd_off(k, 12, 8, WS_W1, 1024 * 7168)
    srd_off(k, 16, 8, WS_Y, 4 * MB)
    k.srd(20, 6, 7168)
    BP = 40; BI = 64; acc0 = 96
    for a in range(NA):
        k(f'buffer_load_dwordx2 {R2("v", BP + 2*a)}, v4, s[20:23], s46 offen offset:{a*32}')
    g = Gemm(k, NA, NB, LP, S, PD, RA, K // 64,
             acc=lambda a, b: R4('v', acc0 + (a * NB + b) * 4),
             aring=lambda s: ('a', 32 * S + 4 * s),
             bring=lambda st, ks, b: R4('a', st * 32 + (ks * NB + b) * 4),
             vA=[[vA] * NA, [vA + 1] * NA], lds_base=0, aimm=32, tile_bytes=16384,
             srdW=12, sW=50, wpitch=224, wdma=wd, sM0=52, srdX=16, sX=51, vX=[vX, vX + 1],
             cinit=lambda a, b: R4('v', BI + 4 * a),
             extra_loads=lambda t: [['buffer_load_dwordx4 v[56:59], v60, s[32:35], s53 offen ; pf']] if t == 11 else [])
    Lepi = k.label('epi')
    k.code_srd(32, Lepi)
    k('s_lshr_b32 s53, s2, 3')
    k('s_lshl_b32 s53, s53, 12')
    k('v_lshlrev_b32 v60, 4, v0')
    g.make_sched(*sched)
    g.dbg = dbg
    g.prologue_loads()
    k(f'v_lshrrev_b32 v{tmp}, 2, v1')
    k(f'v_mul_u32_u24 v{tmp}, 224, v{tmp}')
    k(f'v_and_b32 v{tmp+1}, 3, v1')
    k(f'v_lshl_add_u32 v{vA}, v{tmp+1}, 3, v{tmp}')
    k(f'v_add_u32 v{vA+1}, 0x10000, v{vA}')
    k(f's_waitcnt vmcnt({len(g.vq)})')
    for a in range(NA):
        for j in range(2):
            k(f'v_lshlrev_b32 v{BI+4*a+2*j}, 16, v{BP+2*a+j}')
            k(f'v_and_b32 v{BI+4*a+2*j+1}, 0xffff0000, v{BP+2*a+j}')
    g.stamp_first = 1
    g.emit(loop_sreg=None)
    k.stamp(2)
    k(f'{Lepi}:')
    k('s_waitcnt vmcnt(0)')
    srd_off(k, 24, 8, WS_HH, 2048 * 3584 * 2)
    c1 = -2.0 * math.log2(math.e) * math.sqrt(2.0 / math.pi); c2 = c1 * 0.044715
    C1, C2, ONE = 40, 42, 44
    for (r, v) in ((C1, c1), (C2, c2), (ONE, 1.0)):
        k(f'v_mov_b32 v{r}, 0x{f2u(v):08x}'); k(f'v_mov_b32 v{r+1}, 0x{f2u(v):08x}')
    k('v_lshlrev_b32 v6, 4, v1')
    k('s_mul_i32 s54, s43, 7')
    k('s_lshr_b32 s55, s54, 1')
    k('s_lshl_b32 s55, s55, 7')
    k('s_add_u32 s55, s55, s47')
    k('s_lshl_b32 s55, s55, 10')
    for j in range(1, 4): k(f's_add_u32 s{55+j}, s55, {j*131072}')
    k('s_nop 4')
    T = 48
    def gelu_tile(A, dst):
        for h in range(2):
            x = R2('v', A + 2 * h); t = R2('v', T + 2 * h)
            k(f'v_pk_mul_f32 {t}, {x}, {x}')
            k(f'v_pk_fma_f32 {t}, {t}, {R2("v", C2)}, {R2("v", C1)}')
            k(f'v_pk_mul_f32 {t}, {t}, {x}')
        for r in range(4): k(f'v_exp_f32 v{T+r}, v{T+r}')
        for h in range(2):
            t = R2('v', T + 2 * h)
            k(f'v_pk_add_f32 {t}, {t}, {R2("v", ONE)}')
        for r in range(4): k(f'v_rcp_f32 v{T+r}, v{T+r}')
        for h in range(2):
            x = R2('v', A + 2 * h); t = R2('v', T + 2 * h)
            k(f'v_pk_mul_f32 {x}, {x}, {t}')
        for h in range(2):
            k(f'v_cvt_pk_bf16_f32 v{dst+h}, v{A+2*h}, v{A+2*h+1}')
    Lodd = k.label('odd')
    k('s_bitcmp1_b32 s43, 0')
    k(f's_cbranch_scc1 {Lodd}')
    for odd in range(2):
        if odd: k(f'{Lodd}:')
        n = 0
        for b in range(NB):
            for blk in range(4):
                aa = [a for a in range(NA) if (a + odd) >> 1 == blk]
                D = 56 + (n % 2) * 4; n += 1
                for a in aa:
                    gelu_tile(acc0 + (a * NB + b) * 4, D + 2 * ((a + odd) & 1))
                if len(aa) == 2:
                    k(f'buffer_store_dwordx4 {R4("v", D)}, v6, s[24:27], s{55+blk} offen offset:{b*1024}')
                else:
                    hf = (aa[0] + odd) & 1
                    k(f'buffer_store_dwordx2 {R2("v", D + 2*hf)}, v6, s[24:27], s{55+blk} offen offset:{b*1024 + 8*hf}')
        k.nstamp = 3
        k.stamp_out(kidx)
        k('s_endpgm')
    k(f'{Lend}:')
    k('s_endpgm')
    return k

def gen_mlp1_w8(S=6, PD=4, sched=(2, [1, 2, 1, 2]), name='mlp1_kernel', kidx=5, dbg=None, prio=False):
    K = 1024; KB = 32
    NA, NB, LP, RA = 7, 2, 224, 7
    k = Kern(name, (256, 1, 1), (512, 1, 1), S * 16384, vgpr=128, agpr=16 * S + 28, sgpr=64)
    Lend = k.label('end')
    k('s_cmp_ge_u32 s2, 256')
    k(f's_cbranch_scc1 {Lend}')
    k.stamp(0)
    k(f's_load_dwordx4 s[4:7], s[0:1], {A_W1}')
    k(f's_load_dwordx2 s[8:9], s[0:1], {A_WS}')
    k('v_and_b32 v1, 63, v0')
    k('v_lshrrev_b32 v2, 6, v0')
    k('s_and_b32 s40, s2, 7')
    k('v_readfirstlane_b32 s44, v2')
    k('s_lshr_b32 s41, s2, 3')
    k('s_lshr_b32 s42, s40, 2')
    k('s_lshl_b32 s42, s42, 2')
    k('s_lshr_b32 s43, s41, 3')
    k('s_add_u32 s42, s42, s43')
    k('s_and_b32 s43, s40, 3')
    k('s_lshl_b32 s43, s43, 3')
    k('s_and_b32 s41, s41, 7')
    k('s_add_u32 s43, s43, s41')
    vW = 8; vX = 12; vA = 16; tmp = 18
    k('s_lshl_b32 s52, s44, 11')
    k('s_cmp_eq_u32 s44, 7')
    k('s_cselect_b32 s45, 0x7ff00000, s52')
    k(f'v_lshl_add_u32 v{vW}, v1, 4, s45')
    wd = [(vW, 0), (vW, 1024)]
    if prio:
        Lp = k.label('prio')
        k('s_cmp_lt_u32 s44, 4')
        k(f's_cbranch_scc1 {Lp}')
        k('s_setprio 1')
        k(f'{Lp}:')
    k('s_lshl_b32 s47, s42, 4')
    k('s_lshl_b32 s48, s44, 1')
    k('s_add_u32 s47, s47, s48')
    k('s_lshl_b32 s48, s47, 10')
    k(f'v_lshl_add_u32 v{vX}, v1, 4, s48')
    k(f'v_add_u32 v{vX+1}, 0x20000, v{vX}')
    k('s_mul_i32 s46, s43, 224')
    k('s_lshl_b32 s50, s46, 10')
    k('s_mov_b32 s51, 0')
    k('v_lshrrev_b32 v5, 4, v1')
    k('v_lshlrev_b32 v4, 3, v5')
    k('s_waitcnt lgkmcnt(0)')
    srd_off(k, 12, 8, WS_W1, 1024 * 7168)
    srd_off(k, 16, 8, WS_Y, 4 * MB)
    k.srd(20, 6, 7168)
    BP = 20; BI = 36; acc0 = 64
    for a in range(NA):
        k(f'buffer_load_dwordx2 {R2("v", BP + 2*a)}, v4, s[20:23], s46 offen offset:{a*32}')
    g = Gemm(k, NA, NB, LP, S, PD, RA, K // 64,
             acc=lambda a, b: R4('v', acc0 + (a * NB + b) * 4),
             aring=lambda s: ('a', 16 * S + 4 * s),
             bring=lambda st, ks, b: R4('a', st * 16 + (ks * NB + b) * 4),
             vA=[[vA] * NA, [vA + 1] * NA], lds_base=0, aimm=32, tile_bytes=16384,
             srdW=12, sW=50, wpitch=224, wdma=wd, sM0=52, srdX=16, sX=51, vX=[vX, vX + 1],
             cinit=lambda a, b: R4('v', BI + 4 * a), wait_every=2,
             extra_loads=lambda t: [['buffer_load_dwordx4 v[120:123], v124, s[32:35], s53 offen ; pf']] if t == 11 else [])
    Lepi = k.label('epi')
    k.code_srd(32, Lepi)
    k('s_lshr_b32 s53, s2, 3')
    k('s_lshl_b32 s53, s53, 13')
    k('v_lshlrev_b32 v124, 4, v0')
    g.make_sched(*sched)
    g.dbg = dbg
    g.prologue_loads()
    k(f'v_lshrrev_b32 v{tmp}, 2, v1')
    k(f'v_mul_u32_u24 v{tmp}, 224, v{tmp}')
    k(f'v_and_b32 v{tmp+1}, 3, v1')
    k(f'v_lshl_add_u32 v{vA}, v{tmp+1}, 3, v{tmp}')
    k(f'v_add_u32 v{vA+1}, 0x10000, v{vA}')
    k(f's_waitcnt vmcnt({len(g.vq)})')
    for a in range(NA):
        for j in range(2):
            k(f'v_lshlrev_b32 v{BI+4*a+2*j}, 16, v{BP+2*a+j}')
            k(f'v_and_b32 v{BI+4*a+2*j+1}, 0xffff0000, v{BP+2*a+j}')
    g.stamp_first = 1
    g.emit(loop_sreg=None)
    k.stamp(2)
    k(f'{Lepi}:')
    k('s_waitcnt vmcnt(0)')
    srd_off(k, 24, 8, WS_HH, 2048 * 3584 * 2)
    c1 = -2.0 * math.log2(math.e) * math.sqrt(2.0 / math.pi); c2 = c1 * 0.044715
    C1, C2, ONE = 40, 42, 44
    for (r, v) in ((C1, c1), (C2, c2), (ONE, 1.0)):
        k(f'v_mov_b32 v{r}, 0x{f2u(v):08x}'); k(f'v_mov_b32 v{r+1}, 0x{f2u(v):08x}')
    k('v_lshlrev_b32 v6, 4, v1')
    k('s_mul_i32 s54, s43, 7')
    k('s_lshr_b32 s55, s54, 1')
    k('s_lshl_b32 s55, s55, 7')
    k('s_add_u32 s55, s55, s47')
    k('s_lshl_b32 s55, s55, 10')
    for j in range(1, 4): k(f's_add_u32 s{55+j}, s55, {j*131072}')
    k('s_nop 4')
    T = 48
    def gelu_tile(A, dst):
        for h in range(2):
            x = R2('v', A + 2 * h); t = R2('v', T + 2 * h)
            k(f'v_pk_mul_f32 {t}, {x}, {x}')
            k(f'v_pk_fma_f32 {t}, {t}, {R2("v", C2)}, {R2("v", C1)}')
            k(f'v_pk_mul_f32 {t}, {t}, {x}')
        for r in range(4): k(f'v_exp_f32 v{T+r}, v{T+r}')
        for h in range(2):
            t = R2('v', T + 2 * h)
            k(f'v_pk_add_f32 {t}, {t}, {R2("v", ONE)}')
        for r in range(4): k(f'v_rcp_f32 v{T+r}, v{T+r}')
        for h in range(2):
            x = R2('v', A + 2 * h); t = R2('v', T + 2 * h)
            k(f'v_pk_mul_f32 {x}, {x}, {t}')
        for h in range(2):
            k(f'v_cvt_pk_bf16_f32 v{dst+h}, v{A+2*h}, v{A+2*h+1}')
    Lodd = k.label('odd')
    k('s_bitcmp1_b32 s43, 0')
    k(f's_cbranch_scc1 {Lodd}')
    for odd in range(2):
        if odd: k(f'{Lodd}:')
        n = 0
        for b in range(NB):
            for blk in range(4):
                aa = [a for a in range(NA) if (a + odd) >> 1 == blk]
                D = 56 + (n % 2) * 4; n += 1
                for a in aa:
                    gelu_tile(acc0 + (a * NB + b) * 4, D + 2 * ((a + odd) & 1))
                if len(aa) == 2:
                    k(f'buffer_store_dwordx4 {R4("v", D)}, v6, s[24:27], s{55+blk} offen offset:{b*1024}')
                else:
                    hf = (aa[0] + odd) & 1
                    k(f'buffer_store_dwordx2 {R2("v", D + 2*hf)}, v6, s[24:27], s{55+blk} offen offset:{b*1024 + 8*hf}')
        k.nstamp = 3
        k.stamp_out(kidx)
        k('s_endpgm')
    k(f'{Lend}:')
    k('s_endpgm')
    return k

def gen_oproj(S=8, PD=4, name='oproj_kernel', kidx=3, store_mod='', sched=(3, [1, 2, 2, 2, 2]), dbg=None, xpf=True):
    NA, NB, LP, RA = 8, 2, 256, 8
    k = Kern(name, (256, 1, 1), (256, 1, 1), S * 16384, vgpr=128, agpr=16 * S + 32, sgpr=64)
    Lend = k.label('end')
    k('s_cmp_ge_u32 s2, 256')
    k(f's_cbranch_scc1 {Lend}')
    k.stamp(0)
    k(f's_load_dwordx2 s[6:7], s[0:1], {A_WS}')
    k(f's_load_dwordx2 s[28:29], s[0:1], {A_X}')
    k('v_and_b32 v1, 63, v0')
    k('v_lshrrev_b32 v2, 6, v0')
    k('s_bfe_u32 s40, s2, 0x10002')
    k('v_readfirstlane_b32 s44, v2')
    k('s_bfe_u32 s42, s2, 0x10001')
    k('s_lshl_b32 s42, s42, 3')
    k('s_lshr_b32 s43, s2, 5')
    k('s_add_u32 s42, s42, s43')
    k('s_and_b32 s43, s2, 1')
    k('s_lshl_b32 s43, s43, 2')
    k('s_bfe_u32 s41, s2, 0x20003')
    k('s_add_u32 s43, s43, s41')
    vW = 8; vX = 12; vA = 16; vA2 = 24; tmp = 32
    k('s_lshl_b32 s52, s44, 12')
    k(f'v_lshl_add_u32 v{vW}, v1, 4, s52')
    wd = [(vW, n * 1024) for n in range(4)]
    k('s_lshl_b32 s47, s42, 3')
    k('s_lshl_b32 s48, s44, 1')
    k('s_add_u32 s47, s47, s48')
    k('s_lshl_b32 s48, s47, 10')
    k(f'v_lshl_add_u32 v{vX}, v1, 4, s48')
    k(f'v_add_u32 v{vX+1}, 0x20000, v{vX}')
    k('s_lshl_b32 s50, s43, 20')
    k('s_lshl_b32 s48, s40, 19')
    k('s_add_u32 s50, s50, s48')
    k('s_lshl_b32 s51, s40, 23')
    k('s_waitcnt lgkmcnt(0)')
    srd_off(k, 12, 6, WS_WO, 8 * MB)
    srd_off(k, 16, 6, WS_O, 16 * MB)
    acc0 = 64
    g = Gemm(k, NA, NB, LP, S, PD, RA, 32,
             acc=lambda a, b: R4('v', acc0 + (a * NB + b) * 4),
             aring=lambda s: ('a', 16 * S + 4 * s),
             bring=lambda st, ks, b: R4('a', st * 16 + (ks * NB + b) * 4),
             vA=[[vA + a for a in range(NA)], [vA2 + a for a in range(NA)]], lds_base=0,
             srdW=12, sW=50, wpitch=256, wdma=wd, sM0=52, srdX=16, sX=51, vX=[vX, vX + 1], wait_every=2,
             extra_loads=lambda t: [[f'buffer_load_dwordx4 v[48:51], v{vW}, s[28:31], s54 offen offset:{(t-26)*1024} ; pf']] if xpf and 26 <= t < 30 else
             ([['buffer_load_dwordx4 v[48:51], v52, s[32:35], s55 offen ; pf']] if t == 25 else []))
    k.code_srd(32, 'ln2_kernel')
    k('s_lshr_b32 s55, s2, 3')
    k('s_lshl_b32 s55, s55, 12')
    k('v_lshlrev_b32 v52, 4, v0')
    k.srd(28, 28, 4 * MB)
    k('s_lshl_b32 s54, s2, 14')
    g.make_sched(*sched)
    g.dbg = dbg
    g.prologue_loads()
    tr_addr_regs(k, vA, NA, LP, tmp, 1)
    for a in range(NA): k(f'v_add_u32 v{vA2+a}, 0x10000, v{vA+a}')
    fin = mod_finalize(k, 6, 56, 40, 1)
    g.vq += ['m'] * 4
    srd_off(k, 24, 6, WS_P, 8 * MB)
    k('v_and_b32 v4, 15, v1')
    k('v_lshrrev_b32 v5, 4, v1')
    k('v_lshlrev_b32 v6, 11, v4')
    k('v_lshl_add_u32 v7, v5, 4, v6')
    k('s_lshl_b32 s48, s47, 15')
    k('s_lshl_b32 s49, s43, 8')
    k('s_add_u32 s48, s48, s49')
    k('s_lshl_b32 s49, s40, 22')
    k('s_add_u32 s48, s48, s49')
    k('s_add_u32 s49, s48, 32768')
    g.stamp_first = 1
    g.emit(loop_sreg=53)
    k.stamp(2)
    fin()
    k('s_nop 1')
    n = 0
    for u in range(4):
        ps = []
        for b in range(NB):
            p = 8 + (n % 8) * 4; n += 1
            ps.append(p)
            A0 = acc0 + ((2 * u) * NB + b) * 4; A1 = acc0 + ((2 * u + 1) * NB + b) * 4
            k(f'v_cvt_pk_bf16_f32 v{p}, v{A0}, v{A0+1}')
            k(f'v_cvt_pk_bf16_f32 v{p+1}, v{A0+2}, v{A0+3}')
            k(f'v_cvt_pk_bf16_f32 v{p+2}, v{A1}, v{A1+1}')
            k(f'v_cvt_pk_bf16_f32 v{p+3}, v{A1+2}, v{A1+3}')
        for sw in ('32', '16'):
            for p in ps:
                k(f'v_permlane{sw}_swap_b32 v{p}, v{p+2}')
                k(f'v_permlane{sw}_swap_b32 v{p+1}, v{p+3}')
        for b, p in enumerate(ps):
            k(f'buffer_store_dwordx4 {R4("v", p)}, v7, s[24:27], s{48+b} offen offset:{u*64}{store_mod}')
    k.stamp_out(kidx)
    k(f'{Lend}:')
    k('s_endpgm')
    return k

def gen_mlp2s(S=8, PD=4, name='mlp2_kernel', kidx=6, sched=(3, [1, 2, 2, 2, 2]), WAITOWN=True, POLL1=False):
    NA, NB, LP, RA, NT = 8, 2, 256, 8, 28
    k = Kern(name, (256, 1, 1), (256, 1, 1), S * 16384, vgpr=208, agpr=16 * S + 32, sgpr=64)
    Lend = k.label('end')
    k('s_cmp_ge_u32 s2, 256')
    k(f's_cbranch_scc1 {Lend}')
    k.stamp(0)
    k(f's_load_dwordx2 s[6:7], s[0:1], {A_WS}')
    k(f's_load_dwordx2 s[8:9], s[0:1], {A_OUT}')
    k(f's_load_dwordx2 s[10:11], s[0:1], {A_B2}')
    k('v_and_b32 v1, 63, v0')
    k('v_lshrrev_b32 v2, 6, v0')
    k('s_bfe_u32 s40, s2, 0x10002')
    k('v_readfirstlane_b32 s44, v2')
    k('s_bfe_u32 s42, s2, 0x10001')
    k('s_lshl_b32 s42, s42, 3')
    k('s_lshr_b32 s43, s2, 5')
    k('s_add_u32 s42, s42, s43')
    k('s_and_b32 s43, s2, 1')
    k('s_lshl_b32 s43, s43, 2')
    k('s_bfe_u32 s41, s2, 0x20003')
    k('s_add_u32 s43, s43, s41')
    vW = 8; vX = 12; vA = 16; vA2 = 24; tmp = 32
    k('s_lshl_b32 s52, s44, 12')
    k(f'v_lshl_add_u32 v{vW}, v1, 4, s52')
    wd = [(vW, n * 1024) for n in range(4)]
    k('s_lshl_b32 s47, s42, 3')
    k('s_lshl_b32 s48, s44, 1')
    k('s_add_u32 s47, s47, s48')
    k('s_lshl_b32 s48, s47, 10')
    k(f'v_lshl_add_u32 v{vX}, v1, 4, s48')
    k(f'v_add_u32 v{vX+1}, 0x20000, v{vX}')
    k(f's_mul_i32 s50, s43, {3584*256}')
    k(f's_mul_i32 s48, s40, {1792*256}')
    k('s_add_u32 s50, s50, s48')
    k(f's_mul_i32 s51, s40, {56*131072}')
    k('s_waitcnt lgkmcnt(0)')
    srd_off(k, 12, 6, WS_W2, 3584 * 2048)
    srd_off(k, 16, 6, WS_HH, 2048 * 3584 * 2)
    acc0 = 64
    A = lambda a, b: acc0 + (a * NB + b) * 4
    SP = 184
    send = []
    for q in range(4):
        send += [[f'v_cvt_pk_bf16_f32 v{SP+4*q+j}, v{acc0+8*q+2*j}, v{acc0+8*q+2*j+1}'] for j in range(4)]
    send_st = [f'buffer_store_dwordx4 {R4("v", SP+4*q)}, v{vW}, s[36:39], s55 offen offset:{q*1024} sc1' for q in range(4)]
    g = Gemm(k, NA, NB, LP, S, PD, RA, NT,
             acc=lambda a, b: R4('v', A(a, b)),
             aring=lambda s: ('a', 16 * S + 4 * s),
             bring=lambda st, ks, b: R4('a', st * 16 + (ks * NB + b) * 4),
             vA=[[vA + a for a in range(NA)], [vA2 + a for a in range(NA)]], lds_base=0,
             srdW=12, sW=50, wpitch=256, wdma=wd, sM0=52, srdX=16, sX=51, vX=[vX, vX + 1], wait_every=2,
             extra_loads=lambda t: send if t == NT - 1 else [])
    k.plain_stores = True
    g.make_sched(*sched)
    g.prologue_loads()
    k('s_xor_b32 s45, s40, 1')
    k('s_lshl_b32 s45, s45, 2')
    tr_addr_regs(k, vA, NA, LP, tmp, 1, xor_s=45)
    for a in range(NA): k(f'v_add_u32 v{vA2+a}, 0x10000, v{vA+a}')
    srd_off(k, 36, 6, WS_XB, 4 * MB)
    k('s_lshl_b32 s55, s2, 14')
    k('s_xor_b32 s56, s55, 0x10000')
    srd_off(k, 20, 6, WS_X1, 4 * MB)
    k.srd(24, 8, 4 * MB)
    k.srd(32, 10, 2048)
    srd_off(k, 28, 6, WS_MOD32 + 5 * 4096, 4096)
    k('v_and_b32 v4, 15, v1')
    k('v_lshrrev_b32 v5, 4, v1')
    k('v_lshlrev_b32 v6, 11, v4')
    k('v_lshl_add_u32 v7, v5, 4, v6')
    k('s_lshl_b32 s46, s43, 1')
    k('s_add_u32 s46, s46, s40')
    k('s_lshl_b32 s48, s47, 15')
    k('s_lshl_b32 s49, s46, 7')
    k('s_add_u32 s48, s48, s49')
    k('s_add_u32 s49, s48, 32768')
    XR, GR, BR, RX = 32, 48, 128, 136
    for b in range(NB):
        for u in range(2):
            k(f'buffer_load_dwordx4 {R4("v", XR + (b*2+u)*4)}, v7, s[20:23], s{48+b} offen offset:{u*64}')
    k('v_lshlrev_b32 v4, 5, v5')
    k('s_lshl_b32 s54, s46, 8')
    for u in range(2):
        for h in range(2):
            k(f'buffer_load_dwordx4 {R4("v", GR + (u*2+h)*4)}, v4, s[28:31], s54 offen offset:{u*128 + h*16}')
    k('v_lshlrev_b32 v4, 4, v5')
    k('s_lshl_b32 s54, s46, 7')
    for u in range(2):
        k(f'buffer_load_dwordx4 {R4("v", BR + u*4)}, v4, s[32:35], s54 offen offset:{u*64}')
    g.vq += ['e'] * 10
    g.stamp_first = 1
    g.emit(loop_sreg=53)
    for x in send_st: k(x)
    k.stamp(2)
    UB = 168
    for u in range(2):
        for j in range(4):
            k(f'v_lshlrev_b32 v{UB+8*u+2*j}, 16, v{BR+4*u+j}')
            k(f'v_and_b32 v{UB+8*u+2*j+1}, 0xffff0000, v{BR+4*u+j}')
    for i in range(16):
        k(f'v_lshlrev_b32 v{acc0+2*i}, 16, v{XR+i}')
        k(f'v_and_b32 v{acc0+2*i+1}, 0xffff0000, v{XR+i}')
    k('s_mov_b32 s53, 0x40000')
    if WAITOWN: k('s_waitcnt vmcnt(0)')
    Lp = k.label('poll'); Lq = k.label('pollq')
    if POLL1:
        k(f'{Lq}:')
        k(f'buffer_load_dword v{RX}, v{vW}, s[36:39], s56 offen offset:{3*1024+12} sc1')
        k('s_sub_u32 s53, s53, 1')
        k('s_cselect_b64 s[58:59], 0, -1')
        k('s_waitcnt vmcnt(0)')
        k(f'v_cmp_eq_u32 vcc, -1, v{RX}')
        k('s_and_b64 vcc, vcc, s[58:59]')
        k(f's_cbranch_vccnz {Lq}')
        k('s_mov_b32 s53, 0x40000')
    k(f'{Lp}:')
    for q in range(4):
        k(f'buffer_load_dwordx4 {R4("v", RX + 4*q)}, v{vW}, s[36:39], s56 offen offset:{q*1024} sc1')
    k('s_sub_u32 s53, s53, 1')
    k('s_cselect_b64 s[58:59], 0, -1')
    for q in range(4):
        k(f's_waitcnt vmcnt({3-q})')
        r = RX + 4 * q
        k(f'v_max3_u32 v4, v{r}, v{r+1}, v{r+2}' if q == 0 else f'v_max3_u32 v4, v4, v{r}, v{r+1}')
        k(f'v_max_u32 v4, v4, v{r+3}' if q == 0 else f'v_max3_u32 v4, v4, v{r+2}, v{r+3}')
    k('v_cmp_eq_u32 vcc, -1, v4')
    k('s_and_b64 vcc, vcc, s[58:59]')
    k(f's_cbranch_vccnz {Lp}')
    k.stamp(3)
    for i in range(16):
        o = acc0 + 32 + 2 * i; t = RX + 16 + 2 * (i % 4)
        k(f'v_lshlrev_b32 v{t}, 16, v{RX+i}')
        k(f'v_and_b32 v{t+1}, 0xffff0000, v{RX+i}')
        k(f'v_pk_add_f32 {R2("v", o)}, {R2("v", o)}, {R2("v", t)}')
    k('s_nop 0')
    for sw in ('32', '16'):
        for b in range(NB):
            for u in range(2):
                for r in range(4): k(f'v_permlane{sw}_swap_b32 v{A(4+2*u, b)+r}, v{A(5+2*u, b)+r}')
    for b in range(NB):
        for u in range(2):
            P = RX + (b * 2 + u) * 4
            for h in range(2):
                o = A(4 + 2 * u + h, b)
                for j in range(2):
                    x = R2('v', o + 2 * j)
                    k(f'v_pk_add_f32 {x}, {x}, {R2("v", UB+8*u+4*h+2*j)}')
                    k(f'v_pk_fma_f32 {x}, {x}, {R2("v", GR+(u*2+h)*4+2*j)}, {R2("v", acc0+(b*2+u)*8+4*h+2*j)}')
                for j in range(2): k(f'v_cvt_pk_bf16_f32 v{P+2*h+j}, v{o+2*j}, v{o+2*j+1}')
            k(f'buffer_store_dwordx4 {R4("v", P)}, v7, s[24:27], s{48+b} offen offset:{u*64} sc1')
    k.stamp_out(kidx)
    k(f'{Lend}:')
    k('s_endpgm')
    return k

def gen_opln(S=8, PD=4, name='oproj_kernel', kidx=3, sched=(3, [1, 2, 2, 2, 2]), nextk='mlp1_kernel'):
    NA, NB, LP, RA = 8, 2, 256, 8
    MODL = S * 16384
    k = Kern(name, (256, 1, 1), (256, 1, 1), MODL + 12288, vgpr=256, agpr=16 * S + 32, sgpr=76)
    k.plain_stores = True
    Lend = k.label('end')
    k('s_cmp_ge_u32 s2, 256')
    k(f's_cbranch_scc1 {Lend}')
    k.stamp(0)
    k(f's_load_dwordx2 s[6:7], s[0:1], {A_WS}')
    k(f's_load_dwordx2 s[28:29], s[0:1], {A_X}')
    k(f's_load_dwordx2 s[68:69], s[0:1], {A_B1}')
    k(f's_load_dwordx2 s[72:73], s[0:1], {A_B2}')
    k('v_and_b32 v1, 63, v0')
    k('v_lshrrev_b32 v2, 6, v0')
    k('s_bfe_u32 s40, s2, 0x10002')
    k('v_readfirstlane_b32 s44, v2')
    k('s_bfe_u32 s42, s2, 0x10001')
    k('s_lshl_b32 s42, s42, 3')
    k('s_lshr_b32 s43, s2, 5')
    k('s_add_u32 s42, s42, s43')
    k('s_and_b32 s43, s2, 1')
    k('s_lshl_b32 s43, s43, 2')
    k('s_bfe_u32 s41, s2, 0x20003')
    k('s_add_u32 s43, s43, s41')
    vW = 8; vX = 12; vA = 16; vA2 = 24; tmp = 32
    k('s_lshl_b32 s52, s44, 12')
    k(f'v_lshl_add_u32 v{vW}, v1, 4, s52')
    wd = [(vW, n * 1024) for n in range(4)]
    k('s_lshl_b32 s47, s42, 3')
    k('s_lshl_b32 s48, s44, 1')
    k('s_add_u32 s47, s47, s48')
    k('s_lshl_b32 s48, s47, 10')
    k(f'v_lshl_add_u32 v{vX}, v1, 4, s48')
    k(f'v_add_u32 v{vX+1}, 0x20000, v{vX}')
    k('s_lshl_b32 s50, s43, 20')
    k('s_lshl_b32 s48, s40, 19')
    k('s_add_u32 s50, s50, s48')
    k('s_lshl_b32 s51, s40, 23')
    k('s_waitcnt lgkmcnt(0)')
    srd_off(k, 12, 6, WS_WO, 8 * MB)
    srd_off(k, 16, 6, WS_O, 16 * MB)
    acc0 = 64
    XR = 128
    ext = {}
    g = Gemm(k, NA, NB, LP, S, PD, RA, 32,
             acc=lambda a, b: R4('v', acc0 + (a * NB + b) * 4),
             aring=lambda s: ('a', 16 * S + 4 * s),
             bring=lambda st, ks, b: R4('a', st * 16 + (ks * NB + b) * 4),
             vA=[[vA + a for a in range(NA)], [vA2 + a for a in range(NA)]], lds_base=0,
             srdW=12, sW=50, wpitch=256, wdma=wd, sM0=52, srdX=16, sX=51, vX=[vX, vX + 1], wait_every=2,
             extra_loads=lambda t: ext.get(t, []))
    g.make_sched(*sched)
    g.prologue_loads()
    tr_addr_regs(k, vA, NA, LP, tmp, 1)
    for a in range(NA): k(f'v_add_u32 v{vA2+a}, 0x10000, v{vA+a}')
    fin = mod_finalize(k, 6, 56, 40, 1)
    g.vq += ['m'] * 4
    rec = Kern('rec', None, None, 0, 0); fin(rec)
    ext[2] = [[x] for x in rec.lines]
    Ltail = k.label('tail')
    k.code_srd(32, Ltail)
    k('s_lshr_b32 s55, s2, 3')
    k('s_lshl_b32 s55, s55, 12')
    k('v_lshlrev_b32 v52, 4, v0')
    k.srd(28, 28, 4 * MB)
    k.srd(68, 68, 7168); k.srd(72, 72, 2048)
    srd_off(k, 24, 6, WS_P, 8 * MB)
    srd_off(k, 20, 6, WS_MOD32 + 8192, 12288)
    srd_off(k, 36, 6, WS_X1, 4 * MB)
    srd_off(k, 64, 6, WS_Y, 4 * MB)
    k('v_and_b32 v4, 15, v1')
    k('v_lshrrev_b32 v5, 4, v1')
    k('v_lshlrev_b32 v6, 11, v4')
    k('v_lshl_add_u32 v7, v5, 4, v6')
    k('v_lshlrev_b32 v3, 4, v1')
    k('s_lshl_b32 s48, s47, 15')
    k('s_lshl_b32 s49, s43, 8')
    k('s_add_u32 s48, s48, s49')
    k('s_lshl_b32 s49, s40, 22')
    k('s_add_u32 s48, s48, s49')
    k('s_add_u32 s49, s48, 32768')
    k('s_lshl_b32 s46, s42, 4')
    k('s_lshl_b32 s45, s43, 1')
    k('s_add_u32 s46, s46, s45')
    k('s_add_u32 s46, s46, s40')
    k('s_lshl_b32 s54, s46, 14')
    k(f's_add_u32 s45, s54, {4*MB}')
    k('s_mul_i32 s41, s44, 3072')
    ext[25] = [['buffer_load_dwordx4 v[48:51], v52, s[32:35], s55 offen ; pf'],
               ['buffer_load_dwordx4 v[48:51], v52, s[68:71], 0 offen ; pf'],
               ['buffer_load_dwordx4 v[48:51], v52, s[68:71], 0 offen offset:4080 ; pf'],
               ['buffer_load_dwordx4 v[48:51], v52, s[72:75], 0 offen ; pf']]
    ext[26] = [[f'buffer_load_dwordx4 {R4("v", XR + 4*j)}, v{vW}, s[28:31], s54 offen offset:{j*1024}'] for j in range(4)]
    ext[28] = [[f's_add_u32 m0, s41, {MODL}'], ['s_nop 0']] + \
              [[f'buffer_load_dwordx4 v3, s[20:23], s41 offen offset:{j*1024} sc1 lds'] for j in range(3)]
    g.stamp_first = 1
    g.emit(loop_sreg=53)
    k.stamp(2)
    k(f'{Ltail}:')
    k('s_nop 5')
    n = 0
    for u in range(4):
        ps = []
        for b in range(NB):
            p = 144 + n * 4; n += 1
            ps.append(p)
            A0 = acc0 + ((2 * u) * NB + b) * 4; A1 = acc0 + ((2 * u + 1) * NB + b) * 4
            k(f'v_cvt_pk_bf16_f32 v{p}, v{A0}, v{A0+1}')
            k(f'v_cvt_pk_bf16_f32 v{p+1}, v{A0+2}, v{A0+3}')
            k(f'v_cvt_pk_bf16_f32 v{p+2}, v{A1}, v{A1+1}')
            k(f'v_cvt_pk_bf16_f32 v{p+3}, v{A1+2}, v{A1+3}')
        for sw in ('32', '16'):
            for p in ps:
                k(f'v_permlane{sw}_swap_b32 v{p}, v{p+2}')
                k(f'v_permlane{sw}_swap_b32 v{p+1}, v{p+3}')
        for b, p in enumerate(ps):
            k(f'buffer_store_dwordx4 {R4("v", p)}, v7, s[24:27], s{48+b} offen offset:{u*64} sc1')
    k('s_waitcnt vmcnt(8)')
    k('s_barrier')
    GA, SB, CB = 176, 192, 208
    X = [64, 80]
    for base, sec in ((GA, 0), (SB, 1), (CB, 2)):
        for h in range(2):
            for q in range(2):
                k(f'ds_read_b128 {R4("v", base + 8*h + 4*q)}, v3 offset:{sec*4096 + h*2048 + q*1024}'.replace('v3 offset', 'v9 offset'))
    idx = len(k.lines) - 12
    k.lines.insert(idx, f'v_add_u32 v9, {MODL}, v3')
    for r in range(2):
        unpack8(k, X[r], XR + 8 * r); unpack8(k, X[r] + 8, XR + 8 * r + 4)
    k('s_mov_b32 s60, 0x3a800000')
    k('s_mov_b32 s61, 0xba800000')
    k('s_mov_b32 s53, 0x40000')
    k('s_waitcnt lgkmcnt(0)')
    def sentinel(regs, acc):
        k(f'v_max3_u32 v{acc}, v{regs[0]}, v{regs[1]}, v{regs[2]}')
        i = 3
        while i + 1 < len(regs):
            k(f'v_max3_u32 v{acc}, v{acc}, v{regs[i]}, v{regs[i+1]}'); i += 2
        if i < len(regs): k(f'v_max_u32 v{acc}, v{acc}, v{regs[i]}')
    Lm = k.label('modchk'); Lmok = k.label('modok')
    k(f'{Lm}:')
    sentinel(list(range(GA, GA + 48)), 4)
    k('s_sub_u32 s53, s53, 1')
    k('s_cselect_b64 s[58:59], 0, -1')
    k('v_cmp_eq_u32 vcc, -1, v4')
    k('s_and_b64 vcc, vcc, s[58:59]')
    k(f's_cbranch_vccz {Lmok}')
    for j in range(12):
        k(f's_mov_b32 s41, {(j >> 2) * 4096}')
        k(f'buffer_load_dwordx4 {R4("v", GA + 4*j)}, v3, s[20:23], s41 offen offset:{(j & 3)*1024} sc1')
    k('s_waitcnt vmcnt(0)')
    k(f's_branch {Lm}')
    k(f'{Lmok}:')
    k('s_mov_b32 s53, 0x40000')
    k('s_waitcnt vmcnt(0)')
    RX = 224
    Lp = k.label('poll')
    k(f'{Lp}:')
    for kh in range(2):
        for j in range(4):
            k(f'buffer_load_dwordx4 {R4("v", RX + 16*kh + 4*j)}, v{vW}, s[24:27], s{54 if kh == 0 else 45} offen offset:{j*1024} sc1')
    k('s_sub_u32 s53, s53, 1')
    k('s_cselect_b64 s[58:59], 0, -1')
    k('s_waitcnt vmcnt(0)')
    sentinel(list(range(RX, RX + 32)), 4)
    k('v_cmp_eq_u32 vcc, -1, v4')
    k('s_and_b64 vcc, vcc, s[58:59]')
    k(f's_cbranch_vccnz {Lp}')
    k.stamp(3)
    streams = []
    for r in range(2):
        q = Kern('rec', None, None, 0, 0)
        U0, U1, T, PK = 96 + 16 * r, 144 + 16 * r, 32 + 4 * r, 128 + 8 * r
        unpack8(q, U0, RX + 8 * r); unpack8(q, U0 + 8, RX + 8 * r + 4)
        unpack8(q, U1, RX + 16 + 8 * r); unpack8(q, U1 + 8, RX + 16 + 8 * r + 4)
        x = X[r]
        for j in range(0, 16, 2): q(f'v_pk_add_f32 {R2("v", U0+j)}, {R2("v", U0+j)}, {R2("v", U1+j)}')
        for j in range(0, 16, 2): q(f'v_pk_fma_f32 {R2("v", x+j)}, {R2("v", U0+j)}, {R2("v", GA+j)}, {R2("v", x+j)}')
        for j in range(8): q(f'v_cvt_pk_bf16_f32 v{PK+j}, v{x+2*j}, v{x+2*j+1}')
        q(f'buffer_store_dwordx4 {R4("v", PK)}, v{vW}, s[36:39], s54 offen offset:{r*2048} sc1')
        q(f'buffer_store_dwordx4 {R4("v", PK+4)}, v{vW}, s[36:39], s54 offen offset:{r*2048+1024} sc1')
        ln_fast(q, x, T, 60)
        for j in range(0, 16, 2): q(f'v_pk_mul_f32 {R2("v", x+j)}, {R2("v", x+j)}, {R2("v", T)}')
        for j in range(0, 16, 2): q(f'v_pk_fma_f32 {R2("v", x+j)}, {R2("v", x+j)}, {R2("v", CB+j)}, {R2("v", SB+j)}')
        ln_fast(q, x, T, 60)
        for j in range(0, 16, 2): q(f'v_pk_mul_f32 {R2("v", x+j)}, {R2("v", x+j)}, {R2("v", T)}')
        for j in range(8): q(f'v_cvt_pk_bf16_f32 v{U0+j}, v{x+2*j}, v{x+2*j+1}')
        streams.append(q.lines)
    for a, b in zip(*streams):
        if a == 's_nop 1': k('s_nop 0'); continue
        if a == 's_nop 0': continue
        k(a); k(b)
    k('v_lshrrev_b32 v5, 2, v1')
    k('v_mul_u32_u24 v5, 528, v5')
    k('v_and_b32 v6, 1, v1')
    k('v_lshl_add_u32 v5, v6, 8, v5')
    k('v_bfe_u32 v6, v1, 1, 1')
    k('v_lshl_add_u32 v5, v6, 3, v5')
    k('v_lshl_add_u32 v5, v2, 5, v5')
    for r in range(2):
        P = 96 + 16 * r
        k(f'ds_write_b64 v5, {R2("v", P)} offset:{16*r}')
        k(f'ds_write_b64 v5, {R2("v", P+2)} offset:{16*r+128}')
        k(f'ds_write_b64 v5, {R2("v", P+4)} offset:{16*r+16*528}')
        k(f'ds_write_b64 v5, {R2("v", P+6)} offset:{16*r+16*528+128}')
    k('v_lshrrev_b32 v6, 5, v0')
    k('v_and_b32 v7, 31, v0')
    k('v_mul_u32_u24 v5, 528, v6')
    k('v_lshl_add_u32 v5, v7, 4, v5')
    k('v_lshlrev_b32 v6, 17, v6')
    k('v_bfe_u32 v7, v0, 3, 2')
    k('v_lshl_add_u32 v6, v7, 8, v6')
    k('v_and_b32 v7, 7, v0')
    k('v_lshl_add_u32 v6, v7, 4, v6')
    k('s_lshr_b32 s48, s46, 1')
    k('s_lshl_b32 s48, s48, 10')
    k('s_and_b32 s49, s46, 1')
    k('s_lshl_b32 s49, s49, 7')
    k('s_add_u32 s48, s48, s49')
    k('s_waitcnt lgkmcnt(0)')
    k('s_barrier')
    for j in range(4): k(f'ds_read_b128 {R4("v", 144+4*j)}, v5 offset:{8*528*j}')
    for j in range(4):
        k(f's_waitcnt lgkmcnt({3-j})')
        k(f'buffer_store_dwordx4 {R4("v", 144+4*j)}, v6, s[64:67], s48 offen sc1')
        if j < 3: k(f's_add_u32 s48, s48, {8*131072}')
    k.stamp_out(kidx)
    k(f'{Lend}:')
    k('s_endpgm')
    k.noreplay = {Lm}
    return k
```

```python
NAME = 'adaLN_cond__mha_block_cached__mixer_channel_mlp__prompt'

HEADER = open('cdna_kernels/' + NAME + '.s.ref').read().split('; Override launch')[0]

class Kern:
    def __init__(self, name, grid, block, lds, vgpr, agpr=0, sgpr=102, wgid_y=False):
        self.name = name; self.grid = grid; self.block = block; self.lds = lds
        self.vgpr = vgpr; self.agpr = agpr; self.sgpr = sgpr; self.wgid_y = wgid_y
        self.lines = []
        self.nlabel = 0
    def __call__(self, s):
        for l in s.split('\n'):
            l = l.strip()
            if l:
                if l.startswith('buffer_store_dwordx4') and Kern.STORE_MOD and not getattr(self, 'plain_stores', False) and ' sc1' not in l and '; plain' not in l: l += Kern.STORE_MOD
                self.lines.append(l)
    def label(self, base='L'):
        self.nlabel += 1
        return f'{self.name}_{base}{self.nlabel}'
    def srd(self, d, base, nbytes):
        if d != base: self(f's_mov_b32 s{d}, s{base}')
        self(f's_and_b32 s{d+1}, s{base+1}, 0xffff')
        self(f's_mov_b32 s{d+2}, {nbytes}')
        self(f's_mov_b32 s{d+3}, 0x20000')
    def code_srd(self, d, target):
        L = self.label('pc')
        self(f's_getpc_b64 s[{d}:{d+1}]')
        self(f'{L}:')
        self(f's_add_u32 s{d}, s{d}, {target}-{L}')
        self(f's_addc_u32 s{d+1}, s{d+1}, 0')
        self(f's_and_b32 s{d+1}, s{d+1}, 0xffff')
        self(f's_mov_b32 s{d+2}, code_end-{target}')
        self(f's_mov_b32 s{d+3}, 0x20000')
    STAMP = False
    STORE_MOD = ''
    def stamp(self, i):
        if not Kern.STAMP: return
        self.sgpr = 102
        self.nstamp = max(getattr(self, 'nstamp', 0), i + 1)
        self(f'{"s_memtime" if Kern.STAMP == "cyc" else "s_memrealtime"} s[{78+2*i}:{79+2*i}]')
        self('s_waitcnt lgkmcnt(0)')
    def stamp_out(self, kidx, vtmp=0):
        if not Kern.STAMP: return
        self(f's_load_dwordx2 s[4:5], s[0:1], 112')
        self('s_waitcnt lgkmcnt(0) vmcnt(0)')
        self.stamp(self.nstamp)
        self(f's_add_u32 s96, s4, {200*1048576 + kidx*65536}')
        self('s_addc_u32 s97, s5, 0')
        self('s_and_b32 s97, s97, 0xffff')
        self('s_mov_b32 s98, 65536')
        self('s_mov_b32 s99, 0x20000')
        self('s_lshl_b32 s100, s2, 6')
        self('s_mov_b64 exec, 1')
        self(f'v_mov_b32 v{vtmp+1}, 0')
        for i in range(self.nstamp):
            self(f'v_mov_b32 v{vtmp}, s{78+2*i}')
            self(f'buffer_store_dword v{vtmp}, v{vtmp+1}, s[96:99], s100 offen offset:{4*i}')
    def text(self):
        out = [f'.globl {self.name}', '.p2align 8', f'.type {self.name},@function', f'{self.name}:']
        for l in self.lines:
            out.append(l if l.endswith(':') else '  ' + l)
        return '\n'.join(out) + '\n'
    def desc(self):
        acc = (self.vgpr + 3) // 4 * 4
        nfv = acc + self.agpr if self.agpr else self.vgpr
        s = f'''.p2align 6
.amdhsa_kernel {self.name}
  .amdhsa_next_free_vgpr {nfv}
  .amdhsa_next_free_sgpr {self.sgpr}
  .amdhsa_accum_offset {acc}
  .amdhsa_group_segment_fixed_size 0
  .amdhsa_kernarg_size 120
  .amdhsa_user_sgpr_count 2
  .amdhsa_user_sgpr_kernarg_segment_ptr 1
  .amdhsa_system_sgpr_workgroup_id_x 1
'''
        if self.wgid_y:
            s += '  .amdhsa_system_sgpr_workgroup_id_y 1\n'
        s += '.end_amdhsa_kernel\n'
        return s
    def launch_line(self):
        g = self.grid; b = self.block
        return f'; @launch kernel={self.name} grid=({g[0]},{g[1]},{g[2]}) block=({b[0]},{b[1]},{b[2]}) lds={self.lds}'

def emit(path, launches):
    uniq = []
    for k in launches:
        if k not in uniq:
            uniq.append(k)
    s = HEADER
    for k in launches:
        s += k.launch_line() + '\n'
    s += '.amdgcn_target "amdgcn-amd-amdhsa--gfx950"\n.text\n'
    for k in uniq:
        s += k.text()
    s += 'code_end:\n  s_endpgm\n'
    s += '.section .rodata,"a"\n'
    for k in uniq:
        s += k.desc()
    open(path, 'w').write(s)
```

```python
import sys
from gen_gk import *
from gen_front import *

THRESH_LOG2 = 16

def gen_attn(thresh_log2=THRESH_LOG2, lead=27, E0=58, bias=100, ufl=0x4000, pf=True, sched=(2, [1, 2, 1, 2]), name='attn_kernel', kidx=2, dbg='', excl=True, split2=True, wqpf=0):
    k = Kern(name, (256, 1, 1), (256, 1, 1), 160 * 1024, vgpr=256, agpr=256, sgpr=80)
    Lend = k.label('end')
    k('s_cmp_ge_u32 s2, 256')
    k(f's_cbranch_scc1 {Lend}')
    k.stamp(0)
    k(f's_load_dwordx4 s[4:7], s[0:1], {A_K}')
    k(f's_load_dwordx2 s[8:9], s[0:1], {A_WQ}')
    k(f's_load_dwordx2 s[10:11], s[0:1], {A_WS}')
    k(f's_load_dwordx2 s[32:33], s[0:1], {A_WO}')
    k(f's_load_dwordx2 s[36:37], s[0:1], {A_W1}')
    k(f's_load_dwordx2 s[60:61], s[0:1], {A_W2}')
    k(f's_load_dwordx2 s[64:65], s[0:1], {A_WMOD}')
    Lloop = k.label('loop'); Ltail = k.label('tail'); Lslow = k.label('slow'); Lepi = k.label('epi')
    vKA, vVA, vKD, vVD = 8, 12, 20, 24
    tmp = 26
    vL = 32; vTA2 = 32; vWD = 40; vX = 44
    vQ, vS, vP, vNM, vE, vONE, vT = 64, 128, 192, 224, 240, 248, 252
    aO, aF = 0, 128
    sHEAD, sQT, sWAVE, sMB0, sW, sX, sM0, sK, sV, sCNT, sTH, sFIRST = 40, 41, 44, 47, 50, 51, 52, 53, 54, 55, 57, 58
    k('v_and_b32 v1, 63, v0')
    k('v_lshrrev_b32 v2, 6, v0')
    k('s_and_b32 s42, s2, 7')
    k(f'v_readfirstlane_b32 s{sWAVE}, v2')
    k('s_lshl_b32 s42, s42, 2')
    k('s_bfe_u32 s43, s2, 0x20003')
    k(f's_add_u32 s{sHEAD}, s42, s43')
    k(f's_lshr_b32 s{sQT}, s2, 5')
    wd = wdma_regs(k, vWD, 256, 8192, 16, tmp, 1, sWAVE)
    k(f's_lshl_b32 s{sMB0}, s{sQT}, 4')
    k(f's_lshl_b32 s48, s{sWAVE}, 2')
    k(f's_add_u32 s{sMB0}, s{sMB0}, s48')
    k(f's_lshl_b32 s48, s{sMB0}, 10')
    k(f'v_lshl_add_u32 v{vX}, v1, 4, s48')
    k(f'v_add_u32 v{vX+1}, 0x20000, v{vX}')
    k(f's_lshl_b32 s{sW}, s{sHEAD}, 8')
    k(f's_mov_b32 s{sX}, 0')
    k(f's_lshl_b32 s{sM0}, s{sWAVE}, 12')
    k('s_waitcnt lgkmcnt(0)')
    k.srd(12, 8, 1024 * 8192)
    srd_off(k, 16, 10, WS_H, 4 * MB)
    S = 6
    SL = lambda i: i * 16384
    stage_off = [SL(6), SL(7), SL(8), SL(9), SL(4), SL(5)]
    bbase = {4: 0, 5: 32, 0: 64, 1: 96, 2: 128, 3: 160}
    def kdma(slot):
        return [[f's_add_u32 m0, s{sM0}, {SL(slot)}'], ['s_nop 0']] + \
               [[f'buffer_load_dwordx4 v{vKD+n}, s[20:23], s{sK} offen offset:{n*1024} lds'] for n in range(4)] + \
               [[f's_add_u32 s{sK}, s{sK}, 16384']]
    def vdma(slot):
        return [[f's_add_u32 m0, s{sM0}, {SL(4+slot)}'], ['s_nop 0']] + \
               [[f'buffer_load_dwordx4 v{vVD+(n&1)}, s[24:27], s{sV} offen offset:{n*1024} lds'] for n in range(4)] + \
               [[f's_add_u32 s{sV}, s{sV}, 16384']]
    def zero(base):
        return [[f'v_accvgpr_write_b32 a{base+i}, 0'] for i in range(32)]
    def extra(t):
        if t == 10: return [[x] for x in gld]
        if t == 11: return kdma(0) + kdma(1) + vdma(0) + zero(0)
        if t == 12: return kdma(2) + vdma(1) + zero(32)
        if t == 13: return kdma(3) + vdma(2) + zero(64)
        if t == 14: return zero(96)
        return []
    def extra_p(t):
        return {12: 12, 13: 20, 14: 28}.get(t, 0)
    acc0 = 128
    g = Gemm(k, 8, 4, 256, S, 4, 8, 16,
             acc=lambda a, b: R4('v', acc0 + (a * 4 + b) * 4),
             aring=lambda s: ('a', 192 + 4 * s),
             bring=lambda st, ks, b: R4('a', bbase[st] + (ks * 4 + b) * 4),
             vA=[None, [vVA + a for a in range(8)], [vTA2 + a for a in range(8)]], lds_base=0,
             srdW=12, sW=sW, wpitch=8192, wdma=wd, sM0=sM0, srdX=16, sX=sX, vX=[vX, vX + 1],
             extra_loads=extra, stage_off=stage_off)
    g.make_sched(*sched)
    g.prologue_loads()
    if wqpf:
        nrow = (1024 - 256 * wqpf) // 8
        k(f's_mul_i32 s48, s{sQT}, {4*8192}')
        k(f's_and_b32 s48, s{sQT}, 3')
        k(f's_mul_i32 s48, s48, {4*8192}')
        k(f's_lshr_b32 s45, s{sQT}, 2')
        k(f's_mul_i32 s45, s45, {64*8192}')
        k('s_add_u32 s48, s48, s45')
        k(f's_lshl_b32 s45, s{sHEAD}, 8')
        k('s_add_u32 s48, s48, s45')
        k(f's_add_u32 s48, s48, {wqpf*256*8192}')
        for j in range((16 - 4 * wqpf) // 2):
            k(f'buffer_load_dwordx4 v[64:67], v{vWD}, s[12:15], s48 offen ; pf')
            k(f's_add_u32 s48, s48, {128*8192}')
            g.vq.append('pf')
    tr_addr_regs(k, vVA, 8, 256, tmp, 1, add=0x10000)
    for a in range(8): k(f'v_add_u32 v{vTA2+a}, 0x10000, v{vVA+a}')
    k(f'v_and_b32 v{tmp}, 15, v1')
    k(f'v_lshrrev_b32 v{tmp+1}, 4, v1')
    k(f'v_xor_b32 v{tmp+2}, v{tmp}, v{tmp+1}')
    k(f'v_lshlrev_b32 v{tmp+3}, 8, v{tmp}')
    for ds in range(4):
        k(f'v_xor_b32 v{tmp+4}, {4*ds}, v{tmp+2}')
        k(f'v_lshl_add_u32 v{vKA+ds}, v{tmp+4}, 4, v{tmp+3}')
    k(f'v_lshlrev_b32 v{tmp+3}, 8, v{tmp+1}')
    k(f'v_add_u32 v{tmp+3}, s{sM0}, v{tmp+3}')
    for n in range(4):
        k(f'v_xor_b32 v{tmp+4}, {4*n}, v{tmp+2}')
        k(f'v_lshl_add_u32 v{vKD+n}, v{tmp+4}, 4, v{tmp+3}')
    k(f'v_lshlrev_b32 v{tmp+4}, 1, v{tmp+1}')
    k(f'v_xor_b32 v{tmp+4}, v{tmp+4}, v{tmp}')
    k(f'v_lshl_add_u32 v{vVD}, v{tmp+4}, 4, v{tmp+3}')
    k(f'v_xor_b32 v{tmp+4}, 8, v{tmp+4}')
    k(f'v_lshl_add_u32 v{vVD+1}, v{tmp+4}, 4, v{tmp+3}')
    k(f's_lshl_b32 s48, s{sHEAD}, 19')
    srd_off(k, 20, 4, 's48', 524288)
    srd_off(k, 24, 6, 's48', 524288)
    srd_off(k, 28, 10, WS_O, 16 * MB)
    k(f's_mov_b32 s{sK}, 0')
    k(f's_mov_b32 s{sV}, 0')
    k.srd(32, 32, 4096 * 2048); k.srd(36, 36, 1024 * 7168); k.srd(60, 60, 3584 * 2048)
    sPF, sST0, sST2, sL1, sXB = 59, 56, 49, 46, 41
    vPF, vD0, vD2, vS1, vD1, vN1, vJ1 = 7, 54, 55, 56, 57, 58, 59
    srd_off(k, 72, 10, WS_WO, 36 * MB)
    k(f's_mov_b32 s{sPF}, 0')
    k(f's_mov_b32 s{sL1}, 0')
    k(f's_mov_b32 s{sST0}, 0x70000000')
    k(f's_mov_b32 s{sST2}, 0x70000000')
    k('s_lshl_b32 s48, s2, 12')
    k(f'v_lshl_add_u32 v{vPF}, v0, 4, s48')
    k(f's_lshl_b32 s42, s2, 2')
    k(f's_add_u32 s42, s42, s{sWAVE}')
    k('s_lshr_b32 s43, s42, 1')
    k('s_and_b32 s45, s42, 1')
    k('s_and_b32 s48, s43, 7')
    k('s_lshl_b32 s48, s48, 1')
    k(f'v_xor_b32 v{tmp+4}, s48, v{tmp}')
    k(f'v_lshlrev_b32 v{tmp+4}, 4, v{tmp+4}')
    k(f'v_lshl_add_u32 v{vD0}, v{tmp+1}, 20, v{tmp+4}')
    k('s_lshl_b32 s48, s45, 22')
    k('s_lshl_b32 s62, s43, 8')
    k('s_add_u32 s48, s48, s62')
    k(f'v_add_u32 v{vD0}, s48, v{vD0}')
    if split2:
        k(f'v_mul_u32_u24 v{tmp+5}, {3584*256}, v{tmp+1}')
        k(f'v_add_u32 v{vD2}, v{tmp+4}, v{tmp+5}')
        k(f's_mul_i32 s48, s45, {4*3584*256}')
        k('s_add_u32 s48, s48, s62')
        k(f's_add_u32 s48, s48, {WS_W2 - WS_WO}')
        k(f'v_add_u32 v{vD2}, s48, v{vD2}')
        k(f's_mov_b32 s{sXB}, {WS_XB - WS_WO}')
    else:
        k('s_bfe_u32 s48, s43, 0x20001')
        k('s_lshl_b32 s48, s48, 1')
        k(f'v_and_b32 v{tmp+4}, 7, v1')
        k(f'v_xor_b32 v{tmp+4}, s48, v{tmp+4}')
        k(f'v_lshrrev_b32 v{tmp+5}, 3, v1')
        k(f'v_mul_u32_u24 v{tmp+5}, {3584*128}, v{tmp+5}')
        k(f'v_lshl_add_u32 v{vD2}, v{tmp+4}, 4, v{tmp+5}')
        k(f's_mul_i32 s48, s45, {8*3584*128}')
        k('s_lshl_b32 s62, s43, 7')
        k('s_add_u32 s48, s48, s62')
        k(f's_add_u32 s48, s48, {WS_W2 - WS_WO}')
        k(f'v_add_u32 v{vD2}, s48, v{vD2}')
    k('s_mul_i32 s48, s42, 7168')
    k(f'v_lshl_add_u32 v{vS1}, v1, 4, s48')
    k(f'v_mul_u32_u24 v{tmp+4}, 74, v1')
    k(f'v_lshrrev_b32 v{tmp+4}, 10, v{tmp+4}')
    k(f'v_mul_u32_u24 v{tmp+5}, 14, v{tmp+4}')
    k(f'v_sub_u32 v{vJ1}, v1, v{tmp+5}')
    k(f'v_mul_u32_u24 v{tmp+4}, {1024*224}, v{tmp+4}')
    k(f'v_lshl_add_u32 v{vN1}, v{vJ1}, 4, v{tmp+4}')
    k('s_mul_i32 s48, s42, 224')
    k(f's_add_u32 s48, s48, {WS_W1 - WS_WO}')
    k(f'v_add_u32 v{vN1}, s48, v{vN1}')
    k(f'v_mov_b32 v{vD1}, 0x70000000')
    k(f'v_mov_b32 v60, {1024*224 - 224}')
    k('s_mov_b32 s62, 3584 * 2048')
    GA = [48, 49, 50, 51, 52, 53, 63, 2]; vGW, vGS, vGT0, vGT1, vGA, vGB = 28, 27, 26, 3, 4, 5
    sGW, sGS = 76, 77
    k.srd(64, 64, 1024 * 12288)
    srd_off(k, 68, 10, 0, WS_MP2 + 16 * 16384)
    k(f'v_lshrrev_b32 v{vGB}, 3, v1')
    k(f'v_mul_u32_u24 v{vGA}, 12288, v{vGB}')
    k(f'v_and_b32 v{vGT1}, 7, v1')
    k(f'v_lshl_add_u32 v{vGA}, v{vGT1}, 4, v{vGA}')
    k(f'v_lshlrev_b32 v{vGB}, 2, v{vGB}')
    k('s_and_b32 s48, s42, 15')
    k(f's_mul_i32 s{sGW}, s48, {64*12288}')
    k('s_lshr_b32 s43, s2, 2')
    k('s_lshl_b32 s45, s43, 7')
    k(f's_add_u32 s{sGW}, s{sGW}, s45')
    k(f's_add_u32 s{sGW}, s{sGW}, 4096')
    k(f's_lshl_b32 s{sGS}, s48, 8')
    k(f's_add_u32 s{sGS}, s{sGS}, {WS_SC}')
    k('s_lshl_b32 s48, s48, 14')
    k('s_lshl_b32 s43, s43, 8')
    k('s_add_u32 s43, s43, s48')
    k(f's_add_u32 s43, s43, {WS_MP2}')
    for r in GA: k(f'v_mov_b32 v{r}, 0')
    k.code_srd(4, Ltail)
    k('s_lshr_b32 s8, s2, 3')
    k('s_lshl_b32 s8, s8, 12')
    k('v_lshlrev_b32 v6, 4, v0')
    gld = [f'buffer_load_dwordx4 {R4("v", vGW)}, v{vGA}, s[64:67], s{sGW} offen',
           f'buffer_load_dword v{vGS}, v{vGB}, s[68:71], s{sGS} offen',
           f's_add_u32 s{sGW}, s{sGW}, {8*12288}', f's_add_u32 s{sGS}, s{sGS}, 32']
    gfma = []
    for j in range(4):
        gfma += [f'v_lshlrev_b32 v{vGT0}, 16, v{vGW+j}', f'v_and_b32 v{vGT1}, 0xffff0000, v{vGW+j}',
                 f'v_fmac_f32 v{GA[2*j]}, v{vGT0}, v{vGS}', f'v_fmac_f32 v{GA[2*j+1]}, v{vGT1}, v{vGS}']
    k(f's_mov_b32 s{sTH}, 0x{f2u(2.0**thresh_log2):08x}')
    g.stamp_first = 1
    g.emit(loop_sreg=None)
    k.stamp(2)
    k('s_waitcnt vmcnt(16)')
    k('s_barrier')
    Kfr = lambda kb, ds: aF + 32 + (4 * kb + ds) * 4
    Vfr = lambda db: aF + 4 * db
    def kread(unit, kb, ds, dst=None):
        off = SL((unit >> 1) & 3) + ((unit & 1) * 32 + kb * 16) * 256
        return f'ds_read_b128 {R4("a", Kfr(kb, ds) if dst is None else dst)}, v{vKA+ds} offset:{off}'
    def vread(unit, db, hf):
        off = SL((unit >> 1) & 3) + ((unit & 1) * 32 + hf * 16) * 256
        return f'ds_read_b64_tr_b16 {R2("a", Vfr(db) + 2*hf)}, v{vVA+db} offset:{off}'
    for kb in range(2):
        for ds in range(4): k(kread(0, kb, ds, dst=Vfr(4 * kb + ds)))
    sc = math.log2(math.e) / math.sqrt(128.0)
    k(f'v_mov_b32 v46, 0x{f2u(sc):08x}'); k(f'v_mov_b32 v47, 0x{f2u(sc):08x}')
    Qf = lambda qb, ds: vQ + (qb * 4 + ds) * 4
    for u in range(4):
        for qb in range(4):
            p = Qf(qb, u)
            for h in range(2):
                A = acc0 + ((2 * u + h) * 4 + qb) * 4
                k(f'v_pk_mul_f32 {R2("v", A)}, {R2("v", A)}, {R2("v", 46)}')
                k(f'v_pk_mul_f32 {R2("v", A+2)}, {R2("v", A+2)}, {R2("v", 46)}')
                k(f'v_cvt_pk_bf16_f32 v{p+2*h}, v{A}, v{A+1}')
                k(f'v_cvt_pk_bf16_f32 v{p+2*h+1}, v{A+2}, v{A+3}')
        for sw in ('32', '16'):
            for qb in range(4):
                p = Qf(qb, u)
                k(f'v_permlane{sw}_swap_b32 v{p}, v{p+2}')
                k(f'v_permlane{sw}_swap_b32 v{p+1}, v{p+3}')
    k('s_waitcnt lgkmcnt(0)')
    for kb in range(2):
        for ds in range(4): k(kread(1, kb, ds))
    Sb = lambda N, kb, qb: vS + 32 * (N & 1) + (kb * 4 + qb) * 4
    Pb = lambda N, qb: vP + 16 * (N & 1) + 4 * qb
    Lb = lambda qb: vL + 4 * qb
    NM = lambda qb: vNM + 4 * qb
    def qk(N, kb, ds, qb, fr=None, czero=False):
        d = R4('v', Sb(N, kb, qb))
        c = ('0' if czero else R4('v', NM(qb))) if ds == 0 else d
        return f'{MF} {d}, {R4("a", Kfr(kb, ds) if fr is None else fr)}, {R4("v", Qf(qb, ds))}, {c}'
    def pv(N, db, qb):
        d = R4('a', aO + (db * 4 + qb) * 4)
        return f'{MF} {d}, {R4("a", Vfr(db))}, {R4("v", Pb(N, qb))}, {d}'
    def ones(N, qb):
        return f'{MF} {R4("v", Lb(qb))}, {R4("v", vONE)}, {R4("v", Pb(N, qb))}, {R4("v", Lb(qb))}'
    def E(N, i):
        return f'v_exp_f32 v{vE + (i & 7)}, v{Sb(N, i >> 4, (i >> 2) & 3) + (i & 3)}'
    def C(N, j):
        i = 2 * j
        return f'v_cvt_pk_bf16_f32 v{Pb(N, (i >> 2) & 3) + 2 * (i >> 4) + ((i >> 1) & 1)}, v{vE + (i & 7)}, v{vE + (i & 7) + 1}'
    def xmax(D, X):
        for sw in ('16', '32'):
            k(f'v_mov_b32 v{X}, v{D}')
            k('s_nop 1')
            k(f'v_permlane{sw}_swap_b32 v{D}, v{X}')
            k(f'v_max_f32 v{D}, v{D}, v{X}')
    def interleave(mf, fill, cap=2):
        fi = 0
        for gi, m in enumerate(mf):
            k(m)
            used = 0
            while fi < len(fill) and fill[fi][2] <= gi and used + fill[fi][1] <= cap:
                k(fill[fi][0]); used += fill[fi][1]; fi += 1
        for x in fill[fi:]: k(x[0])

    NG = 68
    def build_iter(N):
        T = (N - 1) >> 1
        first_in_pair = (N & 1) == 1
        mf = [pv(N - 1, db, qb) for db in range(8) for qb in range(4)]
        mf += [ones(N - 1, qb) for qb in range(4)]
        import sys
        if 'nochain' in sys.argv: mf += [qk(N + 1, kb, ds, qb) for kb in range(2) for ds in range(4) for qb in range(4)]
        else: mf += [qk(N + 1, kb, ds, qb) for kb in range(2) for qb in range(4) for ds in range(4)]
        first = [[] for _ in range(NG)]; rest = [[] for _ in range(NG)]; cost = [0] * NG
        def put(g, ins, mem=False, c=1):
            (first if mem else rest)[g].append(ins); cost[g] += c
        for i in range(32):
            gp = E0 + 2 * i
            if gp < NG: put(gp, E(N + 1, i), c=2)
            else: put(gp - NG, E(N, i), c=2)
        for j in range(16):
            gp = E0 + 2 * (2 * j + 1) + 1
            if gp < NG: put(gp, C(N + 1, j))
            else: put(gp - NG, C(N, j))
        rd = []
        for db in range(8):
            for hf in range(2):
                gp = 4 * db - lead + 2 * hf
                rd.append((gp % NG, vread(N - 1 if gp >= 0 else N, db, hf), ('V', db) if gp >= 0 else ('Vn', db)))
        for i in range(8):
            gp = 36 + 4 * i - lead
            rd.append((gp, kread(N + 1, i >> 2, i & 3), ('K', i)))
        rd.sort(key=lambda x: x[0])
        for gp, ins, tag in rd: put(gp, ins, mem=True)
        cyc = [(gp - NG, 'V' if tag[0] == 'Vn' else 'old', tag[1]) for gp, _, tag in rd] + \
              [(gp, tag[0], tag[1]) for gp, _, tag in rd]
        waits = {}
        for at, kind, hi in ((0, 'V', 3), (16, 'V', 7), (36, 'K', 3), (52, 'K', 7)):
            lastidx = max(i for i, x in enumerate(cyc) if x[1] == kind and x[2] == hi)
            n_after = sum(1 for i, x in enumerate(cyc) if i > lastidx and x[0] < at)
            assert cyc[lastidx][0] < at
            waits[at] = n_after
        for at in (16, 36, 52): put(at - 1, f's_waitcnt lgkmcnt({waits[at]})')
        put(NG - 1, f's_waitcnt lgkmcnt({waits[0]})')
        def putv(gp, ins):
            if 'plainpack' in sys.argv and ins.startswith('buffer_store'): ins += ' ; plain'
            assert cost[gp] == 0, (N, gp, first[gp], rest[gp])
            put(gp, ins, mem=True, c=2 if excl else 1)
        def puts(gp, seq, hi=NG):
            for ins in seq:
                while cost[gp] >= 2: gp += 1
                assert gp < hi, (N, ins)
                put(gp, ins)
                if ins.startswith('v_cmp'): gp += 2
        if not first_in_pair:
            X = lambda T: (2 if T % 4 < 3 else 1) + (2 if T % 4 == 1 else 0) + (2 if T % 4 == 2 and split2 else 0)
            npf = X(T - 1) + X(T)
            if T % 4 == 0: npf -= 1
            put(19, f's_waitcnt vmcnt({12 + npf})'); put(19, 's_barrier')
            d = [x[0] for x in kdma(T % 4) if x[0] != 's_nop 0']
            put(15, d[0])
            for gp, ins in zip((23, 27, 31, 39), d[1:5]): putv(gp, ins)
            if T % 4 == 1:
                putv(7, gld[0]); putv(11, gld[1]); puts(35, gld[2:])
            if T % 4 == 2 and split2:
                putv(7, f'buffer_store_dwordx4 a[208:211], v{vPF}, s[72:75], s{sXB} offen'); putv(11, f'buffer_store_dwordx4 a[208:211], v{vT+3}, s[72:75], s{sXB} offen'); put(35, f's_add_u32 s{sXB}, s{sXB}, 0x100000')
            puts(43, d[5:])
            if T % 4 == 0: puts(0, gfma)
        else:
            d = [x[0] for x in vdma((T + 3) % 4) if x[0] != 's_nop 0']
            put(5, d[0])
            for gp, ins in zip((7, 11, 19, 23), d[1:5]): putv(gp, ins)
            puts(43, d[5:])
            if T % 4 == 0:
                putv(27, f'buffer_store_dwordx4 a[192:195], v{vD0}, s[72:75], s{sST0} offen')
                putv(31, f'buffer_load_dwordx4 a[192:195], v{vPF}, s[32:35], s{sPF} offen')
            if T % 4 == 1:
                putv(27, f'buffer_store_dwordx4 a[196:199], v{vD1}, s[72:75], 0 offen')
                putv(31, f'buffer_load_dwordx4 a[196:199], v{vS1}, s[36:39], s{sL1} offen')
                puts(35, [f'v_mov_b32 v{vD1}, v{vN1}',
                        f'v_add_u32 v{vJ1}, 8, v{vJ1}',
                        f'v_add_u32 v{vN1}, {4*1024*224 + 128}, v{vN1}',
                        f'v_cmp_lt_u32 vcc, 13, v{vJ1}',
                        f's_add_u32 s{sL1}, s{sL1}, 1024',
                        f'v_cndmask_b32 v61, 0, v60, vcc',
                        f'v_cndmask_b32 v62, 0, 14, vcc',
                        f'v_add_u32 v{vN1}, v61, v{vN1}',
                        f'v_sub_u32 v{vJ1}, v{vJ1}, v62'])
            if T % 4 == 2:
                putv(27, f'buffer_store_dwordx4 a[200:203], v{vD2}, s[72:75], s{sST2} offen')
                putv(31, f'buffer_load_dwordx4 a[200:203], v{vPF}, s[60:63], s{sPF} offen')
            if T % 4 == 3:
                putv(27, 'buffer_load_dwordx4 a[204:207], v6, s[4:7], s8 offen ; pf')
                put(3, f's_lshr_b32 s{sST0}, s{sPF}, 3'); put(15, f's_lshr_b32 s{sST2}, s{sPF}, {3 if split2 else 4}')
                put(31, f's_add_u32 s{sPF}, s{sPF}, 0x100000')
                put(31, f's_sub_u32 s{sCNT}, s{sCNT}, 1')
        out = []
        for gi in range(NG):
            fl = first[gi] + rest[gi]
            if 'nobar' in dbg: fl = [x for x in fl if x != 's_barrier']
            if 'novm' in dbg: fl = [x for x in fl if not x.startswith(('buffer_', 's_waitcnt vmcnt'))]
            if 'nopack' in dbg: fl = [x for x in fl if not (x.startswith('buffer_') and not x.endswith(' lds'))]
            if 'nopack' in dbg: fl = ['s_waitcnt vmcnt(12)' if x.startswith('s_waitcnt vmcnt') else x for x in fl]
            for md in ('sc1', 'nt', 'sc0'):
                if 'kv' + md in dbg: fl = [x.replace(' lds', f' {md} lds') if x.endswith(' lds') else x for x in fl]
            if 'nods' in dbg: fl = [x for x in fl if not x.startswith(('ds_', 's_waitcnt lgkm'))]
            if 'noexp' in dbg: fl = [x for x in fl if not x.startswith('v_exp')]
            if 'nocvt' in dbg: fl = [x for x in fl if not x.startswith('v_cvt')]
            out.append(mf[gi]); out += fl
            if cost[gi] > 2: print('gap over', N, gi, cost[gi], first[gi] + rest[gi])
        return out, waits[0], rd

    mf0 = [qk(0, kb, ds, qb, fr=Vfr(4 * kb + ds), czero=True) for kb in range(2) for ds in range(4) for qb in range(4)]
    D = lambda qb: vE + qb
    X = lambda qb: vE + 4 + qb
    k(f's_mov_b32 s9, 0x{f2u(-float(bias)):08x}')
    f0 = [(f'v_add_u32 v{vT+3}, 0x800000, v{vPF}', 1, 0)] + [(f'v_accvgpr_write_b32 a{208+i}, -1', 1, 0) for i in range(4)] + [(f'v_mov_b32 v{vL+i}, 0', 1, 0) for i in range(16)] + [(f'v_mov_b32 v{vONE+i}, 0x3f803f80', 1, 0) for i in range(4)]
    for qb in range(4): f0.append((f'v_max3_f32 v{D(qb)}, v{Sb(0,0,qb)}, v{Sb(0,0,qb)+1}, v{Sb(0,0,qb)+2}', 1, 22))
    for qb in range(4): f0.append((f'v_max_f32 v{D(qb)}, v{D(qb)}, v{Sb(0,0,qb)+3}', 1, 0))
    interleave(mf0, f0)
    k('s_waitcnt lgkmcnt(0)')
    mf1 = [qk(1, kb, ds, qb, czero=True) for kb in range(2) for ds in range(4) for qb in range(4)]
    vn = [ins for gp, ins, tag in build_iter(0)[2] if tag[0] == 'Vn']
    f1 = [(x, 1, 0) for x in vn]
    for (M, kb, mg) in ((0, 1, 8), (1, 0, 20)):
        for h in range(2):
            for qb in range(4):
                f1.append((f'v_max3_f32 v{D(qb)}, v{D(qb)}, v{Sb(M,kb,qb)+2*h}, v{Sb(M,kb,qb)+2*h+1}', 1, mg + qb // 2))
    for sw in ('16', '32'):
        for qb in range(4): f1.append((f'v_mov_b32 v{X(qb)}, v{D(qb)}', 1, 0))
        for qb in range(4): f1.append((f'v_permlane{sw}_swap_b32 v{D(qb)}, v{X(qb)}', 1, 0))
        for qb in range(4): f1.append((f'v_max_f32 v{D(qb)}, v{D(qb)}, v{X(qb)}', 1, 0))
    for r in range(4):
        for qb in range(4): f1.append((f'v_sub_f32 v{NM(qb)+r}, s9, v{D(qb)}', 1, 0))
    interleave(mf1, f1)
    for M in range(2):
        for kb in range(2):
            for qb in range(4):
                for h in range(2):
                    r = Sb(M, kb, qb) + 2 * h
                    k(f'v_pk_add_f32 {R2("v", r)}, {R2("v", r)}, {R2("v", NM(qb))}')
    for i in range(0, 32, 2):
        k(E(0, i)); k(E(0, i + 1))
        if i: k(C(0, (i >> 1) - 1))
    k('s_nop 0')
    k(C(0, 15))
    for i in range(32):
        if E0 + 2 * i < NG: k(E(1, i)); k('s_nop 0')
        if i & 1 and E0 + 2 * i + 1 < NG: k(C(1, i >> 1))
    k(f's_mov_b32 s{sCNT}, 7')
    k(f's_waitcnt lgkmcnt({build_iter(1)[1]})')
    k.stamp(3)
    k(f'{Lloop}:')
    for N in range(1, 9):
        ins, w0, _ = build_iter(N)
        cnt = 0
        for idx, x in enumerate(ins):
            if x.startswith(MF):
                if N == 7 and cnt == 36:
                    k(f's_cbranch_scc1 {Ltail}')
                    tail_rest = ins[idx:]
                cnt += 1
            if N == 7 and 33 <= cnt <= 36: assert not (x.startswith('s_') and not x.startswith('s_waitcnt')), x
            k(x)
    k(f's_branch {Lloop}')
    k(f'{Ltail}:')
    k.stamp(4)
    N = 7
    k(f'buffer_store_dwordx4 a[192:195], v{vD0}, s[72:75], s{sST0} offen')
    for db in range(8):
        for hf in range(2): k(vread(N, db, hf))
    for x in tail_rest:
        if x.startswith('v_exp') and any(x == E(N, i) for i in range(32)): k(x); k('s_nop 0')
        elif x.startswith('v_cvt') and any(x == C(N, j) for j in range(16)): k(x)
    k('s_waitcnt lgkmcnt(0)')
    k('s_nop 0')
    red = [f'v_add_f32_dpp v{r}, v{r}, v{r} row_ror:8 row_mask:0xf bank_mask:0xf' for r in GA]
    red += [f'v_permlane16_swap_b32 v{GA[j]}, v{GA[j+1]}' for j in range(0, 8, 2)]
    red += [f'v_add_f32 v{GA[j]}, v{GA[j]}, v{GA[j+1]}' for j in range(0, 8, 2)]
    red += [f'v_and_b32 v{vGA}, 7, v1', f'v_lshrrev_b32 v{vGB}, 4, v1']
    red += [f'v_permlane32_swap_b32 v{GA[0]}, v{GA[2]}', f'v_permlane32_swap_b32 v{GA[4]}, v{GA[6]}']
    red += [f'v_add_f32 v{GA[0]}, v{GA[0]}, v{GA[2]}', f'v_add_f32 v{GA[4]}, v{GA[4]}, v{GA[6]}']
    red += [f'v_lshl_add_u32 v{vGA}, v{vGA}, 3, v{vGB}', f'v_lshlrev_b32 v{vGA}, 2, v{vGA}']
    red += [f'buffer_store_dword v{GA[0]}, v{vGA}, s[68:71], s43 offen', f'buffer_store_dword v{GA[4]}, v{vGA}, s[68:71], s43 offen offset:16']
    for qb in range(4): k(ones(N, qb))
    for db in range(8):
        for qb in range(4):
            k(pv(N, db, qb))
            if red: k(red.pop(0))
    assert not red
    k(f'v_max3_f32 v{vT}, v{Lb(0)}, v{Lb(1)}, v{Lb(2)}')
    k(f'v_max_f32 v{vT}, v{vT}, v{Lb(3)}')
    k(f'v_cmp_nge_f32 vcc, s{sTH}, v{vT}')
    k(f's_cbranch_vccnz {Lslow}')
    k('s_mov_b64 s[66:67], -1')
    k(f'{Lepi}:')
    k('s_setreg_imm32_b32 hwreg(HW_REG_MODE, 4, 2), 3')
    RC = vE
    for qb in range(4):
        k(f'v_rcp_f32 v{RC+2*qb}, v{Lb(qb)}')
        k('s_nop 0')
        k(f'v_mov_b32 v{RC+2*qb+1}, v{RC+2*qb}')
    k('v_lshlrev_b32 v6, 4, v1')
    k(f's_lshl_b32 s48, s{sHEAD}, 9')
    k(f's_add_u32 s48, s48, s{sMB0}')
    k('s_lshl_b32 s48, s48, 10')
    n = 0
    for u in range(4):
        for qb in range(4):
            X = vS + (n % 4) * 8; D = vP + (n % 4) * 4; n += 1
            for h in range(2):
                a = aO + ((2 * u + h) * 4 + qb) * 4
                for r in range(4): k(f'v_accvgpr_read_b32 v{X+4*h+r}, a{a+r}')
            if u == 0:
                k(f'v_max3_f32 v{vT+1}, abs(v{X}), abs(v{X+1}), abs(v{X+2})')
                k(f'v_max3_f32 v{vT+1}, v{vT+1}, abs(v{X+3}), abs(v{X+4})')
                k(f'v_max3_f32 v{vT+1}, v{vT+1}, abs(v{X+5}), abs(v{X+6})')
                k(f'v_mov_b32 v{vT}, v{vT+1}' if qb == 0 else f'v_min_f32 v{vT}, v{vT}, v{vT+1}')
            for j in range(4): k(f'v_pk_mul_f32 {R2("v", X+2*j)}, {R2("v", X+2*j)}, {R2("v", RC+2*qb)}')
            for j in range(4): k(f'v_cvt_pk_bf16_f32 v{D+j}, v{X+2*j}, v{X+2*j+1}')
            k(f'buffer_store_dwordx4 {R4("v", D)}, v6, s[28:31], s48 offen offset:{qb*1024}')
        if u == 0:
            k(f'v_cmp_gt_f32 vcc, 0x{ufl:08x}, v{vT}')
            k('s_and_b64 vcc, vcc, s[66:67]')
            k(f's_cbranch_vccnz {Lslow}')
        if u < 3: k('s_add_u32 s48, s48, 131072')
    k.stamp_out(kidx)
    k(f'{Lend}:')
    k('s_endpgm')

    k(f'{Lslow}:')
    k('s_waitcnt vmcnt(0)')
    k('s_mov_b64 s[66:67], 0')
    MX = vL + 16
    vKG = vL + 20
    vVP = vL + 22
    vVG = vL + 30
    k(f'v_and_b32 v{tmp}, 15, v1')
    k(f'v_lshrrev_b32 v{tmp+1}, 4, v1')
    k(f'v_lshlrev_b32 v{vKG}, 8, v{tmp}')
    k(f'v_lshl_add_u32 v{vKG}, v{tmp+1}, 4, v{vKG}')
    k(f'v_add_u32 v{vKG+1}, 4096, v{vKG}')
    k(f's_lshl_b32 s48, s{sWAVE}, 13')
    k(f's_add_u32 s48, s48, {SL(8)}')
    k(f's_sub_u32 s49, s48, 0x10000')
    for db in range(8): k(f'v_add_u32 v{vVP+db}, s49, v{vVA+db}')
    for j in range(2): k(f'v_subrev_u32 v{vVG+j}, s{sM0}, v{vVD+j}')
    for qb in range(4): k(f'v_mov_b32 v{MX+qb}, 0xff7fffff')
    for i in range(16): k(f'v_mov_b32 v{vNM+i}, 0')
    k(f's_mov_b32 s{sFIRST}, 0')
    Lp = k.label('spass'); Lu = k.label('sunit'); Lp1 = k.label('sp1'); Lnx = k.label('snext'); Lnov = k.label('snov')
    k(f'{Lp}:')
    k(f's_mov_b32 s{sK}, 0')
    k(f'{Lu}:')
    for kb in range(2):
        for ds in range(4):
            k(f'buffer_load_dwordx4 {R4("a", Kfr(kb, ds))}, v{vKG+kb}, s[20:23], s{sK} offen offset:{ds*64}')
    k(f's_cmp_eq_u32 s{sFIRST}, 0')
    k(f's_cbranch_scc1 {Lnov}')
    for half in range(2):
        k(f's_add_u32 m0, s48, {half*4096}')
        k(f's_add_u32 s49, s{sK}, {half*4096}')
        for n in range(4):
            k(f'buffer_load_dwordx4 v{vVG+(n&1)}, s[24:27], s49 offen offset:{n*1024} lds')
    k(f'{Lnov}:')
    k('s_waitcnt vmcnt(0)')
    for kb in range(2):
        for ds in range(4):
            for qb in range(4): k(qk(0, kb, ds, qb))
    k('s_nop 7')
    k(f's_cmp_eq_u32 s{sFIRST}, 0')
    k(f's_cbranch_scc0 {Lp1}')
    for qb in range(4):
        regs = [Sb(0, kb, qb) + r for kb in range(2) for r in range(4)]
        for i in range(0, 8, 2): k(f'v_max3_f32 v{MX+qb}, v{MX+qb}, v{regs[i]}, v{regs[i+1]}')
    k(f's_branch {Lnx}')
    k(f'{Lp1}:')
    for db in range(8):
        for hf in range(2):
            k(f'ds_read_b64_tr_b16 {R2("a", Vfr(db) + 2*hf)}, v{vVP+db} offset:{hf*4096}')
    for i in range(0, 32, 2):
        k(E(0, i)); k(E(0, i + 1)); k('s_nop 0'); k(C(0, i >> 1))
    k('s_waitcnt lgkmcnt(0)')
    k('s_nop 0')
    for qb in range(4): k(ones(0, qb))
    for db in range(8):
        for qb in range(4): k(pv(0, db, qb))
    k(f'{Lnx}:')
    k(f's_add_u32 s{sK}, s{sK}, 8192')
    k(f's_cmp_lt_u32 s{sK}, 524288')
    k(f's_cbranch_scc1 {Lu}')
    k('s_nop 7')
    k(f's_cmp_eq_u32 s{sFIRST}, 0')
    k(f's_cbranch_scc0 {Lepi}')
    for qb in range(4):
        xmax(MX + qb, vT)
        for r in range(4): k(f'v_sub_f32 v{NM(qb)+r}, 0, v{MX+qb}')
    for i in range(16): k(f'v_mov_b32 v{vL+i}, 0')
    for i in range(128): k(f'v_accvgpr_write_b32 a{aO+i}, 0')
    k(f's_mov_b32 s{sFIRST}, 1')
    k(f's_branch {Lp}')
    k.noreplay = {Lepi, Lp}
    return k
```

```python
from gen_gk import *

import sys
FSH = 7
SLEEP = 4
for a in sys.argv:
    if a.startswith('sleep='): SLEEP = int(a[6:])
LATE = 'early' not in sys.argv
sWS, sB1, sOUT, sB2, sWAVE = 4, 6, 8, 10, 44
vW = 8

def sentinel(k, regs, acc):
    k(f'v_max3_u32 v{acc}, v{regs[0]}, v{regs[1]}, v{regs[2]}')
    i = 3
    while i + 1 < len(regs):
        k(f'v_max3_u32 v{acc}, v{acc}, v{regs[i]}, v{regs[i+1]}'); i += 2
    if i < len(regs): k(f'v_max_u32 v{acc}, v{acc}, v{regs[i]}')

def publish(k, s_off):
    L = k.label('pub')
    k('s_waitcnt vmcnt(0)')
    k('s_barrier')
    k(f's_cmp_lg_u32 s{sWAVE}, 0')
    k(f's_cbranch_scc1 {L}')
    k('v_mov_b32 v3, 0')
    k('v_mov_b32 v4, 1')
    k(f'buffer_store_dword v4, v3, s[68:71], s{s_off} offen sc1')
    k(f'{L}:')

def await_flags(k, s_off, n):
    L = k.label('aw'); Ld = k.label('awd')
    k(f's_cmp_lg_u32 s{sWAVE}, 0')
    k(f's_cbranch_scc1 {Ld}')
    k(f'v_and_b32 v3, {n-1}, v1')
    k(f'v_lshlrev_b32 v3, {FSH}, v3')
    k('s_mov_b32 s53, 0x80000')
    k(f'{L}:')
    if SLEEP: k(f's_sleep {SLEEP}')
    k(f'buffer_load_dword v4, v3, s[68:71], s{s_off} offen sc1')
    k('s_sub_u32 s53, s53, 1')
    k('s_cselect_b64 s[58:59], 0, -1')
    k('s_waitcnt vmcnt(0)')
    k('v_cmp_eq_u32 vcc, 0, v4')
    k('s_and_b64 vcc, vcc, s[58:59]')
    k(f's_cbranch_vccnz {L}')
    k(f'{Ld}:')
    k('s_barrier')

def coords_128(k):
    k('s_bfe_u32 s40, s2, 0x10002')
    k('s_bfe_u32 s42, s2, 0x10001')
    k('s_lshl_b32 s42, s42, 3')
    k('s_lshr_b32 s43, s2, 5')
    k('s_add_u32 s42, s42, s43')
    k('s_and_b32 s43, s2, 1')
    k('s_lshl_b32 s43, s43, 2')
    k('s_bfe_u32 s41, s2, 0x20003')
    k('s_add_u32 s43, s43, s41')
    k('s_lshl_b32 s47, s42, 3')
    k(f's_lshl_b32 s48, s{sWAVE}, 1')
    k('s_add_u32 s47, s47, s48')

def gen_back(kidx=3):
    S = 8; MODL = S * 16384
    k = Kern('oproj_kernel', (256, 1, 1), (256, 1, 1), MODL + 12288, vgpr=256, agpr=220, sgpr=78)
    k.plain_stores = True
    Lend = k.label('end')
    k('s_cmp_ge_u32 s2, 256')
    k(f's_cbranch_scc1 {Lend}')
    k.stamp(0)
    k(f's_load_dwordx2 s[{sWS}:{sWS+1}], s[0:1], {A_WS}')
    k(f's_load_dwordx2 s[28:29], s[0:1], {A_X}')
    k(f's_load_dwordx2 s[{sB1}:{sB1+1}], s[0:1], {A_B1}')
    k(f's_load_dwordx2 s[{sOUT}:{sOUT+1}], s[0:1], {A_OUT}')
    k(f's_load_dwordx2 s[{sB2}:{sB2+1}], s[0:1], {A_B2}')
    k('v_and_b32 v1, 63, v0')
    k('v_lshrrev_b32 v2, 6, v0')
    k('s_nop 0')
    k(f'v_readfirstlane_b32 s{sWAVE}, v2')
    NA, NB, LP, RA, PD = 8, 2, 256, 8, 4
    coords_128(k)
    vX = 12; vA = 16; vA2 = 24; tmp = 32
    k(f's_lshl_b32 s52, s{sWAVE}, 12')
    k(f'v_lshl_add_u32 v{vW}, v1, 4, s52')
    wd = [(vW, n * 1024) for n in range(4)]
    k('s_lshl_b32 s48, s47, 10')
    k(f'v_lshl_add_u32 v{vX}, v1, 4, s48')
    k(f'v_add_u32 v{vX+1}, 0x20000, v{vX}')
    k('s_lshl_b32 s50, s43, 20')
    k('s_lshl_b32 s48, s40, 19')
    k('s_add_u32 s50, s50, s48')
    k('s_lshl_b32 s51, s40, 23')
    k('s_waitcnt lgkmcnt(0)')
    srd_off(k, 12, sWS, WS_WO, 8 * MB)
    srd_off(k, 16, sWS, WS_O, 16 * MB)
    acc0 = 64; XR = 128
    ext = {}
    g = Gemm(k, NA, NB, LP, S, PD, RA, 32,
             acc=lambda a, b: R4('v', acc0 + (a * NB + b) * 4),
             aring=lambda s: ('a', 16 * S + 4 * s),
             bring=lambda st, ks, b: R4('a', st * 16 + (ks * NB + b) * 4),
             vA=[[vA + a for a in range(NA)], [vA2 + a for a in range(NA)]], lds_base=0,
             srdW=12, sW=50, wpitch=256, wdma=wd, sM0=52, srdX=16, sX=51, vX=[vX, vX + 1], wait_every=2,
             extra_loads=lambda t: ext.get(t, []), xmod=' sc1')
    g.make_sched(3, [1, 2, 2, 2, 2])
    g.prologue_loads()
    tr_addr_regs(k, vA, NA, LP, tmp, 1)
    for a in range(NA): k(f'v_add_u32 v{vA2+a}, 0x10000, v{vA+a}')
    fin = mod_finalize(k, sWS, 56, 40, 1)
    g.vq += ['m'] * 4
    rec = Kern('rec', None, None, 0, 0); fin(rec)
    ext[2] = [[x] for x in rec.lines]
    Ltail = k.label('tail')
    k.code_srd(32, Ltail)
    k('s_lshr_b32 s55, s2, 3')
    k('s_lshl_b32 s55, s55, 12')
    k('v_lshlrev_b32 v52, 4, v0')
    k.srd(28, 28, 4 * MB)
    k.srd(72, sB2, 2048)
    srd_off(k, 68, sWS, WS_FL, 768 << FSH)
    srd_off(k, 24, sWS, WS_P, 8 * MB)
    srd_off(k, 20, sWS, WS_MOD32 + 8192, 12288)
    srd_off(k, 36, sWS, WS_X1, 4 * MB)
    srd_off(k, 64, sWS, WS_Y, 4 * MB)
    k('v_and_b32 v4, 15, v1')
    k('v_lshrrev_b32 v5, 4, v1')
    k('v_lshlrev_b32 v6, 11, v4')
    k('v_lshl_add_u32 v7, v5, 4, v6')
    k('v_lshlrev_b32 v3, 4, v1')
    k('s_lshl_b32 s48, s47, 15')
    k('s_lshl_b32 s49, s43, 8')
    k('s_add_u32 s48, s48, s49')
    k('s_lshl_b32 s49, s40, 22')
    k('s_add_u32 s48, s48, s49')
    k('s_add_u32 s49, s48, 32768')
    k('s_lshl_b32 s46, s42, 4')
    k('s_lshl_b32 s45, s43, 1')
    k('s_add_u32 s46, s46, s45')
    k('s_add_u32 s46, s46, s40')
    k('s_lshl_b32 s54, s46, 14')
    k(f's_add_u32 s45, s54, {4*MB}')
    k(f's_mul_i32 s41, s{sWAVE}, 3072')
    ext[25] = [['buffer_load_dwordx4 v[48:51], v52, s[32:35], s55 offen ; pf'],
               ['buffer_load_dwordx4 v[48:51], v52, s[72:75], 0 offen ; pf']]
    ext[26] = [[f'buffer_load_dwordx4 {R4("v", XR + 4*j)}, v{vW}, s[28:31], s54 offen offset:{j*1024}'] for j in range(4)]
    ext[28] = [[f's_add_u32 m0, s41, {MODL}'], ['s_nop 0']] + \
              [[f'buffer_load_dwordx4 v3, s[20:23], s41 offen offset:{j*1024} sc1 lds'] for j in range(3)]
    g.emit(loop_sreg=53)
    k.stamp(1)
    k(f'{Ltail}:')
    k('s_nop 5')
    n = 0
    for u in range(4):
        ps = []
        for b in range(NB):
            p = 144 + n * 4; n += 1
            ps.append(p)
            A0 = acc0 + ((2 * u) * NB + b) * 4; A1 = acc0 + ((2 * u + 1) * NB + b) * 4
            k(f'v_cvt_pk_bf16_f32 v{p}, v{A0}, v{A0+1}')
            k(f'v_cvt_pk_bf16_f32 v{p+1}, v{A0+2}, v{A0+3}')
            k(f'v_cvt_pk_bf16_f32 v{p+2}, v{A1}, v{A1+1}')
            k(f'v_cvt_pk_bf16_f32 v{p+3}, v{A1+2}, v{A1+3}')
        for sw in ('32', '16'):
            for p in ps:
                k(f'v_permlane{sw}_swap_b32 v{p}, v{p+2}')
                k(f'v_permlane{sw}_swap_b32 v{p+1}, v{p+3}')
        for b, p in enumerate(ps):
            k(f'buffer_store_dwordx4 {R4("v", p)}, v7, s[24:27], s{48+b} offen offset:{u*64} sc1')
    k('s_waitcnt vmcnt(8)')
    k('s_barrier')
    GA, SB, CB = 176, 192, 208
    X = [64, 80]
    k(f'v_add_u32 v10, {MODL}, v3')
    for base, sec in ((GA, 0), (SB, 1), (CB, 2)):
        for h in range(2):
            for q in range(2):
                k(f'ds_read_b128 {R4("v", base + 8*h + 4*q)}, v10 offset:{sec*4096 + h*2048 + q*1024}')
    for r in range(2):
        unpack8(k, X[r], XR + 8 * r); unpack8(k, X[r] + 8, XR + 8 * r + 4)
    k('s_and_b32 s40, s2, 7')
    k('s_lshr_b32 s41, s2, 3')
    k('s_lshr_b32 s42, s40, 2')
    k('s_lshl_b32 s42, s42, 2')
    k('s_lshr_b32 s43, s41, 3')
    k('s_add_u32 s42, s42, s43')
    k('s_and_b32 s43, s40, 3')
    k('s_lshl_b32 s43, s43, 3')
    k('s_and_b32 s41, s41, 7')
    k('s_add_u32 s43, s43, s41')
    k(f's_cmp_eq_u32 s{sWAVE}, 3')
    k('s_cselect_b32 s41, 0x7ff00000, 0')
    k(f'v_add_u32 v{vW+1}, s41, v{vW}')
    k('s_mul_i32 s62, s43, 224')
    k('s_lshl_b32 s50, s62, 10')
    srd_off(k, 12, sWS, WS_W1, 1024 * 7168)
    k.srd(28, sB1, 7168)
    S1 = 6; BP = 40; BI = 64; acc1 = 96
    ext1 = {}
    g1 = Gemm(k, 7, 4, 224, S1, 4, 7, 16,
              acc=lambda a, b: R4('v', acc1 + (a * 4 + b) * 4),
              aring=lambda s: ('a', 32 * S1 + 4 * s),
              bring=lambda st, ks, b: R4('a', st * 32 + (ks * 4 + b) * 4),
              vA=[[vA] * 7, [vA + 1] * 7], lds_base=32768, aimm=32, tile_bytes=16384,
              srdW=12, sW=50, wpitch=224, wdma=[(vW, 0), (vW, 1024), (vW + 1, 2048), (vW + 1, 3072)],
              sM0=52, srdX=64, sX=51, vX=[vX, vX + 1], cinit=lambda a, b: R4('v', BI + 4 * a),
              extra_loads=lambda t: ext1.get(t, []), pre_w=True, xmod=' sc1')
    k('s_mov_b32 s60, 0x3a800000')
    k('s_mov_b32 s61, 0xba800000')
    k('s_mov_b32 s53, 0x40000')
    k('s_waitcnt lgkmcnt(0)')
    Lm = k.label('modchk'); Lmok = k.label('modok')
    k(f'{Lm}:')
    sentinel(k, list(range(GA, GA + 48)), 4)
    k('s_sub_u32 s53, s53, 1')
    k('s_cselect_b64 s[58:59], 0, -1')
    k('v_cmp_eq_u32 vcc, -1, v4')
    k('s_and_b64 vcc, vcc, s[58:59]')
    k(f's_cbranch_vccz {Lmok}')
    for j in range(12):
        k(f's_mov_b32 s41, {(j >> 2) * 4096}')
        k(f'buffer_load_dwordx4 {R4("v", GA + 4*j)}, v3, s[20:23], s41 offen offset:{(j & 3)*1024} sc1')
    k('s_waitcnt vmcnt(0)')
    k(f's_branch {Lm}')
    k(f'{Lmok}:')
    k('s_mov_b32 s53, 0x40000')
    k('s_waitcnt vmcnt(0)')
    RX = 224
    Lp = k.label('poll')
    k(f'{Lp}:')
    for kh in range(2):
        for j in range(4):
            k(f'buffer_load_dwordx4 {R4("v", RX + 16*kh + 4*j)}, v{vW}, s[24:27], s{54 if kh == 0 else 45} offen offset:{j*1024} sc1')
    k('s_sub_u32 s53, s53, 1')
    k('s_cselect_b64 s[58:59], 0, -1')
    k('s_waitcnt vmcnt(0)')
    sentinel(k, list(range(RX, RX + 32)), 4)
    k('v_cmp_eq_u32 vcc, -1, v4')
    k('s_and_b64 vcc, vcc, s[58:59]')
    k(f's_cbranch_vccnz {Lp}')
    k.stamp(2)
    streams = []
    for r in range(2):
        q = Kern('rec', None, None, 0, 0)
        U0, U1, T, PK = 96 + 16 * r, 144 + 16 * r, 32 + 4 * r, 128 + 8 * r
        unpack8(q, U0, RX + 8 * r); unpack8(q, U0 + 8, RX + 8 * r + 4)
        unpack8(q, U1, RX + 16 + 8 * r); unpack8(q, U1 + 8, RX + 16 + 8 * r + 4)
        x = X[r]
        for j in range(0, 16, 2): q(f'v_pk_add_f32 {R2("v", U0+j)}, {R2("v", U0+j)}, {R2("v", U1+j)}')
        for j in range(0, 16, 2): q(f'v_pk_fma_f32 {R2("v", x+j)}, {R2("v", U0+j)}, {R2("v", GA+j)}, {R2("v", x+j)}')
        for j in range(8): q(f'v_cvt_pk_bf16_f32 v{PK+j}, v{x+2*j}, v{x+2*j+1}')
        q(f'buffer_store_dwordx4 {R4("v", PK)}, v{vW}, s[36:39], s54 offen offset:{r*2048} sc1')
        q(f'buffer_store_dwordx4 {R4("v", PK+4)}, v{vW}, s[36:39], s54 offen offset:{r*2048+1024} sc1')
        ln_fast(q, x, T, 60)
        for j in range(0, 16, 2): q(f'v_pk_mul_f32 {R2("v", x+j)}, {R2("v", x+j)}, {R2("v", T)}')
        for j in range(0, 16, 2): q(f'v_pk_fma_f32 {R2("v", x+j)}, {R2("v", x+j)}, {R2("v", CB+j)}, {R2("v", SB+j)}')
        ln_fast(q, x, T, 60)
        for j in range(0, 16, 2): q(f'v_pk_mul_f32 {R2("v", x+j)}, {R2("v", x+j)}, {R2("v", T)}')
        for j in range(8): q(f'v_cvt_pk_bf16_f32 v{U0+j}, v{x+2*j}, v{x+2*j+1}')
        streams.append(q.lines)
    k('v_lshlrev_b32 v4, 3, v5')
    pre = [f'buffer_load_dwordx2 {R2("v", BP + 2*a)}, v4, s[28:31], s62 offen offset:{a*32}' for a in range(7)] + \
          ([] if LATE else [x for x in g1.wpreload() if x != 's_nop 0'])
    cnt = 0
    for a, b in zip(*streams):
        if a == 's_nop 1': k('s_nop 0'); continue
        if a == 's_nop 0': continue
        k(a); k(b)
        cnt += 1
        if cnt % 3 == 0 and pre: k(pre.pop(0))
    assert not pre
    k('v_lshrrev_b32 v5, 2, v1')
    k('v_mul_u32_u24 v5, 528, v5')
    k('v_and_b32 v6, 1, v1')
    k('v_lshl_add_u32 v5, v6, 8, v5')
    k('v_bfe_u32 v6, v1, 1, 1')
    k('v_lshl_add_u32 v5, v6, 3, v5')
    k('v_lshl_add_u32 v5, v2, 5, v5')
    for r in range(2):
        P = 96 + 16 * r
        k(f'ds_write_b64 v5, {R2("v", P)} offset:{16*r}')
        k(f'ds_write_b64 v5, {R2("v", P+2)} offset:{16*r+128}')
        k(f'ds_write_b64 v5, {R2("v", P+4)} offset:{16*r+16*528}')
        k(f'ds_write_b64 v5, {R2("v", P+6)} offset:{16*r+16*528+128}')
    k('v_lshrrev_b32 v6, 5, v0')
    k('v_and_b32 v7, 31, v0')
    k('v_mul_u32_u24 v5, 528, v6')
    k('v_lshl_add_u32 v5, v7, 4, v5')
    k('v_lshlrev_b32 v6, 17, v6')
    k('v_bfe_u32 v7, v0, 3, 2')
    k('v_lshl_add_u32 v6, v7, 8, v6')
    k('v_and_b32 v7, 7, v0')
    k('v_lshl_add_u32 v6, v7, 4, v6')
    k('s_lshr_b32 s48, s46, 1')
    k('s_lshl_b32 s48, s48, 10')
    k('s_and_b32 s49, s46, 1')
    k('s_lshl_b32 s49, s49, 7')
    k('s_add_u32 s48, s48, s49')
    k('s_waitcnt lgkmcnt(0)')
    k('s_barrier')
    for j in range(4): k(f'ds_read_b128 {R4("v", 144+4*j)}, v5 offset:{8*528*j}')
    for j in range(4):
        k(f's_waitcnt lgkmcnt({3-j})')
        k(f'buffer_store_dwordx4 {R4("v", 144+4*j)}, v6, s[64:67], s48 offen sc1')
        if j < 3: k(f's_add_u32 s48, s48, {8*131072}')
    k(f's_lshl_b32 s46, s46, {FSH}')
    k(f's_lshl_b32 s45, s42, {5+FSH}')
    k('s_lshl_b32 s47, s42, 4')
    k(f's_lshl_b32 s48, s{sWAVE}, 2')
    k('s_add_u32 s47, s47, s48')
    k('s_lshl_b32 s48, s47, 10')
    k(f'v_lshl_add_u32 v{vX}, v1, 4, s48')
    k(f'v_add_u32 v{vX+1}, 0x20000, v{vX}')
    k('s_mov_b32 s51, 0')
    k(f'v_lshrrev_b32 v{tmp}, 2, v1')
    k(f'v_mul_u32_u24 v{tmp}, 224, v{tmp}')
    k(f'v_and_b32 v{tmp+1}, 3, v1')
    k(f'v_lshl_add_u32 v{vA}, v{tmp+1}, 3, v{tmp}')
    k(f'v_add_u32 v{vA+1}, 0x10000, v{vA}')
    Lepi = k.label('epi')
    k.code_srd(32, Lepi)
    k('v_lshlrev_b32 v60, 4, v0')
    ext1[11] = [['buffer_load_dwordx4 v[56:59], v60, s[32:35], s55 offen ; pf']]
    publish(k, 46)
    k.stamp(3)
    if LATE:
        for x in g1.wpreload(): k(x)
    for a in range(7):
        for j in range(2):
            k(f'v_lshlrev_b32 v{BI+4*a+2*j}, 16, v{BP+2*a+j}')
            k(f'v_and_b32 v{BI+4*a+2*j+1}, 0xffff0000, v{BP+2*a+j}')
    await_flags(k, 45, 32)
    k.stamp(4)
    g1.make_sched(3, [2])
    g1.prologue_loads()
    g1.emit(loop_sreg=None)
    k.stamp(5)
    k(f'{Lepi}:')
    k('s_waitcnt vmcnt(0)')
    if not LATE: k('s_barrier')
    srd_off(k, 24, sWS, WS_HH, 2048 * 3584 * 2)
    k('s_and_b32 s62, s2, 1')
    k('s_lshl_b32 s62, s62, 2')
    k('s_bfe_u32 s63, s2, 0x20003')
    k('s_add_u32 s62, s62, s63')
    k('s_bfe_u32 s63, s2, 0x10002')
    k(f's_mul_i32 s50, s62, {3584*256}')
    k(f's_mul_i32 s63, s63, {1792*256}')
    k('s_add_u32 s50, s50, s63')
    srd_off(k, 12, sWS, WS_W2, 3584 * 2048)
    NT = 28; SP = 184
    send = []
    for q in range(4):
        send += [[f'v_cvt_pk_bf16_f32 v{SP+4*q+j}, v{acc0+8*q+2*j}, v{acc0+8*q+2*j+1}'] for j in range(4)]
    A = lambda a, b: acc0 + (a * NB + b) * 4
    g2 = Gemm(k, NA, NB, LP, S, PD, RA, NT,
              acc=lambda a, b: R4('v', A(a, b)),
              aring=lambda s: ('a', 16 * S + 4 * s),
              bring=lambda st, ks, b: R4('a', st * 16 + (ks * NB + b) * 4),
              vA=[[vA + a for a in range(NA)], [vA2 + a for a in range(NA)]], lds_base=0,
              srdW=12, sW=50, wpitch=256, wdma=wd, sM0=52, srdX=24, sX=51, vX=[vX, vX + 1], wait_every=2,
              extra_loads=lambda t: send if t == NT - 1 else [], pre_w=True, xmod=' sc1')
    c1 = -2.0 * math.log2(math.e) * math.sqrt(2.0 / math.pi); c2 = c1 * 0.044715
    C1, C2, ONE = 40, 42, 44
    for (r, v) in ((C1, c1), (C2, c2), (ONE, 1.0)):
        k(f'v_mov_b32 v{r}, 0x{f2u(v):08x}'); k(f'v_mov_b32 v{r+1}, 0x{f2u(v):08x}')
    k('v_lshlrev_b32 v6, 4, v1')
    k('s_mul_i32 s54, s43, 7')
    k('s_lshr_b32 s55, s54, 1')
    k('s_lshl_b32 s55, s55, 7')
    k('s_add_u32 s55, s55, s47')
    k('s_lshl_b32 s55, s55, 10')
    for j in range(1, 4): k(f's_add_u32 s{55+j}, s55, {j*131072}')
    T = 48
    Lodd = k.label('odd'); Ljoin = k.label('join')
    k('s_bitcmp1_b32 s43, 0')
    k(f's_cbranch_scc1 {Lodd}')
    for odd in range(2):
        if odd: k(f'{Lodd}:')
        pre = [] if LATE else [x for x in g2.wpreload() if x != 's_nop 0']
        def gelu_tile(Ar, dst):
            for h in range(2):
                x = R2('v', Ar + 2 * h); t = R2('v', T + 2 * h)
                k(f'v_pk_mul_f32 {t}, {x}, {x}')
                k(f'v_pk_fma_f32 {t}, {t}, {R2("v", C2)}, {R2("v", C1)}')
                k(f'v_pk_mul_f32 {t}, {t}, {x}')
            if pre: k(pre.pop(0))
            for r in range(4): k(f'v_exp_f32 v{T+r}, v{T+r}')
            for h in range(2):
                t = R2('v', T + 2 * h)
                k(f'v_pk_add_f32 {t}, {t}, {R2("v", ONE)}')
            if pre: k(pre.pop(0))
            for r in range(4): k(f'v_rcp_f32 v{T+r}, v{T+r}')
            for h in range(2):
                x = R2('v', Ar + 2 * h); t = R2('v', T + 2 * h)
                k(f'v_pk_mul_f32 {x}, {x}, {t}')
            for h in range(2):
                k(f'v_cvt_pk_bf16_f32 v{dst+h}, v{Ar+2*h}, v{Ar+2*h+1}')
        n = 0
        order = [(b, blk) for b in range(4) for blk in range(4)]
        half = 0 if odd else 3
        order.sort(key=lambda x: x[1] != half)
        for b, blk in order:
            aa = [a for a in range(7) if (a + odd) >> 1 == blk]
            D = 56 + (n % 2) * 4; n += 1
            for a in aa:
                gelu_tile(acc1 + (a * 4 + b) * 4, D + 2 * ((a + odd) & 1))
            if len(aa) == 2:
                k(f'buffer_store_dwordx4 {R4("v", D)}, v6, s[24:27], s{55+blk} offen offset:{b*1024} sc1')
            else:
                hf = (aa[0] + odd) & 1
                k(f'buffer_store_dwordx2 {R2("v", D + 2*hf)}, v6, s[24:27], s{55+blk} offen offset:{b*1024 + 8*hf} sc1')
        assert not pre
        if not odd: k(f's_branch {Ljoin}')
    k(f'{Ljoin}:')
    k('s_lshl_b32 s46, s42, 5')
    k('s_add_u32 s46, s46, s43')
    k(f's_lshl_b32 s46, s46, {FSH}')
    k(f's_add_u32 s57, s46, {256 << FSH}')
    coords_128(k)
    k('s_lshr_b32 s45, s42, 1')
    k(f's_lshl_b32 s45, s45, {5+FSH}')
    k(f's_lshl_b32 s46, s40, {4+FSH}')
    k('s_add_u32 s45, s45, s46')
    k(f's_add_u32 s60, s45, {256 << FSH}')
    k('s_lshl_b32 s48, s47, 10')
    k(f'v_lshl_add_u32 v{vX}, v1, 4, s48')
    k(f'v_add_u32 v{vX+1}, 0x20000, v{vX}')
    k(f's_mul_i32 s51, s40, {56*131072}')
    k('s_xor_b32 s45, s40, 1')
    k('s_lshl_b32 s45, s45, 2')
    tr_addr_regs(k, vA, NA, LP, tmp, 1, xor_s=45)
    for a in range(NA): k(f'v_add_u32 v{vA2+a}, 0x10000, v{vA+a}')
    srd_off(k, 16, sWS, WS_XB, 4 * MB)
    k('s_lshl_b32 s55, s2, 14')
    k('s_xor_b32 s56, s55, 0x10000')
    k.srd(20, sOUT, 4 * MB)
    srd_off(k, 28, sWS, WS_MOD32 + 5 * 4096, 4096)
    k('v_and_b32 v4, 15, v1')
    k('v_lshrrev_b32 v5, 4, v1')
    k('v_lshlrev_b32 v6, 11, v4')
    k('v_lshl_add_u32 v7, v5, 4, v6')
    k('s_lshl_b32 s46, s43, 1')
    k('s_add_u32 s46, s46, s40')
    k('s_lshl_b32 s48, s47, 15')
    k('s_lshl_b32 s49, s46, 7')
    k('s_add_u32 s48, s48, s49')
    k('s_add_u32 s49, s48, 32768')
    k('v_lshlrev_b32 v10, 5, v5')
    k('v_lshlrev_b32 v11, 4, v5')
    k('s_lshl_b32 s54, s46, 8')
    k('s_lshl_b32 s61, s46, 7')
    publish(k, 57)
    k.stamp(6)
    if LATE:
        for x in g2.wpreload(): k(x)
    await_flags(k, 60, 16)
    k.stamp(7)
    XR, GR, BR, RX, UB = 32, 48, 128, 136, 168
    g2.make_sched(5, [2])
    g2.prologue_loads()
    for b in range(NB):
        for u in range(2):
            k(f'buffer_load_dwordx4 {R4("v", XR + (b*2+u)*4)}, v7, s[36:39], s{48+b} offen offset:{u*64} sc1')
    gate = [f'buffer_load_dwordx4 {R4("v", GR + (u*2+h)*4)}, v10, s[28:31], s54 offen offset:{u*128 + h*16} sc1' for u in range(2) for h in range(2)]
    for x in gate: k(x)
    for u in range(2):
        k(f'buffer_load_dwordx4 {R4("v", BR + u*4)}, v11, s[72:75], s61 offen offset:{u*64}')
    g2.vq += ['e'] * 10
    g2.emit(loop_sreg=53)
    for q in range(4): k(f'buffer_store_dwordx4 {R4("v", SP+4*q)}, v{vW}, s[16:19], s55 offen offset:{q*1024} sc1')
    for u in range(2):
        for j in range(4):
            k(f'v_lshlrev_b32 v{UB+8*u+2*j}, 16, v{BR+4*u+j}')
            k(f'v_and_b32 v{UB+8*u+2*j+1}, 0xffff0000, v{BR+4*u+j}')
    for i in range(16):
        k(f'v_lshlrev_b32 v{acc0+2*i}, 16, v{XR+i}')
        k(f'v_and_b32 v{acc0+2*i+1}, 0xffff0000, v{XR+i}')
    k('s_mov_b32 s53, 0x40000')
    Lg = k.label('gchk'); Lgok = k.label('gok')
    k(f'{Lg}:')
    sentinel(k, list(range(GR, GR + 16)), 4)
    k('s_sub_u32 s53, s53, 1')
    k('s_cselect_b64 s[58:59], 0, -1')
    k('v_cmp_eq_u32 vcc, -1, v4')
    k('s_and_b64 vcc, vcc, s[58:59]')
    k(f's_cbranch_vccz {Lgok}')
    for x in gate: k(x)
    k('s_waitcnt vmcnt(0)')
    k(f's_branch {Lg}')
    k(f'{Lgok}:')
    k('s_mov_b32 s53, 0x40000')
    k('s_waitcnt vmcnt(0)')
    Lp2 = k.label('poll')
    k(f'{Lp2}:')
    for q in range(4):
        k(f'buffer_load_dwordx4 {R4("v", RX + 4*q)}, v{vW}, s[16:19], s56 offen offset:{q*1024} sc1')
    k('s_sub_u32 s53, s53, 1')
    k('s_cselect_b64 s[58:59], 0, -1')
    k('s_waitcnt vmcnt(0)')
    sentinel(k, list(range(RX, RX + 16)), 4)
    k('v_cmp_eq_u32 vcc, -1, v4')
    k('s_and_b64 vcc, vcc, s[58:59]')
    k(f's_cbranch_vccnz {Lp2}')
    for i in range(16):
        o = acc0 + 32 + 2 * i; t = RX + 16 + 2 * (i % 4)
        k(f'v_lshlrev_b32 v{t}, 16, v{RX+i}')
        k(f'v_and_b32 v{t+1}, 0xffff0000, v{RX+i}')
        k(f'v_pk_add_f32 {R2("v", o)}, {R2("v", o)}, {R2("v", t)}')
    k('s_nop 0')
    for sw in ('32', '16'):
        for b in range(NB):
            for u in range(2):
                for r in range(4): k(f'v_permlane{sw}_swap_b32 v{A(4+2*u, b)+r}, v{A(5+2*u, b)+r}')
    for b in range(NB):
        for u in range(2):
            P = RX + (b * 2 + u) * 4
            for h in range(2):
                o = A(4 + 2 * u + h, b)
                for j in range(2):
                    x = R2('v', o + 2 * j)
                    k(f'v_pk_add_f32 {x}, {x}, {R2("v", UB+8*u+4*h+2*j)}')
                    k(f'v_pk_fma_f32 {x}, {x}, {R2("v", GR+(u*2+h)*4+2*j)}, {R2("v", acc0+(b*2+u)*8+4*h+2*j)}')
                for j in range(2): k(f'v_cvt_pk_bf16_f32 v{P+2*h+j}, v{o+2*j}, v{o+2*j+1}')
            k(f'buffer_store_dwordx4 {R4("v", P)}, v7, s[20:23], s{48+b} offen offset:{u*64} sc1')
    k.stamp_out(kidx)
    k(f'{Lend}:')
    k('s_endpgm')
    k.noreplay = {Lm, Lg}
    return k
```

```python
from gen_small import *
WS_MP = 65536
WS_SC = 49152
WS_FL = 655360
WS_MP2 = 262144

CPF = True
def R4(kind, i): return f'{kind}[{i}:{i+3}]'
def R2(kind, i): return f'{kind}[{i}:{i+1}]'

def gemv_body(k, s_unit, nunits_x, colgrp0, nthreads, Lend):
    nsub = nthreads // 256
    k(f's_and_b32 s20, s{s_unit}, 7')
    k(f's_lshr_b32 s21, s{s_unit}, 3')
    k('s_and_b32 s22, s21, 3')
    k('s_lshr_b32 s21, s21, 2')
    k(f's_mul_i32 s20, s20, {nunits_x // 4}')
    k('s_add_u32 s20, s20, s21')
    if nsub == 2: k('s_lshl_b32 s20, s20, 1')
    k(f's_add_u32 s20, s20, {colgrp0}')
    k('v_and_b32 v5, 255, v0')
    k('v_lshrrev_b32 v1, 2, v5')
    k('v_and_b32 v2, 3, v0')
    k('s_mov_b32 s23, 12288')
    k('v_mul_lo_u32 v3, v1, s23')
    k('v_lshl_add_u32 v3, v2, 4, v3')
    if nsub == 2:
        k('v_lshrrev_b32 v6, 8, v0')
        k('v_lshl_add_u32 v3, v6, 6, v3')
    k('v_lshlrev_b32 v4, 1, v1')
    k(f's_mul_i32 s24, s22, {256*12288}')
    k('s_lshl_b32 s21, s20, 6')
    k('s_add_u32 s21, s21, s24')
    k('s_lshl_b32 s24, s22, 9')
    k('s_waitcnt lgkmcnt(0)')
    k.srd(12, 6, 1024 * 6144 * 2)
    k.srd(16, 4, 2048)
    for p in range(4):
        k(f'buffer_load_ushort v{40+p}, v4, s[16:19], s24 offen offset:{p*128}')
    for p in range(4):
        k(f'buffer_load_dwordx4 v[{16+4*p}:{16+4*p+3}], v3, s[12:15], s21 offen')
        if p < 3: k(f's_add_u32 s21, s21, {64*12288}')

def gemv_finish(k, nthreads, Lend, npf=0, table=False):
    k('s_mov_b32 s23, 0xbfb8aa3b')
    k(f's_waitcnt vmcnt({4+npf})')
    for p in range(4): k(f'v_lshlrev_b32 v{40+p}, 16, v{40+p}')
    for p in range(4): k(f'v_mul_f32 v{44+p}, s23, v{40+p}')
    for p in range(4): k(f'v_exp_f32 v{44+p}, v{44+p}')
    for p in range(4): k(f'v_add_f32 v{44+p}, 1.0, v{44+p}')
    for p in range(4): k(f'v_rcp_f32 v{44+p}, v{44+p}')
    for p in range(4): k(f'v_mul_f32 v{40+p}, v{40+p}, v{44+p}')
    round_pair(k, 40, 41, 44); round_pair(k, 42, 43, 45)
    if table:
        srd_off(k, 32, 8, WS_SC, 4096)
        k('s_lshl_b32 s26, s22, 10')
        k('s_cmp_eq_u32 s20, 0')
        k('s_cselect_b32 s26, s26, 0x10000')
        k('v_lshlrev_b32 v7, 2, v1')
        for p in range(4): k(f'buffer_store_dword v{40+p}, v7, s[32:35], s26 offen offset:{p*256}')
        npf += 4
        srd_off(k, 40, 8, WS_MOD32 + 8192, 16384)
        k('s_lshl_b32 s26, s2, 10')
        k('v_lshlrev_b32 v7, 2, v0')
        k('v_mov_b32 v52, -1')
        k('buffer_store_dword v52, v7, s[40:43], s26 offen')
        srd_off(k, 40, 8, WS_FL, 1024 * 128)
        k('v_mov_b32 v53, 0')
        k('buffer_store_dword v53, v7, s[40:43], s26 offen')
        npf += 2
    for p in range(4):
        k(f's_waitcnt vmcnt({3-p+npf})')
        for j in range(4):
            w = 16 + 4 * p + j
            k(f'v_lshlrev_b32 v46, 16, v{w}')
            k(f'v_and_b32 v47, 0xffff0000, v{w}')
            op = 'v_mul_f32' if p == 0 else 'v_fmac_f32'
            k(f'{op} v{8+2*j}, v46, v{40+p}')
            k(f'{op} v{9+2*j}, v47, v{40+p}')
    for sh in (4, 8):
        for j in range(8):
            k(f'v_add_f32_dpp v{8+j}, v{8+j}, v{8+j} row_ror:{sh} row_mask:0xf bank_mask:0xf')
    for j in range(0, 8, 2): k(f'v_permlane16_swap_b32 v{8+j}, v{9+j}')
    for j in range(0, 8, 2): k(f'v_add_f32 v{8+j}, v{8+j}, v{9+j}')
    k('s_nop 0')
    k('v_permlane32_swap_b32 v8, v10')
    k('v_permlane32_swap_b32 v12, v14')
    k('v_add_f32 v8, v8, v10')
    k('v_add_f32 v9, v12, v14')
    k('v_and_b32 v1, 63, v0')
    k('v_lshrrev_b32 v3, 4, v1')
    k('v_lshl_add_u32 v3, v2, 3, v3')
    k('v_lshrrev_b32 v4, 6, v0')
    k('v_lshl_add_u32 v3, v4, 5, v3')
    k('v_lshlrev_b32 v3, 2, v3')
    k('ds_write2_b32 v3, v8, v9 offset0:0 offset1:4')
    k('s_waitcnt lgkmcnt(0)')
    k('s_barrier')
    ncol = 32 * (nthreads // 256)
    k(f'v_cmp_gt_u32 vcc, {ncol}, v0')
    k('s_and_saveexec_b64 s[24:25], vcc')
    k(f's_cbranch_execz {Lend}')
    k('v_and_b32 v1, 31, v0')
    k('v_lshrrev_b32 v2, 5, v0')
    k('v_lshlrev_b32 v3, 9, v2')
    k('v_lshl_add_u32 v3, v1, 2, v3')
    k('ds_read2_b32 v[8:9], v3 offset0:0 offset1:32')
    k('ds_read2_b32 v[10:11], v3 offset0:64 offset1:96')
    srd_off(k, 12, 8, WS_MP, 4 * 6144 * 4)
    k('s_mul_i32 s22, s22, 24576')
    k('s_lshl_b32 s21, s20, 7')
    k('s_add_u32 s21, s21, s22')
    k('v_lshlrev_b32 v4, 2, v0')
    k('s_waitcnt lgkmcnt(0)')
    k('v_add_f32 v8, v8, v9')
    k('v_add_f32 v10, v10, v11')
    k('v_add_f32 v8, v8, v10')
    k('buffer_store_dword v8, v4, s[12:15], s21 offen')

def gen_mod(pf=True, wq=0):
    k = Kern('mod_kernel', (512 if wq else 256, 1, 1), (256, 1, 1), 1024, vgpr=64, sgpr=48)
    Lend = k.label('end'); Lg = k.label('pfwg')
    k('s_cmp_ge_u32 s2, 256')
    k(f's_cbranch_scc1 {Lg if wq else Lend}')
    k.stamp(0)
    k(f's_load_dwordx4 s[4:7], s[0:1], {A_C}')
    k(f's_load_dwordx2 s[8:9], s[0:1], {A_WS}')
    if pf: k(f's_load_dwordx2 s[28:29], s[0:1], {A_X}')
    gemv_body(k, 2, 32, 0, 256, Lend)
    npf = 0
    if pf:
        k.srd(28, 28, 4 * MB)
        k('v_lshlrev_b32 v6, 4, v0')
        k('s_lshl_b32 s26, s2, 14')
        for j in range(4):
            k(f'buffer_load_dwordx4 v[48:51], v6, s[28:31], s26 offen ; pf')
            if j < 3: k('s_add_u32 s26, s26, 4096')
        npf = 4
        if CPF:
            k.code_srd(36, 'mod_kernel_end1')
            k('s_lshr_b32 s26, s2, 3')
            k('s_lshl_b32 s26, s26, 12')
            k('buffer_load_dwordx4 v[48:51], v6, s[36:39], s26 offen ; pf')
            npf = 5
    gemv_finish(k, 256, Lend, npf, table=True)
    k.stamp_out(0)
    if wq:
        k('s_endpgm')
        k(f'{Lg}:')
        k('s_cmp_ge_u32 s2, 512')
        k(f's_cbranch_scc1 {Lend}')
        k(f's_load_dwordx2 s[28:29], s[0:1], {A_WQ}')
        k('v_and_b32 v1, 63, v0')
        k('v_lshrrev_b32 v2, 6, v0')
        k('v_lshlrev_b32 v6, 18, v2')
        k('v_lshl_add_u32 v6, v1, 4, v6')
        k('s_and_b32 s32, s2, 7')
        k('s_lshl_b32 s32, s32, 10')
        k('s_bfe_u32 s33, s2, 0x50003')
        k('s_lshl_b32 s33, s33, 13')
        k('s_add_u32 s32, s32, s33')
        k(f's_add_u32 s32, s32, {(1024 - 256*wq)*8192}')
        k('s_waitcnt lgkmcnt(0)')
        k.srd(28, 28, 1024 * 8192)
        for j in range(2 * wq):
            k(f'buffer_load_dwordx4 v[48:51], v6, s[28:31], s32 offen ; pf')
            k(f's_add_u32 s32, s32, {128*8192}')
    k(f'{Lend}:')
    k('s_endpgm')
    return k

def store_porder(k, X_packed, srd, wave, lane):
    P = X_packed
    k(f'v_lshrrev_b32 v5, 2, v{lane}')
    k('v_mul_u32_u24 v5, 528, v5')
    k(f'v_and_b32 v6, 1, v{lane}')
    k('v_lshl_add_u32 v5, v6, 8, v5')
    k(f'v_bfe_u32 v6, v{lane}, 1, 1')
    k('v_lshl_add_u32 v5, v6, 3, v5')
    k(f'v_lshl_add_u32 v5, v{wave}, 4, v5')
    k(f'ds_write_b64 v5, {R2("v", P)}')
    k(f'ds_write_b64 v5, {R2("v", P+2)} offset:128')
    k(f'ds_write_b64 v5, {R2("v", P+4)} offset:{16*528}')
    k(f'ds_write_b64 v5, {R2("v", P+6)} offset:{16*528+128}')
    k('v_lshrrev_b32 v6, 5, v0')
    k('v_and_b32 v7, 31, v0')
    k('v_mul_u32_u24 v5, 528, v6')
    k('v_lshl_add_u32 v5, v7, 4, v5')
    k('v_lshlrev_b32 v6, 17, v6')
    k('v_bfe_u32 v7, v0, 3, 2')
    k('v_lshl_add_u32 v6, v7, 8, v6')
    k('v_and_b32 v7, 7, v0')
    k('v_lshl_add_u32 v6, v7, 4, v6')
    k('s_lshr_b32 s20, s2, 1')
    k('s_lshl_b32 s20, s20, 10')
    k('s_and_b32 s21, s2, 1')
    k('s_lshl_b32 s21, s21, 7')
    k('s_add_u32 s20, s20, s21')
    k(f's_add_u32 s21, s20, {16*131072}')
    k('s_waitcnt lgkmcnt(0)')
    k('s_barrier')
    k(f'ds_read_b128 {R4("v", P)}, v5')
    k(f'ds_read_b128 {R4("v", P+4)}, v5 offset:{16*528}')
    k('s_waitcnt lgkmcnt(1)')
    k(f'buffer_store_dwordx4 {R4("v", P)}, v6, s[{srd}:{srd+3}], s20 offen')
    k('s_waitcnt lgkmcnt(0)')
    k(f'buffer_store_dwordx4 {R4("v", P+4)}, v6, s[{srd}:{srd+3}], s21 offen')

def ln_core_pk(k, X, T, sc):
    t0, t2, C = T, T + 2, T + 8
    k(f'v_pk_add_f32 {R2("v", t0)}, {R2("v", X)}, {R2("v", X+2)}')
    k(f'v_pk_add_f32 {R2("v", t2)}, {R2("v", X+4)}, {R2("v", X+6)}')
    for j in range(8, 16, 4):
        k(f'v_pk_add_f32 {R2("v", t0)}, {R2("v", t0)}, {R2("v", X+j)}')
        k(f'v_pk_add_f32 {R2("v", t2)}, {R2("v", t2)}, {R2("v", X+j+2)}')
    k(f'v_pk_add_f32 {R2("v", t0)}, {R2("v", t0)}, {R2("v", t2)}')
    k(f'v_add_f32 v{t0}, v{t0}, v{t0+1}')
    wave_sum(k, t0, t2)
    k(f'v_mul_f32 v{t0}, s{sc+1}, v{t0}')
    k(f'v_mov_b32 v{t0+1}, v{t0}')
    for j in range(0, 16, 2): k(f'v_pk_add_f32 {R2("v", C+j)}, {R2("v", X+j)}, {R2("v", t0)}')
    k(f'v_pk_mul_f32 {R2("v", t2)}, {R2("v", C)}, {R2("v", C)}')
    k(f'v_pk_mul_f32 {R2("v", T+4)}, {R2("v", C+2)}, {R2("v", C+2)}')
    for j in range(4, 16, 4):
        k(f'v_pk_fma_f32 {R2("v", t2)}, {R2("v", C+j)}, {R2("v", C+j)}, {R2("v", t2)}')
        k(f'v_pk_fma_f32 {R2("v", T+4)}, {R2("v", C+j+2)}, {R2("v", C+j+2)}, {R2("v", T+4)}')
    k(f'v_pk_add_f32 {R2("v", t2)}, {R2("v", t2)}, {R2("v", T+4)}')
    k(f'v_add_f32 v{t2}, v{t2}, v{t2+1}')
    round_pair(k, t0, t0 + 1, T + 4)
    for j in range(0, 16, 2): k(f'v_pk_add_f32 {R2("v", X+j)}, {R2("v", X+j)}, {R2("v", t0)}')
    wave_sum(k, t2, T + 4)
    for j in range(0, 16, 2): k(f'v_cvt_pk_bf16_f32 v{C+j}, v{X+j}, v{X+j+1}')
    k(f'v_mul_f32 v{t2}, s{sc}, v{t2}')
    round_pair(k, t2, t2 + 1, T + 4)
    k(f'v_add_f32 v{t2}, 0x3727c5ac, v{t2}')
    round_pair(k, t2, t2 + 1, T + 4)
    k(f'v_sqrt_f32 v{t2}, v{t2}')
    for j in range(0, 16, 2):
        k(f'v_lshlrev_b32 v{X+j}, 16, v{C+j}')
        k(f'v_and_b32 v{X+j+1}, 0xffff0000, v{C+j}')
    round_pair(k, t2, t2 + 1, T + 4)
    k(f'v_rcp_f32 v{t2}, v{t2}')
    k('s_nop 0')
    k(f'v_mov_b32 v{t2+1}, v{t2}')
    for j in range(0, 16, 2): k(f'v_pk_mul_f32 {R2("v", X+j)}, {R2("v", X+j)}, {R2("v", t2)}')
    round16(k, X, C)

def round16(k, X, C):
    for j in range(0, 16, 2): k(f'v_cvt_pk_bf16_f32 v{C+j}, v{X+j}, v{X+j+1}')
    for j in range(0, 16, 2):
        k(f'v_lshlrev_b32 v{X+j}, 16, v{C+j}')
        k(f'v_and_b32 v{X+j+1}, 0xffff0000, v{C+j}')

def gen_ln1(npf=4):
    MODL = 17408
    k = Kern('ln1_kernel', (512, 1, 1), (512, 1, 1), MODL + 8192, vgpr=96, sgpr=40)
    Lend = k.label('end'); Lg = k.label('gemv')
    k('s_cmp_ge_u32 s2, 256')
    k(f's_cbranch_scc1 {Lg}')
    k.stamp(0)
    k(f's_load_dwordx2 s[4:5], s[0:1], {A_X}')
    k(f's_load_dwordx2 s[8:9], s[0:1], {A_WS}')
    k('v_and_b32 v1, 63, v0')
    k('v_lshrrev_b32 v2, 6, v0')
    k('v_lshlrev_b32 v3, 4, v1')
    k('v_lshl_add_u32 v4, v2, 11, v3')
    k('v_lshlrev_b32 v7, 4, v0')
    k('s_lshl_b32 s20, s2, 14')
    k('s_waitcnt lgkmcnt(0)')
    k.stamp(1)
    k.srd(12, 4, 4 * MB)
    srd_off(k, 16, 8, WS_MP, 4 * 6144 * 4)
    k('buffer_load_dwordx4 v[8:11], v4, s[12:15], s20 offen')
    k('buffer_load_dwordx4 v[12:15], v4, s[12:15], s20 offen offset:1024')
    for p in range(4):
        k(f's_mov_b32 s21, {p*24576}')
        k(f'buffer_load_dwordx4 {R4("v", 16+4*p)}, v7, s[16:19], s21 offen')
    srd_off(k, 24, 8, WS_H, 4 * MB)
    k('s_mov_b32 s22, 0x3a800000')
    k('s_mov_b32 s23, 0xba800000')
    k('s_waitcnt vmcnt(0)')
    k.stamp(2)
    for p in range(1, 4):
        for h in range(2): k(f'v_pk_add_f32 {R2("v", 16+2*h)}, {R2("v", 16+2*h)}, {R2("v", 16+4*p+2*h)}')
    round_pair(k, 16, 17, 20); round_pair(k, 18, 19, 21)
    k('v_cmp_lt_u32 vcc, 255, v0')
    k('s_nop 1')
    k('v_cndmask_b32 v22, 0, 1.0, vcc')
    for j in range(4): k(f'v_add_f32 v{16+j}, v{16+j}, v22')
    round_pair(k, 16, 17, 20); round_pair(k, 18, 19, 21)
    k(f'ds_write_b128 v7, v[16:19] offset:{MODL}')
    X = 32
    unpack8(k, X, 8); unpack8(k, X + 8, 12)
    k('s_waitcnt lgkmcnt(0)')
    k('s_barrier')
    k('v_lshlrev_b32 v5, 5, v1')
    for sec, base in ((1, 64), (0, 48)):
        for h in range(2):
            for q in range(2):
                k(f'ds_read_b128 {R4("v", base + 8*h + 4*q)}, v5 offset:{MODL + sec*4096 + h*2048 + q*16}')
    ln_core_pk(k, X, 8, 22)
    k('s_waitcnt lgkmcnt(0)')
    for j in range(0, 16, 2): k(f'v_pk_mul_f32 {R2("v", X+j)}, {R2("v", X+j)}, {R2("v", 64+j)}')
    round16(k, X, 16)
    for j in range(0, 16, 2): k(f'v_pk_add_f32 {R2("v", X+j)}, {R2("v", X+j)}, {R2("v", 48+j)}')
    for j in range(8): k(f'v_cvt_pk_bf16_f32 v{8+j}, v{X+2*j}, v{X+2*j+1}')
    k.stamp(3)
    store_porder(k, 8, 24, 2, 1)
    k.stamp(4)
    k.stamp_out(1)
    k('s_endpgm')
    k(f'{Lg}:')
    k('s_cmp_ge_u32 s2, 512')
    k(f's_cbranch_scc1 {Lend}')
    k(f's_load_dwordx2 s[28:29], s[0:1], {A_WQ}')
    k('v_and_b32 v1, 63, v0')
    k('v_lshrrev_b32 v2, 6, v0')
    k('v_lshlrev_b32 v6, 18, v2')
    k('v_lshl_add_u32 v6, v1, 4, v6')
    k('s_and_b32 s32, s2, 7')
    k('s_lshl_b32 s32, s32, 10')
    k('s_bfe_u32 s33, s2, 0x50003')
    k('s_lshl_b32 s33, s33, 13')
    k('s_add_u32 s32, s32, s33')
    k('s_waitcnt lgkmcnt(0)')
    k.srd(28, 28, 1024 * 8192)
    for j in range(npf):
        k(f'buffer_load_dwordx4 v[84:87], v6, s[28:31], s32 offen ; pf')
        if j < npf - 1: k(f's_add_u32 s32, s32, {256*8192}')
    k(f'{Lend}:')
    k('s_endpgm')
    return k

def mod_finalize(k, s_ws, sbase, vbase, lane):
    srd_off(k, sbase, s_ws, 0, WS_MP2 + 16 * 16384)
    k(f'v_and_b32 v{vbase}, 15, v{lane}')
    k(f'v_lshlrev_b32 v{vbase}, 2, v{vbase}')
    k(f'v_lshrrev_b32 v{vbase+5}, 4, v{lane}')
    k(f'v_lshl_add_u32 v{vbase+5}, v{vbase+5}, 16, v{vbase}')
    k(f's_lshl_b32 s{sbase+4}, s2, 6')
    for p in range(4):
        k(f's_add_u32 s{sbase+5}, s{sbase+4}, {WS_MP2 + p*16384}')
        k(f'buffer_load_dword v{vbase+1+p}, v{vbase+5}, s[{sbase}:{sbase+3}], s{sbase+5} offen sc1')
    def fin(k=k):
        a = vbase + 1
        k(f'v_add_f32 v{a}, v{a}, v{a+1}')
        k(f'v_add_f32 v{a+2}, v{a+2}, v{a+3}')
        k(f'v_add_f32 v{a}, v{a}, v{a+2}')
        for sw in ('16', '32'):
            k(f'v_mov_b32 v{a+1}, v{a}')
            k('s_nop 1')
            k(f'v_permlane{sw}_swap_b32 v{a}, v{a+1}')
            k(f'v_add_f32 v{a}, v{a}, v{a+1}')
        round_pair(k, a, a + 1, a + 2)
        k(f's_lshr_b32 s{sbase+5}, s2, 6')
        k(f's_cmp_eq_u32 s{sbase+5}, 2')
        k(f's_cselect_b32 s{sbase+5}, 1.0, 0')
        k(f'v_add_f32 v{a}, s{sbase+5}, v{a}')
        round_pair(k, a, a + 1, a + 2)
        k(f'v_and_b32 v{a+1}, 12, v{vbase}')
        k(f'v_bfe_u32 v{a+2}, v{vbase}, 4, 1')
        k(f'v_lshl_add_u32 v{a+1}, v{a+2}, 10, v{a+1}')
        k(f'v_bfe_u32 v{a+2}, v{vbase}, 5, 1')
        k(f'v_lshl_add_u32 v{a+1}, v{a+2}, 4, v{a+1}')
        k(f's_and_b32 s{sbase+5}, s2, 31')
        k(f's_lshl_b32 s{sbase+5}, s{sbase+5}, 5')
        k(f's_lshr_b32 s{sbase+6}, s2, 5')
        k(f's_lshl_b32 s{sbase+6}, s{sbase+6}, 11')
        k(f's_add_u32 s{sbase+5}, s{sbase+5}, s{sbase+6}')
        k('s_cmp_ge_u32 s2, 192')
        k(f's_cselect_b32 s{sbase+4}, s{sbase+4}, s{sbase+5}')
        k('s_cselect_b64 vcc, -1, 0')
        k(f's_add_u32 s{sbase+4}, s{sbase+4}, 8192')
        k(f'v_cndmask_b32 v{a+1}, v{a+1}, v{vbase}, vcc')
        k(f'buffer_store_dword v{a}, v{a+1}, s[{sbase}:{sbase+3}], s{sbase+4} offen sc1')
    return fin

def wave_sum2(k, v, t):
    wave_sum(k, v, t)

def ln_fast(k, X, T, sc):
    t0, t2 = T, T + 2
    k(f'v_pk_add_f32 {R2("v", t0)}, {R2("v", X)}, {R2("v", X+2)}')
    for j in range(4, 16, 2): k(f'v_pk_add_f32 {R2("v", t0)}, {R2("v", t0)}, {R2("v", X+j)}')
    k(f'v_add_f32 v{t0}, v{t0}, v{t0+1}')
    wave_sum(k, t0, t2)
    k(f'v_mul_f32 v{t0}, s{sc+1}, v{t0}')
    k(f'v_mov_b32 v{t0+1}, v{t0}')
    for j in range(0, 16, 2): k(f'v_pk_add_f32 {R2("v", X+j)}, {R2("v", X+j)}, {R2("v", t0)}')
    k(f'v_pk_mul_f32 {R2("v", t0)}, {R2("v", X)}, {R2("v", X)}')
    for j in range(2, 16, 2): k(f'v_pk_fma_f32 {R2("v", t0)}, {R2("v", X+j)}, {R2("v", X+j)}, {R2("v", t0)}')
    k(f'v_add_f32 v{t0}, v{t0}, v{t0+1}')
    wave_sum(k, t0, t2)
    k(f'v_mov_b32 v{t2}, 0x3727c5ac')
    k(f'v_fmac_f32 v{t2}, s{sc}, v{t0}')
    k(f'v_rsq_f32 v{t0}, v{t2}')
    k('s_nop 0')
    k(f'v_mov_b32 v{t0+1}, v{t0}')

def gen_ln2():
    k = Kern('ln2_kernel', (256, 1, 1), (512, 1, 1), 17408 + 16384, vgpr=128, sgpr=40)
    Lend = k.label('end')
    k('s_cmp_ge_u32 s2, 256')
    k(f's_cbranch_scc1 {Lend}')
    k.stamp(0)
    k(f's_load_dwordx2 s[4:5], s[0:1], {A_X}')
    k(f's_load_dwordx2 s[8:9], s[0:1], {A_WS}')
    k('v_and_b32 v1, 63, v0')
    k('v_lshrrev_b32 v2, 6, v0')
    k('v_lshlrev_b32 v3, 4, v1')
    k('v_lshl_add_u32 v4, v2, 11, v3')
    k('s_lshl_b32 s20, s2, 14')
    k(f's_add_u32 s23, s20, {4*MB}')
    k('s_waitcnt lgkmcnt(0)')
    k.stamp(1)
    srd_off(k, 28, 8, WS_P, 8 * MB)
    k('buffer_load_dwordx4 v[16:19], v4, s[28:31], s20 offen')
    k('buffer_load_dwordx4 v[20:23], v4, s[28:31], s20 offen offset:1024')
    k('buffer_load_dwordx4 v[24:27], v4, s[28:31], s23 offen')
    k('buffer_load_dwordx4 v[28:31], v4, s[28:31], s23 offen offset:1024')
    k.srd(12, 4, 4 * MB)
    k('buffer_load_dwordx4 v[8:11], v4, s[12:15], s20 offen')
    k('buffer_load_dwordx4 v[12:15], v4, s[12:15], s20 offen offset:1024')
    srd_off(k, 16, 8, WS_MOD32 + 8192, 12288)
    GA, SB, CB = 80, 96, 112
    MODL = 17408
    k('v_readfirstlane_b32 s21, v2')
    k('s_lshl_b32 s21, s21, 11')
    k(f's_add_u32 m0, s21, {MODL}')
    k('s_nop 2')
    k('buffer_load_dwordx4 v3, s[16:19], s21 offen lds')
    k('buffer_load_dwordx4 v3, s[16:19], s21 offen offset:1024 lds')
    srd_off(k, 24, 8, WS_Y, 4 * MB)
    srd_off(k, 32, 8, WS_X1, 4 * MB)
    k('s_mov_b32 s36, 0x3a800000')
    k('s_mov_b32 s37, 0xba800000')
    X = 32
    k('s_waitcnt vmcnt(4)')
    unpack8(k, 48, 16); unpack8(k, 56, 20); unpack8(k, 64, 24); unpack8(k, 72, 28)
    for j in range(0, 16, 2): k(f'v_pk_add_f32 {R2("v", 48+j)}, {R2("v", 48+j)}, {R2("v", 64+j)}')
    k('s_waitcnt vmcnt(0)')
    k('s_barrier')
    for base, sec in ((GA, 0), (CB, 2), (SB, 1)):
        for h in range(2):
            for q in range(2):
                k(f'ds_read_b128 {R4("v", base + 8*h + 4*q)}, v3 offset:{MODL + sec*4096 + h*2048 + q*1024}')
    unpack8(k, X, 8); unpack8(k, X + 8, 12)
    k('s_waitcnt lgkmcnt(8)')
    k.stamp(2)
    for j in range(0, 16, 2): k(f'v_pk_fma_f32 {R2("v", X+j)}, {R2("v", 48+j)}, {R2("v", GA+j)}, {R2("v", X+j)}')
    for j in range(8): k(f'v_cvt_pk_bf16_f32 v{8+j}, v{X+2*j}, v{X+2*j+1}')
    k('buffer_store_dwordx4 v[8:11], v4, s[32:35], s20 offen')
    k('buffer_store_dwordx4 v[12:15], v4, s[32:35], s20 offen offset:1024')
    T = 16
    ln_fast(k, X, T, 36)
    k('s_waitcnt lgkmcnt(0)')
    for j in range(0, 16, 2): k(f'v_pk_mul_f32 {R2("v", X+j)}, {R2("v", X+j)}, {R2("v", T)}')
    for j in range(0, 16, 2): k(f'v_pk_fma_f32 {R2("v", X+j)}, {R2("v", X+j)}, {R2("v", CB+j)}, {R2("v", SB+j)}')
    ln_fast(k, X, T, 36)
    for j in range(0, 16, 2): k(f'v_pk_mul_f32 {R2("v", X+j)}, {R2("v", X+j)}, {R2("v", T)}')
    for j in range(8): k(f'v_cvt_pk_bf16_f32 v{24+j}, v{X+2*j}, v{X+2*j+1}')
    k.stamp(3)
    store_porder(k, 24, 24, 2, 1)
    k.stamp(4)
    k.stamp_out(4)
    k(f'{Lend}:')
    k('s_endpgm')
    return k
```

```python
from asmgen import *
from gen_small import *

def R4(kind, i): return f'{kind}[{i}:{i+3}]'
def R2(kind, i): return f'{kind}[{i}:{i+1}]'
MF = 'v_mfma_f32_16x16x32_bf16'

class Gemm:
    def __init__(self, k, NA, NB, LP, S, PD, RA, ntiles, acc, aring, bring, vA, lds_base,
                 srdW, sW, wpitch, wdma, sM0, srdX, sX, vX, cinit=None, wait_every=1, extra_loads=None, stage_off=None, extra_pending=None, aimm=0, tile_bytes=None, NS=2, chain=True, pre_w=False, xmod=''):
        self.__dict__.update(locals())
        import sys
        if 'nochain' in sys.argv: self.chain = False
        self.tile_bytes = tile_bytes or 64 * LP
        self.nops = len(wdma) + NS * NB
        if stage_off is None: self.stage_off = [lds_base + i * self.tile_bytes for i in range(S)]
        self.vq = []
        self.make_sched(S - 1, [])

    def loads(self, t):
        st = t % self.S
        bl = []
        for ks in range(self.NS):
            for b in range(self.NB):
                bl.append([f'buffer_load_dwordx4 {self.bring(st, ks, b)}, v{self.vX[ks]}, s[{self.srdX}:{self.srdX+3}], s{self.sX} offen offset:{b*1024}{self.xmod}'])
        g = [bl[0], [f's_add_u32 m0, s{self.sM0}, {self.stage_off[st]}'], bl[1]]
        for (voff, ioff) in self.wdma:
            g.append([f'buffer_load_dwordx4 v{voff}, s[{self.srdW}:{self.srdW+3}], s{self.sW} offen offset:{ioff}{getattr(self, "wmod", "")} lds'])
        dbg = getattr(self, 'dbg', None) or ''
        g.append([f's_add_u32 s{self.sW}, s{self.sW}, {64 * self.wpitch}'] + ([f's_sub_u32 s{self.sW}, s{self.sW}, {4 * 64 * self.wpitch}'] if 'wrapW' in dbg and t % 4 == 3 else []))
        g += bl[2:]
        if self.pre_w and t < self.S - 1: g = list(bl)
        if t >= self.S - 1:
            if 'noW' in dbg: g = [x for x in g if not x[0].endswith(' lds')]
            if 'noX' in dbg: g = [x for x in g if not (x[0].startswith('buffer') and not x[0].endswith(' lds'))]
            if 'noX' in dbg and 'noW' not in dbg: g.insert(1, ['s_nop 0'])
        g.append([f's_add_u32 s{self.sX}, s{self.sX}, 262144'] + ([f's_sub_u32 s{self.sX}, s{self.sX}, {4 * 262144}'] if 'wrapX' in dbg and t % 4 == 3 else []))
        return g

    def fidx(self, f):
        if self.chain:
            a, ks = divmod(f, 2)
            return ks, a
        return divmod(f, self.NA)

    def wpreload(self):
        r = []
        for t in range(self.S - 1):
            r.append(f's_add_u32 m0, s{self.sM0}, {self.stage_off[t]}')
            r.append('s_nop 0')
            for (voff, ioff) in self.wdma:
                r.append(f'buffer_load_dwordx4 v{voff}, s[{self.srdW}:{self.srdW+3}], s{self.sW} offen offset:{ioff}{getattr(self, "wmod", "")} lds')
            r.append(f's_add_u32 s{self.sW}, s{self.sW}, {64 * self.wpitch}')
        return r

    def reads(self, t, f):
        ks, a = self.fidx(f)
        slot = (t * self.NS * self.NA + f) % self.RA
        kind, base = self.aring(slot)
        r = []
        for hf in range(2):
            off = self.stage_off[t % self.S] + (32 * ks + 16 * hf) * self.LP
            off += a * self.aimm
            va = self.vA[off >> 16][a]
            r.append(f'ds_read_b64_tr_b16 {R2(kind, base + 2 * hf)}, v{va} offset:{off & 0xffff}')
        if 'nods' in (getattr(self, 'dbg', None) or '') and t > 0: r = ['s_nop 0', 's_nop 0']
        return r

    def mfmas(self, t, f):
        ks, a = self.fidx(f)
        slot = (t * self.NS * self.NA + f) % self.RA
        kind, base = self.aring(slot)
        r = []
        for b in range(self.NB):
            c = self.acc(a, b)
            if t == 0 and ks == 0:
                c = self.cinit(a, b) if self.cinit else '0'
            r.append(f'{MF} {self.acc(a, b)}, {R4(kind, base)}, {self.bring(t % self.S, ks, b)}, {c}')
        return r

    def _track(self, ins, tag):
        if ins.startswith('buffer_'): self.vq.append(tag)

    def prologue_loads(self, tiles=None):
        for t in (self.sched.get(-2, []) if tiles is None else tiles):
            for g in self.loads(t):
                for i in g:
                    self.k(i); self._track(i, t)

    def pending(self, tile):
        idx = max(i for i, x in enumerate(self.vq) if x == tile)
        return len(self.vq) - 1 - idx

    def body(self, t, pending_after=None, ldtiles=None):
        k = self.k; NA2 = self.NS * self.NA; PD = self.PD; nt = self.ntiles
        has_next = t + 1 < nt
        if has_next:
            dbg = getattr(self, 'dbg', None) or ''
            if pending_after is None: pending_after = self.pending(t + 1) if (t + 1) in self.vq else 63
            assert pending_after <= 63
            k(f's_waitcnt vmcnt({pending_after})')
            widx = len(k.lines) - 1
            if not ('nobar' in dbg and t >= 0): k('s_barrier')
            if t == -1 and getattr(self, 'stamp_first', None): k.stamp(self.stamp_first)
        ld = []
        for tau in (self.sched.get(t, []) if ldtiles is None else ldtiles):
            assert tau < self.S - 1 + max(t, 0) + 1 and (tau < self.S or tau - self.S + 1 <= t), (t, tau)
            ld += [(x, tau) for x in self.loads(tau)]
        if self.extra_loads: ld += [(x, 'x') for x in self.extra_loads(t)]
        groups = []
        for i in range(NA2):
            if i < PD: groups.append((t, NA2 - PD + i) if t >= 0 else None)
            else: groups.append((t + 1, i - PD) if has_next else None)
        queue = [(t, NA2 - PD + i) for i in range(PD)] if t >= 0 else []
        queue = queue[getattr(self, '_carry', 0):] if t >= 0 else []
        sk = []
        step = 2 if self.chain else 1
        we = max(self.wait_every, step)
        for i in range(0, NA2, step):
            gs = groups[i:i + step]
            rds = [self.reads(t + 1, i + j) if has_next else [] for j in range(step)]
            if gs[0] is None:
                for j, rd in enumerate(rds):
                    for r in rd: sk.append(['i', r])
                    if rd: queue.append((t + 1, i + j))
                continue
            if gs[-1] in queue:
                idx = queue.index(gs[0]) if gs[0] in queue else 0
                upto = min(idx + we - 1, len(queue) - 1)
                remain = len(queue) - 1 - upto
                if sk and sk[-1][0] == 'gap': sk[-1][1] = False
                sk.append(['i', f's_waitcnt lgkmcnt({2 * remain})'])
                queue = queue[upto + 1:]
            mfs = [self.mfmas(*g) for g in gs]
            mf = [mfs[j][b] for b in range(self.NB) for j in range(step)]
            for n, m in enumerate(mf):
                sk.append(['i', m])
                j, rem = divmod(n, self.NB)
                if rem == 0 and rds[j]:
                    for r in rds[j]: sk.append(['i', r])
                    queue.append((t + 1, i + j))
                else:
                    sk.append(['gap', True])
        if sk and sk[-1][0] == 'gap': sk[-1][1] = False
        if has_next and sk and sk[0][0] == 'i' and sk[0][1].startswith('s_waitcnt lgkmcnt'):
            k.lines[widx] += ' ' + sk[0][1].split()[1]
            sk = sk[1:]
        items = [(x, tag) for grp, tag in ld for x in grp]
        isv = lambda x: x.startswith('buffer_')
        gaps = [e for e in sk if e[0] == 'gap']
        nclean = sum(1 for e in gaps if e[1])
        nv = sum(1 for x, _ in items if isv(x))
        use_clean_only = nv <= nclean
        li = 0; seen_c = 0; seen = 0; done_v = 0
        for e in sk:
            if e[0] == 'i':
                k(e[1]); continue
            seen += 1
            if e[1]: seen_c += 1
            room = 2 if e[1] else 1
            if use_clean_only and nv:
                want_v = (seen_c * nv + nclean - 1) // nclean
            else:
                want_v = (seen * nv + len(gaps) - 1) // len(gaps) if nv else 0
            want_all = (seen * len(items) + len(gaps) - 1) // len(gaps)
            placed_v = False
            while li < len(items) and room > 0:
                x, tag = items[li]
                if isv(x):
                    if placed_v and use_clean_only: break
                    if (use_clean_only and not e[1]) or done_v >= want_v: break
                    if use_clean_only and room < 2: break
                    k(x); self._track(x, tag); li += 1; done_v += 1; placed_v = True
                    room -= 2 if use_clean_only else 1
                else:
                    if nv == 0 and li >= want_all: break
                    if e[1] and use_clean_only and (nclean - seen_c) < (nv - done_v) and not x.startswith('s_add_u32 m0'):
                        k(x); li += 1; continue
                    k(x); li += 1; room -= 1
                    if x.startswith('s_add_u32 m0') and li < len(items) and items[li][0].endswith(' lds'): break
        while li < len(items):
            x, tag = items[li]
            k(x); self._track(x, tag); li += 1
        self._carry = PD - len(queue) if has_next else 0

    def make_sched(self, first, ramp):
        S, nt = self.S, self.ntiles
        sched = {-2: list(range(first))}
        nxt = first
        t = -1
        while nxt < nt:
            n = ramp[t + 1] if t + 1 < len(ramp) else 1
            lim = max(t, 0) + S - 1 if t >= 0 else S - 2
            tl = [x for x in range(nxt, min(nxt + n, lim + 1, nt))]
            sched[t] = tl; nxt += len(tl); t += 1
        self.sched = sched

    def emit(self, loop_sreg=None):
        k = self.k; S = self.S; nt = self.ntiles
        self.body(-1)
        t = 0
        steady = lambda t: self.sched.get(t) == [t + S - 1]
        if loop_sreg is not None:
            while t < nt and not (steady(t) and (t > 0 or (self.NS == 2 and not self.chain)) and (S - 3) * self.nops <= self.pending(t + 1) <= (S - 3) * self.nops + 1 and not (self.extra_loads and self.extra_loads(t))):
                self.body(t); t += 1
            nsteady = nt - S + 1 - t
            trips = nsteady // S
            if trips >= 2:
                c0 = self._carry
                k(f's_mov_b32 s{loop_sreg}, {trips}')
                L = k.label('gloop')
                k(f'{L}:')
                for u in range(trips * S): assert not (self.extra_loads and self.extra_loads(t + u)), t + u
                for u in range(S):
                    self.body(t + u, pending_after=(S - 3) * self.nops)
                assert self._carry == c0
                k(f's_sub_u32 s{loop_sreg}, s{loop_sreg}, 1')
                k(f's_cmp_lg_u32 s{loop_sreg}, 0')
                k(f's_cbranch_scc1 {L}')
                sh = (trips - 1) * S
                self.vq = [x + sh if isinstance(x, int) else x for x in self.vq]
                t += trips * S
        while t < nt:
            self.body(t)
            t += 1

def tr_addr_regs(k, vbase, NA, LP, tmp, lane, add=0, xor_s=None):
    t0, t1, t2 = tmp, tmp + 1, tmp + 2
    k(f'v_lshrrev_b32 v{t0}, 2, v{lane}')
    k(f'v_and_b32 v{t1}, 3, v{lane}')
    if LP == 256:
        k(f'v_and_b32 v{t2}, 7, v{t0}')
        sh = 8
    else:
        k(f'v_bfe_u32 v{t2}, v{t0}, 1, 2')
        sh = 7
    if xor_s is not None: k(f'v_xor_b32 v{t2}, s{xor_s}, v{t2}')
    k(f'v_lshlrev_b32 v{t0}, {sh}, v{t0}')
    k(f'v_lshl_add_u32 v{t0}, v{t1}, 3, v{t0}')
    if add: k(f'v_add_u32 v{t0}, {add}, v{t0}')
    for a in range(NA):
        k(f'v_xor_b32 v{t1}, {a}, v{t2}')
        k(f'v_lshl_add_u32 v{vbase+a}, v{t1}, 5, v{t0}')

def wdma_regs(k, vbase, LP, pitch, nchunks, tmp, lane, swave):
    t0, t1, t2, t3 = tmp, tmp + 1, tmp + 2, tmp + 3
    res = []
    if LP == 256:
        n_ins, rows_per, shl, msk = 4, 4, 4, 15
    else:
        n_ins, rows_per, shl, msk = 2, 8, 3, 7
    k(f'v_lshrrev_b32 v{t0}, {shl}, v{lane}')
    k(f'v_and_b32 v{t1}, {msk}, v{lane}')
    k(f's_lshl_b32 s{swave+1}, s{swave}, 4')
    k(f's_mov_b32 s{swave+2}, {pitch}')
    for n in range(n_ins):
        k(f'v_add_u32 v{t2}, {n * rows_per}, v{t0}')
        if LP == 256:
            k(f'v_and_b32 v{t3}, 7, v{t2}')
        else:
            k(f'v_bfe_u32 v{t3}, v{t2}, 1, 2')
        k(f'v_lshlrev_b32 v{t3}, 1, v{t3}')
        k(f'v_xor_b32 v{t3}, v{t3}, v{t1}')
        k(f'v_add_u32 v{t2}, s{swave+1}, v{t2}')
        k(f'v_mul_lo_u32 v{t2}, v{t2}, s{swave+2}')
        k(f'v_lshl_add_u32 v{vbase+n}, v{t3}, 4, v{t2}')
        if n: k(f'v_subrev_u32 v{vbase+n}, {n*1024}, v{vbase+n}')
        if nchunks <= msk:
            k(f'v_cmp_le_u32 vcc, {nchunks}, v{t3}')
            k(f'v_mov_b32 v{t2}, 0x7ff00000')
            k('s_nop 0')
            k(f'v_cndmask_b32 v{vbase+n}, v{vbase+n}, v{t2}, vcc')
        res.append((vbase + n, n * 1024))
    return res
```

```python
import sys
from gen_gk import *
from gen_front import *

THRESH_LOG2 = 16

def gen_attn(thresh_log2=THRESH_LOG2, lead=27, E0=58, bias=100, ufl=0x4000, pf=True, sched=(2, [1, 2, 1, 2]), name='attn_kernel', kidx=2, dbg='', excl=True, split2=True, wqpf=0, then=None):
    k = Kern(name, (256, 1, 1), (256, 1, 1), 160 * 1024, vgpr=256, agpr=256, sgpr=80)
    Lend = k.label('end')
    k('s_cmp_ge_u32 s2, 256')
    k(f's_cbranch_scc1 {Lend}')
    k.stamp(0)
    k(f's_load_dwordx4 s[4:7], s[0:1], {A_K}')
    k(f's_load_dwordx2 s[8:9], s[0:1], {A_WQ}')
    k(f's_load_dwordx2 s[10:11], s[0:1], {A_WS}')
    k(f's_load_dwordx2 s[32:33], s[0:1], {A_WO}')
    k(f's_load_dwordx2 s[36:37], s[0:1], {A_W1}')
    k(f's_load_dwordx2 s[60:61], s[0:1], {A_W2}')
    k(f's_load_dwordx2 s[64:65], s[0:1], {A_WMOD}')
    Lloop = k.label('loop'); Ltail = k.label('tail'); Lslow = k.label('slow'); Lepi = k.label('epi')
    vKA, vVA, vKD, vVD = 8, 12, 20, 24
    tmp = 26
    vL = 32; vTA2 = 32; vWD = 40; vX = 44
    vQ, vS, vP, vNM, vE, vONE, vT = 64, 128, 192, 224, 240, 248, 252
    aO, aF = 0, 128
    sHEAD, sQT, sWAVE, sMB0, sW, sX, sM0, sK, sV, sCNT, sTH, sFIRST = 40, 41, 44, 47, 50, 51, 52, 53, 54, 55, 57, 58
    k('v_and_b32 v1, 63, v0')
    k('v_lshrrev_b32 v2, 6, v0')
    k('s_and_b32 s42, s2, 7')
    k(f'v_readfirstlane_b32 s{sWAVE}, v2')
    k('s_lshl_b32 s42, s42, 2')
    k('s_bfe_u32 s43, s2, 0x20003')
    k(f's_add_u32 s{sHEAD}, s42, s43')
    k(f's_lshr_b32 s{sQT}, s2, 5')
    wd = wdma_regs(k, vWD, 256, 8192, 16, tmp, 1, sWAVE)
    k(f's_lshl_b32 s{sMB0}, s{sQT}, 4')
    k(f's_lshl_b32 s48, s{sWAVE}, 2')
    k(f's_add_u32 s{sMB0}, s{sMB0}, s48')
    k(f's_lshl_b32 s48, s{sMB0}, 10')
    k(f'v_lshl_add_u32 v{vX}, v1, 4, s48')
    k(f'v_add_u32 v{vX+1}, 0x20000, v{vX}')
    k(f's_lshl_b32 s{sW}, s{sHEAD}, 8')
    k(f's_mov_b32 s{sX}, 0')
    k(f's_lshl_b32 s{sM0}, s{sWAVE}, 12')
    k('s_waitcnt lgkmcnt(0)')
    k.srd(12, 8, 1024 * 8192)
    srd_off(k, 16, 10, WS_H, 4 * MB)
    S = 6
    SL = lambda i: i * 16384
    stage_off = [SL(6), SL(7), SL(8), SL(9), SL(4), SL(5)]
    bbase = {4: 0, 5: 32, 0: 64, 1: 96, 2: 128, 3: 160}
    def kdma(slot):
        return [[f's_add_u32 m0, s{sM0}, {SL(slot)}'], ['s_nop 0']] + \
               [[f'buffer_load_dwordx4 v{vKD+n}, s[20:23], s{sK} offen offset:{n*1024} lds'] for n in range(4)] + \
               [[f's_add_u32 s{sK}, s{sK}, 16384']]
    def vdma(slot):
        return [[f's_add_u32 m0, s{sM0}, {SL(4+slot)}'], ['s_nop 0']] + \
               [[f'buffer_load_dwordx4 v{vVD+(n&1)}, s[24:27], s{sV} offen offset:{n*1024} lds'] for n in range(4)] + \
               [[f's_add_u32 s{sV}, s{sV}, 16384']]
    def zero(base):
        return [[f'v_accvgpr_write_b32 a{base+i}, 0'] for i in range(32)]
    def extra(t):
        if t == 10: return [[x] for x in gld]
        if t == 11: return kdma(0) + kdma(1) + vdma(0) + zero(0)
        if t == 12: return kdma(2) + vdma(1) + zero(32)
        if t == 13: return kdma(3) + vdma(2) + zero(64)
        if t == 14: return zero(96)
        return []
    def extra_p(t):
        return {12: 12, 13: 20, 14: 28}.get(t, 0)
    acc0 = 128
    g = Gemm(k, 8, 4, 256, S, 4, 8, 16,
             acc=lambda a, b: R4('v', acc0 + (a * 4 + b) * 4),
             aring=lambda s: ('a', 192 + 4 * s),
             bring=lambda st, ks, b: R4('a', bbase[st] + (ks * 4 + b) * 4),
             vA=[None, [vVA + a for a in range(8)], [vTA2 + a for a in range(8)]], lds_base=0,
             srdW=12, sW=sW, wpitch=8192, wdma=wd, sM0=sM0, srdX=16, sX=sX, vX=[vX, vX + 1],
             extra_loads=extra, stage_off=stage_off)
    g.make_sched(*sched)
    g.prologue_loads()
    if wqpf:
        nrow = (1024 - 256 * wqpf) // 8
        k(f's_mul_i32 s48, s{sQT}, {4*8192}')
        k(f's_and_b32 s48, s{sQT}, 3')
        k(f's_mul_i32 s48, s48, {4*8192}')
        k(f's_lshr_b32 s45, s{sQT}, 2')
        k(f's_mul_i32 s45, s45, {64*8192}')
        k('s_add_u32 s48, s48, s45')
        k(f's_lshl_b32 s45, s{sHEAD}, 8')
        k('s_add_u32 s48, s48, s45')
        k(f's_add_u32 s48, s48, {wqpf*256*8192}')
        for j in range((16 - 4 * wqpf) // 2):
            k(f'buffer_load_dwordx4 v[64:67], v{vWD}, s[12:15], s48 offen ; pf')
            k(f's_add_u32 s48, s48, {128*8192}')
            g.vq.append('pf')
    tr_addr_regs(k, vVA, 8, 256, tmp, 1, add=0x10000)
    for a in range(8): k(f'v_add_u32 v{vTA2+a}, 0x10000, v{vVA+a}')
    k(f'v_and_b32 v{tmp}, 15, v1')
    k(f'v_lshrrev_b32 v{tmp+1}, 4, v1')
    k(f'v_xor_b32 v{tmp+2}, v{tmp}, v{tmp+1}')
    k(f'v_lshlrev_b32 v{tmp+3}, 8, v{tmp}')
    for ds in range(4):
        k(f'v_xor_b32 v{tmp+4}, {4*ds}, v{tmp+2}')
        k(f'v_lshl_add_u32 v{vKA+ds}, v{tmp+4}, 4, v{tmp+3}')
    k(f'v_lshlrev_b32 v{tmp+3}, 8, v{tmp+1}')
    k(f'v_add_u32 v{tmp+3}, s{sM0}, v{tmp+3}')
    for n in range(4):
        k(f'v_xor_b32 v{tmp+4}, {4*n}, v{tmp+2}')
        k(f'v_lshl_add_u32 v{vKD+n}, v{tmp+4}, 4, v{tmp+3}')
    k(f'v_lshlrev_b32 v{tmp+4}, 1, v{tmp+1}')
    k(f'v_xor_b32 v{tmp+4}, v{tmp+4}, v{tmp}')
    k(f'v_lshl_add_u32 v{vVD}, v{tmp+4}, 4, v{tmp+3}')
    k(f'v_xor_b32 v{tmp+4}, 8, v{tmp+4}')
    k(f'v_lshl_add_u32 v{vVD+1}, v{tmp+4}, 4, v{tmp+3}')
    k(f's_lshl_b32 s48, s{sHEAD}, 19')
    srd_off(k, 20, 4, 's48', 524288)
    srd_off(k, 24, 6, 's48', 524288)
    srd_off(k, 28, 10, WS_O, 16 * MB)
    k(f's_mov_b32 s{sK}, 0')
    k(f's_mov_b32 s{sV}, 0')
    k.srd(32, 32, 4096 * 2048); k.srd(36, 36, 1024 * 7168); k.srd(60, 60, 3584 * 2048)
    sPF, sST0, sST2, sL1, sXB = 59, 56, 49, 46, 41
    vPF, vD0, vD2, vS1, vD1, vN1, vJ1 = 7, 54, 55, 56, 57, 58, 59
    srd_off(k, 72, 10, WS_WO, 36 * MB)
    k(f's_mov_b32 s{sPF}, 0')
    k(f's_mov_b32 s{sL1}, 0')
    k(f's_mov_b32 s{sST0}, 0x70000000')
    k(f's_mov_b32 s{sST2}, 0x70000000')
    k('s_lshl_b32 s48, s2, 12')
    k(f'v_lshl_add_u32 v{vPF}, v0, 4, s48')
    k(f's_lshl_b32 s42, s2, 2')
    k(f's_add_u32 s42, s42, s{sWAVE}')
    k('s_lshr_b32 s43, s42, 1')
    k('s_and_b32 s45, s42, 1')
    k('s_and_b32 s48, s43, 7')
    k('s_lshl_b32 s48, s48, 1')
    k(f'v_xor_b32 v{tmp+4}, s48, v{tmp}')
    k(f'v_lshlrev_b32 v{tmp+4}, 4, v{tmp+4}')
    k(f'v_lshl_add_u32 v{vD0}, v{tmp+1}, 20, v{tmp+4}')
    k('s_lshl_b32 s48, s45, 22')
    k('s_lshl_b32 s62, s43, 8')
    k('s_add_u32 s48, s48, s62')
    k(f'v_add_u32 v{vD0}, s48, v{vD0}')
    if split2:
        k(f'v_mul_u32_u24 v{tmp+5}, {3584*256}, v{tmp+1}')
        k(f'v_add_u32 v{vD2}, v{tmp+4}, v{tmp+5}')
        k(f's_mul_i32 s48, s45, {4*3584*256}')
        k('s_add_u32 s48, s48, s62')
        k(f's_add_u32 s48, s48, {WS_W2 - WS_WO}')
        k(f'v_add_u32 v{vD2}, s48, v{vD2}')
        k(f's_mov_b32 s{sXB}, {WS_XB - WS_WO}')
    else:
        k('s_bfe_u32 s48, s43, 0x20001')
        k('s_lshl_b32 s48, s48, 1')
        k(f'v_and_b32 v{tmp+4}, 7, v1')
        k(f'v_xor_b32 v{tmp+4}, s48, v{tmp+4}')
        k(f'v_lshrrev_b32 v{tmp+5}, 3, v1')
        k(f'v_mul_u32_u24 v{tmp+5}, {3584*128}, v{tmp+5}')
        k(f'v_lshl_add_u32 v{vD2}, v{tmp+4}, 4, v{tmp+5}')
        k(f's_mul_i32 s48, s45, {8*3584*128}')
        k('s_lshl_b32 s62, s43, 7')
        k('s_add_u32 s48, s48, s62')
        k(f's_add_u32 s48, s48, {WS_W2 - WS_WO}')
        k(f'v_add_u32 v{vD2}, s48, v{vD2}')
    k('s_mul_i32 s48, s42, 7168')
    k(f'v_lshl_add_u32 v{vS1}, v1, 4, s48')
    k(f'v_mul_u32_u24 v{tmp+4}, 74, v1')
    k(f'v_lshrrev_b32 v{tmp+4}, 10, v{tmp+4}')
    k(f'v_mul_u32_u24 v{tmp+5}, 14, v{tmp+4}')
    k(f'v_sub_u32 v{vJ1}, v1, v{tmp+5}')
    k(f'v_mul_u32_u24 v{tmp+4}, {1024*224}, v{tmp+4}')
    k(f'v_lshl_add_u32 v{vN1}, v{vJ1}, 4, v{tmp+4}')
    k('s_mul_i32 s48, s42, 224')
    k(f's_add_u32 s48, s48, {WS_W1 - WS_WO}')
    k(f'v_add_u32 v{vN1}, s48, v{vN1}')
    k(f'v_mov_b32 v{vD1}, 0x70000000')
    k(f'v_mov_b32 v60, {1024*224 - 224}')
    k('s_mov_b32 s62, 3584 * 2048')
    GA = [48, 49, 50, 51, 52, 53, 63, 2]; vGW, vGS, vGT0, vGT1, vGA, vGB = 28, 27, 26, 3, 4, 5
    sGW, sGS = 76, 77
    k.srd(64, 64, 1024 * 12288)
    srd_off(k, 68, 10, 0, WS_MP2 + 16 * 16384)
    k(f'v_lshrrev_b32 v{vGB}, 3, v1')
    k(f'v_mul_u32_u24 v{vGA}, 12288, v{vGB}')
    k(f'v_and_b32 v{vGT1}, 7, v1')
    k(f'v_lshl_add_u32 v{vGA}, v{vGT1}, 4, v{vGA}')
    k(f'v_lshlrev_b32 v{vGB}, 2, v{vGB}')
    k('s_and_b32 s48, s42, 15')
    k(f's_mul_i32 s{sGW}, s48, {64*12288}')
    k('s_lshr_b32 s43, s2, 2')
    k('s_lshl_b32 s45, s43, 7')
    k(f's_add_u32 s{sGW}, s{sGW}, s45')
    k(f's_add_u32 s{sGW}, s{sGW}, 4096')
    k(f's_lshl_b32 s{sGS}, s48, 8')
    k(f's_add_u32 s{sGS}, s{sGS}, {WS_SC}')
    k('s_lshl_b32 s48, s48, 14')
    k('s_lshl_b32 s43, s43, 8')
    k('s_add_u32 s43, s43, s48')
    k(f's_add_u32 s43, s43, {WS_MP2}')
    for r in GA: k(f'v_mov_b32 v{r}, 0')
    k.code_srd(4, Ltail)
    k('s_lshr_b32 s8, s2, 3')
    k('s_lshl_b32 s8, s8, 12')
    k('v_lshlrev_b32 v6, 4, v0')
    gld = [f'buffer_load_dwordx4 {R4("v", vGW)}, v{vGA}, s[64:67], s{sGW} offen',
           f'buffer_load_dword v{vGS}, v{vGB}, s[68:71], s{sGS} offen',
           f's_add_u32 s{sGW}, s{sGW}, {8*12288}', f's_add_u32 s{sGS}, s{sGS}, 32']
    gfma = []
    for j in range(4):
        gfma += [f'v_lshlrev_b32 v{vGT0}, 16, v{vGW+j}', f'v_and_b32 v{vGT1}, 0xffff0000, v{vGW+j}',
                 f'v_fmac_f32 v{GA[2*j]}, v{vGT0}, v{vGS}', f'v_fmac_f32 v{GA[2*j+1]}, v{vGT1}, v{vGS}']
    k(f's_mov_b32 s{sTH}, 0x{f2u(2.0**thresh_log2):08x}')
    g.stamp_first = 1
    g.emit(loop_sreg=None)
    k.stamp(2)
    k('s_waitcnt vmcnt(16)')
    k('s_barrier')
    Kfr = lambda kb, ds: aF + 32 + (4 * kb + ds) * 4
    Vfr = lambda db: aF + 4 * db
    def kread(unit, kb, ds, dst=None):
        off = SL((unit >> 1) & 3) + ((unit & 1) * 32 + kb * 16) * 256
        return f'ds_read_b128 {R4("a", Kfr(kb, ds) if dst is None else dst)}, v{vKA+ds} offset:{off}'
    def vread(unit, db, hf):
        off = SL((unit >> 1) & 3) + ((unit & 1) * 32 + hf * 16) * 256
        return f'ds_read_b64_tr_b16 {R2("a", Vfr(db) + 2*hf)}, v{vVA+db} offset:{off}'
    for kb in range(2):
        for ds in range(4): k(kread(0, kb, ds, dst=Vfr(4 * kb + ds)))
    sc = math.log2(math.e) / math.sqrt(128.0)
    k(f'v_mov_b32 v46, 0x{f2u(sc):08x}'); k(f'v_mov_b32 v47, 0x{f2u(sc):08x}')
    Qf = lambda qb, ds: vQ + (qb * 4 + ds) * 4
    for u in range(4):
        for qb in range(4):
            p = Qf(qb, u)
            for h in range(2):
                A = acc0 + ((2 * u + h) * 4 + qb) * 4
                k(f'v_pk_mul_f32 {R2("v", A)}, {R2("v", A)}, {R2("v", 46)}')
                k(f'v_pk_mul_f32 {R2("v", A+2)}, {R2("v", A+2)}, {R2("v", 46)}')
                k(f'v_cvt_pk_bf16_f32 v{p+2*h}, v{A}, v{A+1}')
                k(f'v_cvt_pk_bf16_f32 v{p+2*h+1}, v{A+2}, v{A+3}')
        for sw in ('32', '16'):
            for qb in range(4):
                p = Qf(qb, u)
                k(f'v_permlane{sw}_swap_b32 v{p}, v{p+2}')
                k(f'v_permlane{sw}_swap_b32 v{p+1}, v{p+3}')
    k('s_waitcnt lgkmcnt(0)')
    for kb in range(2):
        for ds in range(4): k(kread(1, kb, ds))
    Sb = lambda N, kb, qb: vS + 32 * (N & 1) + (kb * 4 + qb) * 4
    Pb = lambda N, qb: vP + 16 * (N & 1) + 4 * qb
    Lb = lambda qb: vL + 4 * qb
    NM = lambda qb: vNM + 4 * qb
    def qk(N, kb, ds, qb, fr=None, czero=False):
        d = R4('v', Sb(N, kb, qb))
        c = ('0' if czero else R4('v', NM(qb))) if ds == 0 else d
        return f'{MF} {d}, {R4("a", Kfr(kb, ds) if fr is None else fr)}, {R4("v", Qf(qb, ds))}, {c}'
    def pv(N, db, qb):
        d = R4('a', aO + (db * 4 + qb) * 4)
        return f'{MF} {d}, {R4("a", Vfr(db))}, {R4("v", Pb(N, qb))}, {d}'
    def ones(N, qb):
        return f'{MF} {R4("v", Lb(qb))}, {R4("v", vONE)}, {R4("v", Pb(N, qb))}, {R4("v", Lb(qb))}'
    def E(N, i):
        return f'v_exp_f32 v{vE + (i & 7)}, v{Sb(N, i >> 4, (i >> 2) & 3) + (i & 3)}'
    def C(N, j):
        i = 2 * j
        return f'v_cvt_pk_bf16_f32 v{Pb(N, (i >> 2) & 3) + 2 * (i >> 4) + ((i >> 1) & 1)}, v{vE + (i & 7)}, v{vE + (i & 7) + 1}'
    def xmax(D, X):
        for sw in ('16', '32'):
            k(f'v_mov_b32 v{X}, v{D}')
            k('s_nop 1')
            k(f'v_permlane{sw}_swap_b32 v{D}, v{X}')
            k(f'v_max_f32 v{D}, v{D}, v{X}')
    def interleave(mf, fill, cap=2):
        fi = 0
        for gi, m in enumerate(mf):
            k(m)
            used = 0
            while fi < len(fill) and fill[fi][2] <= gi and used + fill[fi][1] <= cap:
                k(fill[fi][0]); used += fill[fi][1]; fi += 1
        for x in fill[fi:]: k(x[0])

    NG = 68
    def build_iter(N):
        T = (N - 1) >> 1
        first_in_pair = (N & 1) == 1
        mf = [pv(N - 1, db, qb) for db in range(8) for qb in range(4)]
        mf += [ones(N - 1, qb) for qb in range(4)]
        import sys
        if 'nochain' in sys.argv: mf += [qk(N + 1, kb, ds, qb) for kb in range(2) for ds in range(4) for qb in range(4)]
        else: mf += [qk(N + 1, kb, ds, qb) for kb in range(2) for qb in range(4) for ds in range(4)]
        first = [[] for _ in range(NG)]; rest = [[] for _ in range(NG)]; cost = [0] * NG
        def put(g, ins, mem=False, c=1):
            (first if mem else rest)[g].append(ins); cost[g] += c
        for i in range(32):
            gp = E0 + 2 * i
            if gp < NG: put(gp, E(N + 1, i), c=2)
            else: put(gp - NG, E(N, i), c=2)
        for j in range(16):
            gp = E0 + 2 * (2 * j + 1) + 1
            if gp < NG: put(gp, C(N + 1, j))
            else: put(gp - NG, C(N, j))
        rd = []
        for db in range(8):
            for hf in range(2):
                gp = 4 * db - lead + 2 * hf
                rd.append((gp % NG, vread(N - 1 if gp >= 0 else N, db, hf), ('V', db) if gp >= 0 else ('Vn', db)))
        for i in range(8):
            gp = 36 + 4 * i - lead
            rd.append((gp, kread(N + 1, i >> 2, i & 3), ('K', i)))
        rd.sort(key=lambda x: x[0])
        for gp, ins, tag in rd: put(gp, ins, mem=True)
        cyc = [(gp - NG, 'V' if tag[0] == 'Vn' else 'old', tag[1]) for gp, _, tag in rd] + \
              [(gp, tag[0], tag[1]) for gp, _, tag in rd]
        waits = {}
        for at, kind, hi in ((0, 'V', 3), (16, 'V', 7), (36, 'K', 3), (52, 'K', 7)):
            lastidx = max(i for i, x in enumerate(cyc) if x[1] == kind and x[2] == hi)
            n_after = sum(1 for i, x in enumerate(cyc) if i > lastidx and x[0] < at)
            assert cyc[lastidx][0] < at
            waits[at] = n_after
        for at in (16, 36, 52): put(at - 1, f's_waitcnt lgkmcnt({waits[at]})')
        put(NG - 1, f's_waitcnt lgkmcnt({waits[0]})')
        def putv(gp, ins):
            if 'plainpack' in sys.argv and ins.startswith('buffer_store'): ins += ' ; plain'
            assert cost[gp] == 0, (N, gp, first[gp], rest[gp])
            put(gp, ins, mem=True, c=2 if excl else 1)
        def puts(gp, seq, hi=NG):
            for ins in seq:
                while cost[gp] >= 2: gp += 1
                assert gp < hi, (N, ins)
                put(gp, ins)
                if ins.startswith('v_cmp'): gp += 2
        if not first_in_pair:
            X = lambda T: (2 if T % 4 in (1, 2) else 1) + (2 if T % 4 == 1 else 0) + (2 if T % 4 == 2 and split2 else 0)
            npf = X(T - 1) + X(T)
            if T % 4 == 0: npf -= 1
            put(19, f's_waitcnt vmcnt({12 + npf})'); put(19, 's_barrier')
            d = [x[0] for x in kdma(T % 4) if x[0] != 's_nop 0']
            put(15, d[0])
            for gp, ins in zip((23, 27, 31, 39), d[1:5]): putv(gp, ins)
            if T % 4 == 1:
                putv(7, gld[0]); putv(11, gld[1]); puts(35, gld[2:])
            if T % 4 == 2 and split2:
                putv(7, f'buffer_store_dwordx4 a[208:211], v{vPF}, s[72:75], s{sXB} offen'); putv(11, f'buffer_store_dwordx4 a[208:211], v{vT+3}, s[72:75], s{sXB} offen'); put(35, f's_add_u32 s{sXB}, s{sXB}, 0x100000')
            puts(43, d[5:])
            if T % 4 == 0: puts(0, gfma)
        else:
            d = [x[0] for x in vdma((T + 3) % 4) if x[0] != 's_nop 0']
            put(5, d[0])
            for gp, ins in zip((7, 11, 19, 23), d[1:5]): putv(gp, ins)
            puts(43, d[5:])
            if T % 4 == 0:
                putv(31, f'buffer_load_dwordx4 a[192:195], v{vPF}, s[32:35], s{sPF} offen ; pf')
            if T % 4 == 1:
                putv(27, f'buffer_store_dwordx4 a[196:199], v{vD1}, s[72:75], 0 offen')
                putv(31, f'buffer_load_dwordx4 a[196:199], v{vS1}, s[36:39], s{sL1} offen')
                puts(35, [f'v_mov_b32 v{vD1}, v{vN1}',
                        f'v_add_u32 v{vJ1}, 8, v{vJ1}',
                        f'v_add_u32 v{vN1}, {4*1024*224 + 128}, v{vN1}',
                        f'v_cmp_lt_u32 vcc, 13, v{vJ1}',
                        f's_add_u32 s{sL1}, s{sL1}, 1024',
                        f'v_cndmask_b32 v61, 0, v60, vcc',
                        f'v_cndmask_b32 v62, 0, 14, vcc',
                        f'v_add_u32 v{vN1}, v61, v{vN1}',
                        f'v_sub_u32 v{vJ1}, v{vJ1}, v62'])
            if T % 4 == 2:
                putv(27, f'buffer_store_dwordx4 a[200:203], v{vD2}, s[72:75], s{sST2} offen')
                putv(31, f'buffer_load_dwordx4 a[200:203], v{vPF}, s[60:63], s{sPF} offen')
            if T % 4 == 3:
                putv(27, 'buffer_load_dwordx4 a[204:207], v6, s[4:7], s8 offen ; pf')
                put(15, f's_lshr_b32 s{sST2}, s{sPF}, {3 if split2 else 4}')
                put(31, f's_add_u32 s{sPF}, s{sPF}, 0x100000')
                put(31, f's_sub_u32 s{sCNT}, s{sCNT}, 1')
        out = []
        for gi in range(NG):
            fl = first[gi] + rest[gi]
            if 'nobar' in dbg: fl = [x for x in fl if x != 's_barrier']
            if 'novm' in dbg: fl = [x for x in fl if not x.startswith(('buffer_', 's_waitcnt vmcnt'))]
            if 'nopack' in dbg: fl = [x for x in fl if not (x.startswith('buffer_') and not x.endswith(' lds'))]
            if 'nopack' in dbg: fl = ['s_waitcnt vmcnt(12)' if x.startswith('s_waitcnt vmcnt') else x for x in fl]
            for md in ('sc1', 'nt', 'sc0'):
                if 'kv' + md in dbg: fl = [x.replace(' lds', f' {md} lds') if x.endswith(' lds') else x for x in fl]
            if 'nods' in dbg: fl = [x for x in fl if not x.startswith(('ds_', 's_waitcnt lgkm'))]
            if 'noexp' in dbg: fl = [x for x in fl if not x.startswith('v_exp')]
            if 'nocvt' in dbg: fl = [x for x in fl if not x.startswith('v_cvt')]
            out.append(mf[gi]); out += fl
            if cost[gi] > 2: print('gap over', N, gi, cost[gi], first[gi] + rest[gi])
        return out, waits[0], rd

    mf0 = [qk(0, kb, ds, qb, fr=Vfr(4 * kb + ds), czero=True) for kb in range(2) for ds in range(4) for qb in range(4)]
    D = lambda qb: vE + qb
    X = lambda qb: vE + 4 + qb
    k(f's_mov_b32 s9, 0x{f2u(-float(bias)):08x}')
    f0 = [(f'v_add_u32 v{vT+3}, 0x800000, v{vPF}', 1, 0)] + [(f'v_accvgpr_write_b32 a{208+i}, -1', 1, 0) for i in range(4)] + [(f'v_mov_b32 v{vL+i}, 0', 1, 0) for i in range(16)] + [(f'v_mov_b32 v{vONE+i}, 0x3f803f80', 1, 0) for i in range(4)]
    for qb in range(4): f0.append((f'v_max3_f32 v{D(qb)}, v{Sb(0,0,qb)}, v{Sb(0,0,qb)+1}, v{Sb(0,0,qb)+2}', 1, 22))
    for qb in range(4): f0.append((f'v_max_f32 v{D(qb)}, v{D(qb)}, v{Sb(0,0,qb)+3}', 1, 0))
    interleave(mf0, f0)
    k('s_waitcnt lgkmcnt(0)')
    mf1 = [qk(1, kb, ds, qb, czero=True) for kb in range(2) for ds in range(4) for qb in range(4)]
    vn = [ins for gp, ins, tag in build_iter(0)[2] if tag[0] == 'Vn']
    f1 = [(x, 1, 0) for x in vn]
    for (M, kb, mg) in ((0, 1, 8), (1, 0, 20)):
        for h in range(2):
            for qb in range(4):
                f1.append((f'v_max3_f32 v{D(qb)}, v{D(qb)}, v{Sb(M,kb,qb)+2*h}, v{Sb(M,kb,qb)+2*h+1}', 1, mg + qb // 2))
    for sw in ('16', '32'):
        for qb in range(4): f1.append((f'v_mov_b32 v{X(qb)}, v{D(qb)}', 1, 0))
        for qb in range(4): f1.append((f'v_permlane{sw}_swap_b32 v{D(qb)}, v{X(qb)}', 1, 0))
        for qb in range(4): f1.append((f'v_max_f32 v{D(qb)}, v{D(qb)}, v{X(qb)}', 1, 0))
    for r in range(4):
        for qb in range(4): f1.append((f'v_sub_f32 v{NM(qb)+r}, s9, v{D(qb)}', 1, 0))
    interleave(mf1, f1)
    for M in range(2):
        for kb in range(2):
            for qb in range(4):
                for h in range(2):
                    r = Sb(M, kb, qb) + 2 * h
                    k(f'v_pk_add_f32 {R2("v", r)}, {R2("v", r)}, {R2("v", NM(qb))}')
    for i in range(0, 32, 2):
        k(E(0, i)); k(E(0, i + 1))
        if i: k(C(0, (i >> 1) - 1))
    k('s_nop 0')
    k(C(0, 15))
    for i in range(32):
        if E0 + 2 * i < NG: k(E(1, i)); k('s_nop 0')
        if i & 1 and E0 + 2 * i + 1 < NG: k(C(1, i >> 1))
    k(f's_mov_b32 s{sCNT}, 7')
    k(f's_waitcnt lgkmcnt({build_iter(1)[1]})')
    k.stamp(3)
    k(f'{Lloop}:')
    for N in range(1, 9):
        ins, w0, _ = build_iter(N)
        cnt = 0
        for idx, x in enumerate(ins):
            if x.startswith(MF):
                if N == 7 and cnt == 36:
                    k(f's_cbranch_scc1 {Ltail}')
                    tail_rest = ins[idx:]
                cnt += 1
            if N == 7 and 33 <= cnt <= 36: assert not (x.startswith('s_') and not x.startswith('s_waitcnt')), x
            k(x)
    k(f's_branch {Lloop}')
    k(f'{Ltail}:')
    k.stamp(4)
    N = 7
    for db in range(8):
        for hf in range(2): k(vread(N, db, hf))
    for x in tail_rest:
        if x.startswith('v_exp') and any(x == E(N, i) for i in range(32)): k(x); k('s_nop 0')
        elif x.startswith('v_cvt') and any(x == C(N, j) for j in range(16)): k(x)
    k('s_waitcnt lgkmcnt(0)')
    k('s_nop 0')
    red = [f'v_add_f32_dpp v{r}, v{r}, v{r} row_ror:8 row_mask:0xf bank_mask:0xf' for r in GA]
    red += [f'v_permlane16_swap_b32 v{GA[j]}, v{GA[j+1]}' for j in range(0, 8, 2)]
    red += [f'v_add_f32 v{GA[j]}, v{GA[j]}, v{GA[j+1]}' for j in range(0, 8, 2)]
    red += [f'v_and_b32 v{vGA}, 7, v1', f'v_lshrrev_b32 v{vGB}, 4, v1']
    red += [f'v_permlane32_swap_b32 v{GA[0]}, v{GA[2]}', f'v_permlane32_swap_b32 v{GA[4]}, v{GA[6]}']
    red += [f'v_add_f32 v{GA[0]}, v{GA[0]}, v{GA[2]}', f'v_add_f32 v{GA[4]}, v{GA[4]}, v{GA[6]}']
    red += [f'v_lshl_add_u32 v{vGA}, v{vGA}, 3, v{vGB}', f'v_lshlrev_b32 v{vGA}, 2, v{vGA}']
    red += [f'buffer_store_dword v{GA[0]}, v{vGA}, s[68:71], s43 offen sc1', f'buffer_store_dword v{GA[4]}, v{vGA}, s[68:71], s43 offen offset:16 sc1']
    for qb in range(4): k(ones(N, qb))
    for db in range(8):
        for qb in range(4):
            k(pv(N, db, qb))
            if red: k(red.pop(0))
    assert not red
    k(f'v_max3_f32 v{vT}, v{Lb(0)}, v{Lb(1)}, v{Lb(2)}')
    k(f'v_max_f32 v{vT}, v{vT}, v{Lb(3)}')
    k(f'v_cmp_nge_f32 vcc, s{sTH}, v{vT}')
    k(f's_cbranch_vccnz {Lslow}')
    k('s_mov_b64 s[66:67], -1')
    k(f'{Lepi}:')
    k('s_setreg_imm32_b32 hwreg(HW_REG_MODE, 4, 2), 3')
    RC = vE
    for qb in range(4):
        k(f'v_rcp_f32 v{RC+2*qb}, v{Lb(qb)}')
        k('s_nop 0')
        k(f'v_mov_b32 v{RC+2*qb+1}, v{RC+2*qb}')
    k('v_lshlrev_b32 v6, 4, v1')
    k(f's_lshl_b32 s48, s{sHEAD}, 9')
    k(f's_add_u32 s48, s48, s{sMB0}')
    k('s_lshl_b32 s48, s48, 10')
    n = 0
    for u in range(4):
        for qb in range(4):
            X = vS + (n % 4) * 8; D = vP + (n % 4) * 4; n += 1
            for h in range(2):
                a = aO + ((2 * u + h) * 4 + qb) * 4
                for r in range(4): k(f'v_accvgpr_read_b32 v{X+4*h+r}, a{a+r}')
            if u == 0:
                k(f'v_max3_f32 v{vT+1}, abs(v{X}), abs(v{X+1}), abs(v{X+2})')
                k(f'v_max3_f32 v{vT+1}, v{vT+1}, abs(v{X+3}), abs(v{X+4})')
                k(f'v_max3_f32 v{vT+1}, v{vT+1}, abs(v{X+5}), abs(v{X+6})')
                k(f'v_mov_b32 v{vT}, v{vT+1}' if qb == 0 else f'v_min_f32 v{vT}, v{vT}, v{vT+1}')
            for j in range(4): k(f'v_pk_mul_f32 {R2("v", X+2*j)}, {R2("v", X+2*j)}, {R2("v", RC+2*qb)}')
            for j in range(4): k(f'v_cvt_pk_bf16_f32 v{D+j}, v{X+2*j}, v{X+2*j+1}')
            k(f'buffer_store_dwordx4 {R4("v", D)}, v6, s[28:31], s48 offen offset:{qb*1024}')
        if u == 0:
            k(f'v_cmp_gt_f32 vcc, 0x{ufl:08x}, v{vT}')
            k('s_and_b64 vcc, vcc, s[66:67]')
            k(f's_cbranch_vccnz {Lslow}')
        if u < 3: k('s_add_u32 s48, s48, 131072')
    Lnext = k.label('next')
    if then:
        k('s_setreg_imm32_b32 hwreg(HW_REG_MODE, 4, 2), 0')
        k(f's_branch {Lnext}')
    else:
        k.stamp_out(kidx)
    k(f'{Lend}:')
    k('s_endpgm')

    k(f'{Lslow}:')
    k('s_waitcnt vmcnt(0)')
    k('s_mov_b64 s[66:67], 0')
    MX = vL + 16
    vKG = vL + 20
    vVP = vL + 22
    vVG = vL + 30
    k(f'v_and_b32 v{tmp}, 15, v1')
    k(f'v_lshrrev_b32 v{tmp+1}, 4, v1')
    k(f'v_lshlrev_b32 v{vKG}, 8, v{tmp}')
    k(f'v_lshl_add_u32 v{vKG}, v{tmp+1}, 4, v{vKG}')
    k(f'v_add_u32 v{vKG+1}, 4096, v{vKG}')
    k(f's_lshl_b32 s48, s{sWAVE}, 13')
    k(f's_add_u32 s48, s48, {SL(8)}')
    k(f's_sub_u32 s49, s48, 0x10000')
    for db in range(8): k(f'v_add_u32 v{vVP+db}, s49, v{vVA+db}')
    for j in range(2): k(f'v_subrev_u32 v{vVG+j}, s{sM0}, v{vVD+j}')
    for qb in range(4): k(f'v_mov_b32 v{MX+qb}, 0xff7fffff')
    for i in range(16): k(f'v_mov_b32 v{vNM+i}, 0')
    k(f's_mov_b32 s{sFIRST}, 0')
    Lp = k.label('spass'); Lu = k.label('sunit'); Lp1 = k.label('sp1'); Lnx = k.label('snext'); Lnov = k.label('snov')
    k(f'{Lp}:')
    k(f's_mov_b32 s{sK}, 0')
    k(f'{Lu}:')
    for kb in range(2):
        for ds in range(4):
            k(f'buffer_load_dwordx4 {R4("a", Kfr(kb, ds))}, v{vKG+kb}, s[20:23], s{sK} offen offset:{ds*64}')
    k(f's_cmp_eq_u32 s{sFIRST}, 0')
    k(f's_cbranch_scc1 {Lnov}')
    for half in range(2):
        k(f's_add_u32 m0, s48, {half*4096}')
        k(f's_add_u32 s49, s{sK}, {half*4096}')
        for n in range(4):
            k(f'buffer_load_dwordx4 v{vVG+(n&1)}, s[24:27], s49 offen offset:{n*1024} lds')
    k(f'{Lnov}:')
    k('s_waitcnt vmcnt(0)')
    for kb in range(2):
        for ds in range(4):
            for qb in range(4): k(qk(0, kb, ds, qb))
    k('s_nop 7')
    k(f's_cmp_eq_u32 s{sFIRST}, 0')
    k(f's_cbranch_scc0 {Lp1}')
    for qb in range(4):
        regs = [Sb(0, kb, qb) + r for kb in range(2) for r in range(4)]
        for i in range(0, 8, 2): k(f'v_max3_f32 v{MX+qb}, v{MX+qb}, v{regs[i]}, v{regs[i+1]}')
    k(f's_branch {Lnx}')
    k(f'{Lp1}:')
    for db in range(8):
        for hf in range(2):
            k(f'ds_read_b64_tr_b16 {R2("a", Vfr(db) + 2*hf)}, v{vVP+db} offset:{hf*4096}')
    for i in range(0, 32, 2):
        k(E(0, i)); k(E(0, i + 1)); k('s_nop 0'); k(C(0, i >> 1))
    k('s_waitcnt lgkmcnt(0)')
    k('s_nop 0')
    for qb in range(4): k(ones(0, qb))
    for db in range(8):
        for qb in range(4): k(pv(0, db, qb))
    k(f'{Lnx}:')
    k(f's_add_u32 s{sK}, s{sK}, 8192')
    k(f's_cmp_lt_u32 s{sK}, 524288')
    k(f's_cbranch_scc1 {Lu}')
    k('s_nop 7')
    k(f's_cmp_eq_u32 s{sFIRST}, 0')
    k(f's_cbranch_scc0 {Lepi}')
    for qb in range(4):
        xmax(MX + qb, vT)
        for r in range(4): k(f'v_sub_f32 v{NM(qb)+r}, 0, v{MX+qb}')
    for i in range(16): k(f'v_mov_b32 v{vL+i}, 0')
    for i in range(128): k(f'v_accvgpr_write_b32 a{aO+i}, 0')
    k(f's_mov_b32 s{sFIRST}, 1')
    k(f's_branch {Lp}')
    k.noreplay = {Lepi, Lp}
    if then:
        k(f'{Lnext}:')
        then(k)
    return k
```

```python
from gen_gk import *

import sys
FSH = 7
SLEEP = 4
for a in sys.argv:
    if a.startswith('sleep='): SLEEP = int(a[6:])
LATE = 'early' not in sys.argv
P3 = 'p3' in sys.argv
sWS, sB1, sOUT, sB2, sWAVE = 4, 6, 8, 10, 44
vW = 8

def sentinel(k, regs, acc):
    k(f'v_max3_u32 v{acc}, v{regs[0]}, v{regs[1]}, v{regs[2]}')
    i = 3
    while i + 1 < len(regs):
        k(f'v_max3_u32 v{acc}, v{acc}, v{regs[i]}, v{regs[i+1]}'); i += 2
    if i < len(regs): k(f'v_max_u32 v{acc}, v{acc}, v{regs[i]}')

def publish(k, s_off):
    L = k.label('pub')
    k('s_waitcnt vmcnt(0)')
    k('s_barrier')
    k(f's_cmp_lg_u32 s{sWAVE}, 0')
    k(f's_cbranch_scc1 {L}')
    k('v_mov_b32 v3, 0')
    k('v_mov_b32 v4, 1')
    k(f'buffer_store_dword v4, v3, s[68:71], s{s_off} offen sc1')
    k(f'{L}:')

def await_flags(k, s_off, n):
    L = k.label('aw'); Ld = k.label('awd')
    k(f's_cmp_lg_u32 s{sWAVE}, 0')
    k(f's_cbranch_scc1 {Ld}')
    if n: k(f'v_and_b32 v3, {n-1}, v1')
    k(f'v_lshlrev_b32 v3, {FSH}, v3')
    k('s_mov_b32 s53, 0x80000')
    k(f'{L}:')
    if SLEEP: k(f's_sleep {SLEEP}')
    k(f'buffer_load_dword v4, v3, s[68:71], s{s_off} offen sc1')
    k('s_sub_u32 s53, s53, 1')
    k('s_cselect_b64 s[58:59], 0, -1')
    k('s_waitcnt vmcnt(0)')
    k('v_cmp_eq_u32 vcc, 0, v4')
    k('s_and_b64 vcc, vcc, s[58:59]')
    k(f's_cbranch_vccnz {L}')
    k(f'{Ld}:')
    k('s_barrier')

def coords_128(k):
    k('s_bfe_u32 s40, s2, 0x10002')
    k('s_bfe_u32 s42, s2, 0x10001')
    k('s_lshl_b32 s42, s42, 3')
    k('s_lshr_b32 s43, s2, 5')
    k('s_add_u32 s42, s42, s43')
    k('s_and_b32 s43, s2, 1')
    k('s_lshl_b32 s43, s43, 2')
    k('s_bfe_u32 s41, s2, 0x20003')
    k('s_add_u32 s43, s43, s41')
    k('s_lshl_b32 s47, s42, 3')
    k(f's_lshl_b32 s48, s{sWAVE}, 1')
    k('s_add_u32 s47, s47, s48')

def gen_back(kidx=3, k=None):
    S = 8; MODL = S * 16384
    fused = k is not None
    if not fused:
        k = Kern('oproj_kernel', (256, 1, 1), (256, 1, 1), MODL + 12288, vgpr=256, agpr=220, sgpr=78)
    k.plain_stores = True
    Lend = k.label('end')
    if not fused:
        k('s_cmp_ge_u32 s2, 256')
        k(f's_cbranch_scc1 {Lend}')
        k.stamp(0)
    st = (lambda i: None) if fused else k.stamp
    k(f's_load_dwordx2 s[{sWS}:{sWS+1}], s[0:1], {A_WS}')
    k(f's_load_dwordx2 s[28:29], s[0:1], {A_X}')
    k(f's_load_dwordx2 s[{sB1}:{sB1+1}], s[0:1], {A_B1}')
    k(f's_load_dwordx2 s[{sOUT}:{sOUT+1}], s[0:1], {A_OUT}')
    k(f's_load_dwordx2 s[{sB2}:{sB2+1}], s[0:1], {A_B2}')
    k(f's_load_dwordx2 s[12:13], s[0:1], {A_WO}')
    k('v_and_b32 v1, 63, v0')
    k('v_lshrrev_b32 v2, 6, v0')
    k('s_nop 0')
    k(f'v_readfirstlane_b32 s{sWAVE}, v2')
    NA, NB, LP, RA, PD = 8, 2, 256, 8, 4
    coords_128(k)
    vX = 12; vA = 16; vA2 = 24; tmp = 32
    k(f's_lshl_b32 s52, s{sWAVE}, 12')
    k(f'v_lshl_add_u32 v{vW}, v1, 4, s52')
    wd = [(vW, n * 1024) for n in range(4)]
    wdo = wdma_regs(k, 56, LP, 2048, 16, tmp, 1, sWAVE)
    k('s_lshl_b32 s48, s47, 10')
    k(f'v_lshl_add_u32 v{vX}, v1, 4, s48')
    k(f'v_add_u32 v{vX+1}, 0x20000, v{vX}')
    k('s_lshl_b32 s50, s43, 8')
    k('s_lshl_b32 s48, s40, 22')
    k('s_add_u32 s50, s50, s48')
    k('s_lshl_b32 s51, s40, 23')
    k('s_waitcnt lgkmcnt(0)')
    k.srd(12, 12, 4096 * 2048)
    srd_off(k, 16, sWS, WS_O, 16 * MB)
    srd_off(k, 68, sWS, WS_FL, 768 << FSH)
    acc0 = 64; XR = 128
    ext = {}
    g = Gemm(k, NA, NB, LP, S, PD, RA, 32,
             acc=lambda a, b: R4('v', acc0 + (a * NB + b) * 4),
             aring=lambda s: ('a', 16 * S + 4 * s),
             bring=lambda st, ks, b: R4('a', st * 16 + (ks * NB + b) * 4),
             vA=[[vA + a for a in range(NA)], [vA2 + a for a in range(NA)]], lds_base=0,
             srdW=12, sW=50, wpitch=2048, wdma=wdo, sM0=52, srdX=16, sX=51, vX=[vX, vX + 1], wait_every=2,
             extra_loads=lambda t: ext.get(t, []), xmod=' sc1', pre_w=fused)
    if fused:
        k(f's_lshl_b32 s45, s2, {FSH}')
        k(f's_add_u32 s45, s45, {512 << FSH}')
        publish(k, 45)
        k.stamp(5)
        for x in g.wpreload(): k(x)
        k('v_and_b32 v3, 3, v1')
        k('v_bfe_u32 v4, v1, 2, 2')
        k('v_lshl_add_u32 v4, v3, 3, v4')
        k('s_lshr_b32 s45, s42, 1')
        k('s_lshl_b32 s45, s45, 5')
        k('s_lshl_b32 s46, s40, 2')
        k('s_add_u32 s45, s45, s46')
        k('v_add_u32 v4, s45, v4')
        k('s_and_b32 s45, s2, 0xfc')
        k('v_add_u32 v3, s45, v3')
        k('v_cmp_gt_u32 vcc, 16, v1')
        k(f's_mov_b32 s45, {512 << FSH}')
        k('s_nop 0')
        k('v_cndmask_b32 v3, v3, v4, vcc')
        await_flags(k, 45, 0)
        k.stamp(6)
    g.make_sched(*((5, [2]) if fused else (3, [1, 2, 2, 2, 2])))
    g.prologue_loads()
    tr_addr_regs(k, vA, NA, LP, tmp, 1)
    for a in range(NA): k(f'v_add_u32 v{vA2+a}, 0x10000, v{vA+a}')
    fin = mod_finalize(k, sWS, 56, 40, 1)
    g.vq += ['m'] * 4
    rec = Kern('rec', None, None, 0, 0); fin(rec)
    ext[5 if fused else 2] = [[x] for x in rec.lines]
    Ltail = k.label('tail')
    k.code_srd(32, Ltail)
    k('s_lshr_b32 s55, s2, 3')
    k('s_lshl_b32 s55, s55, 12')
    k('v_lshlrev_b32 v52, 4, v0')
    k.srd(28, 28, 4 * MB)
    k.srd(72, sB2, 2048)
    srd_off(k, 24, sWS, WS_P, 8 * MB)
    srd_off(k, 20, sWS, WS_MOD32 + 8192, 12288)
    srd_off(k, 36, sWS, WS_X1, 4 * MB)
    srd_off(k, 64, sWS, WS_Y, 4 * MB)
    k('v_and_b32 v4, 15, v1')
    k('v_lshrrev_b32 v5, 4, v1')
    k('v_lshlrev_b32 v6, 11, v4')
    k('v_lshl_add_u32 v7, v5, 4, v6')
    k('v_lshlrev_b32 v3, 4, v1')
    k('s_lshl_b32 s48, s47, 15')
    k('s_lshl_b32 s49, s43, 8')
    k('s_add_u32 s48, s48, s49')
    k('s_lshl_b32 s49, s40, 22')
    k('s_add_u32 s48, s48, s49')
    k('s_add_u32 s49, s48, 32768')
    k('s_lshl_b32 s46, s42, 4')
    k('s_lshl_b32 s45, s43, 1')
    k('s_add_u32 s46, s46, s45')
    k('s_add_u32 s46, s46, s40')
    k('s_lshl_b32 s54, s46, 14')
    k(f's_add_u32 s45, s54, {4*MB}')
    k(f's_mul_i32 s41, s{sWAVE}, 3072')
    ext[25] = [['buffer_load_dwordx4 v[48:51], v52, s[32:35], s55 offen ; pf'],
               ['buffer_load_dwordx4 v[48:51], v52, s[72:75], 0 offen ; pf']]
    ext[26] = [[f'buffer_load_dwordx4 {R4("v", XR + 4*j)}, v{vW}, s[28:31], s54 offen offset:{j*1024}'] for j in range(4)]
    allf = [f'buffer_load_dword v{60+j}, v53, s[68:71], s{63 if j & 1 == 0 else 62} offen sc1'.replace('v53', 'v53' if j < 2 else 'v54') for j in range(4)]
    if fused:
        k(f'v_lshlrev_b32 v53, {FSH}, v1')
        k(f'v_add_u32 v54, {128 << FSH}, v53')
        ext[27] = [[f's_mov_b32 s63, {512 << FSH}'], [f's_mov_b32 s62, {576 << FSH}']] + [[x] for x in allf]
    ext[28] = [[f's_add_u32 m0, s41, {MODL}'], ['s_nop 0']] + \
              [[f'buffer_load_dwordx4 v3, s[20:23], s41 offen offset:{j*1024} sc1 lds'] for j in range(3)]
    g.emit(loop_sreg=53)
    if not P3: st(1)
    if fused: k.stamp(7)
    k(f'{Ltail}:')
    if fused:
        La = k.label('allchk'); Lao = k.label('allok')
        k('s_mov_b32 s53, 0x80000')
        k('s_waitcnt vmcnt(3)')
        k(f'{La}:')
        k('v_min3_u32 v4, v60, v61, v62')
        k('v_min_u32 v4, v4, v63')
        k('s_sub_u32 s53, s53, 1')
        k('s_cselect_b64 s[58:59], 0, -1')
        k('v_cmp_eq_u32 vcc, 0, v4')
        k('s_and_b64 vcc, vcc, s[58:59]')
        k(f's_cbranch_vccz {Lao}')
        for x in allf: k(x)
        k('s_waitcnt vmcnt(0)')
        k(f's_branch {La}')
        k(f'{Lao}:')
        k.norep2 = La
    else:
        k('s_nop 5')
    n = 0
    for u in range(4):
        ps = []
        for b in range(NB):
            p = 144 + n * 4; n += 1
            ps.append(p)
            A0 = acc0 + ((2 * u) * NB + b) * 4; A1 = acc0 + ((2 * u + 1) * NB + b) * 4
            k(f'v_cvt_pk_bf16_f32 v{p}, v{A0}, v{A0+1}')
            k(f'v_cvt_pk_bf16_f32 v{p+1}, v{A0+2}, v{A0+3}')
            k(f'v_cvt_pk_bf16_f32 v{p+2}, v{A1}, v{A1+1}')
            k(f'v_cvt_pk_bf16_f32 v{p+3}, v{A1+2}, v{A1+3}')
        for sw in ('32', '16'):
            for p in ps:
                k(f'v_permlane{sw}_swap_b32 v{p}, v{p+2}')
                k(f'v_permlane{sw}_swap_b32 v{p+1}, v{p+3}')
        for b, p in enumerate(ps):
            k(f'buffer_store_dwordx4 {R4("v", p)}, v7, s[24:27], s{48+b} offen offset:{u*64} sc1')
    k('s_waitcnt vmcnt(8)')
    k('s_barrier')
    GA, SB, CB = 176, 192, 208
    X = [64, 80]
    k(f'v_add_u32 v10, {MODL}, v3')
    for base, sec in ((GA, 0), (SB, 1), (CB, 2)):
        for h in range(2):
            for q in range(2):
                k(f'ds_read_b128 {R4("v", base + 8*h + 4*q)}, v10 offset:{sec*4096 + h*2048 + q*1024}')
    for r in range(2):
        unpack8(k, X[r], XR + 8 * r); unpack8(k, X[r] + 8, XR + 8 * r + 4)
    k('s_and_b32 s40, s2, 7')
    k('s_lshr_b32 s41, s2, 3')
    k('s_lshr_b32 s42, s40, 2')
    k('s_lshl_b32 s42, s42, 2')
    k('s_lshr_b32 s43, s41, 3')
    k('s_add_u32 s42, s42, s43')
    k('s_and_b32 s43, s40, 3')
    k('s_lshl_b32 s43, s43, 3')
    k('s_and_b32 s41, s41, 7')
    k('s_add_u32 s43, s43, s41')
    k(f's_cmp_eq_u32 s{sWAVE}, 3')
    k('s_cselect_b32 s41, 0x7ff00000, 0')
    k(f'v_add_u32 v{vW+1}, s41, v{vW}')
    k('s_mul_i32 s62, s43, 224')
    k('s_lshl_b32 s50, s62, 10')
    srd_off(k, 12, sWS, WS_W1, 1024 * 7168)
    k.srd(28, sB1, 7168)
    S1 = 6; BP = 40; BI = 64; acc1 = 96
    ext1 = {}
    g1 = Gemm(k, 7, 4, 224, S1, 4, 7, 16,
              acc=lambda a, b: R4('v', acc1 + (a * 4 + b) * 4),
              aring=lambda s: ('a', 32 * S1 + 4 * s),
              bring=lambda st, ks, b: R4('a', st * 32 + (ks * 4 + b) * 4),
              vA=[[vA] * 7, [vA + 1] * 7], lds_base=32768, aimm=32, tile_bytes=16384,
              srdW=12, sW=50, wpitch=224, wdma=[(vW, 0), (vW, 1024), (vW + 1, 2048), (vW + 1, 3072)],
              sM0=52, srdX=64, sX=51, vX=[vX, vX + 1], cinit=lambda a, b: R4('v', BI + 4 * a),
              extra_loads=lambda t: ext1.get(t, []), pre_w=True, xmod=' sc1')
    g1.wmod = ' sc1'
    k('s_mov_b32 s60, 0x3a800000')
    k('s_mov_b32 s61, 0xba800000')
    k('s_mov_b32 s53, 0x40000')
    k('s_waitcnt lgkmcnt(0)')
    Lm = k.label('modchk'); Lmok = k.label('modok')
    k(f'{Lm}:')
    sentinel(k, list(range(GA, GA + 48)), 4)
    k('s_sub_u32 s53, s53, 1')
    k('s_cselect_b64 s[58:59], 0, -1')
    k('v_cmp_eq_u32 vcc, -1, v4')
    k('s_and_b64 vcc, vcc, s[58:59]')
    k(f's_cbranch_vccz {Lmok}')
    for j in range(12):
        k(f's_mov_b32 s41, {(j >> 2) * 4096}')
        k(f'buffer_load_dwordx4 {R4("v", GA + 4*j)}, v3, s[20:23], s41 offen offset:{(j & 3)*1024} sc1')
    k('s_waitcnt vmcnt(0)')
    k(f's_branch {Lm}')
    k(f'{Lmok}:')
    k('s_mov_b32 s53, 0x40000')
    k('s_waitcnt vmcnt(0)')
    RX = 224
    Lp = k.label('poll')
    k(f'{Lp}:')
    for kh in range(2):
        for j in range(4):
            k(f'buffer_load_dwordx4 {R4("v", RX + 16*kh + 4*j)}, v{vW}, s[24:27], s{54 if kh == 0 else 45} offen offset:{j*1024} sc1')
    k('s_sub_u32 s53, s53, 1')
    k('s_cselect_b64 s[58:59], 0, -1')
    k('s_waitcnt vmcnt(0)')
    sentinel(k, list(range(RX, RX + 32)), 4)
    k('v_cmp_eq_u32 vcc, -1, v4')
    k('s_and_b64 vcc, vcc, s[58:59]')
    k(f's_cbranch_vccnz {Lp}')
    if not P3: st(2)
    streams = []
    for r in range(2):
        q = Kern('rec', None, None, 0, 0)
        U0, U1, T, PK = 96 + 16 * r, 144 + 16 * r, 32 + 4 * r, 128 + 8 * r
        unpack8(q, U0, RX + 8 * r); unpack8(q, U0 + 8, RX + 8 * r + 4)
        unpack8(q, U1, RX + 16 + 8 * r); unpack8(q, U1 + 8, RX + 16 + 8 * r + 4)
        x = X[r]
        for j in range(0, 16, 2): q(f'v_pk_add_f32 {R2("v", U0+j)}, {R2("v", U0+j)}, {R2("v", U1+j)}')
        for j in range(0, 16, 2): q(f'v_pk_fma_f32 {R2("v", x+j)}, {R2("v", U0+j)}, {R2("v", GA+j)}, {R2("v", x+j)}')
        for j in range(8): q(f'v_cvt_pk_bf16_f32 v{PK+j}, v{x+2*j}, v{x+2*j+1}')
        q(f'buffer_store_dwordx4 {R4("v", PK)}, v{vW}, s[36:39], s54 offen offset:{r*2048} sc1')
        q(f'buffer_store_dwordx4 {R4("v", PK+4)}, v{vW}, s[36:39], s54 offen offset:{r*2048+1024} sc1')
        ln_fast(q, x, T, 60)
        for j in range(0, 16, 2): q(f'v_pk_mul_f32 {R2("v", x+j)}, {R2("v", x+j)}, {R2("v", T)}')
        for j in range(0, 16, 2): q(f'v_pk_fma_f32 {R2("v", x+j)}, {R2("v", x+j)}, {R2("v", CB+j)}, {R2("v", SB+j)}')
        ln_fast(q, x, T, 60)
        for j in range(0, 16, 2): q(f'v_pk_mul_f32 {R2("v", x+j)}, {R2("v", x+j)}, {R2("v", T)}')
        for j in range(8): q(f'v_cvt_pk_bf16_f32 v{U0+j}, v{x+2*j}, v{x+2*j+1}')
        streams.append(q.lines)
    k('v_lshlrev_b32 v4, 3, v5')
    pre = [f'buffer_load_dwordx2 {R2("v", BP + 2*a)}, v4, s[28:31], s62 offen offset:{a*32}' for a in range(7)] + \
          ([] if LATE else [x for x in g1.wpreload() if x != 's_nop 0'])
    cnt = 0
    for a, b in zip(*streams):
        if a == 's_nop 1': k('s_nop 0'); continue
        if a == 's_nop 0': continue
        k(a); k(b)
        cnt += 1
        if cnt % 3 == 0 and pre: k(pre.pop(0))
    assert not pre
    k('v_lshrrev_b32 v5, 2, v1')
    k('v_mul_u32_u24 v5, 528, v5')
    k('v_and_b32 v6, 1, v1')
    k('v_lshl_add_u32 v5, v6, 8, v5')
    k('v_bfe_u32 v6, v1, 1, 1')
    k('v_lshl_add_u32 v5, v6, 3, v5')
    k('v_lshl_add_u32 v5, v2, 5, v5')
    for r in range(2):
        P = 96 + 16 * r
        k(f'ds_write_b64 v5, {R2("v", P)} offset:{16*r}')
        k(f'ds_write_b64 v5, {R2("v", P+2)} offset:{16*r+128}')
        k(f'ds_write_b64 v5, {R2("v", P+4)} offset:{16*r+16*528}')
        k(f'ds_write_b64 v5, {R2("v", P+6)} offset:{16*r+16*528+128}')
    k('v_lshrrev_b32 v6, 5, v0')
    k('v_and_b32 v7, 31, v0')
    k('v_mul_u32_u24 v5, 528, v6')
    k('v_lshl_add_u32 v5, v7, 4, v5')
    k('v_lshlrev_b32 v6, 17, v6')
    k('v_bfe_u32 v7, v0, 3, 2')
    k('v_lshl_add_u32 v6, v7, 8, v6')
    k('v_and_b32 v7, 7, v0')
    k('v_lshl_add_u32 v6, v7, 4, v6')
    k('s_lshr_b32 s48, s46, 1')
    k('s_lshl_b32 s48, s48, 10')
    k('s_and_b32 s49, s46, 1')
    k('s_lshl_b32 s49, s49, 7')
    k('s_add_u32 s48, s48, s49')
    k('s_waitcnt lgkmcnt(0)')
    k('s_barrier')
    for j in range(4): k(f'ds_read_b128 {R4("v", 144+4*j)}, v5 offset:{8*528*j}')
    for j in range(4):
        k(f's_waitcnt lgkmcnt({3-j})')
        k(f'buffer_store_dwordx4 {R4("v", 144+4*j)}, v6, s[64:67], s48 offen sc1')
        if j < 3: k(f's_add_u32 s48, s48, {8*131072}')
    k(f's_lshl_b32 s46, s46, {FSH}')
    k(f's_lshl_b32 s45, s42, {5+FSH}')
    k('s_lshl_b32 s47, s42, 4')
    k(f's_lshl_b32 s48, s{sWAVE}, 2')
    k('s_add_u32 s47, s47, s48')
    k('s_lshl_b32 s48, s47, 10')
    k(f'v_lshl_add_u32 v{vX}, v1, 4, s48')
    k(f'v_add_u32 v{vX+1}, 0x20000, v{vX}')
    k('s_mov_b32 s51, 0')
    k(f'v_lshrrev_b32 v{tmp}, 2, v1')
    k(f'v_mul_u32_u24 v{tmp}, 224, v{tmp}')
    k(f'v_and_b32 v{tmp+1}, 3, v1')
    k(f'v_lshl_add_u32 v{vA}, v{tmp+1}, 3, v{tmp}')
    k(f'v_add_u32 v{vA+1}, 0x10000, v{vA}')
    Lepi = k.label('epi')
    k.code_srd(32, Lepi)
    k('v_lshlrev_b32 v60, 4, v0')
    ext1[11] = [['buffer_load_dwordx4 v[56:59], v60, s[32:35], s55 offen ; pf']]
    publish(k, 46)
    if not P3: st(3)
    if LATE:
        for x in g1.wpreload(): k(x)
    for a in range(7):
        for j in range(2):
            k(f'v_lshlrev_b32 v{BI+4*a+2*j}, 16, v{BP+2*a+j}')
            k(f'v_and_b32 v{BI+4*a+2*j+1}, 0xffff0000, v{BP+2*a+j}')
    await_flags(k, 45, 32)
    if not P3: st(4)
    g1.make_sched(3, [2])
    g1.prologue_loads()
    g1.emit(loop_sreg=None)
    st(1 if P3 else 5)
    k(f'{Lepi}:')
    k('s_waitcnt vmcnt(0)')
    if not LATE: k('s_barrier')
    srd_off(k, 24, sWS, WS_HH, 2048 * 3584 * 2)
    k('s_and_b32 s62, s2, 1')
    k('s_lshl_b32 s62, s62, 2')
    k('s_bfe_u32 s63, s2, 0x20003')
    k('s_add_u32 s62, s62, s63')
    k('s_bfe_u32 s63, s2, 0x10002')
    k(f's_mul_i32 s50, s62, {3584*256}')
    k(f's_mul_i32 s63, s63, {1792*256}')
    k('s_add_u32 s50, s50, s63')
    srd_off(k, 12, sWS, WS_W2, 3584 * 2048)
    NT = 28; SP = 184
    send = []
    for q in range(4):
        send += [[f'v_cvt_pk_bf16_f32 v{SP+4*q+j}, v{acc0+8*q+2*j}, v{acc0+8*q+2*j+1}'] for j in range(4)]
    A = lambda a, b: acc0 + (a * NB + b) * 4
    g2 = Gemm(k, NA, NB, LP, S, PD, RA, NT,
              acc=lambda a, b: R4('v', A(a, b)),
              aring=lambda s: ('a', 16 * S + 4 * s),
              bring=lambda st, ks, b: R4('a', st * 16 + (ks * NB + b) * 4),
              vA=[[vA + a for a in range(NA)], [vA2 + a for a in range(NA)]], lds_base=0,
              srdW=12, sW=50, wpitch=256, wdma=wd, sM0=52, srdX=24, sX=51, vX=[vX, vX + 1], wait_every=2,
              extra_loads=lambda t: send if t == NT - 1 else [], pre_w=True, xmod=' sc1')
    g2.wmod = ' sc1'
    c1 = -2.0 * math.log2(math.e) * math.sqrt(2.0 / math.pi); c2 = c1 * 0.044715
    C1, C2, ONE = 40, 42, 44
    for (r, v) in ((C1, c1), (C2, c2), (ONE, 1.0)):
        k(f'v_mov_b32 v{r}, 0x{f2u(v):08x}'); k(f'v_mov_b32 v{r+1}, 0x{f2u(v):08x}')
    k('v_lshlrev_b32 v6, 4, v1')
    k('s_mul_i32 s54, s43, 7')
    k('s_lshr_b32 s55, s54, 1')
    k('s_lshl_b32 s55, s55, 7')
    k('s_add_u32 s55, s55, s47')
    k('s_lshl_b32 s55, s55, 10')
    for j in range(1, 4): k(f's_add_u32 s{55+j}, s55, {j*131072}')
    T = 48
    Lodd = k.label('odd'); Ljoin = k.label('join')
    k('s_bitcmp1_b32 s43, 0')
    k(f's_cbranch_scc1 {Lodd}')
    for odd in range(2):
        if odd: k(f'{Lodd}:')
        pre = [] if LATE else [x for x in g2.wpreload() if x != 's_nop 0']
        def gelu_tile(Ar, dst):
            for h in range(2):
                x = R2('v', Ar + 2 * h); t = R2('v', T + 2 * h)
                k(f'v_pk_mul_f32 {t}, {x}, {x}')
                k(f'v_pk_fma_f32 {t}, {t}, {R2("v", C2)}, {R2("v", C1)}')
                k(f'v_pk_mul_f32 {t}, {t}, {x}')
            if pre: k(pre.pop(0))
            for r in range(4): k(f'v_exp_f32 v{T+r}, v{T+r}')
            for h in range(2):
                t = R2('v', T + 2 * h)
                k(f'v_pk_add_f32 {t}, {t}, {R2("v", ONE)}')
            if pre: k(pre.pop(0))
            for r in range(4): k(f'v_rcp_f32 v{T+r}, v{T+r}')
            for h in range(2):
                x = R2('v', Ar + 2 * h); t = R2('v', T + 2 * h)
                k(f'v_pk_mul_f32 {x}, {x}, {t}')
            for h in range(2):
                k(f'v_cvt_pk_bf16_f32 v{dst+h}, v{Ar+2*h}, v{Ar+2*h+1}')
        n = 0
        order = [(b, blk) for b in range(4) for blk in range(4)]
        half = 0 if odd else 3
        order.sort(key=lambda x: x[1] != half)
        for b, blk in order:
            aa = [a for a in range(7) if (a + odd) >> 1 == blk]
            D = 56 + (n % 2) * 4; n += 1
            for a in aa:
                gelu_tile(acc1 + (a * 4 + b) * 4, D + 2 * ((a + odd) & 1))
            if len(aa) == 2:
                k(f'buffer_store_dwordx4 {R4("v", D)}, v6, s[24:27], s{55+blk} offen offset:{b*1024} sc1')
            else:
                hf = (aa[0] + odd) & 1
                k(f'buffer_store_dwordx2 {R2("v", D + 2*hf)}, v6, s[24:27], s{55+blk} offen offset:{b*1024 + 8*hf} sc1')
        assert not pre
        if not odd: k(f's_branch {Ljoin}')
    k(f'{Ljoin}:')
    k('s_lshl_b32 s46, s42, 5')
    k('s_add_u32 s46, s46, s43')
    k(f's_lshl_b32 s46, s46, {FSH}')
    k(f's_add_u32 s57, s46, {256 << FSH}')
    coords_128(k)
    k('s_lshr_b32 s45, s42, 1')
    k(f's_lshl_b32 s45, s45, {5+FSH}')
    k(f's_lshl_b32 s46, s40, {4+FSH}')
    k('s_add_u32 s45, s45, s46')
    k(f's_add_u32 s60, s45, {256 << FSH}')
    k('s_lshl_b32 s48, s47, 10')
    k(f'v_lshl_add_u32 v{vX}, v1, 4, s48')
    k(f'v_add_u32 v{vX+1}, 0x20000, v{vX}')
    k(f's_mul_i32 s51, s40, {56*131072}')
    k('s_xor_b32 s45, s40, 1')
    k('s_lshl_b32 s45, s45, 2')
    tr_addr_regs(k, vA, NA, LP, tmp, 1, xor_s=45)
    for a in range(NA): k(f'v_add_u32 v{vA2+a}, 0x10000, v{vA+a}')
    srd_off(k, 16, sWS, WS_XB, 4 * MB)
    k('s_lshl_b32 s55, s2, 14')
    k('s_xor_b32 s56, s55, 0x10000')
    k.srd(20, sOUT, 4 * MB)
    srd_off(k, 28, sWS, WS_MOD32 + 5 * 4096, 4096)
    k('v_and_b32 v4, 15, v1')
    k('v_lshrrev_b32 v5, 4, v1')
    k('v_lshlrev_b32 v6, 11, v4')
    k('v_lshl_add_u32 v7, v5, 4, v6')
    k('s_lshl_b32 s46, s43, 1')
    k('s_add_u32 s46, s46, s40')
    k('s_lshl_b32 s48, s47, 15')
    k('s_lshl_b32 s49, s46, 7')
    k('s_add_u32 s48, s48, s49')
    k('s_add_u32 s49, s48, 32768')
    k('v_lshlrev_b32 v10, 5, v5')
    k('v_lshlrev_b32 v11, 4, v5')
    k('s_lshl_b32 s54, s46, 8')
    k('s_lshl_b32 s61, s46, 7')
    publish(k, 57)
    st(2 if P3 else 6)
    if LATE:
        for x in g2.wpreload(): k(x)
    await_flags(k, 60, 16)
    st(3 if P3 else 7)
    XR, GR, BR, RX, UB = 32, 48, 128, 136, 168
    g2.make_sched(5, [2])
    g2.prologue_loads()
    for b in range(NB):
        for u in range(2):
            k(f'buffer_load_dwordx4 {R4("v", XR + (b*2+u)*4)}, v7, s[36:39], s{48+b} offen offset:{u*64} sc1')
    gate = [f'buffer_load_dwordx4 {R4("v", GR + (u*2+h)*4)}, v10, s[28:31], s54 offen offset:{u*128 + h*16} sc1' for u in range(2) for h in range(2)]
    for x in gate: k(x)
    for u in range(2):
        k(f'buffer_load_dwordx4 {R4("v", BR + u*4)}, v11, s[72:75], s61 offen offset:{u*64}')
    g2.vq += ['e'] * 10
    if P3 and not fused: g2.stamp_first = 4
    g2.emit(loop_sreg=53)
    if P3: st(5)
    for q in range(4): k(f'buffer_store_dwordx4 {R4("v", SP+4*q)}, v{vW}, s[16:19], s55 offen offset:{q*1024} sc1')
    for u in range(2):
        for j in range(4):
            k(f'v_lshlrev_b32 v{UB+8*u+2*j}, 16, v{BR+4*u+j}')
            k(f'v_and_b32 v{UB+8*u+2*j+1}, 0xffff0000, v{BR+4*u+j}')
    for i in range(16):
        k(f'v_lshlrev_b32 v{acc0+2*i}, 16, v{XR+i}')
        k(f'v_and_b32 v{acc0+2*i+1}, 0xffff0000, v{XR+i}')
    k('s_mov_b32 s53, 0x40000')
    Lg = k.label('gchk'); Lgok = k.label('gok')
    k(f'{Lg}:')
    sentinel(k, list(range(GR, GR + 16)), 4)
    k('s_sub_u32 s53, s53, 1')
    k('s_cselect_b64 s[58:59], 0, -1')
    k('v_cmp_eq_u32 vcc, -1, v4')
    k('s_and_b64 vcc, vcc, s[58:59]')
    k(f's_cbranch_vccz {Lgok}')
    for x in gate: k(x)
    k('s_waitcnt vmcnt(0)')
    k(f's_branch {Lg}')
    k(f'{Lgok}:')
    k('s_mov_b32 s53, 0x40000')
    k('s_waitcnt vmcnt(0)')
    if P3: st(6)
    Lp2 = k.label('poll')
    k(f'{Lp2}:')
    for q in range(4):
        k(f'buffer_load_dwordx4 {R4("v", RX + 4*q)}, v{vW}, s[16:19], s56 offen offset:{q*1024} sc1')
    k('s_sub_u32 s53, s53, 1')
    k('s_cselect_b64 s[58:59], 0, -1')
    k('s_waitcnt vmcnt(0)')
    sentinel(k, list(range(RX, RX + 16)), 4)
    k('v_cmp_eq_u32 vcc, -1, v4')
    k('s_and_b64 vcc, vcc, s[58:59]')
    k(f's_cbranch_vccnz {Lp2}')
    if P3: st(7)
    for i in range(16):
        o = acc0 + 32 + 2 * i; t = RX + 16 + 2 * (i % 4)
        k(f'v_lshlrev_b32 v{t}, 16, v{RX+i}')
        k(f'v_and_b32 v{t+1}, 0xffff0000, v{RX+i}')
        k(f'v_pk_add_f32 {R2("v", o)}, {R2("v", o)}, {R2("v", t)}')
    k('s_nop 0')
    for sw in ('32', '16'):
        for b in range(NB):
            for u in range(2):
                for r in range(4): k(f'v_permlane{sw}_swap_b32 v{A(4+2*u, b)+r}, v{A(5+2*u, b)+r}')
    for b in range(NB):
        for u in range(2):
            P = RX + (b * 2 + u) * 4
            for h in range(2):
                o = A(4 + 2 * u + h, b)
                for j in range(2):
                    x = R2('v', o + 2 * j)
                    k(f'v_pk_add_f32 {x}, {x}, {R2("v", UB+8*u+4*h+2*j)}')
                    k(f'v_pk_fma_f32 {x}, {x}, {R2("v", GR+(u*2+h)*4+2*j)}, {R2("v", acc0+(b*2+u)*8+4*h+2*j)}')
                for j in range(2): k(f'v_cvt_pk_bf16_f32 v{P+2*h+j}, v{o+2*j}, v{o+2*j+1}')
            k(f'buffer_store_dwordx4 {R4("v", P)}, v7, s[20:23], s{48+b} offen offset:{u*64} sc1')
    k.stamp_out(kidx)
    k(f'{Lend}:')
    k('s_endpgm')
    k.noreplay = set(getattr(k, 'noreplay', set())) | {Lm, Lg, getattr(k, 'norep2', Lm)}
    return k
```

```python
import sys
from gen_gk import *
from gen_front import *
from gen_back import publish, await_flags, FSH

THRESH_LOG2 = 16

def gen_attn(thresh_log2=THRESH_LOG2, lead=27, E0=58, bias=100, ufl=0x4000, pf=True, sched=(2, [1, 2, 1, 2]), name='attn_kernel', kidx=2, dbg='', excl=True, split2=True, wqpf=0, then=None, ln1=False):
    k = Kern(name, (256, 1, 1), (256, 1, 1), 160 * 1024, vgpr=256, agpr=256, sgpr=80)
    Lend = k.label('end')
    k('s_cmp_ge_u32 s2, 256')
    k(f's_cbranch_scc1 {Lend}')
    k.stamp(0)
    k(f's_load_dwordx4 s[4:7], s[0:1], {A_K}')
    k(f's_load_dwordx2 s[8:9], s[0:1], {A_WQ}')
    k(f's_load_dwordx2 s[10:11], s[0:1], {A_WS}')
    k(f's_load_dwordx2 s[32:33], s[0:1], {A_WO}')
    k(f's_load_dwordx2 s[36:37], s[0:1], {A_W1}')
    k(f's_load_dwordx2 s[60:61], s[0:1], {A_W2}')
    k(f's_load_dwordx2 s[64:65], s[0:1], {A_WMOD}')
    if ln1: k(f's_load_dwordx2 s[20:21], s[0:1], {A_X}')
    Lloop = k.label('loop'); Ltail = k.label('tail'); Lslow = k.label('slow'); Lepi = k.label('epi')
    vKA, vVA, vKD, vVD = 8, 12, 20, 24
    tmp = 26
    vL = 32; vTA2 = 32; vWD = 40; vX = 44
    vQ, vS, vP, vNM, vE, vONE, vT = 64, 128, 192, 224, 240, 248, 252
    aO, aF = 0, 128
    sHEAD, sQT, sWAVE, sMB0, sW, sX, sM0, sK, sV, sCNT, sTH, sFIRST = 40, 41, 44, 47, 50, 51, 52, 53, 54, 55, 57, 58
    k('v_and_b32 v1, 63, v0')
    k('v_lshrrev_b32 v2, 6, v0')
    k('s_and_b32 s42, s2, 7')
    k(f'v_readfirstlane_b32 s{sWAVE}, v2')
    k('s_lshl_b32 s42, s42, 2')
    k('s_bfe_u32 s43, s2, 0x20003')
    k(f's_add_u32 s{sHEAD}, s42, s43')
    k(f's_lshr_b32 s{sQT}, s2, 5')
    XR, PR = 64, 80
    if ln1:
        k(f's_lshl_b32 s{sM0}, s{sWAVE}, 12')
        k(f'v_lshl_add_u32 v5, v1, 4, s{sM0}')
        k('v_lshlrev_b32 v6, 4, v0')
        k('s_lshl_b32 s48, s2, 14')
        k('s_waitcnt lgkmcnt(0)')
        k.srd(20, 20, 4 * MB)
        srd_off(k, 24, 10, WS_MP, 4 * 6144 * 4)
        for p in range(4):
            for sec in range(2):
                k(f's_mov_b32 s49, {p*24576 + sec*4096}')
                k(f'buffer_load_dwordx4 {R4("v", PR + 8*p + 4*sec)}, v6, s[24:27], s49 offen')
        for j in range(4): k(f'buffer_load_dwordx4 {R4("v", XR + 4*j)}, v5, s[20:23], s48 offen offset:{j*1024}')
    wd = wdma_regs(k, vWD, 256, 8192, 16, tmp, 1, sWAVE)
    k(f's_lshl_b32 s{sMB0}, s{sQT}, 4')
    k(f's_lshl_b32 s48, s{sWAVE}, 2')
    k(f's_add_u32 s{sMB0}, s{sMB0}, s48')
    k(f's_lshl_b32 s48, s{sMB0}, 10')
    k(f'v_lshl_add_u32 v{vX}, v1, 4, s48')
    k(f'v_add_u32 v{vX+1}, 0x20000, v{vX}')
    k(f's_lshl_b32 s{sW}, s{sHEAD}, 8')
    k(f's_mov_b32 s{sX}, 0')
    k(f's_lshl_b32 s{sM0}, s{sWAVE}, 12')
    k('s_waitcnt lgkmcnt(0)')
    k.srd(12, 8, 1024 * 8192)
    srd_off(k, 16, 10, WS_H, 4 * MB)
    S = 6
    SL = lambda i: i * 16384
    stage_off = [SL(6), SL(7), SL(8), SL(9), SL(4), SL(5)]
    bbase = {4: 0, 5: 32, 0: 64, 1: 96, 2: 128, 3: 160}
    def kdma(slot):
        return [[f's_add_u32 m0, s{sM0}, {SL(slot)}'], ['s_nop 0']] + \
               [[f'buffer_load_dwordx4 v{vKD+n}, s[20:23], s{sK} offen offset:{n*1024} lds'] for n in range(4)] + \
               [[f's_add_u32 s{sK}, s{sK}, 16384']]
    def vdma(slot):
        return [[f's_add_u32 m0, s{sM0}, {SL(4+slot)}'], ['s_nop 0']] + \
               [[f'buffer_load_dwordx4 v{vVD+(n&1)}, s[24:27], s{sV} offen offset:{n*1024} lds'] for n in range(4)] + \
               [[f's_add_u32 s{sV}, s{sV}, 16384']]
    def zero(base):
        return [[f'v_accvgpr_write_b32 a{base+i}, 0'] for i in range(32)]
    def extra(t):
        if t == 10: return [[x] for x in gld]
        if t == 11: return kdma(0) + kdma(1) + vdma(0) + zero(0)
        if t == 12: return kdma(2) + vdma(1) + zero(32)
        if t == 13: return kdma(3) + vdma(2) + zero(64)
        if t == 14: return zero(96)
        return []
    def extra_p(t):
        return {12: 12, 13: 20, 14: 28}.get(t, 0)
    acc0 = 128
    g = Gemm(k, 8, 4, 256, S, 4, 8, 16,
             acc=lambda a, b: R4('v', acc0 + (a * 4 + b) * 4),
             aring=lambda s: ('a', 192 + 4 * s),
             bring=lambda st, ks, b: R4('a', bbase[st] + (ks * 4 + b) * 4),
             vA=[None, [vVA + a for a in range(8)], [vTA2 + a for a in range(8)]], lds_base=0,
             srdW=12, sW=sW, wpitch=8192, wdma=wd, sM0=sM0, srdX=16, sX=sX, vX=[vX, vX + 1],
             extra_loads=extra, stage_off=stage_off)
    if ln1:
        g.pre_w = True; g.xmod = ' sc1'
        k(f's_and_b32 s48, s{sQT}, 3')
        k(f's_mul_i32 s48, s48, {4*8192}')
        k(f's_lshr_b32 s45, s{sQT}, 2')
        k(f's_mul_i32 s45, s45, {64*8192}')
        k('s_add_u32 s48, s48, s45')
        k(f's_add_u32 s48, s48, s{sW}')
        for j in range(8):
            k(f'buffer_load_dwordx4 a[0:3], v{vWD}, s[12:15], s48 offen ; pf')
            k(f's_add_u32 s48, s48, {128*8192}')
        srd_off(k, 28, 10, WS_FL, 1024 << FSH)
        MODL = 32768
        k('s_waitcnt vmcnt(12)')
        for p in range(1, 4):
            for h in range(4): k(f'v_pk_add_f32 {R2("v", PR+2*h)}, {R2("v", PR+2*h)}, {R2("v", PR+8*p+2*h)}')
        for h in range(4): round_pair(k, PR + 2 * h, PR + 2 * h + 1, PR + 8 + h)
        for j in range(4): k(f'v_add_f32 v{PR+4+j}, 1.0, v{PR+4+j}')
        for h in range(2, 4): round_pair(k, PR + 2 * h, PR + 2 * h + 1, PR + 8 + h)
        k('v_lshrrev_b32 v6, 7, v0')
        k('v_lshlrev_b32 v6, 11, v6')
        k('v_and_b32 v7, 1, v0')
        k('v_lshl_add_u32 v6, v7, 10, v6')
        k('v_bfe_u32 v7, v0, 1, 6')
        k('v_lshl_add_u32 v6, v7, 4, v6')
        k(f'ds_write_b128 v6, {R4("v", PR)} offset:{MODL}')
        k(f'ds_write_b128 v6, {R4("v", PR+4)} offset:{MODL+4096}')
        k('s_mov_b32 s56, 0x3a800000')
        k('s_mov_b32 s57, 0xba800000')
        k('v_lshlrev_b32 v3, 4, v1')
        XX = [128, 144]; SA, C1 = 96, 112
        k('s_waitcnt vmcnt(8)')
        for r in range(2):
            unpack8(k, XX[r], XR + 8 * r); unpack8(k, XX[r] + 8, XR + 8 * r + 4)
        k('s_waitcnt lgkmcnt(0)')
        k('s_barrier')
        for base, sec in ((C1, 1), (SA, 0)):
            for h in range(2):
                for q in range(2):
                    k(f'ds_read_b128 {R4("v", base + 8*h + 4*q)}, v3 offset:{MODL + sec*4096 + h*2048 + q*1024}')
        streams = []
        for r in range(2):
            q = Kern('rec', None, None, 0, 0)
            x = XX[r]; T = 160 + 24 * r
            ln_core_pk(q, x, T, 56)
            q('s_waitcnt lgkmcnt(0)')
            for j in range(0, 16, 2): q(f'v_pk_mul_f32 {R2("v", x+j)}, {R2("v", x+j)}, {R2("v", C1+j)}')
            round16(q, x, T + 8)
            for j in range(0, 16, 2): q(f'v_pk_add_f32 {R2("v", x+j)}, {R2("v", x+j)}, {R2("v", SA+j)}')
            for j in range(8): q(f'v_cvt_pk_bf16_f32 v{XR+8*r+j}, v{x+2*j}, v{x+2*j+1}')
            streams.append(q.lines)
        for a, b in zip(*streams):
            if a == 's_nop 1': k('s_nop 0'); continue
            if a == 's_nop 0': continue
            if a.startswith('s_waitcnt'): k(a); continue
            k(a); k(b)
        k('v_lshrrev_b32 v5, 2, v1')
        k('v_mul_u32_u24 v5, 528, v5')
        k('v_and_b32 v6, 1, v1')
        k('v_lshl_add_u32 v5, v6, 8, v5')
        k('v_bfe_u32 v6, v1, 1, 1')
        k('v_lshl_add_u32 v5, v6, 3, v5')
        k('v_lshl_add_u32 v5, v2, 5, v5')
        for r in range(2):
            P = XR + 8 * r
            k(f'ds_write_b64 v5, {R2("v", P)} offset:{16*r}')
            k(f'ds_write_b64 v5, {R2("v", P+2)} offset:{16*r+128}')
            k(f'ds_write_b64 v5, {R2("v", P+4)} offset:{16*r+16*528}')
            k(f'ds_write_b64 v5, {R2("v", P+6)} offset:{16*r+16*528+128}')
        k('v_lshrrev_b32 v6, 5, v0')
        k('v_and_b32 v7, 31, v0')
        k('v_mul_u32_u24 v5, 528, v6')
        k('v_lshl_add_u32 v5, v7, 4, v5')
        k('v_lshlrev_b32 v6, 17, v6')
        k('v_bfe_u32 v7, v0, 3, 2')
        k('v_lshl_add_u32 v6, v7, 8, v6')
        k('v_and_b32 v7, 7, v0')
        k('v_lshl_add_u32 v6, v7, 4, v6')
        k('s_lshr_b32 s48, s2, 1')
        k('s_lshl_b32 s48, s48, 10')
        k('s_and_b32 s49, s2, 1')
        k('s_lshl_b32 s49, s49, 7')
        k('s_add_u32 s48, s48, s49')
        k('s_waitcnt lgkmcnt(0)')
        k('s_barrier')
        for j in range(4): k(f'ds_read_b128 {R4("v", PR+4*j)}, v5 offset:{8*528*j}')
        for j in range(4):
            k(f's_waitcnt lgkmcnt({3-j})')
            k(f'buffer_store_dwordx4 {R4("v", PR+4*j)}, v6, s[16:19], s48 offen sc1')
            if j < 3: k(f's_add_u32 s48, s48, {8*131072}')
        k(f's_lshl_b32 s48, s2, {FSH}')
        k(f's_add_u32 s48, s48, {768 << FSH}')
        k(f's_lshl_b32 s49, s{sQT}, {5+FSH}')
        k(f's_add_u32 s49, s49, {768 << FSH}')
        publish(k, 48, srd=28)
        for x in g.wpreload(): k(x)
        await_flags(k, 49, 32, srd=28)
        sched = (3, [2])
    g.make_sched(*sched)
    g.prologue_loads()
    tr_addr_regs(k, vVA, 8, 256, tmp, 1, add=0x10000)
    for a in range(8): k(f'v_add_u32 v{vTA2+a}, 0x10000, v{vVA+a}')
    k(f'v_and_b32 v{tmp}, 15, v1')
    k(f'v_lshrrev_b32 v{tmp+1}, 4, v1')
    k(f'v_xor_b32 v{tmp+2}, v{tmp}, v{tmp+1}')
    k(f'v_lshlrev_b32 v{tmp+3}, 8, v{tmp}')
    for ds in range(4):
        k(f'v_xor_b32 v{tmp+4}, {4*ds}, v{tmp+2}')
        k(f'v_lshl_add_u32 v{vKA+ds}, v{tmp+4}, 4, v{tmp+3}')
    k(f'v_lshlrev_b32 v{tmp+3}, 8, v{tmp+1}')
    k(f'v_add_u32 v{tmp+3}, s{sM0}, v{tmp+3}')
    for n in range(4):
        k(f'v_xor_b32 v{tmp+4}, {4*n}, v{tmp+2}')
        k(f'v_lshl_add_u32 v{vKD+n}, v{tmp+4}, 4, v{tmp+3}')
    k(f'v_lshlrev_b32 v{tmp+4}, 1, v{tmp+1}')
    k(f'v_xor_b32 v{tmp+4}, v{tmp+4}, v{tmp}')
    k(f'v_lshl_add_u32 v{vVD}, v{tmp+4}, 4, v{tmp+3}')
    k(f'v_xor_b32 v{tmp+4}, 8, v{tmp+4}')
    k(f'v_lshl_add_u32 v{vVD+1}, v{tmp+4}, 4, v{tmp+3}')
    k(f's_lshl_b32 s48, s{sHEAD}, 19')
    srd_off(k, 20, 4, 's48', 524288)
    srd_off(k, 24, 6, 's48', 524288)
    srd_off(k, 28, 10, WS_O, 16 * MB)
    k(f's_mov_b32 s{sK}, 0')
    k(f's_mov_b32 s{sV}, 0')
    k.srd(32, 32, 4096 * 2048); k.srd(36, 36, 1024 * 7168); k.srd(60, 60, 3584 * 2048)
    sPF, sST0, sST2, sL1, sXB = 59, 56, 49, 46, 41
    vPF, vD0, vD2, vS1, vD1, vN1, vJ1 = 7, 54, 55, 56, 57, 58, 59
    srd_off(k, 72, 10, WS_WO, 36 * MB)
    k(f's_mov_b32 s{sPF}, 0')
    k(f's_mov_b32 s{sL1}, 0')
    k(f's_mov_b32 s{sST0}, 0x70000000')
    k(f's_mov_b32 s{sST2}, 0x70000000')
    k('s_lshl_b32 s48, s2, 12')
    k(f'v_lshl_add_u32 v{vPF}, v0, 4, s48')
    k(f's_lshl_b32 s42, s2, 2')
    k(f's_add_u32 s42, s42, s{sWAVE}')
    k('s_lshr_b32 s43, s42, 1')
    k('s_and_b32 s45, s42, 1')
    k('s_and_b32 s48, s43, 7')
    k('s_lshl_b32 s48, s48, 1')
    k(f'v_xor_b32 v{tmp+4}, s48, v{tmp}')
    k(f'v_lshlrev_b32 v{tmp+4}, 4, v{tmp+4}')
    k(f'v_lshl_add_u32 v{vD0}, v{tmp+1}, 20, v{tmp+4}')
    k('s_lshl_b32 s48, s45, 22')
    k('s_lshl_b32 s62, s43, 8')
    k('s_add_u32 s48, s48, s62')
    k(f'v_add_u32 v{vD0}, s48, v{vD0}')
    if split2:
        k(f'v_mul_u32_u24 v{tmp+5}, {3584*256}, v{tmp+1}')
        k(f'v_add_u32 v{vD2}, v{tmp+4}, v{tmp+5}')
        k(f's_mul_i32 s48, s45, {4*3584*256}')
        k('s_add_u32 s48, s48, s62')
        k(f's_add_u32 s48, s48, {WS_W2 - WS_WO}')
        k(f'v_add_u32 v{vD2}, s48, v{vD2}')
        k(f's_mov_b32 s{sXB}, {WS_XB - WS_WO}')
    else:
        k('s_bfe_u32 s48, s43, 0x20001')
        k('s_lshl_b32 s48, s48, 1')
        k(f'v_and_b32 v{tmp+4}, 7, v1')
        k(f'v_xor_b32 v{tmp+4}, s48, v{tmp+4}')
        k(f'v_lshrrev_b32 v{tmp+5}, 3, v1')
        k(f'v_mul_u32_u24 v{tmp+5}, {3584*128}, v{tmp+5}')
        k(f'v_lshl_add_u32 v{vD2}, v{tmp+4}, 4, v{tmp+5}')
        k(f's_mul_i32 s48, s45, {8*3584*128}')
        k('s_lshl_b32 s62, s43, 7')
        k('s_add_u32 s48, s48, s62')
        k(f's_add_u32 s48, s48, {WS_W2 - WS_WO}')
        k(f'v_add_u32 v{vD2}, s48, v{vD2}')
    k('s_mul_i32 s48, s42, 7168')
    k(f'v_lshl_add_u32 v{vS1}, v1, 4, s48')
    k(f'v_mul_u32_u24 v{tmp+4}, 74, v1')
    k(f'v_lshrrev_b32 v{tmp+4}, 10, v{tmp+4}')
    k(f'v_mul_u32_u24 v{tmp+5}, 14, v{tmp+4}')
    k(f'v_sub_u32 v{vJ1}, v1, v{tmp+5}')
    k(f'v_mul_u32_u24 v{tmp+4}, {1024*224}, v{tmp+4}')
    k(f'v_lshl_add_u32 v{vN1}, v{vJ1}, 4, v{tmp+4}')
    k('s_mul_i32 s48, s42, 224')
    k(f's_add_u32 s48, s48, {WS_W1 - WS_WO}')
    k(f'v_add_u32 v{vN1}, s48, v{vN1}')
    k(f'v_mov_b32 v{vD1}, 0x70000000')
    k(f'v_mov_b32 v60, {1024*224 - 224}')
    k('s_mov_b32 s62, 3584 * 2048')
    GA = [48, 49, 50, 51, 52, 53, 63, 2]; vGW, vGS, vGT0, vGT1, vGA, vGB = 28, 27, 26, 3, 4, 5
    sGW, sGS = 76, 77
    k.srd(64, 64, 1024 * 12288)
    srd_off(k, 68, 10, 0, WS_MP2 + 16 * 16384)
    k(f'v_lshrrev_b32 v{vGB}, 3, v1')
    k(f'v_mul_u32_u24 v{vGA}, 12288, v{vGB}')
    k(f'v_and_b32 v{vGT1}, 7, v1')
    k(f'v_lshl_add_u32 v{vGA}, v{vGT1}, 4, v{vGA}')
    k(f'v_lshlrev_b32 v{vGB}, 2, v{vGB}')
    k('s_and_b32 s48, s42, 15')
    k(f's_mul_i32 s{sGW}, s48, {64*12288}')
    k('s_lshr_b32 s43, s2, 2')
    k('s_lshl_b32 s45, s43, 7')
    k(f's_add_u32 s{sGW}, s{sGW}, s45')
    k(f's_add_u32 s{sGW}, s{sGW}, 4096')
    k(f's_lshl_b32 s{sGS}, s48, 8')
    k(f's_add_u32 s{sGS}, s{sGS}, {WS_SC}')
    k('s_lshl_b32 s48, s48, 14')
    k('s_lshl_b32 s43, s43, 8')
    k('s_add_u32 s43, s43, s48')
    k(f's_add_u32 s43, s43, {WS_MP2}')
    for r in GA: k(f'v_mov_b32 v{r}, 0')
    k.code_srd(4, Ltail)
    k('s_lshr_b32 s8, s2, 3')
    k('s_lshl_b32 s8, s8, 12')
    k('v_lshlrev_b32 v6, 4, v0')
    gld = [f'buffer_load_dwordx4 {R4("v", vGW)}, v{vGA}, s[64:67], s{sGW} offen',
           f'buffer_load_dword v{vGS}, v{vGB}, s[68:71], s{sGS} offen',
           f's_add_u32 s{sGW}, s{sGW}, {8*12288}', f's_add_u32 s{sGS}, s{sGS}, 32']
    gfma = []
    for j in range(4):
        gfma += [f'v_lshlrev_b32 v{vGT0}, 16, v{vGW+j}', f'v_and_b32 v{vGT1}, 0xffff0000, v{vGW+j}',
                 f'v_fmac_f32 v{GA[2*j]}, v{vGT0}, v{vGS}', f'v_fmac_f32 v{GA[2*j+1]}, v{vGT1}, v{vGS}']
    k(f's_mov_b32 s{sTH}, 0x{f2u(2.0**thresh_log2):08x}')
    g.stamp_first = 1
    g.emit(loop_sreg=None)
    k.stamp(2)
    k('s_waitcnt vmcnt(16)')
    k('s_barrier')
    Kfr = lambda kb, ds: aF + 32 + (4 * kb + ds) * 4
    Vfr = lambda db: aF + 4 * db
    def kread(unit, kb, ds, dst=None):
        off = SL((unit >> 1) & 3) + ((unit & 1) * 32 + kb * 16) * 256
        return f'ds_read_b128 {R4("a", Kfr(kb, ds) if dst is None else dst)}, v{vKA+ds} offset:{off}'
    def vread(unit, db, hf):
        off = SL((unit >> 1) & 3) + ((unit & 1) * 32 + hf * 16) * 256
        return f'ds_read_b64_tr_b16 {R2("a", Vfr(db) + 2*hf)}, v{vVA+db} offset:{off}'
    for kb in range(2):
        for ds in range(4): k(kread(0, kb, ds, dst=Vfr(4 * kb + ds)))
    sc = math.log2(math.e) / math.sqrt(128.0)
    k(f'v_mov_b32 v46, 0x{f2u(sc):08x}'); k(f'v_mov_b32 v47, 0x{f2u(sc):08x}')
    Qf = lambda qb, ds: vQ + (qb * 4 + ds) * 4
    for u in range(4):
        for qb in range(4):
            p = Qf(qb, u)
            for h in range(2):
                A = acc0 + ((2 * u + h) * 4 + qb) * 4
                k(f'v_pk_mul_f32 {R2("v", A)}, {R2("v", A)}, {R2("v", 46)}')
                k(f'v_pk_mul_f32 {R2("v", A+2)}, {R2("v", A+2)}, {R2("v", 46)}')
                k(f'v_cvt_pk_bf16_f32 v{p+2*h}, v{A}, v{A+1}')
                k(f'v_cvt_pk_bf16_f32 v{p+2*h+1}, v{A+2}, v{A+3}')
        for sw in ('32', '16'):
            for qb in range(4):
                p = Qf(qb, u)
                k(f'v_permlane{sw}_swap_b32 v{p}, v{p+2}')
                k(f'v_permlane{sw}_swap_b32 v{p+1}, v{p+3}')
    k('s_waitcnt lgkmcnt(0)')
    for kb in range(2):
        for ds in range(4): k(kread(1, kb, ds))
    Sb = lambda N, kb, qb: vS + 32 * (N & 1) + (kb * 4 + qb) * 4
    Pb = lambda N, qb: vP + 16 * (N & 1) + 4 * qb
    Lb = lambda qb: vL + 4 * qb
    NM = lambda qb: vNM + 4 * qb
    def qk(N, kb, ds, qb, fr=None, czero=False):
        d = R4('v', Sb(N, kb, qb))
        c = ('0' if czero else R4('v', NM(qb))) if ds == 0 else d
        return f'{MF} {d}, {R4("a", Kfr(kb, ds) if fr is None else fr)}, {R4("v", Qf(qb, ds))}, {c}'
    def pv(N, db, qb):
        d = R4('a', aO + (db * 4 + qb) * 4)
        return f'{MF} {d}, {R4("a", Vfr(db))}, {R4("v", Pb(N, qb))}, {d}'
    def ones(N, qb):
        return f'{MF} {R4("v", Lb(qb))}, {R4("v", vONE)}, {R4("v", Pb(N, qb))}, {R4("v", Lb(qb))}'
    def E(N, i):
        return f'v_exp_f32 v{vE + (i & 7)}, v{Sb(N, i >> 4, (i >> 2) & 3) + (i & 3)}'
    def C(N, j):
        i = 2 * j
        return f'v_cvt_pk_bf16_f32 v{Pb(N, (i >> 2) & 3) + 2 * (i >> 4) + ((i >> 1) & 1)}, v{vE + (i & 7)}, v{vE + (i & 7) + 1}'
    def xmax(D, X):
        for sw in ('16', '32'):
            k(f'v_mov_b32 v{X}, v{D}')
            k('s_nop 1')
            k(f'v_permlane{sw}_swap_b32 v{D}, v{X}')
            k(f'v_max_f32 v{D}, v{D}, v{X}')
    def interleave(mf, fill, cap=2):
        fi = 0
        for gi, m in enumerate(mf):
            k(m)
            used = 0
            while fi < len(fill) and fill[fi][2] <= gi and used + fill[fi][1] <= cap:
                k(fill[fi][0]); used += fill[fi][1]; fi += 1
        for x in fill[fi:]: k(x[0])

    NG = 68
    def build_iter(N):
        T = (N - 1) >> 1
        first_in_pair = (N & 1) == 1
        mf = [pv(N - 1, db, qb) for db in range(8) for qb in range(4)]
        mf += [ones(N - 1, qb) for qb in range(4)]
        import sys
        if 'nochain' in sys.argv: mf += [qk(N + 1, kb, ds, qb) for kb in range(2) for ds in range(4) for qb in range(4)]
        else: mf += [qk(N + 1, kb, ds, qb) for kb in range(2) for qb in range(4) for ds in range(4)]
        first = [[] for _ in range(NG)]; rest = [[] for _ in range(NG)]; cost = [0] * NG
        def put(g, ins, mem=False, c=1):
            (first if mem else rest)[g].append(ins); cost[g] += c
        for i in range(32):
            gp = E0 + 2 * i
            if gp < NG: put(gp, E(N + 1, i), c=2)
            else: put(gp - NG, E(N, i), c=2)
        for j in range(16):
            gp = E0 + 2 * (2 * j + 1) + 1
            if gp < NG: put(gp, C(N + 1, j))
            else: put(gp - NG, C(N, j))
        rd = []
        for db in range(8):
            for hf in range(2):
                gp = 4 * db - lead + 2 * hf
                rd.append((gp % NG, vread(N - 1 if gp >= 0 else N, db, hf), ('V', db) if gp >= 0 else ('Vn', db)))
        for i in range(8):
            gp = 36 + 4 * i - lead
            rd.append((gp, kread(N + 1, i >> 2, i & 3), ('K', i)))
        rd.sort(key=lambda x: x[0])
        for gp, ins, tag in rd: put(gp, ins, mem=True)
        cyc = [(gp - NG, 'V' if tag[0] == 'Vn' else 'old', tag[1]) for gp, _, tag in rd] + \
              [(gp, tag[0], tag[1]) for gp, _, tag in rd]
        waits = {}
        for at, kind, hi in ((0, 'V', 3), (16, 'V', 7), (36, 'K', 3), (52, 'K', 7)):
            lastidx = max(i for i, x in enumerate(cyc) if x[1] == kind and x[2] == hi)
            n_after = sum(1 for i, x in enumerate(cyc) if i > lastidx and x[0] < at)
            assert cyc[lastidx][0] < at
            waits[at] = n_after
        for at in (16, 36, 52): put(at - 1, f's_waitcnt lgkmcnt({waits[at]})')
        put(NG - 1, f's_waitcnt lgkmcnt({waits[0]})')
        def putv(gp, ins):
            if 'plainpack' in sys.argv and ins.startswith('buffer_store'): ins += ' ; plain'
            assert cost[gp] == 0, (N, gp, first[gp], rest[gp])
            put(gp, ins, mem=True, c=2 if excl else 1)
        def puts(gp, seq, hi=NG):
            for ins in seq:
                while cost[gp] >= 2: gp += 1
                assert gp < hi, (N, ins)
                put(gp, ins)
                if ins.startswith('v_cmp'): gp += 2
        if not first_in_pair:
            X = lambda T: (2 if T % 4 in (1, 2) else 1) + (2 if T % 4 == 1 else 0) + (2 if T % 4 == 2 and split2 else 0)
            npf = X(T - 1) + X(T)
            if T % 4 == 0: npf -= 1
            put(19, f's_waitcnt vmcnt({12 + npf})'); put(19, 's_barrier')
            d = [x[0] for x in kdma(T % 4) if x[0] != 's_nop 0']
            put(15, d[0])
            for gp, ins in zip((23, 27, 31, 39), d[1:5]): putv(gp, ins)
            if T % 4 == 1:
                putv(7, gld[0]); putv(11, gld[1]); puts(35, gld[2:])
            if T % 4 == 2 and split2:
                putv(7, f'buffer_store_dwordx4 a[208:211], v{vPF}, s[72:75], s{sXB} offen'); putv(11, f'buffer_store_dwordx4 a[208:211], v{vT+3}, s[72:75], s{sXB} offen'); put(35, f's_add_u32 s{sXB}, s{sXB}, 0x100000')
            puts(43, d[5:])
            if T % 4 == 0: puts(0, gfma)
        else:
            d = [x[0] for x in vdma((T + 3) % 4) if x[0] != 's_nop 0']
            put(5, d[0])
            for gp, ins in zip((7, 11, 19, 23), d[1:5]): putv(gp, ins)
            puts(43, d[5:])
            if T % 4 == 0:
                putv(31, f'buffer_load_dwordx4 a[192:195], v{vPF}, s[32:35], s{sPF} offen ; pf')
            if T % 4 == 1:
                putv(27, f'buffer_store_dwordx4 a[196:199], v{vD1}, s[72:75], 0 offen')
                putv(31, f'buffer_load_dwordx4 a[196:199], v{vS1}, s[36:39], s{sL1} offen')
                puts(35, [f'v_mov_b32 v{vD1}, v{vN1}',
                        f'v_add_u32 v{vJ1}, 8, v{vJ1}',
                        f'v_add_u32 v{vN1}, {4*1024*224 + 128}, v{vN1}',
                        f'v_cmp_lt_u32 vcc, 13, v{vJ1}',
                        f's_add_u32 s{sL1}, s{sL1}, 1024',
                        f'v_cndmask_b32 v61, 0, v60, vcc',
                        f'v_cndmask_b32 v62, 0, 14, vcc',
                        f'v_add_u32 v{vN1}, v61, v{vN1}',
                        f'v_sub_u32 v{vJ1}, v{vJ1}, v62'])
            if T % 4 == 2:
                putv(27, f'buffer_store_dwordx4 a[200:203], v{vD2}, s[72:75], s{sST2} offen')
                putv(31, f'buffer_load_dwordx4 a[200:203], v{vPF}, s[60:63], s{sPF} offen')
            if T % 4 == 3:
                putv(27, 'buffer_load_dwordx4 a[204:207], v6, s[4:7], s8 offen ; pf')
                put(15, f's_lshr_b32 s{sST2}, s{sPF}, {3 if split2 else 4}')
                put(31, f's_add_u32 s{sPF}, s{sPF}, 0x100000')
                put(31, f's_sub_u32 s{sCNT}, s{sCNT}, 1')
        out = []
        for gi in range(NG):
            fl = first[gi] + rest[gi]
            if 'nobar' in dbg: fl = [x for x in fl if x != 's_barrier']
            if 'novm' in dbg: fl = [x for x in fl if not x.startswith(('buffer_', 's_waitcnt vmcnt'))]
            if 'nopack' in dbg: fl = [x for x in fl if not (x.startswith('buffer_') and not x.endswith(' lds'))]
            if 'nopack' in dbg: fl = ['s_waitcnt vmcnt(12)' if x.startswith('s_waitcnt vmcnt') else x for x in fl]
            for md in ('sc1', 'nt', 'sc0'):
                if 'kv' + md in dbg: fl = [x.replace(' lds', f' {md} lds') if x.endswith(' lds') else x for x in fl]
            if 'nods' in dbg: fl = [x for x in fl if not x.startswith(('ds_', 's_waitcnt lgkm'))]
            if 'noexp' in dbg: fl = [x for x in fl if not x.startswith('v_exp')]
            if 'nocvt' in dbg: fl = [x for x in fl if not x.startswith('v_cvt')]
            out.append(mf[gi]); out += fl
            if cost[gi] > 2: print('gap over', N, gi, cost[gi], first[gi] + rest[gi])
        return out, waits[0], rd

    mf0 = [qk(0, kb, ds, qb, fr=Vfr(4 * kb + ds), czero=True) for kb in range(2) for ds in range(4) for qb in range(4)]
    D = lambda qb: vE + qb
    X = lambda qb: vE + 4 + qb
    k(f's_mov_b32 s9, 0x{f2u(-float(bias)):08x}')
    f0 = [(f'v_add_u32 v{vT+3}, 0x800000, v{vPF}', 1, 0)] + [(f'v_accvgpr_write_b32 a{208+i}, -1', 1, 0) for i in range(4)] + [(f'v_mov_b32 v{vL+i}, 0', 1, 0) for i in range(16)] + [(f'v_mov_b32 v{vONE+i}, 0x3f803f80', 1, 0) for i in range(4)]
    for qb in range(4): f0.append((f'v_max3_f32 v{D(qb)}, v{Sb(0,0,qb)}, v{Sb(0,0,qb)+1}, v{Sb(0,0,qb)+2}', 1, 22))
    for qb in range(4): f0.append((f'v_max_f32 v{D(qb)}, v{D(qb)}, v{Sb(0,0,qb)+3}', 1, 0))
    interleave(mf0, f0)
    k('s_waitcnt lgkmcnt(0)')
    mf1 = [qk(1, kb, ds, qb, czero=True) for kb in range(2) for ds in range(4) for qb in range(4)]
    vn = [ins for gp, ins, tag in build_iter(0)[2] if tag[0] == 'Vn']
    f1 = [(x, 1, 0) for x in vn]
    for (M, kb, mg) in ((0, 1, 8), (1, 0, 20)):
        for h in range(2):
            for qb in range(4):
                f1.append((f'v_max3_f32 v{D(qb)}, v{D(qb)}, v{Sb(M,kb,qb)+2*h}, v{Sb(M,kb,qb)+2*h+1}', 1, mg + qb // 2))
    for sw in ('16', '32'):
        for qb in range(4): f1.append((f'v_mov_b32 v{X(qb)}, v{D(qb)}', 1, 0))
        for qb in range(4): f1.append((f'v_permlane{sw}_swap_b32 v{D(qb)}, v{X(qb)}', 1, 0))
        for qb in range(4): f1.append((f'v_max_f32 v{D(qb)}, v{D(qb)}, v{X(qb)}', 1, 0))
    for r in range(4):
        for qb in range(4): f1.append((f'v_sub_f32 v{NM(qb)+r}, s9, v{D(qb)}', 1, 0))
    interleave(mf1, f1)
    for M in range(2):
        for kb in range(2):
            for qb in range(4):
                for h in range(2):
                    r = Sb(M, kb, qb) + 2 * h
                    k(f'v_pk_add_f32 {R2("v", r)}, {R2("v", r)}, {R2("v", NM(qb))}')
    for i in range(0, 32, 2):
        k(E(0, i)); k(E(0, i + 1))
        if i: k(C(0, (i >> 1) - 1))
    k('s_nop 0')
    k(C(0, 15))
    for i in range(32):
        if E0 + 2 * i < NG: k(E(1, i)); k('s_nop 0')
        if i & 1 and E0 + 2 * i + 1 < NG: k(C(1, i >> 1))
    k(f's_mov_b32 s{sCNT}, 7')
    k(f's_waitcnt lgkmcnt({build_iter(1)[1]})')
    k.stamp(3)
    k(f'{Lloop}:')
    for N in range(1, 9):
        ins, w0, _ = build_iter(N)
        cnt = 0
        for idx, x in enumerate(ins):
            if x.startswith(MF):
                if N == 7 and cnt == 36:
                    k(f's_cbranch_scc1 {Ltail}')
                    tail_rest = ins[idx:]
                cnt += 1
            if N == 7 and 33 <= cnt <= 36: assert not (x.startswith('s_') and not x.startswith('s_waitcnt')), x
            k(x)
    k(f's_branch {Lloop}')
    k(f'{Ltail}:')
    k.stamp(4)
    N = 7
    for db in range(8):
        for hf in range(2): k(vread(N, db, hf))
    for x in tail_rest:
        if x.startswith('v_exp') and any(x == E(N, i) for i in range(32)): k(x); k('s_nop 0')
        elif x.startswith('v_cvt') and any(x == C(N, j) for j in range(16)): k(x)
    k('s_waitcnt lgkmcnt(0)')
    k('s_nop 0')
    red = [f'v_add_f32_dpp v{r}, v{r}, v{r} row_ror:8 row_mask:0xf bank_mask:0xf' for r in GA]
    red += [f'v_permlane16_swap_b32 v{GA[j]}, v{GA[j+1]}' for j in range(0, 8, 2)]
    red += [f'v_add_f32 v{GA[j]}, v{GA[j]}, v{GA[j+1]}' for j in range(0, 8, 2)]
    red += [f'v_and_b32 v{vGA}, 7, v1', f'v_lshrrev_b32 v{vGB}, 4, v1']
    red += [f'v_permlane32_swap_b32 v{GA[0]}, v{GA[2]}', f'v_permlane32_swap_b32 v{GA[4]}, v{GA[6]}']
    red += [f'v_add_f32 v{GA[0]}, v{GA[0]}, v{GA[2]}', f'v_add_f32 v{GA[4]}, v{GA[4]}, v{GA[6]}']
    red += [f'v_lshl_add_u32 v{vGA}, v{vGA}, 3, v{vGB}', f'v_lshlrev_b32 v{vGA}, 2, v{vGA}']
    red += [f'buffer_store_dword v{GA[0]}, v{vGA}, s[68:71], s43 offen sc1', f'buffer_store_dword v{GA[4]}, v{vGA}, s[68:71], s43 offen offset:16 sc1']
    for qb in range(4): k(ones(N, qb))
    for db in range(8):
        for qb in range(4):
            k(pv(N, db, qb))
            if red: k(red.pop(0))
    assert not red
    k(f'v_max3_f32 v{vT}, v{Lb(0)}, v{Lb(1)}, v{Lb(2)}')
    k(f'v_max_f32 v{vT}, v{vT}, v{Lb(3)}')
    k(f'v_cmp_nge_f32 vcc, s{sTH}, v{vT}')
    k(f's_cbranch_vccnz {Lslow}')
    k('s_mov_b64 s[66:67], -1')
    k(f'{Lepi}:')
    k('s_setreg_imm32_b32 hwreg(HW_REG_MODE, 4, 2), 3')
    RC = vE
    for qb in range(4):
        k(f'v_rcp_f32 v{RC+2*qb}, v{Lb(qb)}')
        k('s_nop 0')
        k(f'v_mov_b32 v{RC+2*qb+1}, v{RC+2*qb}')
    k('v_lshlrev_b32 v6, 4, v1')
    k(f's_lshl_b32 s48, s{sHEAD}, 9')
    k(f's_add_u32 s48, s48, s{sMB0}')
    k('s_lshl_b32 s48, s48, 10')
    n = 0
    for u in range(4):
        for qb in range(4):
            X = vS + (n % 4) * 8; D = vP + (n % 4) * 4; n += 1
            for h in range(2):
                a = aO + ((2 * u + h) * 4 + qb) * 4
                for r in range(4): k(f'v_accvgpr_read_b32 v{X+4*h+r}, a{a+r}')
            if u == 0:
                k(f'v_max3_f32 v{vT+1}, abs(v{X}), abs(v{X+1}), abs(v{X+2})')
                k(f'v_max3_f32 v{vT+1}, v{vT+1}, abs(v{X+3}), abs(v{X+4})')
                k(f'v_max3_f32 v{vT+1}, v{vT+1}, abs(v{X+5}), abs(v{X+6})')
                k(f'v_mov_b32 v{vT}, v{vT+1}' if qb == 0 else f'v_min_f32 v{vT}, v{vT}, v{vT+1}')
            for j in range(4): k(f'v_pk_mul_f32 {R2("v", X+2*j)}, {R2("v", X+2*j)}, {R2("v", RC+2*qb)}')
            for j in range(4): k(f'v_cvt_pk_bf16_f32 v{D+j}, v{X+2*j}, v{X+2*j+1}')
            k(f'buffer_store_dwordx4 {R4("v", D)}, v6, s[28:31], s48 offen offset:{qb*1024}')
        if u == 0:
            k(f'v_cmp_gt_f32 vcc, 0x{ufl:08x}, v{vT}')
            k('s_and_b64 vcc, vcc, s[66:67]')
            k(f's_cbranch_vccnz {Lslow}')
        if u < 3: k('s_add_u32 s48, s48, 131072')
    Lnext = k.label('next')
    if then:
        k('s_setreg_imm32_b32 hwreg(HW_REG_MODE, 4, 2), 0')
        k(f's_branch {Lnext}')
    else:
        k.stamp_out(kidx)
    k(f'{Lend}:')
    k('s_endpgm')

    k(f'{Lslow}:')
    k('s_waitcnt vmcnt(0)')
    k('s_mov_b64 s[66:67], 0')
    MX = vL + 16
    vKG = vL + 20
    vVP = vL + 22
    vVG = vL + 30
    k(f'v_and_b32 v{tmp}, 15, v1')
    k(f'v_lshrrev_b32 v{tmp+1}, 4, v1')
    k(f'v_lshlrev_b32 v{vKG}, 8, v{tmp}')
    k(f'v_lshl_add_u32 v{vKG}, v{tmp+1}, 4, v{vKG}')
    k(f'v_add_u32 v{vKG+1}, 4096, v{vKG}')
    k(f's_lshl_b32 s48, s{sWAVE}, 13')
    k(f's_add_u32 s48, s48, {SL(8)}')
    k(f's_sub_u32 s49, s48, 0x10000')
    for db in range(8): k(f'v_add_u32 v{vVP+db}, s49, v{vVA+db}')
    for j in range(2): k(f'v_subrev_u32 v{vVG+j}, s{sM0}, v{vVD+j}')
    for qb in range(4): k(f'v_mov_b32 v{MX+qb}, 0xff7fffff')
    for i in range(16): k(f'v_mov_b32 v{vNM+i}, 0')
    k(f's_mov_b32 s{sFIRST}, 0')
    Lp = k.label('spass'); Lu = k.label('sunit'); Lp1 = k.label('sp1'); Lnx = k.label('snext'); Lnov = k.label('snov')
    k(f'{Lp}:')
    k(f's_mov_b32 s{sK}, 0')
    k(f'{Lu}:')
    for kb in range(2):
        for ds in range(4):
            k(f'buffer_load_dwordx4 {R4("a", Kfr(kb, ds))}, v{vKG+kb}, s[20:23], s{sK} offen offset:{ds*64}')
    k(f's_cmp_eq_u32 s{sFIRST}, 0')
    k(f's_cbranch_scc1 {Lnov}')
    for half in range(2):
        k(f's_add_u32 m0, s48, {half*4096}')
        k(f's_add_u32 s49, s{sK}, {half*4096}')
        for n in range(4):
            k(f'buffer_load_dwordx4 v{vVG+(n&1)}, s[24:27], s49 offen offset:{n*1024} lds')
    k(f'{Lnov}:')
    k('s_waitcnt vmcnt(0)')
    for kb in range(2):
        for ds in range(4):
            for qb in range(4): k(qk(0, kb, ds, qb))
    k('s_nop 7')
    k(f's_cmp_eq_u32 s{sFIRST}, 0')
    k(f's_cbranch_scc0 {Lp1}')
    for qb in range(4):
        regs = [Sb(0, kb, qb) + r for kb in range(2) for r in range(4)]
        for i in range(0, 8, 2): k(f'v_max3_f32 v{MX+qb}, v{MX+qb}, v{regs[i]}, v{regs[i+1]}')
    k(f's_branch {Lnx}')
    k(f'{Lp1}:')
    for db in range(8):
        for hf in range(2):
            k(f'ds_read_b64_tr_b16 {R2("a", Vfr(db) + 2*hf)}, v{vVP+db} offset:{hf*4096}')
    for i in range(0, 32, 2):
        k(E(0, i)); k(E(0, i + 1)); k('s_nop 0'); k(C(0, i >> 1))
    k('s_waitcnt lgkmcnt(0)')
    k('s_nop 0')
    for qb in range(4): k(ones(0, qb))
    for db in range(8):
        for qb in range(4): k(pv(0, db, qb))
    k(f'{Lnx}:')
    k(f's_add_u32 s{sK}, s{sK}, 8192')
    k(f's_cmp_lt_u32 s{sK}, 524288')
    k(f's_cbranch_scc1 {Lu}')
    k('s_nop 7')
    k(f's_cmp_eq_u32 s{sFIRST}, 0')
    k(f's_cbranch_scc0 {Lepi}')
    for qb in range(4):
        xmax(MX + qb, vT)
        for r in range(4): k(f'v_sub_f32 v{NM(qb)+r}, 0, v{MX+qb}')
    for i in range(16): k(f'v_mov_b32 v{vL+i}, 0')
    for i in range(128): k(f'v_accvgpr_write_b32 a{aO+i}, 0')
    k(f's_mov_b32 s{sFIRST}, 1')
    k(f's_branch {Lp}')
    k.noreplay = {Lepi, Lp}
    if then:
        k(f'{Lnext}:')
        then(k)
    return k
```

```python
from gen_gk import *

import sys
FSH = 7
SLEEP = 4
for a in sys.argv:
    if a.startswith('sleep='): SLEEP = int(a[6:])
LATE = 'early' not in sys.argv
P3 = 'p3' in sys.argv
sWS, sB1, sOUT, sB2, sWAVE = 4, 6, 8, 10, 44
vW = 8

def sentinel(k, regs, acc):
    k(f'v_max3_u32 v{acc}, v{regs[0]}, v{regs[1]}, v{regs[2]}')
    i = 3
    while i + 1 < len(regs):
        k(f'v_max3_u32 v{acc}, v{acc}, v{regs[i]}, v{regs[i+1]}'); i += 2
    if i < len(regs): k(f'v_max_u32 v{acc}, v{acc}, v{regs[i]}')

def publish(k, s_off, srd=68):
    L = k.label('pub')
    k('s_waitcnt vmcnt(0)')
    k('s_barrier')
    k(f's_cmp_lg_u32 s{sWAVE}, 0')
    k(f's_cbranch_scc1 {L}')
    k('v_mov_b32 v3, 0')
    k('v_mov_b32 v4, 1')
    k(f'buffer_store_dword v4, v3, s[{srd}:{srd+3}], s{s_off} offen sc1')
    k(f'{L}:')

def await_flags(k, s_off, n, srd=68):
    L = k.label('aw'); Ld = k.label('awd')
    k(f's_cmp_lg_u32 s{sWAVE}, 0')
    k(f's_cbranch_scc1 {Ld}')
    if n: k(f'v_and_b32 v3, {n-1}, v1')
    k(f'v_lshlrev_b32 v3, {FSH}, v3')
    k('s_mov_b32 s53, 0x80000')
    k(f'{L}:')
    if SLEEP: k(f's_sleep {SLEEP}')
    k(f'buffer_load_dword v4, v3, s[{srd}:{srd+3}], s{s_off} offen sc1')
    k('s_sub_u32 s53, s53, 1')
    k('s_cselect_b64 s[58:59], 0, -1')
    k('s_waitcnt vmcnt(0)')
    k('v_cmp_eq_u32 vcc, 0, v4')
    k('s_and_b64 vcc, vcc, s[58:59]')
    k(f's_cbranch_vccnz {L}')
    k(f'{Ld}:')
    k('s_barrier')

def coords_128(k):
    k('s_bfe_u32 s40, s2, 0x10002')
    k('s_bfe_u32 s42, s2, 0x10001')
    k('s_lshl_b32 s42, s42, 3')
    k('s_lshr_b32 s43, s2, 5')
    k('s_add_u32 s42, s42, s43')
    k('s_and_b32 s43, s2, 1')
    k('s_lshl_b32 s43, s43, 2')
    k('s_bfe_u32 s41, s2, 0x20003')
    k('s_add_u32 s43, s43, s41')
    k('s_lshl_b32 s47, s42, 3')
    k(f's_lshl_b32 s48, s{sWAVE}, 1')
    k('s_add_u32 s47, s47, s48')

def gen_back(kidx=3, k=None):
    S = 8; MODL = S * 16384
    fused = k is not None
    if not fused:
        k = Kern('oproj_kernel', (256, 1, 1), (256, 1, 1), MODL + 12288, vgpr=256, agpr=220, sgpr=78)
    k.plain_stores = True
    Lend = k.label('end')
    if not fused:
        k('s_cmp_ge_u32 s2, 256')
        k(f's_cbranch_scc1 {Lend}')
        k.stamp(0)
    st = (lambda i: None) if fused else k.stamp
    k(f's_load_dwordx2 s[{sWS}:{sWS+1}], s[0:1], {A_WS}')
    k(f's_load_dwordx2 s[28:29], s[0:1], {A_X}')
    k(f's_load_dwordx2 s[{sB1}:{sB1+1}], s[0:1], {A_B1}')
    k(f's_load_dwordx2 s[{sOUT}:{sOUT+1}], s[0:1], {A_OUT}')
    k(f's_load_dwordx2 s[{sB2}:{sB2+1}], s[0:1], {A_B2}')
    k(f's_load_dwordx2 s[12:13], s[0:1], {A_WO}')
    k('v_and_b32 v1, 63, v0')
    k('v_lshrrev_b32 v2, 6, v0')
    k('s_nop 0')
    k(f'v_readfirstlane_b32 s{sWAVE}, v2')
    NA, NB, LP, RA, PD = 8, 2, 256, 8, 4
    coords_128(k)
    vX = 12; vA = 16; vA2 = 24; tmp = 32
    k(f's_lshl_b32 s52, s{sWAVE}, 12')
    k(f'v_lshl_add_u32 v{vW}, v1, 4, s52')
    wd = [(vW, n * 1024) for n in range(4)]
    wdo = wdma_regs(k, 56, LP, 2048, 16, tmp, 1, sWAVE)
    k('s_lshl_b32 s48, s47, 10')
    k(f'v_lshl_add_u32 v{vX}, v1, 4, s48')
    k(f'v_add_u32 v{vX+1}, 0x20000, v{vX}')
    k('s_lshl_b32 s50, s43, 8')
    k('s_lshl_b32 s48, s40, 22')
    k('s_add_u32 s50, s50, s48')
    k('s_lshl_b32 s51, s40, 23')
    k('s_waitcnt lgkmcnt(0)')
    k.srd(12, 12, 4096 * 2048)
    srd_off(k, 16, sWS, WS_O, 16 * MB)
    srd_off(k, 68, sWS, WS_FL, 768 << FSH)
    acc0 = 64; XR = 128
    ext = {}
    g = Gemm(k, NA, NB, LP, S, PD, RA, 32,
             acc=lambda a, b: R4('v', acc0 + (a * NB + b) * 4),
             aring=lambda s: ('a', 16 * S + 4 * s),
             bring=lambda st, ks, b: R4('a', st * 16 + (ks * NB + b) * 4),
             vA=[[vA + a for a in range(NA)], [vA2 + a for a in range(NA)]], lds_base=0,
             srdW=12, sW=50, wpitch=2048, wdma=wdo, sM0=52, srdX=16, sX=51, vX=[vX, vX + 1], wait_every=2,
             extra_loads=lambda t: ext.get(t, []), xmod=' sc1', pre_w=fused)
    if fused:
        k(f's_lshl_b32 s45, s2, {FSH}')
        k(f's_add_u32 s45, s45, {512 << FSH}')
        publish(k, 45)
        k.stamp(5)
        for x in g.wpreload(): k(x)
        k('v_and_b32 v3, 3, v1')
        k('v_bfe_u32 v4, v1, 2, 2')
        k('v_lshl_add_u32 v4, v3, 3, v4')
        k('s_lshr_b32 s45, s42, 1')
        k('s_lshl_b32 s45, s45, 5')
        k('s_lshl_b32 s46, s40, 2')
        k('s_add_u32 s45, s45, s46')
        k('v_add_u32 v4, s45, v4')
        k('s_and_b32 s45, s2, 0xfc')
        k('v_add_u32 v3, s45, v3')
        k('v_cmp_gt_u32 vcc, 16, v1')
        k(f's_mov_b32 s45, {512 << FSH}')
        k('s_nop 0')
        k('v_cndmask_b32 v3, v3, v4, vcc')
        await_flags(k, 45, 0)
        k.stamp(6)
    g.make_sched(*((5, [2]) if fused else (3, [1, 2, 2, 2, 2])))
    g.prologue_loads()
    tr_addr_regs(k, vA, NA, LP, tmp, 1)
    for a in range(NA): k(f'v_add_u32 v{vA2+a}, 0x10000, v{vA+a}')
    fin = mod_finalize(k, sWS, 56, 40, 1)
    g.vq += ['m'] * 4
    rec = Kern('rec', None, None, 0, 0); fin(rec)
    ext[5 if fused else 2] = [[x] for x in rec.lines]
    Ltail = k.label('tail')
    k.code_srd(32, Ltail)
    k('s_lshr_b32 s55, s2, 3')
    k('s_lshl_b32 s55, s55, 12')
    k('v_lshlrev_b32 v52, 4, v0')
    k.srd(28, 28, 4 * MB)
    k.srd(72, sB2, 2048)
    srd_off(k, 24, sWS, WS_P, 8 * MB)
    srd_off(k, 20, sWS, WS_MOD32 + 8192, 12288)
    srd_off(k, 36, sWS, WS_X1, 4 * MB)
    srd_off(k, 64, sWS, WS_Y, 4 * MB)
    k('v_and_b32 v4, 15, v1')
    k('v_lshrrev_b32 v5, 4, v1')
    k('v_lshlrev_b32 v6, 11, v4')
    k('v_lshl_add_u32 v7, v5, 4, v6')
    k('v_lshlrev_b32 v3, 4, v1')
    k('s_lshl_b32 s48, s47, 15')
    k('s_lshl_b32 s49, s43, 8')
    k('s_add_u32 s48, s48, s49')
    k('s_lshl_b32 s49, s40, 22')
    k('s_add_u32 s48, s48, s49')
    k('s_add_u32 s49, s48, 32768')
    k('s_lshl_b32 s46, s42, 4')
    k('s_lshl_b32 s45, s43, 1')
    k('s_add_u32 s46, s46, s45')
    k('s_add_u32 s46, s46, s40')
    k('s_lshl_b32 s54, s46, 14')
    k(f's_add_u32 s45, s54, {4*MB}')
    k(f's_mul_i32 s41, s{sWAVE}, 3072')
    ext[25] = [['buffer_load_dwordx4 v[48:51], v52, s[32:35], s55 offen ; pf'],
               ['buffer_load_dwordx4 v[48:51], v52, s[72:75], 0 offen ; pf']]
    ext[26] = [[f'buffer_load_dwordx4 {R4("v", XR + 4*j)}, v{vW}, s[28:31], s54 offen offset:{j*1024}'] for j in range(4)]
    allf = [f'buffer_load_dword v{60+j}, v53, s[68:71], s{63 if j & 1 == 0 else 62} offen sc1'.replace('v53', 'v53' if j < 2 else 'v54') for j in range(4)]
    if fused:
        k(f'v_lshlrev_b32 v53, {FSH}, v1')
        k(f'v_add_u32 v54, {128 << FSH}, v53')
        ext[27] = [[f's_mov_b32 s63, {512 << FSH}'], [f's_mov_b32 s62, {576 << FSH}']] + [[x] for x in allf]
    ext[28] = [[f's_add_u32 m0, s41, {MODL}'], ['s_nop 0']] + \
              [[f'buffer_load_dwordx4 v3, s[20:23], s41 offen offset:{j*1024} sc1 lds'] for j in range(3)]
    g.emit(loop_sreg=53)
    if not P3: st(1)
    if fused: k.stamp(7)
    k(f'{Ltail}:')
    if fused:
        La = k.label('allchk'); Lao = k.label('allok')
        k('s_mov_b32 s53, 0x80000')
        k('s_waitcnt vmcnt(3)')
        k(f'{La}:')
        k('v_min3_u32 v4, v60, v61, v62')
        k('v_min_u32 v4, v4, v63')
        k('s_sub_u32 s53, s53, 1')
        k('s_cselect_b64 s[58:59], 0, -1')
        k('v_cmp_eq_u32 vcc, 0, v4')
        k('s_and_b64 vcc, vcc, s[58:59]')
        k(f's_cbranch_vccz {Lao}')
        for x in allf: k(x)
        k('s_waitcnt vmcnt(0)')
        k(f's_branch {La}')
        k(f'{Lao}:')
        k.norep2 = La
    else:
        k('s_nop 5')
    n = 0
    for u in range(4):
        ps = []
        for b in range(NB):
            p = 144 + n * 4; n += 1
            ps.append(p)
            A0 = acc0 + ((2 * u) * NB + b) * 4; A1 = acc0 + ((2 * u + 1) * NB + b) * 4
            k(f'v_cvt_pk_bf16_f32 v{p}, v{A0}, v{A0+1}')
            k(f'v_cvt_pk_bf16_f32 v{p+1}, v{A0+2}, v{A0+3}')
            k(f'v_cvt_pk_bf16_f32 v{p+2}, v{A1}, v{A1+1}')
            k(f'v_cvt_pk_bf16_f32 v{p+3}, v{A1+2}, v{A1+3}')
        for sw in ('32', '16'):
            for p in ps:
                k(f'v_permlane{sw}_swap_b32 v{p}, v{p+2}')
                k(f'v_permlane{sw}_swap_b32 v{p+1}, v{p+3}')
        for b, p in enumerate(ps):
            k(f'buffer_store_dwordx4 {R4("v", p)}, v7, s[24:27], s{48+b} offen offset:{u*64} sc1')
    k('s_waitcnt vmcnt(8)')
    k('s_barrier')
    GA, SB, CB = 176, 192, 208
    X = [64, 80]
    k(f'v_add_u32 v10, {MODL}, v3')
    for base, sec in ((GA, 0), (SB, 1), (CB, 2)):
        for h in range(2):
            for q in range(2):
                k(f'ds_read_b128 {R4("v", base + 8*h + 4*q)}, v10 offset:{sec*4096 + h*2048 + q*1024}')
    for r in range(2):
        unpack8(k, X[r], XR + 8 * r); unpack8(k, X[r] + 8, XR + 8 * r + 4)
    k('s_and_b32 s40, s2, 7')
    k('s_lshr_b32 s41, s2, 3')
    k('s_lshr_b32 s42, s40, 2')
    k('s_lshl_b32 s42, s42, 2')
    k('s_lshr_b32 s43, s41, 3')
    k('s_add_u32 s42, s42, s43')
    k('s_and_b32 s43, s40, 3')
    k('s_lshl_b32 s43, s43, 3')
    k('s_and_b32 s41, s41, 7')
    k('s_add_u32 s43, s43, s41')
    k(f's_cmp_eq_u32 s{sWAVE}, 3')
    k('s_cselect_b32 s41, 0x7ff00000, 0')
    k(f'v_add_u32 v{vW+1}, s41, v{vW}')
    k('s_mul_i32 s62, s43, 224')
    k('s_lshl_b32 s50, s62, 10')
    srd_off(k, 12, sWS, WS_W1, 1024 * 7168)
    k.srd(28, sB1, 7168)
    S1 = 6; BP = 40; BI = 64; acc1 = 96
    ext1 = {}
    g1 = Gemm(k, 7, 4, 224, S1, 4, 7, 16,
              acc=lambda a, b: R4('v', acc1 + (a * 4 + b) * 4),
              aring=lambda s: ('a', 32 * S1 + 4 * s),
              bring=lambda st, ks, b: R4('a', st * 32 + (ks * 4 + b) * 4),
              vA=[[vA] * 7, [vA + 1] * 7], lds_base=32768, aimm=32, tile_bytes=16384,
              srdW=12, sW=50, wpitch=224, wdma=[(vW, 0), (vW, 1024), (vW + 1, 2048), (vW + 1, 3072)],
              sM0=52, srdX=64, sX=51, vX=[vX, vX + 1], cinit=lambda a, b: R4('v', BI + 4 * a),
              extra_loads=lambda t: ext1.get(t, []), pre_w=True, xmod=' sc1')
    g1.wmod = ' sc1'
    k('s_mov_b32 s60, 0x3a800000')
    k('s_mov_b32 s61, 0xba800000')
    k('s_mov_b32 s53, 0x40000')
    k('s_waitcnt lgkmcnt(0)')
    Lm = k.label('modchk'); Lmok = k.label('modok')
    k(f'{Lm}:')
    sentinel(k, list(range(GA, GA + 48)), 4)
    k('s_sub_u32 s53, s53, 1')
    k('s_cselect_b64 s[58:59], 0, -1')
    k('v_cmp_eq_u32 vcc, -1, v4')
    k('s_and_b64 vcc, vcc, s[58:59]')
    k(f's_cbranch_vccz {Lmok}')
    for j in range(12):
        k(f's_mov_b32 s41, {(j >> 2) * 4096}')
        k(f'buffer_load_dwordx4 {R4("v", GA + 4*j)}, v3, s[20:23], s41 offen offset:{(j & 3)*1024} sc1')
    k('s_waitcnt vmcnt(0)')
    k(f's_branch {Lm}')
    k(f'{Lmok}:')
    k('s_mov_b32 s53, 0x40000')
    k('s_waitcnt vmcnt(0)')
    RX = 224
    Lp = k.label('poll')
    k(f'{Lp}:')
    for kh in range(2):
        for j in range(4):
            k(f'buffer_load_dwordx4 {R4("v", RX + 16*kh + 4*j)}, v{vW}, s[24:27], s{54 if kh == 0 else 45} offen offset:{j*1024} sc1')
    k('s_sub_u32 s53, s53, 1')
    k('s_cselect_b64 s[58:59], 0, -1')
    k('s_waitcnt vmcnt(0)')
    sentinel(k, list(range(RX, RX + 32)), 4)
    k('v_cmp_eq_u32 vcc, -1, v4')
    k('s_and_b64 vcc, vcc, s[58:59]')
    k(f's_cbranch_vccnz {Lp}')
    if not P3: st(2)
    streams = []
    for r in range(2):
        q = Kern('rec', None, None, 0, 0)
        U0, U1, T, PK = 96 + 16 * r, 144 + 16 * r, 32 + 4 * r, 128 + 8 * r
        unpack8(q, U0, RX + 8 * r); unpack8(q, U0 + 8, RX + 8 * r + 4)
        unpack8(q, U1, RX + 16 + 8 * r); unpack8(q, U1 + 8, RX + 16 + 8 * r + 4)
        x = X[r]
        for j in range(0, 16, 2): q(f'v_pk_add_f32 {R2("v", U0+j)}, {R2("v", U0+j)}, {R2("v", U1+j)}')
        for j in range(0, 16, 2): q(f'v_pk_fma_f32 {R2("v", x+j)}, {R2("v", U0+j)}, {R2("v", GA+j)}, {R2("v", x+j)}')
        for j in range(8): q(f'v_cvt_pk_bf16_f32 v{PK+j}, v{x+2*j}, v{x+2*j+1}')
        q(f'buffer_store_dwordx4 {R4("v", PK)}, v{vW}, s[36:39], s54 offen offset:{r*2048} sc1')
        q(f'buffer_store_dwordx4 {R4("v", PK+4)}, v{vW}, s[36:39], s54 offen offset:{r*2048+1024} sc1')
        ln_fast(q, x, T, 60)
        for j in range(0, 16, 2): q(f'v_pk_mul_f32 {R2("v", x+j)}, {R2("v", x+j)}, {R2("v", T)}')
        for j in range(0, 16, 2): q(f'v_pk_fma_f32 {R2("v", x+j)}, {R2("v", x+j)}, {R2("v", CB+j)}, {R2("v", SB+j)}')
        ln_fast(q, x, T, 60)
        for j in range(0, 16, 2): q(f'v_pk_mul_f32 {R2("v", x+j)}, {R2("v", x+j)}, {R2("v", T)}')
        for j in range(8): q(f'v_cvt_pk_bf16_f32 v{U0+j}, v{x+2*j}, v{x+2*j+1}')
        streams.append(q.lines)
    k('v_lshlrev_b32 v4, 3, v5')
    pre = [f'buffer_load_dwordx2 {R2("v", BP + 2*a)}, v4, s[28:31], s62 offen offset:{a*32}' for a in range(7)] + \
          ([] if LATE else [x for x in g1.wpreload() if x != 's_nop 0'])
    cnt = 0
    for a, b in zip(*streams):
        if a == 's_nop 1': k('s_nop 0'); continue
        if a == 's_nop 0': continue
        k(a); k(b)
        cnt += 1
        if cnt % 3 == 0 and pre: k(pre.pop(0))
    assert not pre
    k('v_lshrrev_b32 v5, 2, v1')
    k('v_mul_u32_u24 v5, 528, v5')
    k('v_and_b32 v6, 1, v1')
    k('v_lshl_add_u32 v5, v6, 8, v5')
    k('v_bfe_u32 v6, v1, 1, 1')
    k('v_lshl_add_u32 v5, v6, 3, v5')
    k('v_lshl_add_u32 v5, v2, 5, v5')
    for r in range(2):
        P = 96 + 16 * r
        k(f'ds_write_b64 v5, {R2("v", P)} offset:{16*r}')
        k(f'ds_write_b64 v5, {R2("v", P+2)} offset:{16*r+128}')
        k(f'ds_write_b64 v5, {R2("v", P+4)} offset:{16*r+16*528}')
        k(f'ds_write_b64 v5, {R2("v", P+6)} offset:{16*r+16*528+128}')
    k('v_lshrrev_b32 v6, 5, v0')
    k('v_and_b32 v7, 31, v0')
    k('v_mul_u32_u24 v5, 528, v6')
    k('v_lshl_add_u32 v5, v7, 4, v5')
    k('v_lshlrev_b32 v6, 17, v6')
    k('v_bfe_u32 v7, v0, 3, 2')
    k('v_lshl_add_u32 v6, v7, 8, v6')
    k('v_and_b32 v7, 7, v0')
    k('v_lshl_add_u32 v6, v7, 4, v6')
    k('s_lshr_b32 s48, s46, 1')
    k('s_lshl_b32 s48, s48, 10')
    k('s_and_b32 s49, s46, 1')
    k('s_lshl_b32 s49, s49, 7')
    k('s_add_u32 s48, s48, s49')
    k('s_waitcnt lgkmcnt(0)')
    k('s_barrier')
    for j in range(4): k(f'ds_read_b128 {R4("v", 144+4*j)}, v5 offset:{8*528*j}')
    for j in range(4):
        k(f's_waitcnt lgkmcnt({3-j})')
        k(f'buffer_store_dwordx4 {R4("v", 144+4*j)}, v6, s[64:67], s48 offen sc1')
        if j < 3: k(f's_add_u32 s48, s48, {8*131072}')
    k(f's_lshl_b32 s46, s46, {FSH}')
    k(f's_lshl_b32 s45, s42, {5+FSH}')
    k('s_lshl_b32 s47, s42, 4')
    k(f's_lshl_b32 s48, s{sWAVE}, 2')
    k('s_add_u32 s47, s47, s48')
    k('s_lshl_b32 s48, s47, 10')
    k(f'v_lshl_add_u32 v{vX}, v1, 4, s48')
    k(f'v_add_u32 v{vX+1}, 0x20000, v{vX}')
    k('s_mov_b32 s51, 0')
    k(f'v_lshrrev_b32 v{tmp}, 2, v1')
    k(f'v_mul_u32_u24 v{tmp}, 224, v{tmp}')
    k(f'v_and_b32 v{tmp+1}, 3, v1')
    k(f'v_lshl_add_u32 v{vA}, v{tmp+1}, 3, v{tmp}')
    k(f'v_add_u32 v{vA+1}, 0x10000, v{vA}')
    Lepi = k.label('epi')
    k.code_srd(32, Lepi)
    k('v_lshlrev_b32 v60, 4, v0')
    ext1[11] = [['buffer_load_dwordx4 v[56:59], v60, s[32:35], s55 offen ; pf']]
    publish(k, 46)
    if not P3: st(3)
    if LATE:
        for x in g1.wpreload(): k(x)
    for a in range(7):
        for j in range(2):
            k(f'v_lshlrev_b32 v{BI+4*a+2*j}, 16, v{BP+2*a+j}')
            k(f'v_and_b32 v{BI+4*a+2*j+1}, 0xffff0000, v{BP+2*a+j}')
    await_flags(k, 45, 32)
    if not P3: st(4)
    g1.make_sched(3, [2])
    g1.prologue_loads()
    g1.emit(loop_sreg=None)
    st(1 if P3 else 5)
    k(f'{Lepi}:')
    k('s_waitcnt vmcnt(0)')
    if not LATE: k('s_barrier')
    srd_off(k, 24, sWS, WS_HH, 2048 * 3584 * 2)
    k('s_and_b32 s62, s2, 1')
    k('s_lshl_b32 s62, s62, 2')
    k('s_bfe_u32 s63, s2, 0x20003')
    k('s_add_u32 s62, s62, s63')
    k('s_bfe_u32 s63, s2, 0x10002')
    k(f's_mul_i32 s50, s62, {3584*256}')
    k(f's_mul_i32 s63, s63, {1792*256}')
    k('s_add_u32 s50, s50, s63')
    srd_off(k, 12, sWS, WS_W2, 3584 * 2048)
    NT = 28; SP = 184
    send = []
    for q in range(4):
        send += [[f'v_cvt_pk_bf16_f32 v{SP+4*q+j}, v{acc0+8*q+2*j}, v{acc0+8*q+2*j+1}'] for j in range(4)]
    A = lambda a, b: acc0 + (a * NB + b) * 4
    g2 = Gemm(k, NA, NB, LP, S, PD, RA, NT,
              acc=lambda a, b: R4('v', A(a, b)),
              aring=lambda s: ('a', 16 * S + 4 * s),
              bring=lambda st, ks, b: R4('a', st * 16 + (ks * NB + b) * 4),
              vA=[[vA + a for a in range(NA)], [vA2 + a for a in range(NA)]], lds_base=0,
              srdW=12, sW=50, wpitch=256, wdma=wd, sM0=52, srdX=24, sX=51, vX=[vX, vX + 1], wait_every=2,
              extra_loads=lambda t: send if t == NT - 1 else [], pre_w=True, xmod=' sc1')
    g2.wmod = ' sc1'
    c1 = -2.0 * math.log2(math.e) * math.sqrt(2.0 / math.pi); c2 = c1 * 0.044715
    C1, C2, ONE = 40, 42, 44
    for (r, v) in ((C1, c1), (C2, c2), (ONE, 1.0)):
        k(f'v_mov_b32 v{r}, 0x{f2u(v):08x}'); k(f'v_mov_b32 v{r+1}, 0x{f2u(v):08x}')
    k('v_lshlrev_b32 v6, 4, v1')
    k('s_mul_i32 s54, s43, 7')
    k('s_lshr_b32 s55, s54, 1')
    k('s_lshl_b32 s55, s55, 7')
    k('s_add_u32 s55, s55, s47')
    k('s_lshl_b32 s55, s55, 10')
    for j in range(1, 4): k(f's_add_u32 s{55+j}, s55, {j*131072}')
    T = 48
    Lodd = k.label('odd'); Ljoin = k.label('join')
    k('s_bitcmp1_b32 s43, 0')
    k(f's_cbranch_scc1 {Lodd}')
    for odd in range(2):
        if odd: k(f'{Lodd}:')
        pre = [] if LATE else [x for x in g2.wpreload() if x != 's_nop 0']
        def gelu_tile(Ar, dst):
            for h in range(2):
                x = R2('v', Ar + 2 * h); t = R2('v', T + 2 * h)
                k(f'v_pk_mul_f32 {t}, {x}, {x}')
                k(f'v_pk_fma_f32 {t}, {t}, {R2("v", C2)}, {R2("v", C1)}')
                k(f'v_pk_mul_f32 {t}, {t}, {x}')
            if pre: k(pre.pop(0))
            for r in range(4): k(f'v_exp_f32 v{T+r}, v{T+r}')
            for h in range(2):
                t = R2('v', T + 2 * h)
                k(f'v_pk_add_f32 {t}, {t}, {R2("v", ONE)}')
            if pre: k(pre.pop(0))
            for r in range(4): k(f'v_rcp_f32 v{T+r}, v{T+r}')
            for h in range(2):
                x = R2('v', Ar + 2 * h); t = R2('v', T + 2 * h)
                k(f'v_pk_mul_f32 {x}, {x}, {t}')
            for h in range(2):
                k(f'v_cvt_pk_bf16_f32 v{dst+h}, v{Ar+2*h}, v{Ar+2*h+1}')
        n = 0
        order = [(b, blk) for b in range(4) for blk in range(4)]
        half = 0 if odd else 3
        order.sort(key=lambda x: x[1] != half)
        for b, blk in order:
            aa = [a for a in range(7) if (a + odd) >> 1 == blk]
            D = 56 + (n % 2) * 4; n += 1
            for a in aa:
                gelu_tile(acc1 + (a * 4 + b) * 4, D + 2 * ((a + odd) & 1))
            if len(aa) == 2:
                k(f'buffer_store_dwordx4 {R4("v", D)}, v6, s[24:27], s{55+blk} offen offset:{b*1024} sc1')
            else:
                hf = (aa[0] + odd) & 1
                k(f'buffer_store_dwordx2 {R2("v", D + 2*hf)}, v6, s[24:27], s{55+blk} offen offset:{b*1024 + 8*hf} sc1')
        assert not pre
        if not odd: k(f's_branch {Ljoin}')
    k(f'{Ljoin}:')
    k('s_lshl_b32 s46, s42, 5')
    k('s_add_u32 s46, s46, s43')
    k(f's_lshl_b32 s46, s46, {FSH}')
    k(f's_add_u32 s57, s46, {256 << FSH}')
    coords_128(k)
    k('s_lshr_b32 s45, s42, 1')
    k(f's_lshl_b32 s45, s45, {5+FSH}')
    k(f's_lshl_b32 s46, s40, {4+FSH}')
    k('s_add_u32 s45, s45, s46')
    k(f's_add_u32 s60, s45, {256 << FSH}')
    k('s_lshl_b32 s48, s47, 10')
    k(f'v_lshl_add_u32 v{vX}, v1, 4, s48')
    k(f'v_add_u32 v{vX+1}, 0x20000, v{vX}')
    k(f's_mul_i32 s51, s40, {56*131072}')
    k('s_xor_b32 s45, s40, 1')
    k('s_lshl_b32 s45, s45, 2')
    tr_addr_regs(k, vA, NA, LP, tmp, 1, xor_s=45)
    for a in range(NA): k(f'v_add_u32 v{vA2+a}, 0x10000, v{vA+a}')
    srd_off(k, 16, sWS, WS_XB, 4 * MB)
    k('s_lshl_b32 s55, s2, 14')
    k('s_xor_b32 s56, s55, 0x10000')
    k.srd(20, sOUT, 4 * MB)
    srd_off(k, 28, sWS, WS_MOD32 + 5 * 4096, 4096)
    k('v_and_b32 v4, 15, v1')
    k('v_lshrrev_b32 v5, 4, v1')
    k('v_lshlrev_b32 v6, 11, v4')
    k('v_lshl_add_u32 v7, v5, 4, v6')
    k('s_lshl_b32 s46, s43, 1')
    k('s_add_u32 s46, s46, s40')
    k('s_lshl_b32 s48, s47, 15')
    k('s_lshl_b32 s49, s46, 7')
    k('s_add_u32 s48, s48, s49')
    k('s_add_u32 s49, s48, 32768')
    k('v_lshlrev_b32 v10, 5, v5')
    k('v_lshlrev_b32 v11, 4, v5')
    k('s_lshl_b32 s54, s46, 8')
    k('s_lshl_b32 s61, s46, 7')
    publish(k, 57)
    st(2 if P3 else 6)
    if LATE:
        for x in g2.wpreload(): k(x)
    await_flags(k, 60, 16)
    st(3 if P3 else 7)
    XR, GR, BR, RX, UB = 32, 48, 128, 136, 168
    g2.make_sched(5, [2])
    g2.prologue_loads()
    for b in range(NB):
        for u in range(2):
            k(f'buffer_load_dwordx4 {R4("v", XR + (b*2+u)*4)}, v7, s[36:39], s{48+b} offen offset:{u*64} sc1')
    gate = [f'buffer_load_dwordx4 {R4("v", GR + (u*2+h)*4)}, v10, s[28:31], s54 offen offset:{u*128 + h*16} sc1' for u in range(2) for h in range(2)]
    for x in gate: k(x)
    for u in range(2):
        k(f'buffer_load_dwordx4 {R4("v", BR + u*4)}, v11, s[72:75], s61 offen offset:{u*64}')
    g2.vq += ['e'] * 10
    if P3 and not fused: g2.stamp_first = 4
    g2.emit(loop_sreg=53)
    if P3: st(5)
    for q in range(4): k(f'buffer_store_dwordx4 {R4("v", SP+4*q)}, v{vW}, s[16:19], s55 offen offset:{q*1024} sc1')
    for u in range(2):
        for j in range(4):
            k(f'v_lshlrev_b32 v{UB+8*u+2*j}, 16, v{BR+4*u+j}')
            k(f'v_and_b32 v{UB+8*u+2*j+1}, 0xffff0000, v{BR+4*u+j}')
    for i in range(16):
        k(f'v_lshlrev_b32 v{acc0+2*i}, 16, v{XR+i}')
        k(f'v_and_b32 v{acc0+2*i+1}, 0xffff0000, v{XR+i}')
    k('s_mov_b32 s53, 0x40000')
    Lg = k.label('gchk'); Lgok = k.label('gok')
    k(f'{Lg}:')
    sentinel(k, list(range(GR, GR + 16)), 4)
    k('s_sub_u32 s53, s53, 1')
    k('s_cselect_b64 s[58:59], 0, -1')
    k('v_cmp_eq_u32 vcc, -1, v4')
    k('s_and_b64 vcc, vcc, s[58:59]')
    k(f's_cbranch_vccz {Lgok}')
    for x in gate: k(x)
    k('s_waitcnt vmcnt(0)')
    k(f's_branch {Lg}')
    k(f'{Lgok}:')
    k('s_mov_b32 s53, 0x40000')
    k('s_waitcnt vmcnt(0)')
    if P3: st(6)
    Lp2 = k.label('poll')
    k(f'{Lp2}:')
    for q in range(4):
        k(f'buffer_load_dwordx4 {R4("v", RX + 4*q)}, v{vW}, s[16:19], s56 offen offset:{q*1024} sc1')
    k('s_sub_u32 s53, s53, 1')
    k('s_cselect_b64 s[58:59], 0, -1')
    k('s_waitcnt vmcnt(0)')
    sentinel(k, list(range(RX, RX + 16)), 4)
    k('v_cmp_eq_u32 vcc, -1, v4')
    k('s_and_b64 vcc, vcc, s[58:59]')
    k(f's_cbranch_vccnz {Lp2}')
    if P3: st(7)
    for i in range(16):
        o = acc0 + 32 + 2 * i; t = RX + 16 + 2 * (i % 4)
        k(f'v_lshlrev_b32 v{t}, 16, v{RX+i}')
        k(f'v_and_b32 v{t+1}, 0xffff0000, v{RX+i}')
        k(f'v_pk_add_f32 {R2("v", o)}, {R2("v", o)}, {R2("v", t)}')
    k('s_nop 0')
    for sw in ('32', '16'):
        for b in range(NB):
            for u in range(2):
                for r in range(4): k(f'v_permlane{sw}_swap_b32 v{A(4+2*u, b)+r}, v{A(5+2*u, b)+r}')
    for b in range(NB):
        for u in range(2):
            P = RX + (b * 2 + u) * 4
            for h in range(2):
                o = A(4 + 2 * u + h, b)
                for j in range(2):
                    x = R2('v', o + 2 * j)
                    k(f'v_pk_add_f32 {x}, {x}, {R2("v", UB+8*u+4*h+2*j)}')
                    k(f'v_pk_fma_f32 {x}, {x}, {R2("v", GR+(u*2+h)*4+2*j)}, {R2("v", acc0+(b*2+u)*8+4*h+2*j)}')
                for j in range(2): k(f'v_cvt_pk_bf16_f32 v{P+2*h+j}, v{o+2*j}, v{o+2*j+1}')
            k(f'buffer_store_dwordx4 {R4("v", P)}, v7, s[20:23], s{48+b} offen offset:{u*64} sc1')
    k.stamp_out(kidx)
    k(f'{Lend}:')
    k('s_endpgm')
    k.noreplay = set(getattr(k, 'noreplay', set())) | {Lm, Lg, getattr(k, 'norep2', Lm)}
    return k
```

```python
import sys
from gen_gk import *
from gen_front import *
from gen_back import publish, await_flags, FSH, sNONCE, ONE

THRESH_LOG2 = 16
P0 = 'p0' in sys.argv
NA_PF = 4
for a in sys.argv:
    if a.startswith('napf='): NA_PF = int(a[5:])

def gen_attn(thresh_log2=THRESH_LOG2, lead=27, E0=58, bias=100, ufl=0x4000, pf=True, sched=(2, [1, 2, 1, 2]), name='attn_kernel', kidx=2, dbg='', excl=True, split2=True, wqpf=0, then=None, ln1=False):
    k = Kern(name, (256, 1, 1), (256, 1, 1), 160 * 1024, vgpr=256, agpr=256, sgpr=102)
    Lend = k.label('end')
    k('s_cmp_ge_u32 s2, 256')
    k(f's_cbranch_scc1 {Lend}')
    k.stamp(0)
    k(f's_load_dwordx4 s[4:7], s[0:1], {A_K}')
    k(f's_load_dwordx2 s[8:9], s[0:1], {A_WQ}')
    k(f's_load_dwordx2 s[10:11], s[0:1], {A_WS}')
    k(f's_load_dwordx2 s[32:33], s[0:1], {A_WO}')
    k(f's_load_dwordx2 s[36:37], s[0:1], {A_W1}')
    k(f's_load_dwordx2 s[60:61], s[0:1], {A_W2}')
    k(f's_load_dwordx2 s[64:65], s[0:1], {A_WMOD}')
    if ln1: k(f's_load_dwordx2 s[20:21], s[0:1], {A_X}')
    front = ln1 and ONE
    if front: k(f's_load_dwordx2 s[68:69], s[0:1], {A_C}')
    Lloop = k.label('loop'); Ltail = k.label('tail'); Lslow = k.label('slow'); Lepi = k.label('epi'); Lstart2 = k.label('st2')
    vKA, vVA, vKD, vVD = 8, 12, 20, 24
    tmp = 26
    vL = 32; vTA2 = 32; vWD = 40; vX = 44
    vQ, vS, vP, vNM, vE, vONE, vT = 64, 128, 192, 224, 240, 248, 252
    aO, aF = 0, 128
    sHEAD, sQT, sWAVE, sMB0, sW, sX, sM0, sK, sV, sCNT, sTH, sFIRST = 40, 41, 44, 47, 50, 51, 52, 53, 54, 55, 57, 58
    k('v_and_b32 v1, 63, v0')
    k('v_lshrrev_b32 v2, 6, v0')
    k('s_and_b32 s42, s2, 7')
    k(f'v_readfirstlane_b32 s{sWAVE}, v2')
    k('s_lshl_b32 s42, s42, 2')
    k('s_bfe_u32 s43, s2, 0x20003')
    k(f's_add_u32 s{sHEAD}, s42, s43')
    k(f's_lshr_b32 s{sQT}, s2, 5')
    XR, PR = 64, 80
    GW, GC, GACC = 208, 224, 232
    if ln1:
        k(f's_lshl_b32 s{sM0}, s{sWAVE}, 12')
        k(f'v_lshl_add_u32 v5, v1, 4, s{sM0}')
        k('v_lshlrev_b32 v6, 4, v0')
        k('s_lshl_b32 s48, s2, 14')
    if front:
        k('v_lshrrev_b32 v7, 1, v0')
        k('v_mul_u32_u24 v3, 12288, v7')
        k('v_and_b32 v4, 1, v0')
        k('v_lshl_add_u32 v3, v4, 4, v3')
        k('v_lshlrev_b32 v7, 1, v7')
        k('s_bfe_u32 s54, s2, 0x10003')
        k('s_and_b32 s55, s2, 7')
        k('s_lshl_b32 s55, s55, 4')
        k('s_lshr_b32 s56, s2, 4')
        k('s_add_u32 s55, s55, s56')
        k(f's_mul_i32 s56, s54, {512*12288}')
        k('s_lshl_b32 s57, s55, 5')
        k('s_add_u32 s56, s56, s57')
        k('s_lshl_b32 s57, s54, 10')
        k('s_lshl_b32 s58, s2, 2')
        k(f's_add_u32 s58, s58, s{sWAVE}')
        k('s_and_b32 s59, s58, 15')
        k('s_lshl_b32 s59, s59, 7')
        k(f'v_lshlrev_b32 v{tmp}, 1, v1')
        k.code_srd(28, Lstart2)
        k('s_lshr_b32 s49, s2, 3')
        k('s_lshl_b32 s49, s49, 12')
        k('buffer_load_dwordx4 a[0:3], v6, s[28:31], s49 offen ; pf')
        k('v_and_b32 v8, 15, v1')
        k('v_lshlrev_b32 v8, 2, v8')
        k('s_lshl_b32 s74, s2, 6')
        mod_dest(k, 70, 8, 9, 10)
        k('v_mov_b32 v10, -1')
        k('s_waitcnt lgkmcnt(0)')
        k(f'{Lstart2}:')
        k(f's_load_dword s{sNONCE}, s[10:11], {WS_NONCE}')
        k.srd(64, 64, 1024 * 12288)
        k.srd(68, 68, 2048)
        srd_off(k, 24, 10, 0, 1 * MB)
        k('buffer_store_dword v10, v9, s[24:27], s74 offen sc1')
        for p in range(4): k(f'buffer_load_ushort v{GC+p}, v7, s[68:71], s57 offen offset:{p*256}')
        k(f'buffer_load_ushort v{GC+4}, v{tmp}, s[68:71], s59 offen')
        for p in range(4):
            k(f'buffer_load_dwordx4 {R4("v", GW+4*p)}, v3, s[64:67], s56 offen')
            if p < 3: k(f's_add_u32 s56, s56, {128*12288}')
        k.srd(20, 20, 4 * MB)
        for j in range(4): k(f'buffer_load_dwordx4 {R4("v", XR + 4*j)}, v5, s[20:23], s48 offen offset:{j*1024}')
    elif ln1:
        k('s_waitcnt lgkmcnt(0)')
        k.srd(20, 20, 4 * MB)
        srd_off(k, 24, 10, WS_MP, 4 * 6144 * 4)
        for p in range(4):
            for sec in range(2):
                k(f's_mov_b32 s49, {p*24576 + sec*4096}')
                k(f'buffer_load_dwordx4 {R4("v", PR + 8*p + 4*sec)}, v6, s[24:27], s49 offen')
        for j in range(4): k(f'buffer_load_dwordx4 {R4("v", XR + 4*j)}, v5, s[20:23], s48 offen offset:{j*1024}')
    wd = wdma_regs(k, vWD, 256, 8192, 16, tmp, 1, sWAVE)
    k(f's_lshl_b32 s{sMB0}, s{sQT}, 4')
    k(f's_lshl_b32 s48, s{sWAVE}, 2')
    k(f's_add_u32 s{sMB0}, s{sMB0}, s48')
    k(f's_lshl_b32 s48, s{sMB0}, 10')
    k(f'v_lshl_add_u32 v{vX}, v1, 4, s48')
    k(f'v_add_u32 v{vX+1}, 0x20000, v{vX}')
    k(f's_lshl_b32 s{sW}, s{sHEAD}, 8')
    k(f's_mov_b32 s{sX}, 0')
    k(f's_lshl_b32 s{sM0}, s{sWAVE}, 12')
    k('s_waitcnt lgkmcnt(0)')
    k.srd(12, 8, 1024 * 8192)
    srd_off(k, 16, 10, WS_H, 4 * MB)
    S = 6
    SL = lambda i: i * 16384
    stage_off = [SL(6), SL(7), SL(8), SL(9), SL(4), SL(5)]
    bbase = {4: 0, 5: 32, 0: 64, 1: 96, 2: 128, 3: 160}
    def kdma(slot):
        return [[f's_add_u32 m0, s{sM0}, {SL(slot)}'], ['s_nop 0']] + \
               [[f'buffer_load_dwordx4 v{vKD+n}, s[20:23], s{sK} offen offset:{n*1024} lds'] for n in range(4)] + \
               [[f's_add_u32 s{sK}, s{sK}, 16384']]
    def vdma(slot):
        return [[f's_add_u32 m0, s{sM0}, {SL(4+slot)}'], ['s_nop 0']] + \
               [[f'buffer_load_dwordx4 v{vVD+(n&1)}, s[24:27], s{sV} offen offset:{n*1024} lds'] for n in range(4)] + \
               [[f's_add_u32 s{sV}, s{sV}, 16384']]
    def zero(base):
        return [[f'v_accvgpr_write_b32 a{base+i}, 0'] for i in range(32)]
    def extra(t):
        if t == 10: return [[x] for x in gld]
        if t == 11: return kdma(0) + kdma(1) + vdma(0) + zero(0)
        if t == 12: return kdma(2) + vdma(1) + zero(32)
        if t == 13: return kdma(3) + vdma(2) + zero(64)
        if t == 14: return zero(96)
        return []
    def extra_p(t):
        return {12: 12, 13: 20, 14: 28}.get(t, 0)
    acc0 = 128
    g = Gemm(k, 8, 4, 256, S, 4, 8, 16,
             acc=lambda a, b: R4('v', acc0 + (a * 4 + b) * 4),
             aring=lambda s: ('a', 192 + 4 * s),
             bring=lambda st, ks, b: R4('a', bbase[st] + (ks * 4 + b) * 4),
             vA=[None, [vVA + a for a in range(8)], [vTA2 + a for a in range(8)]], lds_base=0,
             srdW=12, sW=sW, wpitch=8192, wdma=wd, sM0=sM0, srdX=16, sX=sX, vX=[vX, vX + 1],
             extra_loads=extra, stage_off=stage_off)
    def zip_streams(streams):
        for a, b in zip(*streams):
            if a == 's_nop 1': k('s_nop 0'); continue
            if a == 's_nop 0': continue
            if a.startswith('s_waitcnt'): k(a); continue
            k(a); k(b)
    if front:
        g.pre_w = True; g.xmod = ' sc1'
        MODL = 32768; XX = [128, 144]; SA, C1 = 96, 112
        k(f's_add_u32 s{sNONCE}, s{sNONCE}, 1')
        srd_off(k, 28, 10, WS_FL, 1024 << FSH)
        k('s_mov_b32 s49, 0xbfb8aa3b')
        k(f's_and_b32 s62, s{sQT}, 3')
        k(f's_mul_i32 s62, s62, {4*8192}')
        k(f's_lshr_b32 s45, s{sQT}, 2')
        k(f's_mul_i32 s45, s45, {64*8192}')
        k('s_add_u32 s62, s62, s45')
        k(f's_add_u32 s62, s62, s{sW}')
        k('s_waitcnt vmcnt(8)')
        T5 = GACC + 8
        for p in range(5): k(f'v_lshlrev_b32 v{GC+p}, 16, v{GC+p}')
        for p in range(5): k(f'v_mul_f32 v{T5+p}, s49, v{GC+p}')
        for p in range(5): k(f'v_exp_f32 v{T5+p}, v{T5+p}')
        for p in range(5): k(f'v_add_f32 v{T5+p}, 1.0, v{T5+p}')
        for p in range(5): k(f'v_rcp_f32 v{T5+p}, v{T5+p}')
        for p in range(5): k(f'v_mul_f32 v{GC+p}, v{GC+p}, v{T5+p}')
        for p in range(0, 6, 2): round_pair(k, GC + p, GC + p + 1, T5 + p)
        for p in range(4):
            k(f's_waitcnt vmcnt({7-p})')
            for j in range(4):
                w = GW + 4 * p + j
                k(f'v_lshlrev_b32 v{T5}, 16, v{w}')
                k(f'v_and_b32 v{T5+1}, 0xffff0000, v{w}')
                op = 'v_mul_f32' if p == 0 else 'v_fmac_f32'
                k(f'{op} v{GACC+2*j}, v{T5}, v{GC+p}')
                k(f'{op} v{GACC+2*j+1}, v{T5+1}, v{GC+p}')
        for dp in ('quad_perm:[2,3,0,1]', 'row_ror:4', 'row_ror:8'):
            for j in range(8): k(f'v_add_f32_dpp v{GACC+j}, v{GACC+j}, v{GACC+j} {dp} row_mask:0xf bank_mask:0xf')
        for j in range(0, 8, 2): k(f'v_permlane16_swap_b32 v{GACC+j}, v{GACC+j+1}')
        for j in range(0, 8, 2): k(f'v_add_f32 v{GACC+j}, v{GACC+j}, v{GACC+j+1}')
        k('v_lshrrev_b32 v3, 4, v1')
        k(f'v_permlane32_swap_b32 v{GACC}, v{GACC+2}')
        k(f'v_permlane32_swap_b32 v{GACC+4}, v{GACC+6}')
        k(f'v_add_f32 v{GACC}, v{GACC}, v{GACC+2}')
        k(f'v_add_f32 v{GACC+1}, v{GACC+4}, v{GACC+6}')
        k('v_lshl_add_u32 v3, v4, 3, v3')
        k('v_lshl_add_u32 v3, v2, 4, v3')
        k('v_lshlrev_b32 v3, 2, v3')
        k(f'ds_write2_b32 v3, v{GACC}, v{GACC+1} offset0:0 offset1:4')
        k('s_lshl_b32 s58, s58, 8')
        k(f's_add_u32 s58, s58, {WS_SCP}')
        k('v_lshlrev_b32 v7, 2, v1')
        k(f'buffer_store_dword v{GC+4}, v7, s[24:27], s58 offen')
        k('s_waitcnt lgkmcnt(0)')
        k('s_barrier')
        Lw = k.label('w0'); Lpf = k.label('pfw'); Lj = k.label('fj')
        k(f's_cmp_ge_u32 s{sWAVE}, 2')
        k(f's_cbranch_scc1 {Lpf}')
        k(f's_cmp_lg_u32 s{sWAVE}, 0')
        k(f's_cbranch_scc1 {Lj}')
        k(f'ds_read2_b32 v[{GACC}:{GACC+1}], v8 offset0:0 offset1:16')
        k(f'ds_read2_b32 v[{GACC+2}:{GACC+3}], v8 offset0:32 offset1:48')
        k('s_lshl_b32 s54, s54, 14')
        k('s_lshl_b32 s55, s55, 7')
        k('s_add_u32 s54, s54, s55')
        k(f's_add_u32 s54, s54, {WS_MP}')
        k('v_lshlrev_b32 v9, 1, v8')
        k('s_waitcnt lgkmcnt(0)')
        k(f'v_add_f32 v{GACC}, v{GACC}, v{GACC+1}')
        k(f'v_add_f32 v{GACC+2}, v{GACC+2}, v{GACC+3}')
        k(f'v_add_f32 v{GACC}, v{GACC}, v{GACC+2}')
        k(f'v_mov_b32 v{GACC+1}, s{sNONCE}')
        k(f'buffer_store_dwordx2 v[{GACC}:{GACC+1}], v9, s[24:27], s54 offen sc1')
        k(f's_branch {Lj}')
        k(f'{Lpf}:')
        k('s_waitcnt vmcnt(1)')
        k('s_mov_b32 s48, s62')
        k(f'v_subrev_u32 v9, {32*8192}, v{vWD}')
        for j in range(NA_PF):
            k(f'buffer_load_dwordx4 a[0:3], v9, s[12:15], s48 offen ; pf')
            k(f'buffer_load_dwordx4 a[0:3], v{vWD}, s[12:15], s48 offen ; pf')
            k(f's_add_u32 s48, s48, {128*8192}')
        k(f's_branch {Lw}')
        k(f'{Lj}:')
        k('s_waitcnt vmcnt(1)')
        k(f'{Lw}:')
        if P0: k.stamp(1)
        k('s_mov_b32 s56, 0x3a800000')
        k('s_mov_b32 s57, 0xba800000')
        for r in range(2):
            unpack8(k, XX[r], XR + 8 * r); unpack8(k, XX[r] + 8, XR + 8 * r + 4)
        streams = []
        for r in range(2):
            q = Kern('rec', None, None, 0, 0)
            ln_core_pk(q, XX[r], 160 + 24 * r, 56)
            streams.append(q.lines)
        zip_streams(streams)
        Lg = k.label('gat'); Lgd = k.label('gatd')
        k(f's_cmp_ge_u32 s{sWAVE}, 2')
        k(f's_cbranch_scc1 {Lgd}')
        PG = 160
        k('s_mov_b32 s53, 0x80000')
        k(f'{Lg}:')
        for hs in range(2):
            for i in range(8):
                if i % 2 == 0: k(f's_mov_b32 s49, {WS_MP + hs*16384 + i*2048}')
                k(f'buffer_load_dwordx4 {R4("v", PG + 32*hs + 4*i)}, v6, s[24:27], s49 offen offset:{(i&1)*2048} sc1')
        k('s_sub_u32 s53, s53, 1')
        k('s_cselect_b64 s[58:59], 0, -1')
        k('s_waitcnt vmcnt(0)')
        tags = [PG + 2 * j + 1 for j in range(32)]
        k(f'v_min3_u32 v3, v{tags[0]}, v{tags[1]}, v{tags[2]}')
        k(f'v_max3_u32 v4, v{tags[0]}, v{tags[1]}, v{tags[2]}')
        for j in range(3, 31, 2):
            k(f'v_min3_u32 v3, v3, v{tags[j]}, v{tags[j+1]}')
            k(f'v_max3_u32 v4, v4, v{tags[j]}, v{tags[j+1]}')
        k(f'v_min_u32 v3, v3, v{tags[31]}')
        k(f'v_max_u32 v4, v4, v{tags[31]}')
        k(f'v_xor_b32 v3, s{sNONCE}, v3')
        k(f'v_xor_b32 v4, s{sNONCE}, v4')
        k('v_or_b32 v3, v3, v4')
        k('v_cmp_ne_u32 vcc, 0, v3')
        k('s_and_b64 vcc, vcc, s[58:59]')
        k(f's_cbranch_vccnz {Lg}')
        k('v_bfe_u32 v3, v0, 1, 1')
        k('v_lshlrev_b32 v3, 10, v3')
        k('v_lshrrev_b32 v4, 2, v0')
        k('v_lshl_add_u32 v3, v4, 4, v3')
        k('v_and_b32 v4, 1, v0')
        k('v_lshl_add_u32 v3, v4, 3, v3')
        for i in range(8):
            a = PG + 4 * i
            k(f'v_add_f32 v{a}, v{a}, v{a+32}')
            k(f'v_add_f32 v{a+1}, v{a+2}, v{a+34}')
            round_pair(k, a, a + 1, a + 2)
            if i >= 4:
                k(f'v_add_f32 v{a}, 1.0, v{a}'); k(f'v_add_f32 v{a+1}, 1.0, v{a+1}')
                round_pair(k, a, a + 1, a + 2)
            k(f'ds_write_b64 v3, {R2("v", a)} offset:{MODL + (i>>1)*2048 + (i&1)*512}')
        k(f'{Lgd}:')
        k('v_lshlrev_b32 v3, 4, v1')
        k('s_waitcnt lgkmcnt(0)')
        k('s_barrier')
        if P0: k.stamp(2)
        for base, sec in ((C1, 1), (SA, 0)):
            for h in range(2):
                for q in range(2):
                    k(f'ds_read_b128 {R4("v", base + 8*h + 4*q)}, v3 offset:{MODL + sec*4096 + h*2048 + q*1024}')
        k('s_waitcnt lgkmcnt(4)')
        streams = []
        for r in range(2):
            q = Kern('rec', None, None, 0, 0)
            x = XX[r]; T = 160 + 24 * r
            for j in range(0, 16, 2): q(f'v_pk_mul_f32 {R2("v", x+j)}, {R2("v", x+j)}, {R2("v", C1+j)}')
            round16(q, x, T + 8)
            q('s_waitcnt lgkmcnt(0)')
            for j in range(0, 16, 2): q(f'v_pk_add_f32 {R2("v", x+j)}, {R2("v", x+j)}, {R2("v", SA+j)}')
            for j in range(8): q(f'v_cvt_pk_bf16_f32 v{XR+8*r+j}, v{x+2*j}, v{x+2*j+1}')
            streams.append(q.lines)
        zip_streams(streams)
    if ln1 and not front:
        g.pre_w = True; g.xmod = ' sc1'
        k(f's_and_b32 s48, s{sQT}, 3')
        k(f's_mul_i32 s48, s48, {4*8192}')
        k(f's_lshr_b32 s45, s{sQT}, 2')
        k(f's_mul_i32 s45, s45, {64*8192}')
        k('s_add_u32 s48, s48, s45')
        k(f's_add_u32 s48, s48, s{sW}')
        for j in range(8):
            k(f'buffer_load_dwordx4 a[0:3], v{vWD}, s[12:15], s48 offen ; pf')
            k(f's_add_u32 s48, s48, {128*8192}')
        srd_off(k, 28, 10, WS_FL, 1024 << FSH)
        MODL = 32768
        k('s_waitcnt vmcnt(12)')
        for p in range(1, 4):
            for h in range(4): k(f'v_pk_add_f32 {R2("v", PR+2*h)}, {R2("v", PR+2*h)}, {R2("v", PR+8*p+2*h)}')
        for h in range(4): round_pair(k, PR + 2 * h, PR + 2 * h + 1, PR + 8 + h)
        for j in range(4): k(f'v_add_f32 v{PR+4+j}, 1.0, v{PR+4+j}')
        for h in range(2, 4): round_pair(k, PR + 2 * h, PR + 2 * h + 1, PR + 8 + h)
        k('v_lshrrev_b32 v6, 7, v0')
        k('v_lshlrev_b32 v6, 11, v6')
        k('v_and_b32 v7, 1, v0')
        k('v_lshl_add_u32 v6, v7, 10, v6')
        k('v_bfe_u32 v7, v0, 1, 6')
        k('v_lshl_add_u32 v6, v7, 4, v6')
        k(f'ds_write_b128 v6, {R4("v", PR)} offset:{MODL}')
        k(f'ds_write_b128 v6, {R4("v", PR+4)} offset:{MODL+4096}')
        k('s_mov_b32 s56, 0x3a800000')
        k('s_mov_b32 s57, 0xba800000')
        k('v_lshlrev_b32 v3, 4, v1')
        XX = [128, 144]; SA, C1 = 96, 112
        k('s_waitcnt vmcnt(8)')
        if P0: k.stamp(1)
        for r in range(2):
            unpack8(k, XX[r], XR + 8 * r); unpack8(k, XX[r] + 8, XR + 8 * r + 4)
        k('s_waitcnt lgkmcnt(0)')
        k('s_barrier')
        for base, sec in ((C1, 1), (SA, 0)):
            for h in range(2):
                for q in range(2):
                    k(f'ds_read_b128 {R4("v", base + 8*h + 4*q)}, v3 offset:{MODL + sec*4096 + h*2048 + q*1024}')
        streams = []
        for r in range(2):
            q = Kern('rec', None, None, 0, 0)
            x = XX[r]; T = 160 + 24 * r
            ln_core_pk(q, x, T, 56)
            q('s_waitcnt lgkmcnt(0)')
            for j in range(0, 16, 2): q(f'v_pk_mul_f32 {R2("v", x+j)}, {R2("v", x+j)}, {R2("v", C1+j)}')
            round16(q, x, T + 8)
            for j in range(0, 16, 2): q(f'v_pk_add_f32 {R2("v", x+j)}, {R2("v", x+j)}, {R2("v", SA+j)}')
            for j in range(8): q(f'v_cvt_pk_bf16_f32 v{XR+8*r+j}, v{x+2*j}, v{x+2*j+1}')
            streams.append(q.lines)
        for a, b in zip(*streams):
            if a == 's_nop 1': k('s_nop 0'); continue
            if a == 's_nop 0': continue
            if a.startswith('s_waitcnt'): k(a); continue
            k(a); k(b)
    if ln1:
        k('v_lshrrev_b32 v5, 2, v1')
        k('v_mul_u32_u24 v5, 528, v5')
        k('v_and_b32 v6, 1, v1')
        k('v_lshl_add_u32 v5, v6, 8, v5')
        k('v_bfe_u32 v6, v1, 1, 1')
        k('v_lshl_add_u32 v5, v6, 3, v5')
        k('v_lshl_add_u32 v5, v2, 5, v5')
        for r in range(2):
            P = XR + 8 * r
            k(f'ds_write_b64 v5, {R2("v", P)} offset:{16*r}')
            k(f'ds_write_b64 v5, {R2("v", P+2)} offset:{16*r+128}')
            k(f'ds_write_b64 v5, {R2("v", P+4)} offset:{16*r+16*528}')
            k(f'ds_write_b64 v5, {R2("v", P+6)} offset:{16*r+16*528+128}')
        k('v_lshrrev_b32 v6, 5, v0')
        k('v_and_b32 v7, 31, v0')
        k('v_mul_u32_u24 v5, 528, v6')
        k('v_lshl_add_u32 v5, v7, 4, v5')
        k('v_lshlrev_b32 v6, 17, v6')
        k('v_bfe_u32 v7, v0, 3, 2')
        k('v_lshl_add_u32 v6, v7, 8, v6')
        k('v_and_b32 v7, 7, v0')
        k('v_lshl_add_u32 v6, v7, 4, v6')
        k('s_lshr_b32 s48, s2, 1')
        k('s_lshl_b32 s48, s48, 10')
        k('s_and_b32 s49, s2, 1')
        k('s_lshl_b32 s49, s49, 7')
        k('s_add_u32 s48, s48, s49')
        k('s_waitcnt lgkmcnt(0)')
        k('s_barrier')
        for j in range(4): k(f'ds_read_b128 {R4("v", PR+4*j)}, v5 offset:{8*528*j}')
        for j in range(4):
            k(f's_waitcnt lgkmcnt({3-j})')
            k(f'buffer_store_dwordx4 {R4("v", PR+4*j)}, v6, s[16:19], s48 offen sc1')
            if j < 3: k(f's_add_u32 s48, s48, {8*131072}')
        k(f's_lshl_b32 s48, s2, {FSH}')
        k(f's_add_u32 s48, s48, {768 << FSH}')
        k(f's_lshl_b32 s49, s{sQT}, {5+FSH}')
        k(f's_add_u32 s49, s49, {768 << FSH}')
        publish(k, 48, srd=28)
        if P0: k.stamp(3)
        for x in g.wpreload(): k(x)
        await_flags(k, 49, 32, srd=28)
        if P0: k.stamp(4)
        sched = (3, [2])
    g.make_sched(*sched)
    g.prologue_loads()
    if front:
        for j in range(NA_PF, 8):
            k(f's_add_u32 s48, s62, {j*128*8192}')
            k(f'buffer_load_dwordx4 v[64:67], v{vWD}, s[12:15], s48 offen ; pf')
            g.vq.append('pf')
    tr_addr_regs(k, vVA, 8, 256, tmp, 1, add=0x10000)
    for a in range(8): k(f'v_add_u32 v{vTA2+a}, 0x10000, v{vVA+a}')
    k(f'v_and_b32 v{tmp}, 15, v1')
    k(f'v_lshrrev_b32 v{tmp+1}, 4, v1')
    k(f'v_xor_b32 v{tmp+2}, v{tmp}, v{tmp+1}')
    k(f'v_lshlrev_b32 v{tmp+3}, 8, v{tmp}')
    for ds in range(4):
        k(f'v_xor_b32 v{tmp+4}, {4*ds}, v{tmp+2}')
        k(f'v_lshl_add_u32 v{vKA+ds}, v{tmp+4}, 4, v{tmp+3}')
    k(f'v_lshlrev_b32 v{tmp+3}, 8, v{tmp+1}')
    k(f'v_add_u32 v{tmp+3}, s{sM0}, v{tmp+3}')
    for n in range(4):
        k(f'v_xor_b32 v{tmp+4}, {4*n}, v{tmp+2}')
        k(f'v_lshl_add_u32 v{vKD+n}, v{tmp+4}, 4, v{tmp+3}')
    k(f'v_lshlrev_b32 v{tmp+4}, 1, v{tmp+1}')
    k(f'v_xor_b32 v{tmp+4}, v{tmp+4}, v{tmp}')
    k(f'v_lshl_add_u32 v{vVD}, v{tmp+4}, 4, v{tmp+3}')
    k(f'v_xor_b32 v{tmp+4}, 8, v{tmp+4}')
    k(f'v_lshl_add_u32 v{vVD+1}, v{tmp+4}, 4, v{tmp+3}')
    k(f's_lshl_b32 s48, s{sHEAD}, 19')
    srd_off(k, 20, 4, 's48', 524288)
    srd_off(k, 24, 6, 's48', 524288)
    srd_off(k, 28, 10, WS_O, 16 * MB)
    k(f's_mov_b32 s{sK}, 0')
    k(f's_mov_b32 s{sV}, 0')
    k.srd(32, 32, 4096 * 2048); k.srd(36, 36, 1024 * 7168); k.srd(60, 60, 3584 * 2048)
    sPF, sST0, sST2, sL1, sXB = 59, 56, 49, 46, 41
    vPF, vD0, vD2, vS1, vD1, vN1, vJ1 = 7, 54, 55, 56, 57, 58, 59
    srd_off(k, 72, 10, WS_WO, 36 * MB)
    k(f's_mov_b32 s{sPF}, 0')
    k(f's_mov_b32 s{sL1}, 0')
    k(f's_mov_b32 s{sST0}, 0x70000000')
    k(f's_mov_b32 s{sST2}, 0x70000000')
    k('s_lshl_b32 s48, s2, 12')
    k(f'v_lshl_add_u32 v{vPF}, v0, 4, s48')
    k(f's_lshl_b32 s42, s2, 2')
    k(f's_add_u32 s42, s42, s{sWAVE}')
    k('s_lshr_b32 s43, s42, 1')
    k('s_and_b32 s45, s42, 1')
    k('s_and_b32 s48, s43, 7')
    k('s_lshl_b32 s48, s48, 1')
    k(f'v_xor_b32 v{tmp+4}, s48, v{tmp}')
    k(f'v_lshlrev_b32 v{tmp+4}, 4, v{tmp+4}')
    k(f'v_lshl_add_u32 v{vD0}, v{tmp+1}, 20, v{tmp+4}')
    k('s_lshl_b32 s48, s45, 22')
    k('s_lshl_b32 s62, s43, 8')
    k('s_add_u32 s48, s48, s62')
    k(f'v_add_u32 v{vD0}, s48, v{vD0}')
    if split2:
        k(f'v_mul_u32_u24 v{tmp+5}, {3584*256}, v{tmp+1}')
        k(f'v_add_u32 v{vD2}, v{tmp+4}, v{tmp+5}')
        k(f's_mul_i32 s48, s45, {4*3584*256}')
        k('s_add_u32 s48, s48, s62')
        k(f's_add_u32 s48, s48, {WS_W2 - WS_WO}')
        k(f'v_add_u32 v{vD2}, s48, v{vD2}')
        k(f's_mov_b32 s{sXB}, {WS_XB - WS_WO}')
    else:
        k('s_bfe_u32 s48, s43, 0x20001')
        k('s_lshl_b32 s48, s48, 1')
        k(f'v_and_b32 v{tmp+4}, 7, v1')
        k(f'v_xor_b32 v{tmp+4}, s48, v{tmp+4}')
        k(f'v_lshrrev_b32 v{tmp+5}, 3, v1')
        k(f'v_mul_u32_u24 v{tmp+5}, {3584*128}, v{tmp+5}')
        k(f'v_lshl_add_u32 v{vD2}, v{tmp+4}, 4, v{tmp+5}')
        k(f's_mul_i32 s48, s45, {8*3584*128}')
        k('s_lshl_b32 s62, s43, 7')
        k('s_add_u32 s48, s48, s62')
        k(f's_add_u32 s48, s48, {WS_W2 - WS_WO}')
        k(f'v_add_u32 v{vD2}, s48, v{vD2}')
    k('s_mul_i32 s48, s42, 7168')
    k(f'v_lshl_add_u32 v{vS1}, v1, 4, s48')
    k(f'v_mul_u32_u24 v{tmp+4}, 74, v1')
    k(f'v_lshrrev_b32 v{tmp+4}, 10, v{tmp+4}')
    k(f'v_mul_u32_u24 v{tmp+5}, 14, v{tmp+4}')
    k(f'v_sub_u32 v{vJ1}, v1, v{tmp+5}')
    k(f'v_mul_u32_u24 v{tmp+4}, {1024*224}, v{tmp+4}')
    k(f'v_lshl_add_u32 v{vN1}, v{vJ1}, 4, v{tmp+4}')
    k('s_mul_i32 s48, s42, 224')
    k(f's_add_u32 s48, s48, {WS_W1 - WS_WO}')
    k(f'v_add_u32 v{vN1}, s48, v{vN1}')
    k(f'v_mov_b32 v{vD1}, 0x70000000')
    k(f'v_mov_b32 v60, {1024*224 - 224}')
    k('s_mov_b32 s62, 3584 * 2048')
    GA = [48, 49, 50, 51, 52, 53, 63, 2]; vGW, vGS, vGT0, vGT1, vGA, vGB = 28, 27, 26, 3, 4, 5
    sGW, sGS = 76, 77
    if not front: k.srd(64, 64, 1024 * 12288)
    srd_off(k, 68, 10, 0, 1 * MB)
    k(f'v_lshrrev_b32 v{vGB}, 3, v1')
    k(f'v_mul_u32_u24 v{vGA}, 12288, v{vGB}')
    k(f'v_and_b32 v{vGT1}, 7, v1')
    k(f'v_lshl_add_u32 v{vGA}, v{vGT1}, 4, v{vGA}')
    k(f'v_lshlrev_b32 v{vGB}, 2, v{vGB}')
    k('s_and_b32 s48, s42, 15')
    k(f's_mul_i32 s{sGW}, s48, {64*12288}')
    k('s_lshr_b32 s43, s2, 2')
    k('s_lshl_b32 s45, s43, 7')
    k(f's_add_u32 s{sGW}, s{sGW}, s45')
    k(f's_add_u32 s{sGW}, s{sGW}, 4096')
    k(f's_lshl_b32 s{sGS}, s{42 if front else 48}, 8')
    k(f's_add_u32 s{sGS}, s{sGS}, {WS_SCP if front else WS_SC}')
    k('s_lshl_b32 s48, s48, 14')
    k('s_lshl_b32 s43, s43, 8')
    k('s_add_u32 s43, s43, s48')
    k(f's_add_u32 s43, s43, {WS_MP2}')
    for r in GA: k(f'v_mov_b32 v{r}, 0')
    k.code_srd(4, Ltail)
    k('s_lshr_b32 s8, s2, 3')
    k('s_lshl_b32 s8, s8, 12')
    k('v_lshlrev_b32 v6, 4, v0')
    gld = [f'buffer_load_dwordx4 {R4("v", vGW)}, v{vGA}, s[64:67], s{sGW} offen',
           f'buffer_load_dword v{vGS}, v{vGB}, s[68:71], s{sGS} offen',
           f's_add_u32 s{sGW}, s{sGW}, {8*12288}', f's_add_u32 s{sGS}, s{sGS}, 32']
    gfma = []
    for j in range(4):
        gfma += [f'v_lshlrev_b32 v{vGT0}, 16, v{vGW+j}', f'v_and_b32 v{vGT1}, 0xffff0000, v{vGW+j}',
                 f'v_fmac_f32 v{GA[2*j]}, v{vGT0}, v{vGS}', f'v_fmac_f32 v{GA[2*j+1]}, v{vGT1}, v{vGS}']
    k(f's_mov_b32 s{sTH}, 0x{f2u(2.0**thresh_log2):08x}')
    g.stamp_first = 5 if P0 else 1
    g.emit(loop_sreg=None)
    k.stamp(6 if P0 else 2)
    if P0: k.stamp(7); k.stamp = lambda i: (Kern.stamp(k, i) if i == 8 else None)
    k('s_waitcnt vmcnt(16)')
    k('s_barrier')
    Kfr = lambda kb, ds: aF + 32 + (4 * kb + ds) * 4
    Vfr = lambda db: aF + 4 * db
    def kread(unit, kb, ds, dst=None):
        off = SL((unit >> 1) & 3) + ((unit & 1) * 32 + kb * 16) * 256
        return f'ds_read_b128 {R4("a", Kfr(kb, ds) if dst is None else dst)}, v{vKA+ds} offset:{off}'
    def vread(unit, db, hf):
        off = SL((unit >> 1) & 3) + ((unit & 1) * 32 + hf * 16) * 256
        return f'ds_read_b64_tr_b16 {R2("a", Vfr(db) + 2*hf)}, v{vVA+db} offset:{off}'
    for kb in range(2):
        for ds in range(4): k(kread(0, kb, ds, dst=Vfr(4 * kb + ds)))
    sc = math.log2(math.e) / math.sqrt(128.0)
    k(f'v_mov_b32 v46, 0x{f2u(sc):08x}'); k(f'v_mov_b32 v47, 0x{f2u(sc):08x}')
    Qf = lambda qb, ds: vQ + (qb * 4 + ds) * 4
    for u in range(4):
        for qb in range(4):
            p = Qf(qb, u)
            for h in range(2):
                A = acc0 + ((2 * u + h) * 4 + qb) * 4
                k(f'v_pk_mul_f32 {R2("v", A)}, {R2("v", A)}, {R2("v", 46)}')
                k(f'v_pk_mul_f32 {R2("v", A+2)}, {R2("v", A+2)}, {R2("v", 46)}')
                k(f'v_cvt_pk_bf16_f32 v{p+2*h}, v{A}, v{A+1}')
                k(f'v_cvt_pk_bf16_f32 v{p+2*h+1}, v{A+2}, v{A+3}')
        for sw in ('32', '16'):
            for qb in range(4):
                p = Qf(qb, u)
                k(f'v_permlane{sw}_swap_b32 v{p}, v{p+2}')
                k(f'v_permlane{sw}_swap_b32 v{p+1}, v{p+3}')
    k('s_waitcnt lgkmcnt(0)')
    for kb in range(2):
        for ds in range(4): k(kread(1, kb, ds))
    Sb = lambda N, kb, qb: vS + 32 * (N & 1) + (kb * 4 + qb) * 4
    Pb = lambda N, qb: vP + 16 * (N & 1) + 4 * qb
    Lb = lambda qb: vL + 4 * qb
    NM = lambda qb: vNM + 4 * qb
    def qk(N, kb, ds, qb, fr=None, czero=False):
        d = R4('v', Sb(N, kb, qb))
        c = ('0' if czero else R4('v', NM(qb))) if ds == 0 else d
        return f'{MF} {d}, {R4("a", Kfr(kb, ds) if fr is None else fr)}, {R4("v", Qf(qb, ds))}, {c}'
    def pv(N, db, qb):
        d = R4('a', aO + (db * 4 + qb) * 4)
        return f'{MF} {d}, {R4("a", Vfr(db))}, {R4("v", Pb(N, qb))}, {d}'
    def ones(N, qb):
        return f'{MF} {R4("v", Lb(qb))}, {R4("v", vONE)}, {R4("v", Pb(N, qb))}, {R4("v", Lb(qb))}'
    def E(N, i):
        return f'v_exp_f32 v{vE + (i & 7)}, v{Sb(N, i >> 4, (i >> 2) & 3) + (i & 3)}'
    def C(N, j):
        i = 2 * j
        return f'v_cvt_pk_bf16_f32 v{Pb(N, (i >> 2) & 3) + 2 * (i >> 4) + ((i >> 1) & 1)}, v{vE + (i & 7)}, v{vE + (i & 7) + 1}'
    def xmax(D, X):
        for sw in ('16', '32'):
            k(f'v_mov_b32 v{X}, v{D}')
            k('s_nop 1')
            k(f'v_permlane{sw}_swap_b32 v{D}, v{X}')
            k(f'v_max_f32 v{D}, v{D}, v{X}')
    def interleave(mf, fill, cap=2):
        fi = 0
        for gi, m in enumerate(mf):
            k(m)
            used = 0
            while fi < len(fill) and fill[fi][2] <= gi and used + fill[fi][1] <= cap:
                k(fill[fi][0]); used += fill[fi][1]; fi += 1
        for x in fill[fi:]: k(x[0])

    NG = 68
    def build_iter(N):
        T = (N - 1) >> 1
        first_in_pair = (N & 1) == 1
        mf = [pv(N - 1, db, qb) for db in range(8) for qb in range(4)]
        mf += [ones(N - 1, qb) for qb in range(4)]
        import sys
        if 'nochain' in sys.argv: mf += [qk(N + 1, kb, ds, qb) for kb in range(2) for ds in range(4) for qb in range(4)]
        else: mf += [qk(N + 1, kb, ds, qb) for kb in range(2) for qb in range(4) for ds in range(4)]
        first = [[] for _ in range(NG)]; rest = [[] for _ in range(NG)]; cost = [0] * NG
        def put(g, ins, mem=False, c=1):
            (first if mem else rest)[g].append(ins); cost[g] += c
        for i in range(32):
            gp = E0 + 2 * i
            if gp < NG: put(gp, E(N + 1, i), c=2)
            else: put(gp - NG, E(N, i), c=2)
        for j in range(16):
            gp = E0 + 2 * (2 * j + 1) + 1
            if gp < NG: put(gp, C(N + 1, j))
            else: put(gp - NG, C(N, j))
        rd = []
        for db in range(8):
            for hf in range(2):
                gp = 4 * db - lead + 2 * hf
                rd.append((gp % NG, vread(N - 1 if gp >= 0 else N, db, hf), ('V', db) if gp >= 0 else ('Vn', db)))
        for i in range(8):
            gp = 36 + 4 * i - lead
            rd.append((gp, kread(N + 1, i >> 2, i & 3), ('K', i)))
        rd.sort(key=lambda x: x[0])
        for gp, ins, tag in rd: put(gp, ins, mem=True)
        cyc = [(gp - NG, 'V' if tag[0] == 'Vn' else 'old', tag[1]) for gp, _, tag in rd] + \
              [(gp, tag[0], tag[1]) for gp, _, tag in rd]
        waits = {}
        for at, kind, hi in ((0, 'V', 3), (16, 'V', 7), (36, 'K', 3), (52, 'K', 7)):
            lastidx = max(i for i, x in enumerate(cyc) if x[1] == kind and x[2] == hi)
            n_after = sum(1 for i, x in enumerate(cyc) if i > lastidx and x[0] < at)
            assert cyc[lastidx][0] < at
            waits[at] = n_after
        for at in (16, 36, 52): put(at - 1, f's_waitcnt lgkmcnt({waits[at]})')
        put(NG - 1, f's_waitcnt lgkmcnt({waits[0]})')
        def putv(gp, ins):
            if 'plainpack' in sys.argv and ins.startswith('buffer_store'): ins += ' ; plain'
            assert cost[gp] == 0, (N, gp, first[gp], rest[gp])
            put(gp, ins, mem=True, c=2 if excl else 1)
        def puts(gp, seq, hi=NG):
            for ins in seq:
                while cost[gp] >= 2: gp += 1
                assert gp < hi, (N, ins)
                put(gp, ins)
                if ins.startswith('v_cmp'): gp += 2
        if not first_in_pair:
            X = lambda T: (2 if T % 4 in (1, 2) else 1) + (2 if T % 4 == 1 else 0) + (2 if T % 4 == 2 and split2 else 0)
            npf = X(T - 1) + X(T)
            if T % 4 == 0: npf -= 1
            put(19, f's_waitcnt vmcnt({12 + npf})'); put(19, 's_barrier')
            d = [x[0] for x in kdma(T % 4) if x[0] != 's_nop 0']
            put(15, d[0])
            for gp, ins in zip((23, 27, 31, 39), d[1:5]): putv(gp, ins)
            if T % 4 == 1:
                putv(7, gld[0]); putv(11, gld[1]); puts(35, gld[2:])
            if T % 4 == 2 and split2:
                putv(7, f'buffer_store_dwordx4 a[208:211], v{vPF}, s[72:75], s{sXB} offen'); putv(11, f'buffer_store_dwordx4 a[208:211], v{vT+3}, s[72:75], s{sXB} offen'); put(35, f's_add_u32 s{sXB}, s{sXB}, 0x100000')
            puts(43, d[5:])
            if T % 4 == 0: puts(0, gfma)
        else:
            d = [x[0] for x in vdma((T + 3) % 4) if x[0] != 's_nop 0']
            put(5, d[0])
            for gp, ins in zip((7, 11, 19, 23), d[1:5]): putv(gp, ins)
            puts(43, d[5:])
            if T % 4 == 0:
                putv(31, f'buffer_load_dwordx4 a[192:195], v{vPF}, s[32:35], s{sPF} offen ; pf')
            if T % 4 == 1:
                putv(27, f'buffer_store_dwordx4 a[196:199], v{vD1}, s[72:75], 0 offen')
                putv(31, f'buffer_load_dwordx4 a[196:199], v{vS1}, s[36:39], s{sL1} offen')
                puts(35, [f'v_mov_b32 v{vD1}, v{vN1}',
                        f'v_add_u32 v{vJ1}, 8, v{vJ1}',
                        f'v_add_u32 v{vN1}, {4*1024*224 + 128}, v{vN1}',
                        f'v_cmp_lt_u32 vcc, 13, v{vJ1}',
                        f's_add_u32 s{sL1}, s{sL1}, 1024',
                        f'v_cndmask_b32 v61, 0, v60, vcc',
                        f'v_cndmask_b32 v62, 0, 14, vcc',
                        f'v_add_u32 v{vN1}, v61, v{vN1}',
                        f'v_sub_u32 v{vJ1}, v{vJ1}, v62'])
            if T % 4 == 2:
                putv(27, f'buffer_store_dwordx4 a[200:203], v{vD2}, s[72:75], s{sST2} offen')
                putv(31, f'buffer_load_dwordx4 a[200:203], v{vPF}, s[60:63], s{sPF} offen')
            if T % 4 == 3:
                putv(27, 'buffer_load_dwordx4 a[204:207], v6, s[4:7], s8 offen ; pf')
                put(15, f's_lshr_b32 s{sST2}, s{sPF}, {3 if split2 else 4}')
                put(31, f's_add_u32 s{sPF}, s{sPF}, 0x100000')
                put(31, f's_sub_u32 s{sCNT}, s{sCNT}, 1')
        out = []
        for gi in range(NG):
            fl = first[gi] + rest[gi]
            if 'nobar' in dbg: fl = [x for x in fl if x != 's_barrier']
            if 'novm' in dbg: fl = [x for x in fl if not x.startswith(('buffer_', 's_waitcnt vmcnt'))]
            if 'nopack' in dbg: fl = [x for x in fl if not (x.startswith('buffer_') and not x.endswith(' lds'))]
            if 'nopack' in dbg: fl = ['s_waitcnt vmcnt(12)' if x.startswith('s_waitcnt vmcnt') else x for x in fl]
            for md in ('sc1', 'nt', 'sc0'):
                if 'kv' + md in dbg: fl = [x.replace(' lds', f' {md} lds') if x.endswith(' lds') else x for x in fl]
            if 'nods' in dbg: fl = [x for x in fl if not x.startswith(('ds_', 's_waitcnt lgkm'))]
            if 'noexp' in dbg: fl = [x for x in fl if not x.startswith('v_exp')]
            if 'nocvt' in dbg: fl = [x for x in fl if not x.startswith('v_cvt')]
            out.append(mf[gi]); out += fl
            if cost[gi] > 2: print('gap over', N, gi, cost[gi], first[gi] + rest[gi])
        return out, waits[0], rd

    mf0 = [qk(0, kb, ds, qb, fr=Vfr(4 * kb + ds), czero=True) for kb in range(2) for ds in range(4) for qb in range(4)]
    D = lambda qb: vE + qb
    X = lambda qb: vE + 4 + qb
    k(f's_mov_b32 s9, 0x{f2u(-float(bias)):08x}')
    f0 = [(f'v_add_u32 v{vT+3}, 0x800000, v{vPF}', 1, 0)] + [(f'v_accvgpr_write_b32 a{208+i}, -1', 1, 0) for i in range(4)] + [(f'v_mov_b32 v{vL+i}, 0', 1, 0) for i in range(16)] + [(f'v_mov_b32 v{vONE+i}, 0x3f803f80', 1, 0) for i in range(4)]
    for qb in range(4): f0.append((f'v_max3_f32 v{D(qb)}, v{Sb(0,0,qb)}, v{Sb(0,0,qb)+1}, v{Sb(0,0,qb)+2}', 1, 22))
    for qb in range(4): f0.append((f'v_max_f32 v{D(qb)}, v{D(qb)}, v{Sb(0,0,qb)+3}', 1, 0))
    interleave(mf0, f0)
    k('s_waitcnt lgkmcnt(0)')
    mf1 = [qk(1, kb, ds, qb, czero=True) for kb in range(2) for ds in range(4) for qb in range(4)]
    vn = [ins for gp, ins, tag in build_iter(0)[2] if tag[0] == 'Vn']
    f1 = [(x, 1, 0) for x in vn]
    for (M, kb, mg) in ((0, 1, 8), (1, 0, 20)):
        for h in range(2):
            for qb in range(4):
                f1.append((f'v_max3_f32 v{D(qb)}, v{D(qb)}, v{Sb(M,kb,qb)+2*h}, v{Sb(M,kb,qb)+2*h+1}', 1, mg + qb // 2))
    for sw in ('16', '32'):
        for qb in range(4): f1.append((f'v_mov_b32 v{X(qb)}, v{D(qb)}', 1, 0))
        for qb in range(4): f1.append((f'v_permlane{sw}_swap_b32 v{D(qb)}, v{X(qb)}', 1, 0))
        for qb in range(4): f1.append((f'v_max_f32 v{D(qb)}, v{D(qb)}, v{X(qb)}', 1, 0))
    for r in range(4):
        for qb in range(4): f1.append((f'v_sub_f32 v{NM(qb)+r}, s9, v{D(qb)}', 1, 0))
    interleave(mf1, f1)
    for M in range(2):
        for kb in range(2):
            for qb in range(4):
                for h in range(2):
                    r = Sb(M, kb, qb) + 2 * h
                    k(f'v_pk_add_f32 {R2("v", r)}, {R2("v", r)}, {R2("v", NM(qb))}')
    for i in range(0, 32, 2):
        k(E(0, i)); k(E(0, i + 1))
        if i: k(C(0, (i >> 1) - 1))
    k('s_nop 0')
    k(C(0, 15))
    for i in range(32):
        if E0 + 2 * i < NG: k(E(1, i)); k('s_nop 0')
        if i & 1 and E0 + 2 * i + 1 < NG: k(C(1, i >> 1))
    k(f's_mov_b32 s{sCNT}, 7')
    k(f's_waitcnt lgkmcnt({build_iter(1)[1]})')
    k.stamp(3)
    k(f'{Lloop}:')
    for N in range(1, 9):
        ins, w0, _ = build_iter(N)
        cnt = 0
        for idx, x in enumerate(ins):
            if x.startswith(MF):
                if N == 7 and cnt == 36:
                    k(f's_cbranch_scc1 {Ltail}')
                    tail_rest = ins[idx:]
                cnt += 1
            if N == 7 and 33 <= cnt <= 36: assert not (x.startswith('s_') and not x.startswith('s_waitcnt')), x
            k(x)
    k(f's_branch {Lloop}')
    k(f'{Ltail}:')
    k.stamp(4)
    N = 7
    for db in range(8):
        for hf in range(2): k(vread(N, db, hf))
    for x in tail_rest:
        if x.startswith('v_exp') and any(x == E(N, i) for i in range(32)): k(x); k('s_nop 0')
        elif x.startswith('v_cvt') and any(x == C(N, j) for j in range(16)): k(x)
    k('s_waitcnt lgkmcnt(0)')
    k('s_nop 0')
    red = [f'v_add_f32_dpp v{r}, v{r}, v{r} row_ror:8 row_mask:0xf bank_mask:0xf' for r in GA]
    red += [f'v_permlane16_swap_b32 v{GA[j]}, v{GA[j+1]}' for j in range(0, 8, 2)]
    red += [f'v_add_f32 v{GA[j]}, v{GA[j]}, v{GA[j+1]}' for j in range(0, 8, 2)]
    red += [f'v_and_b32 v{vGA}, 7, v1', f'v_lshrrev_b32 v{vGB}, 4, v1']
    red += [f'v_permlane32_swap_b32 v{GA[0]}, v{GA[2]}', f'v_permlane32_swap_b32 v{GA[4]}, v{GA[6]}']
    red += [f'v_add_f32 v{GA[0]}, v{GA[0]}, v{GA[2]}', f'v_add_f32 v{GA[4]}, v{GA[4]}, v{GA[6]}']
    red += [f'v_lshl_add_u32 v{vGA}, v{vGA}, 3, v{vGB}', f'v_lshlrev_b32 v{vGA}, 2, v{vGA}']
    red += [f'buffer_store_dword v{GA[0]}, v{vGA}, s[68:71], s43 offen sc1', f'buffer_store_dword v{GA[4]}, v{vGA}, s[68:71], s43 offen offset:16 sc1']
    for qb in range(4): k(ones(N, qb))
    for db in range(8):
        for qb in range(4):
            k(pv(N, db, qb))
            if red: k(red.pop(0))
    assert not red
    k(f'v_max3_f32 v{vT}, v{Lb(0)}, v{Lb(1)}, v{Lb(2)}')
    k(f'v_max_f32 v{vT}, v{vT}, v{Lb(3)}')
    k(f'v_cmp_nge_f32 vcc, s{sTH}, v{vT}')
    k(f's_cbranch_vccnz {Lslow}')
    k('s_mov_b64 s[66:67], -1')
    k(f'{Lepi}:')
    k('s_setreg_imm32_b32 hwreg(HW_REG_MODE, 4, 2), 3')
    RC = vE
    for qb in range(4):
        k(f'v_rcp_f32 v{RC+2*qb}, v{Lb(qb)}')
        k('s_nop 0')
        k(f'v_mov_b32 v{RC+2*qb+1}, v{RC+2*qb}')
    k('v_lshlrev_b32 v6, 4, v1')
    k(f's_lshl_b32 s48, s{sHEAD}, 9')
    k(f's_add_u32 s48, s48, s{sMB0}')
    k('s_lshl_b32 s48, s48, 10')
    n = 0
    for u in range(4):
        for qb in range(4):
            X = vS + (n % 4) * 8; D = vP + (n % 4) * 4; n += 1
            for h in range(2):
                a = aO + ((2 * u + h) * 4 + qb) * 4
                for r in range(4): k(f'v_accvgpr_read_b32 v{X+4*h+r}, a{a+r}')
            if u == 0:
                k(f'v_max3_f32 v{vT+1}, abs(v{X}), abs(v{X+1}), abs(v{X+2})')
                k(f'v_max3_f32 v{vT+1}, v{vT+1}, abs(v{X+3}), abs(v{X+4})')
                k(f'v_max3_f32 v{vT+1}, v{vT+1}, abs(v{X+5}), abs(v{X+6})')
                k(f'v_mov_b32 v{vT}, v{vT+1}' if qb == 0 else f'v_min_f32 v{vT}, v{vT}, v{vT+1}')
            for j in range(4): k(f'v_pk_mul_f32 {R2("v", X+2*j)}, {R2("v", X+2*j)}, {R2("v", RC+2*qb)}')
            for j in range(4): k(f'v_cvt_pk_bf16_f32 v{D+j}, v{X+2*j}, v{X+2*j+1}')
            k(f'buffer_store_dwordx4 {R4("v", D)}, v6, s[28:31], s48 offen offset:{qb*1024}')
        if u == 0:
            k(f'v_cmp_gt_f32 vcc, 0x{ufl:08x}, v{vT}')
            k('s_and_b64 vcc, vcc, s[66:67]')
            k(f's_cbranch_vccnz {Lslow}')
        if u < 3: k('s_add_u32 s48, s48, 131072')
    Lnext = k.label('next')
    if then:
        k('s_setreg_imm32_b32 hwreg(HW_REG_MODE, 4, 2), 0')
        k(f's_branch {Lnext}')
    else:
        k.stamp_out(kidx)
    k(f'{Lend}:')
    k('s_endpgm')

    k(f'{Lslow}:')
    k('s_waitcnt vmcnt(0)')
    k('s_mov_b64 s[66:67], 0')
    MX = vL + 16
    vKG = vL + 20
    vVP = vL + 22
    vVG = vL + 30
    k(f'v_and_b32 v{tmp}, 15, v1')
    k(f'v_lshrrev_b32 v{tmp+1}, 4, v1')
    k(f'v_lshlrev_b32 v{vKG}, 8, v{tmp}')
    k(f'v_lshl_add_u32 v{vKG}, v{tmp+1}, 4, v{vKG}')
    k(f'v_add_u32 v{vKG+1}, 4096, v{vKG}')
    k(f's_lshl_b32 s48, s{sWAVE}, 13')
    k(f's_add_u32 s48, s48, {SL(8)}')
    k(f's_sub_u32 s49, s48, 0x10000')
    for db in range(8): k(f'v_add_u32 v{vVP+db}, s49, v{vVA+db}')
    for j in range(2): k(f'v_subrev_u32 v{vVG+j}, s{sM0}, v{vVD+j}')
    for qb in range(4): k(f'v_mov_b32 v{MX+qb}, 0xff7fffff')
    for i in range(16): k(f'v_mov_b32 v{vNM+i}, 0')
    k(f's_mov_b32 s{sFIRST}, 0')
    Lp = k.label('spass'); Lu = k.label('sunit'); Lp1 = k.label('sp1'); Lnx = k.label('snext'); Lnov = k.label('snov')
    k(f'{Lp}:')
    k(f's_mov_b32 s{sK}, 0')
    k(f'{Lu}:')
    for kb in range(2):
        for ds in range(4):
            k(f'buffer_load_dwordx4 {R4("a", Kfr(kb, ds))}, v{vKG+kb}, s[20:23], s{sK} offen offset:{ds*64}')
    k(f's_cmp_eq_u32 s{sFIRST}, 0')
    k(f's_cbranch_scc1 {Lnov}')
    for half in range(2):
        k(f's_add_u32 m0, s48, {half*4096}')
        k(f's_add_u32 s49, s{sK}, {half*4096}')
        for n in range(4):
            k(f'buffer_load_dwordx4 v{vVG+(n&1)}, s[24:27], s49 offen offset:{n*1024} lds')
    k(f'{Lnov}:')
    k('s_waitcnt vmcnt(0)')
    for kb in range(2):
        for ds in range(4):
            for qb in range(4): k(qk(0, kb, ds, qb))
    k('s_nop 7')
    k(f's_cmp_eq_u32 s{sFIRST}, 0')
    k(f's_cbranch_scc0 {Lp1}')
    for qb in range(4):
        regs = [Sb(0, kb, qb) + r for kb in range(2) for r in range(4)]
        for i in range(0, 8, 2): k(f'v_max3_f32 v{MX+qb}, v{MX+qb}, v{regs[i]}, v{regs[i+1]}')
    k(f's_branch {Lnx}')
    k(f'{Lp1}:')
    for db in range(8):
        for hf in range(2):
            k(f'ds_read_b64_tr_b16 {R2("a", Vfr(db) + 2*hf)}, v{vVP+db} offset:{hf*4096}')
    for i in range(0, 32, 2):
        k(E(0, i)); k(E(0, i + 1)); k('s_nop 0'); k(C(0, i >> 1))
    k('s_waitcnt lgkmcnt(0)')
    k('s_nop 0')
    for qb in range(4): k(ones(0, qb))
    for db in range(8):
        for qb in range(4): k(pv(0, db, qb))
    k(f'{Lnx}:')
    k(f's_add_u32 s{sK}, s{sK}, 8192')
    k(f's_cmp_lt_u32 s{sK}, 524288')
    k(f's_cbranch_scc1 {Lu}')
    k('s_nop 7')
    k(f's_cmp_eq_u32 s{sFIRST}, 0')
    k(f's_cbranch_scc0 {Lepi}')
    for qb in range(4):
        xmax(MX + qb, vT)
        for r in range(4): k(f'v_sub_f32 v{NM(qb)+r}, 0, v{MX+qb}')
    for i in range(16): k(f'v_mov_b32 v{vL+i}, 0')
    for i in range(128): k(f'v_accvgpr_write_b32 a{aO+i}, 0')
    k(f's_mov_b32 s{sFIRST}, 1')
    k(f's_branch {Lp}')
    k.noreplay = {Lepi, Lp}
    if then:
        k(f'{Lnext}:')
        then(k)
    return k
```

```python
from gen_gk import *

import sys
FSH = 7
SLEEP = 4
for a in sys.argv:
    if a.startswith('sleep='): SLEEP = int(a[6:])
LATE = 'early' not in sys.argv
P3 = 'p3' in sys.argv
sWS, sB1, sOUT, sB2, sWAVE = 4, 6, 8, 10, 44
vW = 8
sNONCE = 101
ONE = 'one' in sys.argv

def sentinel(k, regs, acc):
    k(f'v_max3_u32 v{acc}, v{regs[0]}, v{regs[1]}, v{regs[2]}')
    i = 3
    while i + 1 < len(regs):
        k(f'v_max3_u32 v{acc}, v{acc}, v{regs[i]}, v{regs[i+1]}'); i += 2
    if i < len(regs): k(f'v_max_u32 v{acc}, v{acc}, v{regs[i]}')

def publish(k, s_off, srd=68):
    L = k.label('pub')
    k('s_waitcnt vmcnt(0)')
    k('s_barrier')
    k(f's_cmp_lg_u32 s{sWAVE}, 0')
    k(f's_cbranch_scc1 {L}')
    k('v_mov_b32 v3, 0')
    k(f'v_mov_b32 v4, s{sNONCE}' if ONE else 'v_mov_b32 v4, 1')
    k(f'buffer_store_dword v4, v3, s[{srd}:{srd+3}], s{s_off} offen sc1')
    k(f'{L}:')

def await_flags(k, s_off, n, srd=68):
    L = k.label('aw'); Ld = k.label('awd')
    k(f's_cmp_lg_u32 s{sWAVE}, 0')
    k(f's_cbranch_scc1 {Ld}')
    if n: k(f'v_and_b32 v3, {n-1}, v1')
    k(f'v_lshlrev_b32 v3, {FSH}, v3')
    k('s_mov_b32 s53, 0x80000')
    k(f'{L}:')
    if SLEEP: k(f's_sleep {SLEEP}')
    k(f'buffer_load_dword v4, v3, s[{srd}:{srd+3}], s{s_off} offen sc1')
    k('s_sub_u32 s53, s53, 1')
    k('s_cselect_b64 s[58:59], 0, -1')
    k('s_waitcnt vmcnt(0)')
    k(f'v_cmp_ne_u32 vcc, s{sNONCE}, v4' if ONE else 'v_cmp_eq_u32 vcc, 0, v4')
    k('s_and_b64 vcc, vcc, s[58:59]')
    k(f's_cbranch_vccnz {L}')
    k(f'{Ld}:')
    k('s_barrier')

def coords_128(k):
    k('s_bfe_u32 s40, s2, 0x10002')
    k('s_bfe_u32 s42, s2, 0x10001')
    k('s_lshl_b32 s42, s42, 3')
    k('s_lshr_b32 s43, s2, 5')
    k('s_add_u32 s42, s42, s43')
    k('s_and_b32 s43, s2, 1')
    k('s_lshl_b32 s43, s43, 2')
    k('s_bfe_u32 s41, s2, 0x20003')
    k('s_add_u32 s43, s43, s41')
    k('s_lshl_b32 s47, s42, 3')
    k(f's_lshl_b32 s48, s{sWAVE}, 1')
    k('s_add_u32 s47, s47, s48')

def gen_back(kidx=3, k=None):
    S = 8; MODL = S * 16384
    fused = k is not None
    if not fused:
        k = Kern('oproj_kernel', (256, 1, 1), (256, 1, 1), MODL + 12288, vgpr=256, agpr=220, sgpr=78)
    k.plain_stores = True
    Lend = k.label('end')
    if not fused:
        k('s_cmp_ge_u32 s2, 256')
        k(f's_cbranch_scc1 {Lend}')
        k.stamp(0)
    st = (lambda i: None) if fused else k.stamp
    k(f's_load_dwordx2 s[{sWS}:{sWS+1}], s[0:1], {A_WS}')
    k(f's_load_dwordx2 s[28:29], s[0:1], {A_X}')
    k(f's_load_dwordx2 s[{sB1}:{sB1+1}], s[0:1], {A_B1}')
    k(f's_load_dwordx2 s[{sOUT}:{sOUT+1}], s[0:1], {A_OUT}')
    k(f's_load_dwordx2 s[{sB2}:{sB2+1}], s[0:1], {A_B2}')
    k(f's_load_dwordx2 s[12:13], s[0:1], {A_WO}')
    k('v_and_b32 v1, 63, v0')
    k('v_lshrrev_b32 v2, 6, v0')
    k('s_nop 0')
    k(f'v_readfirstlane_b32 s{sWAVE}, v2')
    NA, NB, LP, RA, PD = 8, 2, 256, 8, 4
    coords_128(k)
    vX = 12; vA = 16; vA2 = 24; tmp = 32
    k(f's_lshl_b32 s52, s{sWAVE}, 12')
    k(f'v_lshl_add_u32 v{vW}, v1, 4, s52')
    wd = [(vW, n * 1024) for n in range(4)]
    wdo = wdma_regs(k, 56, LP, 2048, 16, tmp, 1, sWAVE)
    k('s_lshl_b32 s48, s47, 10')
    k(f'v_lshl_add_u32 v{vX}, v1, 4, s48')
    k(f'v_add_u32 v{vX+1}, 0x20000, v{vX}')
    k('s_lshl_b32 s50, s43, 8')
    k('s_lshl_b32 s48, s40, 22')
    k('s_add_u32 s50, s50, s48')
    k('s_lshl_b32 s51, s40, 23')
    k('s_waitcnt lgkmcnt(0)')
    k.srd(12, 12, 4096 * 2048)
    srd_off(k, 16, sWS, WS_O, 16 * MB)
    srd_off(k, 68, sWS, WS_FL, 768 << FSH)
    acc0 = 64; XR = 128
    ext = {}
    g = Gemm(k, NA, NB, LP, S, PD, RA, 32,
             acc=lambda a, b: R4('v', acc0 + (a * NB + b) * 4),
             aring=lambda s: ('a', 16 * S + 4 * s),
             bring=lambda st, ks, b: R4('a', st * 16 + (ks * NB + b) * 4),
             vA=[[vA + a for a in range(NA)], [vA2 + a for a in range(NA)]], lds_base=0,
             srdW=12, sW=50, wpitch=2048, wdma=wdo, sM0=52, srdX=16, sX=51, vX=[vX, vX + 1], wait_every=2,
             extra_loads=lambda t: ext.get(t, []), xmod=' sc1', pre_w=fused)
    if fused:
        k(f's_lshl_b32 s45, s2, {FSH}')
        k(f's_add_u32 s45, s45, {512 << FSH}')
        publish(k, 45)
        k.stamp(5)
        for x in g.wpreload(): k(x)
        k('v_and_b32 v3, 3, v1')
        k('v_bfe_u32 v4, v1, 2, 2')
        k('v_lshl_add_u32 v4, v3, 3, v4')
        k('s_lshr_b32 s45, s42, 1')
        k('s_lshl_b32 s45, s45, 5')
        k('s_lshl_b32 s46, s40, 2')
        k('s_add_u32 s45, s45, s46')
        k('v_add_u32 v4, s45, v4')
        k('s_and_b32 s45, s2, 0xfc')
        k('v_add_u32 v3, s45, v3')
        k('v_cmp_gt_u32 vcc, 16, v1')
        k(f's_mov_b32 s45, {512 << FSH}')
        k('s_nop 0')
        k('v_cndmask_b32 v3, v3, v4, vcc')
        await_flags(k, 45, 0)
        k.stamp(6)
    g.make_sched(*((5, [2]) if fused else (3, [1, 2, 2, 2, 2])))
    g.prologue_loads()
    tr_addr_regs(k, vA, NA, LP, tmp, 1)
    for a in range(NA): k(f'v_add_u32 v{vA2+a}, 0x10000, v{vA+a}')
    fin = mod_finalize(k, sWS, 56, 40, 1)
    g.vq += ['m'] * 4
    rec = Kern('rec', None, None, 0, 0); fin(rec)
    ext[5 if fused else 2] = [[x] for x in rec.lines]
    Ltail = k.label('tail')
    k.code_srd(32, Ltail)
    k('s_lshr_b32 s55, s2, 3')
    k('s_lshl_b32 s55, s55, 12')
    k('v_lshlrev_b32 v52, 4, v0')
    k.srd(28, 28, 4 * MB)
    k.srd(72, sB2, 2048)
    srd_off(k, 24, sWS, WS_P, 8 * MB)
    srd_off(k, 20, sWS, WS_MOD32 + 8192, 12288)
    srd_off(k, 36, sWS, WS_X1, 4 * MB)
    srd_off(k, 64, sWS, WS_Y, 4 * MB)
    k('v_and_b32 v4, 15, v1')
    k('v_lshrrev_b32 v5, 4, v1')
    k('v_lshlrev_b32 v6, 11, v4')
    k('v_lshl_add_u32 v7, v5, 4, v6')
    k('v_lshlrev_b32 v3, 4, v1')
    k('s_lshl_b32 s48, s47, 15')
    k('s_lshl_b32 s49, s43, 8')
    k('s_add_u32 s48, s48, s49')
    k('s_lshl_b32 s49, s40, 22')
    k('s_add_u32 s48, s48, s49')
    k('s_add_u32 s49, s48, 32768')
    k('s_lshl_b32 s46, s42, 4')
    k('s_lshl_b32 s45, s43, 1')
    k('s_add_u32 s46, s46, s45')
    k('s_add_u32 s46, s46, s40')
    k('s_lshl_b32 s54, s46, 14')
    k(f's_add_u32 s45, s54, {4*MB}')
    k(f's_mul_i32 s41, s{sWAVE}, 3072')
    ext[25] = [['buffer_load_dwordx4 v[48:51], v52, s[32:35], s55 offen ; pf'],
               ['buffer_load_dwordx4 v[48:51], v52, s[72:75], 0 offen ; pf']]
    ext[26] = [[f'buffer_load_dwordx4 {R4("v", XR + 4*j)}, v{vW}, s[28:31], s54 offen offset:{j*1024}'] for j in range(4)]
    allf = [f'buffer_load_dword v{60+j}, v53, s[68:71], s{63 if j & 1 == 0 else 62} offen sc1'.replace('v53', 'v53' if j < 2 else 'v54') for j in range(4)]
    if fused:
        k(f'v_lshlrev_b32 v53, {FSH}, v1')
        k(f'v_add_u32 v54, {128 << FSH}, v53')
        ext[27] = [[f's_mov_b32 s63, {512 << FSH}'], [f's_mov_b32 s62, {576 << FSH}']] + [[x] for x in allf]
    ext[28] = [[f's_add_u32 m0, s41, {MODL}'], ['s_nop 0']] + \
              [[f'buffer_load_dwordx4 v3, s[20:23], s41 offen offset:{j*1024} sc1 lds'] for j in range(3)]
    g.emit(loop_sreg=53)
    if not P3: st(1)
    if fused: k.stamp(7)
    k(f'{Ltail}:')
    if fused:
        La = k.label('allchk'); Lao = k.label('allok')
        k('s_mov_b32 s53, 0x80000')
        k('s_mov_b32 s76, 0')
        if ONE: srd_off(k, 32, sWS, 0, 65536)
        k('s_waitcnt vmcnt(3)')
        k(f'{La}:')
        if ONE:
            for j in range(4): k(f'v_xor_b32 v{60+j}, s{sNONCE}, v{60+j}')
            k('v_or3_b32 v4, v60, v61, v62')
            k('v_or_b32 v4, v4, v63')
        else:
            k('v_min3_u32 v4, v60, v61, v62')
            k('v_min_u32 v4, v4, v63')
        k('s_sub_u32 s53, s53, 1')
        k('s_cselect_b64 s[58:59], 0, -1')
        k('v_cmp_ne_u32 vcc, 0, v4' if ONE else 'v_cmp_eq_u32 vcc, 0, v4')
        k('s_and_b64 vcc, vcc, s[58:59]')
        k(f's_cbranch_vccz {Lao}')
        k('s_mov_b32 s76, -1')
        for x in allf: k(x)
        k('s_waitcnt vmcnt(0)')
        k(f's_branch {La}')
        k(f'{Lao}:')
        if ONE:
            Lc = k.label('cnt')
            k(f's_or_b32 s53, s2, s{sWAVE}')
            k(f's_cbranch_scc1 {Lc}')
            k('v_mov_b32 v60, 0')
            k(f'v_mov_b32 v61, s{sNONCE}')
            k(f's_mov_b32 s53, {WS_NONCE}')
            k('buffer_store_dword v61, v60, s[56:59], s53 offen sc1'.replace('s[56:59]', 's[32:35]'))
            k(f'{Lc}:')
        k.norep2 = La
    else:
        k('s_nop 5')
    n = 0
    for u in range(4):
        ps = []
        for b in range(NB):
            p = 144 + n * 4; n += 1
            ps.append(p)
            A0 = acc0 + ((2 * u) * NB + b) * 4; A1 = acc0 + ((2 * u + 1) * NB + b) * 4
            k(f'v_cvt_pk_bf16_f32 v{p}, v{A0}, v{A0+1}')
            k(f'v_cvt_pk_bf16_f32 v{p+1}, v{A0+2}, v{A0+3}')
            k(f'v_cvt_pk_bf16_f32 v{p+2}, v{A1}, v{A1+1}')
            k(f'v_cvt_pk_bf16_f32 v{p+3}, v{A1+2}, v{A1+3}')
        for sw in ('32', '16'):
            for p in ps:
                k(f'v_permlane{sw}_swap_b32 v{p}, v{p+2}')
                k(f'v_permlane{sw}_swap_b32 v{p+1}, v{p+3}')
        for b, p in enumerate(ps):
            k(f'buffer_store_dwordx4 {R4("v", p)}, v7, s[24:27], s{48+b} offen offset:{u*64} sc1')
    k('s_waitcnt vmcnt(8)')
    k('s_barrier')
    GA, SB, CB = 176, 192, 208
    X = [64, 80]
    k(f'v_add_u32 v10, {MODL}, v3')
    for base, sec in ((GA, 0), (SB, 1), (CB, 2)):
        for h in range(2):
            for q in range(2):
                k(f'ds_read_b128 {R4("v", base + 8*h + 4*q)}, v10 offset:{sec*4096 + h*2048 + q*1024}')
    for r in range(2):
        unpack8(k, X[r], XR + 8 * r); unpack8(k, X[r] + 8, XR + 8 * r + 4)
    k('s_and_b32 s40, s2, 7')
    k('s_lshr_b32 s41, s2, 3')
    k('s_lshr_b32 s42, s40, 2')
    k('s_lshl_b32 s42, s42, 2')
    k('s_lshr_b32 s43, s41, 3')
    k('s_add_u32 s42, s42, s43')
    k('s_and_b32 s43, s40, 3')
    k('s_lshl_b32 s43, s43, 3')
    k('s_and_b32 s41, s41, 7')
    k('s_add_u32 s43, s43, s41')
    k(f's_cmp_eq_u32 s{sWAVE}, 3')
    k('s_cselect_b32 s41, 0x7ff00000, 0')
    k(f'v_add_u32 v{vW+1}, s41, v{vW}')
    k('s_mul_i32 s62, s43, 224')
    k('s_lshl_b32 s50, s62, 10')
    srd_off(k, 12, sWS, WS_W1, 1024 * 7168)
    k.srd(28, sB1, 7168)
    S1 = 6; BP = 40; BI = 64; acc1 = 96
    ext1 = {}
    g1 = Gemm(k, 7, 4, 224, S1, 4, 7, 16,
              acc=lambda a, b: R4('v', acc1 + (a * 4 + b) * 4),
              aring=lambda s: ('a', 32 * S1 + 4 * s),
              bring=lambda st, ks, b: R4('a', st * 32 + (ks * 4 + b) * 4),
              vA=[[vA] * 7, [vA + 1] * 7], lds_base=32768, aimm=32, tile_bytes=16384,
              srdW=12, sW=50, wpitch=224, wdma=[(vW, 0), (vW, 1024), (vW + 1, 2048), (vW + 1, 3072)],
              sM0=52, srdX=64, sX=51, vX=[vX, vX + 1], cinit=lambda a, b: R4('v', BI + 4 * a),
              extra_loads=lambda t: ext1.get(t, []), pre_w=True, xmod=' sc1')
    g1.wmod = ' sc1'
    k('s_mov_b32 s60, 0x3a800000')
    k('s_mov_b32 s61, 0xba800000')
    k('s_mov_b32 s53, 0x40000')
    k('s_waitcnt lgkmcnt(0)')
    Lm = k.label('modchk'); Lmok = k.label('modok')
    k(f'{Lm}:')
    sentinel(k, list(range(GA, GA + 48)), 4)
    if fused:
        k('v_or_b32 v4, s76, v4')
        k('s_mov_b32 s76, 0')
    k('s_sub_u32 s53, s53, 1')
    k('s_cselect_b64 s[58:59], 0, -1')
    k('v_cmp_eq_u32 vcc, -1, v4')
    k('s_and_b64 vcc, vcc, s[58:59]')
    k(f's_cbranch_vccz {Lmok}')
    for j in range(12):
        k(f's_mov_b32 s41, {(j >> 2) * 4096}')
        k(f'buffer_load_dwordx4 {R4("v", GA + 4*j)}, v3, s[20:23], s41 offen offset:{(j & 3)*1024} sc1')
    k('s_waitcnt vmcnt(0)')
    k(f's_branch {Lm}')
    k(f'{Lmok}:')
    k('s_mov_b32 s53, 0x40000')
    k('s_waitcnt vmcnt(0)')
    RX = 224
    Lp = k.label('poll')
    k(f'{Lp}:')
    for kh in range(2):
        for j in range(4):
            k(f'buffer_load_dwordx4 {R4("v", RX + 16*kh + 4*j)}, v{vW}, s[24:27], s{54 if kh == 0 else 45} offen offset:{j*1024} sc1')
    k('s_sub_u32 s53, s53, 1')
    k('s_cselect_b64 s[58:59], 0, -1')
    k('s_waitcnt vmcnt(0)')
    sentinel(k, list(range(RX, RX + 32)), 4)
    k('v_cmp_eq_u32 vcc, -1, v4')
    k('s_and_b64 vcc, vcc, s[58:59]')
    k(f's_cbranch_vccnz {Lp}')
    if not P3: st(2)
    streams = []
    for r in range(2):
        q = Kern('rec', None, None, 0, 0)
        U0, U1, T, PK = 96 + 16 * r, 144 + 16 * r, 32 + 4 * r, 128 + 8 * r
        unpack8(q, U0, RX + 8 * r); unpack8(q, U0 + 8, RX + 8 * r + 4)
        unpack8(q, U1, RX + 16 + 8 * r); unpack8(q, U1 + 8, RX + 16 + 8 * r + 4)
        x = X[r]
        for j in range(0, 16, 2): q(f'v_pk_add_f32 {R2("v", U0+j)}, {R2("v", U0+j)}, {R2("v", U1+j)}')
        for j in range(0, 16, 2): q(f'v_pk_fma_f32 {R2("v", x+j)}, {R2("v", U0+j)}, {R2("v", GA+j)}, {R2("v", x+j)}')
        for j in range(8): q(f'v_cvt_pk_bf16_f32 v{PK+j}, v{x+2*j}, v{x+2*j+1}')
        q(f'buffer_store_dwordx4 {R4("v", PK)}, v{vW}, s[36:39], s54 offen offset:{r*2048} sc1')
        q(f'buffer_store_dwordx4 {R4("v", PK+4)}, v{vW}, s[36:39], s54 offen offset:{r*2048+1024} sc1')
        ln_fast(q, x, T, 60)
        for j in range(0, 16, 2): q(f'v_pk_mul_f32 {R2("v", x+j)}, {R2("v", x+j)}, {R2("v", T)}')
        for j in range(0, 16, 2): q(f'v_pk_fma_f32 {R2("v", x+j)}, {R2("v", x+j)}, {R2("v", CB+j)}, {R2("v", SB+j)}')
        ln_fast(q, x, T, 60)
        for j in range(0, 16, 2): q(f'v_pk_mul_f32 {R2("v", x+j)}, {R2("v", x+j)}, {R2("v", T)}')
        for j in range(8): q(f'v_cvt_pk_bf16_f32 v{U0+j}, v{x+2*j}, v{x+2*j+1}')
        streams.append(q.lines)
    k('v_lshlrev_b32 v4, 3, v5')
    pre = [f'buffer_load_dwordx2 {R2("v", BP + 2*a)}, v4, s[28:31], s62 offen offset:{a*32}' for a in range(7)] + \
          ([] if LATE else [x for x in g1.wpreload() if x != 's_nop 0'])
    cnt = 0
    for a, b in zip(*streams):
        if a == 's_nop 1': k('s_nop 0'); continue
        if a == 's_nop 0': continue
        k(a); k(b)
        cnt += 1
        if cnt % 3 == 0 and pre: k(pre.pop(0))
    assert not pre
    k('v_lshrrev_b32 v5, 2, v1')
    k('v_mul_u32_u24 v5, 528, v5')
    k('v_and_b32 v6, 1, v1')
    k('v_lshl_add_u32 v5, v6, 8, v5')
    k('v_bfe_u32 v6, v1, 1, 1')
    k('v_lshl_add_u32 v5, v6, 3, v5')
    k('v_lshl_add_u32 v5, v2, 5, v5')
    for r in range(2):
        P = 96 + 16 * r
        k(f'ds_write_b64 v5, {R2("v", P)} offset:{16*r}')
        k(f'ds_write_b64 v5, {R2("v", P+2)} offset:{16*r+128}')
        k(f'ds_write_b64 v5, {R2("v", P+4)} offset:{16*r+16*528}')
        k(f'ds_write_b64 v5, {R2("v", P+6)} offset:{16*r+16*528+128}')
    k('v_lshrrev_b32 v6, 5, v0')
    k('v_and_b32 v7, 31, v0')
    k('v_mul_u32_u24 v5, 528, v6')
    k('v_lshl_add_u32 v5, v7, 4, v5')
    k('v_lshlrev_b32 v6, 17, v6')
    k('v_bfe_u32 v7, v0, 3, 2')
    k('v_lshl_add_u32 v6, v7, 8, v6')
    k('v_and_b32 v7, 7, v0')
    k('v_lshl_add_u32 v6, v7, 4, v6')
    k('s_lshr_b32 s48, s46, 1')
    k('s_lshl_b32 s48, s48, 10')
    k('s_and_b32 s49, s46, 1')
    k('s_lshl_b32 s49, s49, 7')
    k('s_add_u32 s48, s48, s49')
    k('s_waitcnt lgkmcnt(0)')
    k('s_barrier')
    for j in range(4): k(f'ds_read_b128 {R4("v", 144+4*j)}, v5 offset:{8*528*j}')
    for j in range(4):
        k(f's_waitcnt lgkmcnt({3-j})')
        k(f'buffer_store_dwordx4 {R4("v", 144+4*j)}, v6, s[64:67], s48 offen sc1')
        if j < 3: k(f's_add_u32 s48, s48, {8*131072}')
    k(f's_lshl_b32 s46, s46, {FSH}')
    k(f's_lshl_b32 s45, s42, {5+FSH}')
    k('s_lshl_b32 s47, s42, 4')
    k(f's_lshl_b32 s48, s{sWAVE}, 2')
    k('s_add_u32 s47, s47, s48')
    k('s_lshl_b32 s48, s47, 10')
    k(f'v_lshl_add_u32 v{vX}, v1, 4, s48')
    k(f'v_add_u32 v{vX+1}, 0x20000, v{vX}')
    k('s_mov_b32 s51, 0')
    k(f'v_lshrrev_b32 v{tmp}, 2, v1')
    k(f'v_mul_u32_u24 v{tmp}, 224, v{tmp}')
    k(f'v_and_b32 v{tmp+1}, 3, v1')
    k(f'v_lshl_add_u32 v{vA}, v{tmp+1}, 3, v{tmp}')
    k(f'v_add_u32 v{vA+1}, 0x10000, v{vA}')
    Lepi = k.label('epi')
    k.code_srd(32, Lepi)
    k('v_lshlrev_b32 v60, 4, v0')
    ext1[11] = [['buffer_load_dwordx4 v[56:59], v60, s[32:35], s55 offen ; pf']]
    publish(k, 46)
    if not P3: st(3)
    if LATE:
        for x in g1.wpreload(): k(x)
    for a in range(7):
        for j in range(2):
            k(f'v_lshlrev_b32 v{BI+4*a+2*j}, 16, v{BP+2*a+j}')
            k(f'v_and_b32 v{BI+4*a+2*j+1}, 0xffff0000, v{BP+2*a+j}')
    await_flags(k, 45, 32)
    if not P3: st(4)
    g1.make_sched(3, [2])
    g1.prologue_loads()
    g1.emit(loop_sreg=None)
    st(1 if P3 else 5)
    k(f'{Lepi}:')
    k('s_waitcnt vmcnt(0)')
    if not LATE: k('s_barrier')
    srd_off(k, 24, sWS, WS_HH, 2048 * 3584 * 2)
    k('s_and_b32 s62, s2, 1')
    k('s_lshl_b32 s62, s62, 2')
    k('s_bfe_u32 s63, s2, 0x20003')
    k('s_add_u32 s62, s62, s63')
    k('s_bfe_u32 s63, s2, 0x10002')
    k(f's_mul_i32 s50, s62, {3584*256}')
    k(f's_mul_i32 s63, s63, {1792*256}')
    k('s_add_u32 s50, s50, s63')
    srd_off(k, 12, sWS, WS_W2, 3584 * 2048)
    NT = 28; SP = 184
    send = []
    for q in range(4):
        send += [[f'v_cvt_pk_bf16_f32 v{SP+4*q+j}, v{acc0+8*q+2*j}, v{acc0+8*q+2*j+1}'] for j in range(4)]
    A = lambda a, b: acc0 + (a * NB + b) * 4
    g2 = Gemm(k, NA, NB, LP, S, PD, RA, NT,
              acc=lambda a, b: R4('v', A(a, b)),
              aring=lambda s: ('a', 16 * S + 4 * s),
              bring=lambda st, ks, b: R4('a', st * 16 + (ks * NB + b) * 4),
              vA=[[vA + a for a in range(NA)], [vA2 + a for a in range(NA)]], lds_base=0,
              srdW=12, sW=50, wpitch=256, wdma=wd, sM0=52, srdX=24, sX=51, vX=[vX, vX + 1], wait_every=2,
              extra_loads=lambda t: send if t == NT - 1 else [], pre_w=True, xmod=' sc1')
    g2.wmod = ' sc1'
    c1 = -2.0 * math.log2(math.e) * math.sqrt(2.0 / math.pi); c2 = c1 * 0.044715
    C1, C2, VONE = 40, 42, 44
    for (r, v) in ((C1, c1), (C2, c2), (VONE, 1.0)):
        k(f'v_mov_b32 v{r}, 0x{f2u(v):08x}'); k(f'v_mov_b32 v{r+1}, 0x{f2u(v):08x}')
    k('v_lshlrev_b32 v6, 4, v1')
    k('s_mul_i32 s54, s43, 7')
    k('s_lshr_b32 s55, s54, 1')
    k('s_lshl_b32 s55, s55, 7')
    k('s_add_u32 s55, s55, s47')
    k('s_lshl_b32 s55, s55, 10')
    for j in range(1, 4): k(f's_add_u32 s{55+j}, s55, {j*131072}')
    T = 48
    Lodd = k.label('odd'); Ljoin = k.label('join')
    k('s_bitcmp1_b32 s43, 0')
    k(f's_cbranch_scc1 {Lodd}')
    for odd in range(2):
        if odd: k(f'{Lodd}:')
        pre = [] if LATE else [x for x in g2.wpreload() if x != 's_nop 0']
        def gelu_tile(Ar, dst):
            for h in range(2):
                x = R2('v', Ar + 2 * h); t = R2('v', T + 2 * h)
                k(f'v_pk_mul_f32 {t}, {x}, {x}')
                k(f'v_pk_fma_f32 {t}, {t}, {R2("v", C2)}, {R2("v", C1)}')
                k(f'v_pk_mul_f32 {t}, {t}, {x}')
            if pre: k(pre.pop(0))
            for r in range(4): k(f'v_exp_f32 v{T+r}, v{T+r}')
            for h in range(2):
                t = R2('v', T + 2 * h)
                k(f'v_pk_add_f32 {t}, {t}, {R2("v", VONE)}')
            if pre: k(pre.pop(0))
            for r in range(4): k(f'v_rcp_f32 v{T+r}, v{T+r}')
            for h in range(2):
                x = R2('v', Ar + 2 * h); t = R2('v', T + 2 * h)
                k(f'v_pk_mul_f32 {x}, {x}, {t}')
            for h in range(2):
                k(f'v_cvt_pk_bf16_f32 v{dst+h}, v{Ar+2*h}, v{Ar+2*h+1}')
        n = 0
        order = [(b, blk) for b in range(4) for blk in range(4)]
        half = 0 if odd else 3
        order.sort(key=lambda x: x[1] != half)
        for b, blk in order:
            aa = [a for a in range(7) if (a + odd) >> 1 == blk]
            D = 56 + (n % 2) * 4; n += 1
            for a in aa:
                gelu_tile(acc1 + (a * 4 + b) * 4, D + 2 * ((a + odd) & 1))
            if len(aa) == 2:
                k(f'buffer_store_dwordx4 {R4("v", D)}, v6, s[24:27], s{55+blk} offen offset:{b*1024} sc1')
            else:
                hf = (aa[0] + odd) & 1
                k(f'buffer_store_dwordx2 {R2("v", D + 2*hf)}, v6, s[24:27], s{55+blk} offen offset:{b*1024 + 8*hf} sc1')
        assert not pre
        if not odd: k(f's_branch {Ljoin}')
    k(f'{Ljoin}:')
    k('s_lshl_b32 s46, s42, 5')
    k('s_add_u32 s46, s46, s43')
    k(f's_lshl_b32 s46, s46, {FSH}')
    k(f's_add_u32 s57, s46, {256 << FSH}')
    coords_128(k)
    k('s_lshr_b32 s45, s42, 1')
    k(f's_lshl_b32 s45, s45, {5+FSH}')
    k(f's_lshl_b32 s46, s40, {4+FSH}')
    k('s_add_u32 s45, s45, s46')
    k(f's_add_u32 s60, s45, {256 << FSH}')
    k('s_lshl_b32 s48, s47, 10')
    k(f'v_lshl_add_u32 v{vX}, v1, 4, s48')
    k(f'v_add_u32 v{vX+1}, 0x20000, v{vX}')
    k(f's_mul_i32 s51, s40, {56*131072}')
    k('s_xor_b32 s45, s40, 1')
    k('s_lshl_b32 s45, s45, 2')
    tr_addr_regs(k, vA, NA, LP, tmp, 1, xor_s=45)
    for a in range(NA): k(f'v_add_u32 v{vA2+a}, 0x10000, v{vA+a}')
    srd_off(k, 16, sWS, WS_XB, 4 * MB)
    k('s_lshl_b32 s55, s2, 14')
    k('s_xor_b32 s56, s55, 0x10000')
    k.srd(20, sOUT, 4 * MB)
    srd_off(k, 28, sWS, WS_MOD32 + 5 * 4096, 4096)
    k('v_and_b32 v4, 15, v1')
    k('v_lshrrev_b32 v5, 4, v1')
    k('v_lshlrev_b32 v6, 11, v4')
    k('v_lshl_add_u32 v7, v5, 4, v6')
    k('s_lshl_b32 s46, s43, 1')
    k('s_add_u32 s46, s46, s40')
    k('s_lshl_b32 s48, s47, 15')
    k('s_lshl_b32 s49, s46, 7')
    k('s_add_u32 s48, s48, s49')
    k('s_add_u32 s49, s48, 32768')
    k('v_lshlrev_b32 v10, 5, v5')
    k('v_lshlrev_b32 v11, 4, v5')
    k('s_lshl_b32 s54, s46, 8')
    k('s_lshl_b32 s61, s46, 7')
    publish(k, 57)
    st(2 if P3 else 6)
    if LATE:
        for x in g2.wpreload(): k(x)
    await_flags(k, 60, 16)
    st(3 if P3 else 7)
    XR, GR, BR, RX, UB = 32, 48, 128, 136, 168
    g2.make_sched(5, [2])
    g2.prologue_loads()
    for b in range(NB):
        for u in range(2):
            k(f'buffer_load_dwordx4 {R4("v", XR + (b*2+u)*4)}, v7, s[36:39], s{48+b} offen offset:{u*64} sc1')
    gate = [f'buffer_load_dwordx4 {R4("v", GR + (u*2+h)*4)}, v10, s[28:31], s54 offen offset:{u*128 + h*16} sc1' for u in range(2) for h in range(2)]
    for x in gate: k(x)
    for u in range(2):
        k(f'buffer_load_dwordx4 {R4("v", BR + u*4)}, v11, s[72:75], s61 offen offset:{u*64}')
    g2.vq += ['e'] * 10
    if P3 and not fused: g2.stamp_first = 4
    g2.emit(loop_sreg=53)
    if P3: st(5)
    for q in range(4): k(f'buffer_store_dwordx4 {R4("v", SP+4*q)}, v{vW}, s[16:19], s55 offen offset:{q*1024} sc1')
    for u in range(2):
        for j in range(4):
            k(f'v_lshlrev_b32 v{UB+8*u+2*j}, 16, v{BR+4*u+j}')
            k(f'v_and_b32 v{UB+8*u+2*j+1}, 0xffff0000, v{BR+4*u+j}')
    for i in range(16):
        k(f'v_lshlrev_b32 v{acc0+2*i}, 16, v{XR+i}')
        k(f'v_and_b32 v{acc0+2*i+1}, 0xffff0000, v{XR+i}')
    k('s_mov_b32 s53, 0x40000')
    Lg = k.label('gchk'); Lgok = k.label('gok')
    k(f'{Lg}:')
    sentinel(k, list(range(GR, GR + 16)), 4)
    k('s_sub_u32 s53, s53, 1')
    k('s_cselect_b64 s[58:59], 0, -1')
    k('v_cmp_eq_u32 vcc, -1, v4')
    k('s_and_b64 vcc, vcc, s[58:59]')
    k(f's_cbranch_vccz {Lgok}')
    for x in gate: k(x)
    k('s_waitcnt vmcnt(0)')
    k(f's_branch {Lg}')
    k(f'{Lgok}:')
    k('s_mov_b32 s53, 0x40000')
    k('s_waitcnt vmcnt(0)')
    if P3: st(6)
    Lp2 = k.label('poll')
    k(f'{Lp2}:')
    for q in range(4):
        k(f'buffer_load_dwordx4 {R4("v", RX + 4*q)}, v{vW}, s[16:19], s56 offen offset:{q*1024} sc1')
    k('s_sub_u32 s53, s53, 1')
    k('s_cselect_b64 s[58:59], 0, -1')
    k('s_waitcnt vmcnt(0)')
    sentinel(k, list(range(RX, RX + 16)), 4)
    k('v_cmp_eq_u32 vcc, -1, v4')
    k('s_and_b64 vcc, vcc, s[58:59]')
    k(f's_cbranch_vccnz {Lp2}')
    if P3: st(7)
    for i in range(16):
        o = acc0 + 32 + 2 * i; t = RX + 16 + 2 * (i % 4)
        k(f'v_lshlrev_b32 v{t}, 16, v{RX+i}')
        k(f'v_and_b32 v{t+1}, 0xffff0000, v{RX+i}')
        k(f'v_pk_add_f32 {R2("v", o)}, {R2("v", o)}, {R2("v", t)}')
    k('s_nop 0')
    for sw in ('32', '16'):
        for b in range(NB):
            for u in range(2):
                for r in range(4): k(f'v_permlane{sw}_swap_b32 v{A(4+2*u, b)+r}, v{A(5+2*u, b)+r}')
    for b in range(NB):
        for u in range(2):
            P = RX + (b * 2 + u) * 4
            for h in range(2):
                o = A(4 + 2 * u + h, b)
                for j in range(2):
                    x = R2('v', o + 2 * j)
                    k(f'v_pk_add_f32 {x}, {x}, {R2("v", UB+8*u+4*h+2*j)}')
                    k(f'v_pk_fma_f32 {x}, {x}, {R2("v", GR+(u*2+h)*4+2*j)}, {R2("v", acc0+(b*2+u)*8+4*h+2*j)}')
                for j in range(2): k(f'v_cvt_pk_bf16_f32 v{P+2*h+j}, v{o+2*j}, v{o+2*j+1}')
            k(f'buffer_store_dwordx4 {R4("v", P)}, v7, s[20:23], s{48+b} offen offset:{u*64} sc1')
    k.stamp_out(kidx)
    k(f'{Lend}:')
    k('s_endpgm')
    k.noreplay = set(getattr(k, 'noreplay', set())) | {Lm, Lg, getattr(k, 'norep2', Lm)}
    return k
```

```python
from gen_small import *
WS_MP = 65536
WS_SC = 49152
WS_FL = 655360
WS_NONCE = 61440
WS_SCP = 786432
WS_MP2 = 262144

CPF = True
def R4(kind, i): return f'{kind}[{i}:{i+3}]'
def R2(kind, i): return f'{kind}[{i}:{i+1}]'

def gemv_body(k, s_unit, nunits_x, colgrp0, nthreads, Lend):
    nsub = nthreads // 256
    k(f's_and_b32 s20, s{s_unit}, 7')
    k(f's_lshr_b32 s21, s{s_unit}, 3')
    k('s_and_b32 s22, s21, 3')
    k('s_lshr_b32 s21, s21, 2')
    k(f's_mul_i32 s20, s20, {nunits_x // 4}')
    k('s_add_u32 s20, s20, s21')
    if nsub == 2: k('s_lshl_b32 s20, s20, 1')
    k(f's_add_u32 s20, s20, {colgrp0}')
    k('v_and_b32 v5, 255, v0')
    k('v_lshrrev_b32 v1, 2, v5')
    k('v_and_b32 v2, 3, v0')
    k('s_mov_b32 s23, 12288')
    k('v_mul_lo_u32 v3, v1, s23')
    k('v_lshl_add_u32 v3, v2, 4, v3')
    if nsub == 2:
        k('v_lshrrev_b32 v6, 8, v0')
        k('v_lshl_add_u32 v3, v6, 6, v3')
    k('v_lshlrev_b32 v4, 1, v1')
    k(f's_mul_i32 s24, s22, {256*12288}')
    k('s_lshl_b32 s21, s20, 6')
    k('s_add_u32 s21, s21, s24')
    k('s_lshl_b32 s24, s22, 9')
    k('s_waitcnt lgkmcnt(0)')
    k.srd(12, 6, 1024 * 6144 * 2)
    k.srd(16, 4, 2048)
    for p in range(4):
        k(f'buffer_load_ushort v{40+p}, v4, s[16:19], s24 offen offset:{p*128}')
    for p in range(4):
        k(f'buffer_load_dwordx4 v[{16+4*p}:{16+4*p+3}], v3, s[12:15], s21 offen')
        if p < 3: k(f's_add_u32 s21, s21, {64*12288}')

def gemv_finish(k, nthreads, Lend, npf=0, table=False):
    k('s_mov_b32 s23, 0xbfb8aa3b')
    k(f's_waitcnt vmcnt({4+npf})')
    for p in range(4): k(f'v_lshlrev_b32 v{40+p}, 16, v{40+p}')
    for p in range(4): k(f'v_mul_f32 v{44+p}, s23, v{40+p}')
    for p in range(4): k(f'v_exp_f32 v{44+p}, v{44+p}')
    for p in range(4): k(f'v_add_f32 v{44+p}, 1.0, v{44+p}')
    for p in range(4): k(f'v_rcp_f32 v{44+p}, v{44+p}')
    for p in range(4): k(f'v_mul_f32 v{40+p}, v{40+p}, v{44+p}')
    round_pair(k, 40, 41, 44); round_pair(k, 42, 43, 45)
    if table:
        srd_off(k, 32, 8, WS_SC, 4096)
        k('s_lshl_b32 s26, s22, 10')
        k('s_cmp_eq_u32 s20, 0')
        k('s_cselect_b32 s26, s26, 0x10000')
        k('v_lshlrev_b32 v7, 2, v1')
        for p in range(4): k(f'buffer_store_dword v{40+p}, v7, s[32:35], s26 offen offset:{p*256}')
        npf += 4
        srd_off(k, 40, 8, WS_MOD32 + 8192, 16384)
        k('s_lshl_b32 s26, s2, 10')
        k('v_lshlrev_b32 v7, 2, v0')
        k('v_mov_b32 v52, -1')
        k('buffer_store_dword v52, v7, s[40:43], s26 offen')
        srd_off(k, 40, 8, WS_FL, 1024 * 128)
        k('v_mov_b32 v53, 0')
        k('buffer_store_dword v53, v7, s[40:43], s26 offen')
        npf += 2
    for p in range(4):
        k(f's_waitcnt vmcnt({3-p+npf})')
        for j in range(4):
            w = 16 + 4 * p + j
            k(f'v_lshlrev_b32 v46, 16, v{w}')
            k(f'v_and_b32 v47, 0xffff0000, v{w}')
            op = 'v_mul_f32' if p == 0 else 'v_fmac_f32'
            k(f'{op} v{8+2*j}, v46, v{40+p}')
            k(f'{op} v{9+2*j}, v47, v{40+p}')
    for sh in (4, 8):
        for j in range(8):
            k(f'v_add_f32_dpp v{8+j}, v{8+j}, v{8+j} row_ror:{sh} row_mask:0xf bank_mask:0xf')
    for j in range(0, 8, 2): k(f'v_permlane16_swap_b32 v{8+j}, v{9+j}')
    for j in range(0, 8, 2): k(f'v_add_f32 v{8+j}, v{8+j}, v{9+j}')
    k('s_nop 0')
    k('v_permlane32_swap_b32 v8, v10')
    k('v_permlane32_swap_b32 v12, v14')
    k('v_add_f32 v8, v8, v10')
    k('v_add_f32 v9, v12, v14')
    k('v_and_b32 v1, 63, v0')
    k('v_lshrrev_b32 v3, 4, v1')
    k('v_lshl_add_u32 v3, v2, 3, v3')
    k('v_lshrrev_b32 v4, 6, v0')
    k('v_lshl_add_u32 v3, v4, 5, v3')
    k('v_lshlrev_b32 v3, 2, v3')
    k('ds_write2_b32 v3, v8, v9 offset0:0 offset1:4')
    k('s_waitcnt lgkmcnt(0)')
    k('s_barrier')
    ncol = 32 * (nthreads // 256)
    k(f'v_cmp_gt_u32 vcc, {ncol}, v0')
    k('s_and_saveexec_b64 s[24:25], vcc')
    k(f's_cbranch_execz {Lend}')
    k('v_and_b32 v1, 31, v0')
    k('v_lshrrev_b32 v2, 5, v0')
    k('v_lshlrev_b32 v3, 9, v2')
    k('v_lshl_add_u32 v3, v1, 2, v3')
    k('ds_read2_b32 v[8:9], v3 offset0:0 offset1:32')
    k('ds_read2_b32 v[10:11], v3 offset0:64 offset1:96')
    srd_off(k, 12, 8, WS_MP, 4 * 6144 * 4)
    k('s_mul_i32 s22, s22, 24576')
    k('s_lshl_b32 s21, s20, 7')
    k('s_add_u32 s21, s21, s22')
    k('v_lshlrev_b32 v4, 2, v0')
    k('s_waitcnt lgkmcnt(0)')
    k('v_add_f32 v8, v8, v9')
    k('v_add_f32 v10, v10, v11')
    k('v_add_f32 v8, v8, v10')
    k('buffer_store_dword v8, v4, s[12:15], s21 offen')

def gen_mod(pf=True, wq=0):
    k = Kern('mod_kernel', (512 if wq else 256, 1, 1), (256, 1, 1), 1024, vgpr=64, sgpr=48)
    Lend = k.label('end'); Lg = k.label('pfwg')
    k('s_cmp_ge_u32 s2, 256')
    k(f's_cbranch_scc1 {Lg if wq else Lend}')
    k.stamp(0)
    k(f's_load_dwordx4 s[4:7], s[0:1], {A_C}')
    k(f's_load_dwordx2 s[8:9], s[0:1], {A_WS}')
    if pf: k(f's_load_dwordx2 s[28:29], s[0:1], {A_X}')
    gemv_body(k, 2, 32, 0, 256, Lend)
    npf = 0
    if pf:
        k.srd(28, 28, 4 * MB)
        k('v_lshlrev_b32 v6, 4, v0')
        k('s_lshl_b32 s26, s2, 14')
        for j in range(4):
            k(f'buffer_load_dwordx4 v[48:51], v6, s[28:31], s26 offen ; pf')
            if j < 3: k('s_add_u32 s26, s26, 4096')
        npf = 4
        if CPF:
            k.code_srd(36, 'mod_kernel_end1')
            k('s_lshr_b32 s26, s2, 3')
            k('s_lshl_b32 s26, s26, 12')
            k('buffer_load_dwordx4 v[48:51], v6, s[36:39], s26 offen ; pf')
            npf = 5
    gemv_finish(k, 256, Lend, npf, table=True)
    k.stamp_out(0)
    if wq:
        k('s_endpgm')
        k(f'{Lg}:')
        k('s_cmp_ge_u32 s2, 512')
        k(f's_cbranch_scc1 {Lend}')
        k(f's_load_dwordx2 s[28:29], s[0:1], {A_WQ}')
        k('v_and_b32 v1, 63, v0')
        k('v_lshrrev_b32 v2, 6, v0')
        k('v_lshlrev_b32 v6, 18, v2')
        k('v_lshl_add_u32 v6, v1, 4, v6')
        k('s_and_b32 s32, s2, 7')
        k('s_lshl_b32 s32, s32, 10')
        k('s_bfe_u32 s33, s2, 0x50003')
        k('s_lshl_b32 s33, s33, 13')
        k('s_add_u32 s32, s32, s33')
        k(f's_add_u32 s32, s32, {(1024 - 256*wq)*8192}')
        k('s_waitcnt lgkmcnt(0)')
        k.srd(28, 28, 1024 * 8192)
        for j in range(2 * wq):
            k(f'buffer_load_dwordx4 v[48:51], v6, s[28:31], s32 offen ; pf')
            k(f's_add_u32 s32, s32, {128*8192}')
    k(f'{Lend}:')
    k('s_endpgm')
    return k

def store_porder(k, X_packed, srd, wave, lane):
    P = X_packed
    k(f'v_lshrrev_b32 v5, 2, v{lane}')
    k('v_mul_u32_u24 v5, 528, v5')
    k(f'v_and_b32 v6, 1, v{lane}')
    k('v_lshl_add_u32 v5, v6, 8, v5')
    k(f'v_bfe_u32 v6, v{lane}, 1, 1')
    k('v_lshl_add_u32 v5, v6, 3, v5')
    k(f'v_lshl_add_u32 v5, v{wave}, 4, v5')
    k(f'ds_write_b64 v5, {R2("v", P)}')
    k(f'ds_write_b64 v5, {R2("v", P+2)} offset:128')
    k(f'ds_write_b64 v5, {R2("v", P+4)} offset:{16*528}')
    k(f'ds_write_b64 v5, {R2("v", P+6)} offset:{16*528+128}')
    k('v_lshrrev_b32 v6, 5, v0')
    k('v_and_b32 v7, 31, v0')
    k('v_mul_u32_u24 v5, 528, v6')
    k('v_lshl_add_u32 v5, v7, 4, v5')
    k('v_lshlrev_b32 v6, 17, v6')
    k('v_bfe_u32 v7, v0, 3, 2')
    k('v_lshl_add_u32 v6, v7, 8, v6')
    k('v_and_b32 v7, 7, v0')
    k('v_lshl_add_u32 v6, v7, 4, v6')
    k('s_lshr_b32 s20, s2, 1')
    k('s_lshl_b32 s20, s20, 10')
    k('s_and_b32 s21, s2, 1')
    k('s_lshl_b32 s21, s21, 7')
    k('s_add_u32 s20, s20, s21')
    k(f's_add_u32 s21, s20, {16*131072}')
    k('s_waitcnt lgkmcnt(0)')
    k('s_barrier')
    k(f'ds_read_b128 {R4("v", P)}, v5')
    k(f'ds_read_b128 {R4("v", P+4)}, v5 offset:{16*528}')
    k('s_waitcnt lgkmcnt(1)')
    k(f'buffer_store_dwordx4 {R4("v", P)}, v6, s[{srd}:{srd+3}], s20 offen')
    k('s_waitcnt lgkmcnt(0)')
    k(f'buffer_store_dwordx4 {R4("v", P+4)}, v6, s[{srd}:{srd+3}], s21 offen')

def ln_core_pk(k, X, T, sc):
    t0, t2, C = T, T + 2, T + 8
    k(f'v_pk_add_f32 {R2("v", t0)}, {R2("v", X)}, {R2("v", X+2)}')
    k(f'v_pk_add_f32 {R2("v", t2)}, {R2("v", X+4)}, {R2("v", X+6)}')
    for j in range(8, 16, 4):
        k(f'v_pk_add_f32 {R2("v", t0)}, {R2("v", t0)}, {R2("v", X+j)}')
        k(f'v_pk_add_f32 {R2("v", t2)}, {R2("v", t2)}, {R2("v", X+j+2)}')
    k(f'v_pk_add_f32 {R2("v", t0)}, {R2("v", t0)}, {R2("v", t2)}')
    k(f'v_add_f32 v{t0}, v{t0}, v{t0+1}')
    wave_sum(k, t0, t2)
    k(f'v_mul_f32 v{t0}, s{sc+1}, v{t0}')
    k(f'v_mov_b32 v{t0+1}, v{t0}')
    for j in range(0, 16, 2): k(f'v_pk_add_f32 {R2("v", C+j)}, {R2("v", X+j)}, {R2("v", t0)}')
    k(f'v_pk_mul_f32 {R2("v", t2)}, {R2("v", C)}, {R2("v", C)}')
    k(f'v_pk_mul_f32 {R2("v", T+4)}, {R2("v", C+2)}, {R2("v", C+2)}')
    for j in range(4, 16, 4):
        k(f'v_pk_fma_f32 {R2("v", t2)}, {R2("v", C+j)}, {R2("v", C+j)}, {R2("v", t2)}')
        k(f'v_pk_fma_f32 {R2("v", T+4)}, {R2("v", C+j+2)}, {R2("v", C+j+2)}, {R2("v", T+4)}')
    k(f'v_pk_add_f32 {R2("v", t2)}, {R2("v", t2)}, {R2("v", T+4)}')
    k(f'v_add_f32 v{t2}, v{t2}, v{t2+1}')
    round_pair(k, t0, t0 + 1, T + 4)
    for j in range(0, 16, 2): k(f'v_pk_add_f32 {R2("v", X+j)}, {R2("v", X+j)}, {R2("v", t0)}')
    wave_sum(k, t2, T + 4)
    for j in range(0, 16, 2): k(f'v_cvt_pk_bf16_f32 v{C+j}, v{X+j}, v{X+j+1}')
    k(f'v_mul_f32 v{t2}, s{sc}, v{t2}')
    round_pair(k, t2, t2 + 1, T + 4)
    k(f'v_add_f32 v{t2}, 0x3727c5ac, v{t2}')
    round_pair(k, t2, t2 + 1, T + 4)
    k(f'v_sqrt_f32 v{t2}, v{t2}')
    for j in range(0, 16, 2):
        k(f'v_lshlrev_b32 v{X+j}, 16, v{C+j}')
        k(f'v_and_b32 v{X+j+1}, 0xffff0000, v{C+j}')
    round_pair(k, t2, t2 + 1, T + 4)
    k(f'v_rcp_f32 v{t2}, v{t2}')
    k('s_nop 0')
    k(f'v_mov_b32 v{t2+1}, v{t2}')
    for j in range(0, 16, 2): k(f'v_pk_mul_f32 {R2("v", X+j)}, {R2("v", X+j)}, {R2("v", t2)}')
    round16(k, X, C)

def round16(k, X, C):
    for j in range(0, 16, 2): k(f'v_cvt_pk_bf16_f32 v{C+j}, v{X+j}, v{X+j+1}')
    for j in range(0, 16, 2):
        k(f'v_lshlrev_b32 v{X+j}, 16, v{C+j}')
        k(f'v_and_b32 v{X+j+1}, 0xffff0000, v{C+j}')

def gen_ln1(npf=4):
    MODL = 17408
    k = Kern('ln1_kernel', (512, 1, 1), (512, 1, 1), MODL + 8192, vgpr=96, sgpr=40)
    Lend = k.label('end'); Lg = k.label('gemv')
    k('s_cmp_ge_u32 s2, 256')
    k(f's_cbranch_scc1 {Lg}')
    k.stamp(0)
    k(f's_load_dwordx2 s[4:5], s[0:1], {A_X}')
    k(f's_load_dwordx2 s[8:9], s[0:1], {A_WS}')
    k('v_and_b32 v1, 63, v0')
    k('v_lshrrev_b32 v2, 6, v0')
    k('v_lshlrev_b32 v3, 4, v1')
    k('v_lshl_add_u32 v4, v2, 11, v3')
    k('v_lshlrev_b32 v7, 4, v0')
    k('s_lshl_b32 s20, s2, 14')
    k('s_waitcnt lgkmcnt(0)')
    k.stamp(1)
    k.srd(12, 4, 4 * MB)
    srd_off(k, 16, 8, WS_MP, 4 * 6144 * 4)
    k('buffer_load_dwordx4 v[8:11], v4, s[12:15], s20 offen')
    k('buffer_load_dwordx4 v[12:15], v4, s[12:15], s20 offen offset:1024')
    for p in range(4):
        k(f's_mov_b32 s21, {p*24576}')
        k(f'buffer_load_dwordx4 {R4("v", 16+4*p)}, v7, s[16:19], s21 offen')
    srd_off(k, 24, 8, WS_H, 4 * MB)
    k('s_mov_b32 s22, 0x3a800000')
    k('s_mov_b32 s23, 0xba800000')
    k('s_waitcnt vmcnt(0)')
    k.stamp(2)
    for p in range(1, 4):
        for h in range(2): k(f'v_pk_add_f32 {R2("v", 16+2*h)}, {R2("v", 16+2*h)}, {R2("v", 16+4*p+2*h)}')
    round_pair(k, 16, 17, 20); round_pair(k, 18, 19, 21)
    k('v_cmp_lt_u32 vcc, 255, v0')
    k('s_nop 1')
    k('v_cndmask_b32 v22, 0, 1.0, vcc')
    for j in range(4): k(f'v_add_f32 v{16+j}, v{16+j}, v22')
    round_pair(k, 16, 17, 20); round_pair(k, 18, 19, 21)
    k(f'ds_write_b128 v7, v[16:19] offset:{MODL}')
    X = 32
    unpack8(k, X, 8); unpack8(k, X + 8, 12)
    k('s_waitcnt lgkmcnt(0)')
    k('s_barrier')
    k('v_lshlrev_b32 v5, 5, v1')
    for sec, base in ((1, 64), (0, 48)):
        for h in range(2):
            for q in range(2):
                k(f'ds_read_b128 {R4("v", base + 8*h + 4*q)}, v5 offset:{MODL + sec*4096 + h*2048 + q*16}')
    ln_core_pk(k, X, 8, 22)
    k('s_waitcnt lgkmcnt(0)')
    for j in range(0, 16, 2): k(f'v_pk_mul_f32 {R2("v", X+j)}, {R2("v", X+j)}, {R2("v", 64+j)}')
    round16(k, X, 16)
    for j in range(0, 16, 2): k(f'v_pk_add_f32 {R2("v", X+j)}, {R2("v", X+j)}, {R2("v", 48+j)}')
    for j in range(8): k(f'v_cvt_pk_bf16_f32 v{8+j}, v{X+2*j}, v{X+2*j+1}')
    k.stamp(3)
    store_porder(k, 8, 24, 2, 1)
    k.stamp(4)
    k.stamp_out(1)
    k('s_endpgm')
    k(f'{Lg}:')
    k('s_cmp_ge_u32 s2, 512')
    k(f's_cbranch_scc1 {Lend}')
    k(f's_load_dwordx2 s[28:29], s[0:1], {A_WQ}')
    k('v_and_b32 v1, 63, v0')
    k('v_lshrrev_b32 v2, 6, v0')
    k('v_lshlrev_b32 v6, 18, v2')
    k('v_lshl_add_u32 v6, v1, 4, v6')
    k('s_and_b32 s32, s2, 7')
    k('s_lshl_b32 s32, s32, 10')
    k('s_bfe_u32 s33, s2, 0x50003')
    k('s_lshl_b32 s33, s33, 13')
    k('s_add_u32 s32, s32, s33')
    k('s_waitcnt lgkmcnt(0)')
    k.srd(28, 28, 1024 * 8192)
    for j in range(npf):
        k(f'buffer_load_dwordx4 v[84:87], v6, s[28:31], s32 offen ; pf')
        if j < npf - 1: k(f's_add_u32 s32, s32, {256*8192}')
    k(f'{Lend}:')
    k('s_endpgm')
    return k

def mod_dest(k, sbase, vcol4, vdst, vt):
    k(f'v_and_b32 v{vdst}, 12, v{vcol4}')
    k(f'v_bfe_u32 v{vt}, v{vcol4}, 4, 1')
    k(f'v_lshl_add_u32 v{vdst}, v{vt}, 10, v{vdst}')
    k(f'v_bfe_u32 v{vt}, v{vcol4}, 5, 1')
    k(f'v_lshl_add_u32 v{vdst}, v{vt}, 4, v{vdst}')
    k(f's_and_b32 s{sbase+5}, s2, 31')
    k(f's_lshl_b32 s{sbase+5}, s{sbase+5}, 5')
    k(f's_lshr_b32 s{sbase+6}, s2, 5')
    k(f's_lshl_b32 s{sbase+6}, s{sbase+6}, 11')
    k(f's_add_u32 s{sbase+5}, s{sbase+5}, s{sbase+6}')
    k('s_cmp_ge_u32 s2, 192')
    k(f's_cselect_b32 s{sbase+4}, s{sbase+4}, s{sbase+5}')
    k('s_cselect_b64 vcc, -1, 0')
    k(f's_add_u32 s{sbase+4}, s{sbase+4}, 8192')
    k(f'v_cndmask_b32 v{vdst}, v{vdst}, v{vcol4}, vcc')

def mod_finalize(k, s_ws, sbase, vbase, lane):
    srd_off(k, sbase, s_ws, 0, WS_MP2 + 16 * 16384)
    k(f'v_and_b32 v{vbase}, 15, v{lane}')
    k(f'v_lshlrev_b32 v{vbase}, 2, v{vbase}')
    k(f'v_lshrrev_b32 v{vbase+5}, 4, v{lane}')
    k(f'v_lshl_add_u32 v{vbase+5}, v{vbase+5}, 16, v{vbase}')
    k(f's_lshl_b32 s{sbase+4}, s2, 6')
    for p in range(4):
        k(f's_add_u32 s{sbase+5}, s{sbase+4}, {WS_MP2 + p*16384}')
        k(f'buffer_load_dword v{vbase+1+p}, v{vbase+5}, s[{sbase}:{sbase+3}], s{sbase+5} offen sc1')
    def fin(k=k):
        a = vbase + 1
        k(f'v_add_f32 v{a}, v{a}, v{a+1}')
        k(f'v_add_f32 v{a+2}, v{a+2}, v{a+3}')
        k(f'v_add_f32 v{a}, v{a}, v{a+2}')
        for sw in ('16', '32'):
            k(f'v_mov_b32 v{a+1}, v{a}')
            k('s_nop 1')
            k(f'v_permlane{sw}_swap_b32 v{a}, v{a+1}')
            k(f'v_add_f32 v{a}, v{a}, v{a+1}')
        round_pair(k, a, a + 1, a + 2)
        k(f's_lshr_b32 s{sbase+5}, s2, 6')
        k(f's_cmp_eq_u32 s{sbase+5}, 2')
        k(f's_cselect_b32 s{sbase+5}, 1.0, 0')
        k(f'v_add_f32 v{a}, s{sbase+5}, v{a}')
        round_pair(k, a, a + 1, a + 2)
        mod_dest(k, sbase, vbase, a + 1, a + 2)
        k(f'buffer_store_dword v{a}, v{a+1}, s[{sbase}:{sbase+3}], s{sbase+4} offen sc1')
    return fin

def wave_sum2(k, v, t):
    wave_sum(k, v, t)

def ln_fast(k, X, T, sc):
    t0, t2 = T, T + 2
    k(f'v_pk_add_f32 {R2("v", t0)}, {R2("v", X)}, {R2("v", X+2)}')
    for j in range(4, 16, 2): k(f'v_pk_add_f32 {R2("v", t0)}, {R2("v", t0)}, {R2("v", X+j)}')
    k(f'v_add_f32 v{t0}, v{t0}, v{t0+1}')
    wave_sum(k, t0, t2)
    k(f'v_mul_f32 v{t0}, s{sc+1}, v{t0}')
    k(f'v_mov_b32 v{t0+1}, v{t0}')
    for j in range(0, 16, 2): k(f'v_pk_add_f32 {R2("v", X+j)}, {R2("v", X+j)}, {R2("v", t0)}')
    k(f'v_pk_mul_f32 {R2("v", t0)}, {R2("v", X)}, {R2("v", X)}')
    for j in range(2, 16, 2): k(f'v_pk_fma_f32 {R2("v", t0)}, {R2("v", X+j)}, {R2("v", X+j)}, {R2("v", t0)}')
    k(f'v_add_f32 v{t0}, v{t0}, v{t0+1}')
    wave_sum(k, t0, t2)
    k(f'v_mov_b32 v{t2}, 0x3727c5ac')
    k(f'v_fmac_f32 v{t2}, s{sc}, v{t0}')
    k(f'v_rsq_f32 v{t0}, v{t2}')
    k('s_nop 0')
    k(f'v_mov_b32 v{t0+1}, v{t0}')

def gen_ln2():
    k = Kern('ln2_kernel', (256, 1, 1), (512, 1, 1), 17408 + 16384, vgpr=128, sgpr=40)
    Lend = k.label('end')
    k('s_cmp_ge_u32 s2, 256')
    k(f's_cbranch_scc1 {Lend}')
    k.stamp(0)
    k(f's_load_dwordx2 s[4:5], s[0:1], {A_X}')
    k(f's_load_dwordx2 s[8:9], s[0:1], {A_WS}')
    k('v_and_b32 v1, 63, v0')
    k('v_lshrrev_b32 v2, 6, v0')
    k('v_lshlrev_b32 v3, 4, v1')
    k('v_lshl_add_u32 v4, v2, 11, v3')
    k('s_lshl_b32 s20, s2, 14')
    k(f's_add_u32 s23, s20, {4*MB}')
    k('s_waitcnt lgkmcnt(0)')
    k.stamp(1)
    srd_off(k, 28, 8, WS_P, 8 * MB)
    k('buffer_load_dwordx4 v[16:19], v4, s[28:31], s20 offen')
    k('buffer_load_dwordx4 v[20:23], v4, s[28:31], s20 offen offset:1024')
    k('buffer_load_dwordx4 v[24:27], v4, s[28:31], s23 offen')
    k('buffer_load_dwordx4 v[28:31], v4, s[28:31], s23 offen offset:1024')
    k.srd(12, 4, 4 * MB)
    k('buffer_load_dwordx4 v[8:11], v4, s[12:15], s20 offen')
    k('buffer_load_dwordx4 v[12:15], v4, s[12:15], s20 offen offset:1024')
    srd_off(k, 16, 8, WS_MOD32 + 8192, 12288)
    GA, SB, CB = 80, 96, 112
    MODL = 17408
    k('v_readfirstlane_b32 s21, v2')
    k('s_lshl_b32 s21, s21, 11')
    k(f's_add_u32 m0, s21, {MODL}')
    k('s_nop 2')
    k('buffer_load_dwordx4 v3, s[16:19], s21 offen lds')
    k('buffer_load_dwordx4 v3, s[16:19], s21 offen offset:1024 lds')
    srd_off(k, 24, 8, WS_Y, 4 * MB)
    srd_off(k, 32, 8, WS_X1, 4 * MB)
    k('s_mov_b32 s36, 0x3a800000')
    k('s_mov_b32 s37, 0xba800000')
    X = 32
    k('s_waitcnt vmcnt(4)')
    unpack8(k, 48, 16); unpack8(k, 56, 20); unpack8(k, 64, 24); unpack8(k, 72, 28)
    for j in range(0, 16, 2): k(f'v_pk_add_f32 {R2("v", 48+j)}, {R2("v", 48+j)}, {R2("v", 64+j)}')
    k('s_waitcnt vmcnt(0)')
    k('s_barrier')
    for base, sec in ((GA, 0), (CB, 2), (SB, 1)):
        for h in range(2):
            for q in range(2):
                k(f'ds_read_b128 {R4("v", base + 8*h + 4*q)}, v3 offset:{MODL + sec*4096 + h*2048 + q*1024}')
    unpack8(k, X, 8); unpack8(k, X + 8, 12)
    k('s_waitcnt lgkmcnt(8)')
    k.stamp(2)
    for j in range(0, 16, 2): k(f'v_pk_fma_f32 {R2("v", X+j)}, {R2("v", 48+j)}, {R2("v", GA+j)}, {R2("v", X+j)}')
    for j in range(8): k(f'v_cvt_pk_bf16_f32 v{8+j}, v{X+2*j}, v{X+2*j+1}')
    k('buffer_store_dwordx4 v[8:11], v4, s[32:35], s20 offen')
    k('buffer_store_dwordx4 v[12:15], v4, s[32:35], s20 offen offset:1024')
    T = 16
    ln_fast(k, X, T, 36)
    k('s_waitcnt lgkmcnt(0)')
    for j in range(0, 16, 2): k(f'v_pk_mul_f32 {R2("v", X+j)}, {R2("v", X+j)}, {R2("v", T)}')
    for j in range(0, 16, 2): k(f'v_pk_fma_f32 {R2("v", X+j)}, {R2("v", X+j)}, {R2("v", CB+j)}, {R2("v", SB+j)}')
    ln_fast(k, X, T, 36)
    for j in range(0, 16, 2): k(f'v_pk_mul_f32 {R2("v", X+j)}, {R2("v", X+j)}, {R2("v", T)}')
    for j in range(8): k(f'v_cvt_pk_bf16_f32 v{24+j}, v{X+2*j}, v{X+2*j+1}')
    k.stamp(3)
    store_porder(k, 24, 24, 2, 1)
    k.stamp(4)
    k.stamp_out(4)
    k(f'{Lend}:')
    k('s_endpgm')
    return k
```

```python
import sys
from gen_gk import *
from gen_front import *
from gen_back import publish, await_flags, FSH, sNONCE, ONE

THRESH_LOG2 = 16
P0 = 'p0' in sys.argv
NA_PF = 4
for a in sys.argv:
    if a.startswith('napf='): NA_PF = int(a[5:])

def gen_attn(thresh_log2=THRESH_LOG2, lead=27, E0=58, bias=100, ufl=0x4000, pf=True, sched=(2, [1, 2, 1, 2]), name='attn_kernel', kidx=2, dbg='', excl=True, split2=True, wqpf=0, then=None, ln1=False):
    k = Kern(name, (256, 1, 1), (256, 1, 1), 160 * 1024, vgpr=256, agpr=256, sgpr=102)
    Lend = k.label('end')
    k('s_cmp_ge_u32 s2, 256')
    k(f's_cbranch_scc1 {Lend}')
    k.stamp(0)
    k(f's_load_dwordx4 s[4:7], s[0:1], {A_K}')
    k(f's_load_dwordx2 s[8:9], s[0:1], {A_WQ}')
    k(f's_load_dwordx2 s[10:11], s[0:1], {A_WS}')
    k(f's_load_dwordx2 s[32:33], s[0:1], {A_WO}')
    k(f's_load_dwordx2 s[36:37], s[0:1], {A_W1}')
    k(f's_load_dwordx2 s[60:61], s[0:1], {A_W2}')
    k(f's_load_dwordx2 s[64:65], s[0:1], {A_WMOD}')
    if ln1: k(f's_load_dwordx2 s[20:21], s[0:1], {A_X}')
    front = ln1 and ONE
    if front: k(f's_load_dwordx2 s[68:69], s[0:1], {A_C}')
    Lloop = k.label('loop'); Ltail = k.label('tail'); Lslow = k.label('slow'); Lepi = k.label('epi'); Lstart2 = k.label('st2')
    vKA, vVA, vKD, vVD = 8, 12, 20, 24
    tmp = 26
    vL = 32; vTA2 = 32; vWD = 40; vX = 44
    vQ, vS, vP, vNM, vE, vONE, vT = 64, 128, 192, 224, 240, 248, 252
    aO, aF = 0, 128
    sHEAD, sQT, sWAVE, sMB0, sW, sX, sM0, sK, sV, sCNT, sTH, sFIRST = 40, 41, 44, 47, 50, 51, 52, 53, 54, 55, 57, 58
    k('v_and_b32 v1, 63, v0')
    k('v_lshrrev_b32 v2, 6, v0')
    k('s_and_b32 s42, s2, 7')
    k(f'v_readfirstlane_b32 s{sWAVE}, v2')
    k('s_lshl_b32 s42, s42, 2')
    k('s_bfe_u32 s43, s2, 0x20003')
    k(f's_add_u32 s{sHEAD}, s42, s43')
    k(f's_lshr_b32 s{sQT}, s2, 5')
    XR, PR = 64, 80
    GW, GC, GACC = 208, 224, 232
    if ln1:
        k(f's_lshl_b32 s{sM0}, s{sWAVE}, 12')
        k(f'v_lshl_add_u32 v5, v1, 4, s{sM0}')
        k('v_lshlrev_b32 v6, 4, v0')
        k('s_lshl_b32 s48, s2, 14')
    if front:
        k('v_lshrrev_b32 v7, 1, v0')
        k('v_mul_u32_u24 v3, 12288, v7')
        k('v_and_b32 v4, 1, v0')
        k('v_lshl_add_u32 v3, v4, 4, v3')
        k('v_lshlrev_b32 v7, 1, v7')
        k('s_bfe_u32 s54, s2, 0x10003')
        k('s_and_b32 s55, s2, 7')
        k('s_lshl_b32 s55, s55, 4')
        k('s_lshr_b32 s56, s2, 4')
        k('s_add_u32 s55, s55, s56')
        k(f's_mul_i32 s56, s54, {512*12288}')
        k('s_lshl_b32 s57, s55, 5')
        k('s_add_u32 s56, s56, s57')
        k('s_lshl_b32 s57, s54, 10')
        k('s_lshl_b32 s58, s2, 2')
        k(f's_add_u32 s58, s58, s{sWAVE}')
        k('s_and_b32 s59, s58, 15')
        k('s_lshl_b32 s59, s59, 7')
        k(f'v_lshlrev_b32 v{tmp}, 1, v1')
        k.code_srd(28, Lstart2)
        k('s_lshr_b32 s49, s2, 3')
        k('s_lshl_b32 s49, s49, 12')
        k('buffer_load_dwordx4 a[0:3], v6, s[28:31], s49 offen ; pf')
        k('v_and_b32 v8, 15, v1')
        k('v_lshlrev_b32 v8, 2, v8')
        k('s_lshl_b32 s74, s2, 6')
        mod_dest(k, 70, 8, 9, 10)
        k('v_mov_b32 v10, -1')
        k('s_waitcnt lgkmcnt(0)')
        k(f'{Lstart2}:')
        k(f's_load_dword s{sNONCE}, s[10:11], {WS_NONCE}')
        k.srd(64, 64, 1024 * 12288)
        k.srd(68, 68, 2048)
        srd_off(k, 24, 10, 0, 1 * MB)
        k('buffer_store_dword v10, v9, s[24:27], s74 offen sc1')
        k('v_and_b32 v10, 3, v1')
        k('v_lshlrev_b32 v10, 7, v10')
        k('s_lshl_b32 s75, s2, 9')
        k(f's_add_u32 s75, s75, {WS_FL}')
        k('buffer_load_dword a0, v10, s[24:27], s75 offen ; pf')
        k('s_lshl_b32 s75, s2, 7')
        k(f's_add_u32 s75, s75, {WS_MP}')
        k('buffer_load_dword a0, v8, s[24:27], s75 offen ; pf')
        for p in range(4): k(f'buffer_load_ushort v{GC+p}, v7, s[68:71], s57 offen offset:{p*256}')
        k(f'buffer_load_ushort v{GC+4}, v{tmp}, s[68:71], s59 offen')
        for p in range(4):
            k(f'buffer_load_dwordx4 {R4("v", GW+4*p)}, v3, s[64:67], s56 offen')
            if p < 3: k(f's_add_u32 s56, s56, {128*12288}')
        k.srd(20, 20, 4 * MB)
        for j in range(4): k(f'buffer_load_dwordx4 {R4("v", XR + 4*j)}, v5, s[20:23], s48 offen offset:{j*1024}')
    elif ln1:
        k('s_waitcnt lgkmcnt(0)')
        k.srd(20, 20, 4 * MB)
        srd_off(k, 24, 10, WS_MP, 4 * 6144 * 4)
        for p in range(4):
            for sec in range(2):
                k(f's_mov_b32 s49, {p*24576 + sec*4096}')
                k(f'buffer_load_dwordx4 {R4("v", PR + 8*p + 4*sec)}, v6, s[24:27], s49 offen')
        for j in range(4): k(f'buffer_load_dwordx4 {R4("v", XR + 4*j)}, v5, s[20:23], s48 offen offset:{j*1024}')
    wd = wdma_regs(k, vWD, 256, 8192, 16, tmp, 1, sWAVE)
    k(f's_lshl_b32 s{sMB0}, s{sQT}, 4')
    k(f's_lshl_b32 s48, s{sWAVE}, 2')
    k(f's_add_u32 s{sMB0}, s{sMB0}, s48')
    k(f's_lshl_b32 s48, s{sMB0}, 10')
    k(f'v_lshl_add_u32 v{vX}, v1, 4, s48')
    k(f'v_add_u32 v{vX+1}, 0x20000, v{vX}')
    k(f's_lshl_b32 s{sW}, s{sHEAD}, 8')
    k(f's_mov_b32 s{sX}, 0')
    k(f's_lshl_b32 s{sM0}, s{sWAVE}, 12')
    k('s_waitcnt lgkmcnt(0)')
    k.srd(12, 8, 1024 * 8192)
    srd_off(k, 16, 10, WS_H, 4 * MB)
    S = 6
    SL = lambda i: i * 16384
    stage_off = [SL(6), SL(7), SL(8), SL(9), SL(4), SL(5)]
    bbase = {4: 0, 5: 32, 0: 64, 1: 96, 2: 128, 3: 160}
    def kdma(slot):
        return [[f's_add_u32 m0, s{sM0}, {SL(slot)}'], ['s_nop 0']] + \
               [[f'buffer_load_dwordx4 v{vKD+n}, s[20:23], s{sK} offen offset:{n*1024} lds'] for n in range(4)] + \
               [[f's_add_u32 s{sK}, s{sK}, 16384']]
    def vdma(slot):
        return [[f's_add_u32 m0, s{sM0}, {SL(4+slot)}'], ['s_nop 0']] + \
               [[f'buffer_load_dwordx4 v{vVD+(n&1)}, s[24:27], s{sV} offen offset:{n*1024} lds'] for n in range(4)] + \
               [[f's_add_u32 s{sV}, s{sV}, 16384']]
    def zero(base):
        return [[f'v_accvgpr_write_b32 a{base+i}, 0'] for i in range(32)]
    def extra(t):
        if t == 10: return [[x] for x in gld]
        if t == 11: return kdma(0) + kdma(1) + vdma(0) + zero(0)
        if t == 12: return kdma(2) + vdma(1) + zero(32)
        if t == 13: return kdma(3) + vdma(2) + zero(64)
        if t == 14: return zero(96)
        return []
    def extra_p(t):
        return {12: 12, 13: 20, 14: 28}.get(t, 0)
    acc0 = 128
    g = Gemm(k, 8, 4, 256, S, 4, 8, 16,
             acc=lambda a, b: R4('v', acc0 + (a * 4 + b) * 4),
             aring=lambda s: ('a', 192 + 4 * s),
             bring=lambda st, ks, b: R4('a', bbase[st] + (ks * 4 + b) * 4),
             vA=[None, [vVA + a for a in range(8)], [vTA2 + a for a in range(8)]], lds_base=0,
             srdW=12, sW=sW, wpitch=8192, wdma=wd, sM0=sM0, srdX=16, sX=sX, vX=[vX, vX + 1],
             extra_loads=extra, stage_off=stage_off)
    def zip_streams(streams):
        for a, b in zip(*streams):
            if a == 's_nop 1': k('s_nop 0'); continue
            if a == 's_nop 0': continue
            if a.startswith('s_waitcnt'): k(a); continue
            k(a); k(b)
    if front:
        g.pre_w = True; g.xmod = ' sc1'
        MODL = 32768; XX = [128, 144]; SA, C1 = 96, 112
        k(f's_add_u32 s{sNONCE}, s{sNONCE}, 1')
        srd_off(k, 28, 10, WS_FL, 1024 << FSH)
        k('s_mov_b32 s49, 0xbfb8aa3b')
        k(f's_and_b32 s62, s{sQT}, 3')
        k(f's_mul_i32 s62, s62, {4*8192}')
        k(f's_lshr_b32 s45, s{sQT}, 2')
        k(f's_mul_i32 s45, s45, {64*8192}')
        k('s_add_u32 s62, s62, s45')
        k(f's_add_u32 s62, s62, s{sW}')
        k('s_waitcnt vmcnt(8)')
        T5 = GACC + 8
        for p in range(5): k(f'v_lshlrev_b32 v{GC+p}, 16, v{GC+p}')
        for p in range(5): k(f'v_mul_f32 v{T5+p}, s49, v{GC+p}')
        for p in range(5): k(f'v_exp_f32 v{T5+p}, v{T5+p}')
        for p in range(5): k(f'v_add_f32 v{T5+p}, 1.0, v{T5+p}')
        for p in range(5): k(f'v_rcp_f32 v{T5+p}, v{T5+p}')
        for p in range(5): k(f'v_mul_f32 v{GC+p}, v{GC+p}, v{T5+p}')
        for p in range(0, 6, 2): round_pair(k, GC + p, GC + p + 1, T5 + p)
        for p in range(4):
            k(f's_waitcnt vmcnt({7-p})')
            for j in range(4):
                w = GW + 4 * p + j
                k(f'v_lshlrev_b32 v{T5}, 16, v{w}')
                k(f'v_and_b32 v{T5+1}, 0xffff0000, v{w}')
                op = 'v_mul_f32' if p == 0 else 'v_fmac_f32'
                k(f'{op} v{GACC+2*j}, v{T5}, v{GC+p}')
                k(f'{op} v{GACC+2*j+1}, v{T5+1}, v{GC+p}')
        for dp in ('quad_perm:[2,3,0,1]', 'row_ror:4', 'row_ror:8'):
            for j in range(8): k(f'v_add_f32_dpp v{GACC+j}, v{GACC+j}, v{GACC+j} {dp} row_mask:0xf bank_mask:0xf')
        for j in range(0, 8, 2): k(f'v_permlane16_swap_b32 v{GACC+j}, v{GACC+j+1}')
        for j in range(0, 8, 2): k(f'v_add_f32 v{GACC+j}, v{GACC+j}, v{GACC+j+1}')
        k('v_lshrrev_b32 v3, 4, v1')
        k(f'v_permlane32_swap_b32 v{GACC}, v{GACC+2}')
        k(f'v_permlane32_swap_b32 v{GACC+4}, v{GACC+6}')
        k(f'v_add_f32 v{GACC}, v{GACC}, v{GACC+2}')
        k(f'v_add_f32 v{GACC+1}, v{GACC+4}, v{GACC+6}')
        k('v_lshl_add_u32 v3, v4, 3, v3')
        k('v_lshl_add_u32 v3, v2, 4, v3')
        k('v_lshlrev_b32 v3, 2, v3')
        k(f'ds_write2_b32 v3, v{GACC}, v{GACC+1} offset0:0 offset1:4')
        k('s_lshl_b32 s58, s58, 8')
        k(f's_add_u32 s58, s58, {WS_SCP}')
        k('v_lshlrev_b32 v7, 2, v1')
        k(f'buffer_store_dword v{GC+4}, v7, s[24:27], s58 offen')
        k('s_waitcnt lgkmcnt(0)')
        k('s_barrier')
        Lw = k.label('w0'); Lpf = k.label('pfw'); Lj = k.label('fj')
        k(f's_cmp_ge_u32 s{sWAVE}, 2')
        k(f's_cbranch_scc1 {Lpf}')
        k(f's_cmp_lg_u32 s{sWAVE}, 0')
        k(f's_cbranch_scc1 {Lj}')
        k(f'ds_read2_b32 v[{GACC}:{GACC+1}], v8 offset0:0 offset1:16')
        k(f'ds_read2_b32 v[{GACC+2}:{GACC+3}], v8 offset0:32 offset1:48')
        k('s_lshl_b32 s54, s54, 14')
        k('s_lshl_b32 s55, s55, 7')
        k('s_add_u32 s54, s54, s55')
        k(f's_add_u32 s54, s54, {WS_MP}')
        k('v_lshlrev_b32 v9, 1, v8')
        k('s_waitcnt lgkmcnt(0)')
        k(f'v_add_f32 v{GACC}, v{GACC}, v{GACC+1}')
        k(f'v_add_f32 v{GACC+2}, v{GACC+2}, v{GACC+3}')
        k(f'v_add_f32 v{GACC}, v{GACC}, v{GACC+2}')
        k(f'v_mov_b32 v{GACC+1}, s{sNONCE}')
        k(f'buffer_store_dwordx2 v[{GACC}:{GACC+1}], v9, s[24:27], s54 offen sc1')
        k(f's_branch {Lj}')
        k(f'{Lpf}:')
        k('s_waitcnt vmcnt(1)')
        k('s_mov_b32 s48, s62')
        k(f'v_subrev_u32 v9, {32*8192}, v{vWD}')
        for j in range(NA_PF):
            k(f'buffer_load_dwordx4 a[0:3], v9, s[12:15], s48 offen ; pf')
            k(f'buffer_load_dwordx4 a[0:3], v{vWD}, s[12:15], s48 offen ; pf')
            k(f's_add_u32 s48, s48, {128*8192}')
        k(f's_branch {Lw}')
        k(f'{Lj}:')
        k('s_waitcnt vmcnt(1)')
        k(f'{Lw}:')
        if P0: k.stamp(1)
        k('s_mov_b32 s56, 0x3a800000')
        k('s_mov_b32 s57, 0xba800000')
        for r in range(2):
            unpack8(k, XX[r], XR + 8 * r); unpack8(k, XX[r] + 8, XR + 8 * r + 4)
        streams = []
        for r in range(2):
            q = Kern('rec', None, None, 0, 0)
            ln_core_pk(q, XX[r], 160 + 24 * r, 56)
            streams.append(q.lines)
        zip_streams(streams)
        Lg = k.label('gat'); Lgd = k.label('gatd')
        k(f's_cmp_ge_u32 s{sWAVE}, 2')
        k(f's_cbranch_scc1 {Lgd}')
        PG = 160
        k('s_mov_b32 s53, 0x80000')
        k(f'{Lg}:')
        for hs in range(2):
            for i in range(8):
                if i % 2 == 0: k(f's_mov_b32 s49, {WS_MP + hs*16384 + i*2048}')
                k(f'buffer_load_dwordx4 {R4("v", PG + 32*hs + 4*i)}, v6, s[24:27], s49 offen offset:{(i&1)*2048} sc1')
        k('s_sub_u32 s53, s53, 1')
        k('s_cselect_b64 s[58:59], 0, -1')
        k('s_waitcnt vmcnt(0)')
        tags = [PG + 2 * j + 1 for j in range(32)]
        k(f'v_min3_u32 v3, v{tags[0]}, v{tags[1]}, v{tags[2]}')
        k(f'v_max3_u32 v4, v{tags[0]}, v{tags[1]}, v{tags[2]}')
        for j in range(3, 31, 2):
            k(f'v_min3_u32 v3, v3, v{tags[j]}, v{tags[j+1]}')
            k(f'v_max3_u32 v4, v4, v{tags[j]}, v{tags[j+1]}')
        k(f'v_min_u32 v3, v3, v{tags[31]}')
        k(f'v_max_u32 v4, v4, v{tags[31]}')
        k(f'v_xor_b32 v3, s{sNONCE}, v3')
        k(f'v_xor_b32 v4, s{sNONCE}, v4')
        k('v_or_b32 v3, v3, v4')
        k('v_cmp_ne_u32 vcc, 0, v3')
        k('s_and_b64 vcc, vcc, s[58:59]')
        k(f's_cbranch_vccnz {Lg}')
        k('v_bfe_u32 v3, v0, 1, 1')
        k('v_lshlrev_b32 v3, 10, v3')
        k('v_lshrrev_b32 v4, 2, v0')
        k('v_lshl_add_u32 v3, v4, 4, v3')
        k('v_and_b32 v4, 1, v0')
        k('v_lshl_add_u32 v3, v4, 3, v3')
        for i in range(8):
            a = PG + 4 * i
            k(f'v_add_f32 v{a}, v{a}, v{a+32}')
            k(f'v_add_f32 v{a+1}, v{a+2}, v{a+34}')
            round_pair(k, a, a + 1, a + 2)
            if i >= 4:
                k(f'v_add_f32 v{a}, 1.0, v{a}'); k(f'v_add_f32 v{a+1}, 1.0, v{a+1}')
                round_pair(k, a, a + 1, a + 2)
            k(f'ds_write_b64 v3, {R2("v", a)} offset:{MODL + (i>>1)*2048 + (i&1)*512}')
        k(f'{Lgd}:')
        k('v_lshlrev_b32 v3, 4, v1')
        k('s_waitcnt lgkmcnt(0)')
        k('s_barrier')
        if P0: k.stamp(2)
        for base, sec in ((C1, 1), (SA, 0)):
            for h in range(2):
                for q in range(2):
                    k(f'ds_read_b128 {R4("v", base + 8*h + 4*q)}, v3 offset:{MODL + sec*4096 + h*2048 + q*1024}')
        k('s_waitcnt lgkmcnt(4)')
        streams = []
        for r in range(2):
            q = Kern('rec', None, None, 0, 0)
            x = XX[r]; T = 160 + 24 * r
            for j in range(0, 16, 2): q(f'v_pk_mul_f32 {R2("v", x+j)}, {R2("v", x+j)}, {R2("v", C1+j)}')
            round16(q, x, T + 8)
            q('s_waitcnt lgkmcnt(0)')
            for j in range(0, 16, 2): q(f'v_pk_add_f32 {R2("v", x+j)}, {R2("v", x+j)}, {R2("v", SA+j)}')
            for j in range(8): q(f'v_cvt_pk_bf16_f32 v{XR+8*r+j}, v{x+2*j}, v{x+2*j+1}')
            streams.append(q.lines)
        zip_streams(streams)
    if ln1 and not front:
        g.pre_w = True; g.xmod = ' sc1'
        k(f's_and_b32 s48, s{sQT}, 3')
        k(f's_mul_i32 s48, s48, {4*8192}')
        k(f's_lshr_b32 s45, s{sQT}, 2')
        k(f's_mul_i32 s45, s45, {64*8192}')
        k('s_add_u32 s48, s48, s45')
        k(f's_add_u32 s48, s48, s{sW}')
        for j in range(8):
            k(f'buffer_load_dwordx4 a[0:3], v{vWD}, s[12:15], s48 offen ; pf')
            k(f's_add_u32 s48, s48, {128*8192}')
        srd_off(k, 28, 10, WS_FL, 1024 << FSH)
        MODL = 32768
        k('s_waitcnt vmcnt(12)')
        for p in range(1, 4):
            for h in range(4): k(f'v_pk_add_f32 {R2("v", PR+2*h)}, {R2("v", PR+2*h)}, {R2("v", PR+8*p+2*h)}')
        for h in range(4): round_pair(k, PR + 2 * h, PR + 2 * h + 1, PR + 8 + h)
        for j in range(4): k(f'v_add_f32 v{PR+4+j}, 1.0, v{PR+4+j}')
        for h in range(2, 4): round_pair(k, PR + 2 * h, PR + 2 * h + 1, PR + 8 + h)
        k('v_lshrrev_b32 v6, 7, v0')
        k('v_lshlrev_b32 v6, 11, v6')
        k('v_and_b32 v7, 1, v0')
        k('v_lshl_add_u32 v6, v7, 10, v6')
        k('v_bfe_u32 v7, v0, 1, 6')
        k('v_lshl_add_u32 v6, v7, 4, v6')
        k(f'ds_write_b128 v6, {R4("v", PR)} offset:{MODL}')
        k(f'ds_write_b128 v6, {R4("v", PR+4)} offset:{MODL+4096}')
        k('s_mov_b32 s56, 0x3a800000')
        k('s_mov_b32 s57, 0xba800000')
        k('v_lshlrev_b32 v3, 4, v1')
        XX = [128, 144]; SA, C1 = 96, 112
        k('s_waitcnt vmcnt(8)')
        if P0: k.stamp(1)
        for r in range(2):
            unpack8(k, XX[r], XR + 8 * r); unpack8(k, XX[r] + 8, XR + 8 * r + 4)
        k('s_waitcnt lgkmcnt(0)')
        k('s_barrier')
        for base, sec in ((C1, 1), (SA, 0)):
            for h in range(2):
                for q in range(2):
                    k(f'ds_read_b128 {R4("v", base + 8*h + 4*q)}, v3 offset:{MODL + sec*4096 + h*2048 + q*1024}')
        streams = []
        for r in range(2):
            q = Kern('rec', None, None, 0, 0)
            x = XX[r]; T = 160 + 24 * r
            ln_core_pk(q, x, T, 56)
            q('s_waitcnt lgkmcnt(0)')
            for j in range(0, 16, 2): q(f'v_pk_mul_f32 {R2("v", x+j)}, {R2("v", x+j)}, {R2("v", C1+j)}')
            round16(q, x, T + 8)
            for j in range(0, 16, 2): q(f'v_pk_add_f32 {R2("v", x+j)}, {R2("v", x+j)}, {R2("v", SA+j)}')
            for j in range(8): q(f'v_cvt_pk_bf16_f32 v{XR+8*r+j}, v{x+2*j}, v{x+2*j+1}')
            streams.append(q.lines)
        for a, b in zip(*streams):
            if a == 's_nop 1': k('s_nop 0'); continue
            if a == 's_nop 0': continue
            if a.startswith('s_waitcnt'): k(a); continue
            k(a); k(b)
    if ln1:
        k('v_lshrrev_b32 v5, 2, v1')
        k('v_mul_u32_u24 v5, 528, v5')
        k('v_and_b32 v6, 1, v1')
        k('v_lshl_add_u32 v5, v6, 8, v5')
        k('v_bfe_u32 v6, v1, 1, 1')
        k('v_lshl_add_u32 v5, v6, 3, v5')
        k('v_lshl_add_u32 v5, v2, 5, v5')
        for r in range(2):
            P = XR + 8 * r
            k(f'ds_write_b64 v5, {R2("v", P)} offset:{16*r}')
            k(f'ds_write_b64 v5, {R2("v", P+2)} offset:{16*r+128}')
            k(f'ds_write_b64 v5, {R2("v", P+4)} offset:{16*r+16*528}')
            k(f'ds_write_b64 v5, {R2("v", P+6)} offset:{16*r+16*528+128}')
        k('v_lshrrev_b32 v6, 5, v0')
        k('v_and_b32 v7, 31, v0')
        k('v_mul_u32_u24 v5, 528, v6')
        k('v_lshl_add_u32 v5, v7, 4, v5')
        k('v_lshlrev_b32 v6, 17, v6')
        k('v_bfe_u32 v7, v0, 3, 2')
        k('v_lshl_add_u32 v6, v7, 8, v6')
        k('v_and_b32 v7, 7, v0')
        k('v_lshl_add_u32 v6, v7, 4, v6')
        k('s_lshr_b32 s48, s2, 1')
        k('s_lshl_b32 s48, s48, 10')
        k('s_and_b32 s49, s2, 1')
        k('s_lshl_b32 s49, s49, 7')
        k('s_add_u32 s48, s48, s49')
        k('s_waitcnt lgkmcnt(0)')
        k('s_barrier')
        for j in range(4): k(f'ds_read_b128 {R4("v", PR+4*j)}, v5 offset:{8*528*j}')
        for j in range(4):
            k(f's_waitcnt lgkmcnt({3-j})')
            k(f'buffer_store_dwordx4 {R4("v", PR+4*j)}, v6, s[16:19], s48 offen sc1')
            if j < 3: k(f's_add_u32 s48, s48, {8*131072}')
        k(f's_lshl_b32 s48, s2, {FSH}')
        k(f's_add_u32 s48, s48, {768 << FSH}')
        k(f's_lshl_b32 s49, s{sQT}, {5+FSH}')
        k(f's_add_u32 s49, s49, {768 << FSH}')
        publish(k, 48, srd=28)
        if P0: k.stamp(3)
        for x in g.wpreload(): k(x)
        await_flags(k, 49, 32, srd=28)
        if P0: k.stamp(4)
        sched = (3, [2])
    g.make_sched(*sched)
    g.prologue_loads()
    if front:
        for j in range(NA_PF, 8):
            k(f's_add_u32 s48, s62, {j*128*8192}')
            k(f'buffer_load_dwordx4 v[64:67], v{vWD}, s[12:15], s48 offen ; pf')
            g.vq.append('pf')
    tr_addr_regs(k, vVA, 8, 256, tmp, 1, add=0x10000)
    for a in range(8): k(f'v_add_u32 v{vTA2+a}, 0x10000, v{vVA+a}')
    k(f'v_and_b32 v{tmp}, 15, v1')
    k(f'v_lshrrev_b32 v{tmp+1}, 4, v1')
    k(f'v_xor_b32 v{tmp+2}, v{tmp}, v{tmp+1}')
    k(f'v_lshlrev_b32 v{tmp+3}, 8, v{tmp}')
    for ds in range(4):
        k(f'v_xor_b32 v{tmp+4}, {4*ds}, v{tmp+2}')
        k(f'v_lshl_add_u32 v{vKA+ds}, v{tmp+4}, 4, v{tmp+3}')
    k(f'v_lshlrev_b32 v{tmp+3}, 8, v{tmp+1}')
    k(f'v_add_u32 v{tmp+3}, s{sM0}, v{tmp+3}')
    for n in range(4):
        k(f'v_xor_b32 v{tmp+4}, {4*n}, v{tmp+2}')
        k(f'v_lshl_add_u32 v{vKD+n}, v{tmp+4}, 4, v{tmp+3}')
    k(f'v_lshlrev_b32 v{tmp+4}, 1, v{tmp+1}')
    k(f'v_xor_b32 v{tmp+4}, v{tmp+4}, v{tmp}')
    k(f'v_lshl_add_u32 v{vVD}, v{tmp+4}, 4, v{tmp+3}')
    k(f'v_xor_b32 v{tmp+4}, 8, v{tmp+4}')
    k(f'v_lshl_add_u32 v{vVD+1}, v{tmp+4}, 4, v{tmp+3}')
    k(f's_lshl_b32 s48, s{sHEAD}, 19')
    srd_off(k, 20, 4, 's48', 524288)
    srd_off(k, 24, 6, 's48', 524288)
    srd_off(k, 28, 10, WS_O, 16 * MB)
    k(f's_mov_b32 s{sK}, 0')
    k(f's_mov_b32 s{sV}, 0')
    k.srd(32, 32, 4096 * 2048); k.srd(36, 36, 1024 * 7168); k.srd(60, 60, 3584 * 2048)
    sPF, sST0, sST2, sL1, sXB = 59, 56, 49, 46, 41
    vPF, vD0, vD2, vS1, vD1, vN1, vJ1 = 7, 54, 55, 56, 57, 58, 59
    srd_off(k, 72, 10, WS_WO, 36 * MB)
    k(f's_mov_b32 s{sPF}, 0')
    k(f's_mov_b32 s{sL1}, 0')
    k(f's_mov_b32 s{sST0}, 0x70000000')
    k(f's_mov_b32 s{sST2}, 0x70000000')
    k('s_lshl_b32 s48, s2, 12')
    k(f'v_lshl_add_u32 v{vPF}, v0, 4, s48')
    k(f's_lshl_b32 s42, s2, 2')
    k(f's_add_u32 s42, s42, s{sWAVE}')
    k('s_lshr_b32 s43, s42, 1')
    k('s_and_b32 s45, s42, 1')
    k('s_and_b32 s48, s43, 7')
    k('s_lshl_b32 s48, s48, 1')
    k(f'v_xor_b32 v{tmp+4}, s48, v{tmp}')
    k(f'v_lshlrev_b32 v{tmp+4}, 4, v{tmp+4}')
    k(f'v_lshl_add_u32 v{vD0}, v{tmp+1}, 20, v{tmp+4}')
    k('s_lshl_b32 s48, s45, 22')
    k('s_lshl_b32 s62, s43, 8')
    k('s_add_u32 s48, s48, s62')
    k(f'v_add_u32 v{vD0}, s48, v{vD0}')
    if split2:
        k(f'v_mul_u32_u24 v{tmp+5}, {3584*256}, v{tmp+1}')
        k(f'v_add_u32 v{vD2}, v{tmp+4}, v{tmp+5}')
        k(f's_mul_i32 s48, s45, {4*3584*256}')
        k('s_add_u32 s48, s48, s62')
        k(f's_add_u32 s48, s48, {WS_W2 - WS_WO}')
        k(f'v_add_u32 v{vD2}, s48, v{vD2}')
        k(f's_mov_b32 s{sXB}, {WS_XB - WS_WO}')
    else:
        k('s_bfe_u32 s48, s43, 0x20001')
        k('s_lshl_b32 s48, s48, 1')
        k(f'v_and_b32 v{tmp+4}, 7, v1')
        k(f'v_xor_b32 v{tmp+4}, s48, v{tmp+4}')
        k(f'v_lshrrev_b32 v{tmp+5}, 3, v1')
        k(f'v_mul_u32_u24 v{tmp+5}, {3584*128}, v{tmp+5}')
        k(f'v_lshl_add_u32 v{vD2}, v{tmp+4}, 4, v{tmp+5}')
        k(f's_mul_i32 s48, s45, {8*3584*128}')
        k('s_lshl_b32 s62, s43, 7')
        k('s_add_u32 s48, s48, s62')
        k(f's_add_u32 s48, s48, {WS_W2 - WS_WO}')
        k(f'v_add_u32 v{vD2}, s48, v{vD2}')
    k('s_mul_i32 s48, s42, 7168')
    k(f'v_lshl_add_u32 v{vS1}, v1, 4, s48')
    k(f'v_mul_u32_u24 v{tmp+4}, 74, v1')
    k(f'v_lshrrev_b32 v{tmp+4}, 10, v{tmp+4}')
    k(f'v_mul_u32_u24 v{tmp+5}, 14, v{tmp+4}')
    k(f'v_sub_u32 v{vJ1}, v1, v{tmp+5}')
    k(f'v_mul_u32_u24 v{tmp+4}, {1024*224}, v{tmp+4}')
    k(f'v_lshl_add_u32 v{vN1}, v{vJ1}, 4, v{tmp+4}')
    k('s_mul_i32 s48, s42, 224')
    k(f's_add_u32 s48, s48, {WS_W1 - WS_WO}')
    k(f'v_add_u32 v{vN1}, s48, v{vN1}')
    k(f'v_mov_b32 v{vD1}, 0x70000000')
    k(f'v_mov_b32 v60, {1024*224 - 224}')
    k('s_mov_b32 s62, 3584 * 2048')
    GA = [48, 49, 50, 51, 52, 53, 63, 2]; vGW, vGS, vGT0, vGT1, vGA, vGB = 28, 27, 26, 3, 4, 5
    sGW, sGS = 76, 77
    if not front: k.srd(64, 64, 1024 * 12288)
    srd_off(k, 68, 10, 0, 1 * MB)
    k(f'v_lshrrev_b32 v{vGB}, 3, v1')
    k(f'v_mul_u32_u24 v{vGA}, 12288, v{vGB}')
    k(f'v_and_b32 v{vGT1}, 7, v1')
    k(f'v_lshl_add_u32 v{vGA}, v{vGT1}, 4, v{vGA}')
    k(f'v_lshlrev_b32 v{vGB}, 2, v{vGB}')
    k('s_and_b32 s48, s42, 15')
    k(f's_mul_i32 s{sGW}, s48, {64*12288}')
    k('s_lshr_b32 s43, s2, 2')
    k('s_lshl_b32 s45, s43, 7')
    k(f's_add_u32 s{sGW}, s{sGW}, s45')
    k(f's_add_u32 s{sGW}, s{sGW}, 4096')
    k(f's_lshl_b32 s{sGS}, s{42 if front else 48}, 8')
    k(f's_add_u32 s{sGS}, s{sGS}, {WS_SCP if front else WS_SC}')
    k('s_lshl_b32 s48, s48, 14')
    k('s_lshl_b32 s43, s43, 8')
    k('s_add_u32 s43, s43, s48')
    k(f's_add_u32 s43, s43, {WS_MP2}')
    for r in GA: k(f'v_mov_b32 v{r}, 0')
    k.code_srd(4, Ltail)
    k('s_lshr_b32 s8, s2, 3')
    k('s_lshl_b32 s8, s8, 12')
    k('v_lshlrev_b32 v6, 4, v0')
    gld = [f'buffer_load_dwordx4 {R4("v", vGW)}, v{vGA}, s[64:67], s{sGW} offen',
           f'buffer_load_dword v{vGS}, v{vGB}, s[68:71], s{sGS} offen',
           f's_add_u32 s{sGW}, s{sGW}, {8*12288}', f's_add_u32 s{sGS}, s{sGS}, 32']
    gfma = []
    for j in range(4):
        gfma += [f'v_lshlrev_b32 v{vGT0}, 16, v{vGW+j}', f'v_and_b32 v{vGT1}, 0xffff0000, v{vGW+j}',
                 f'v_fmac_f32 v{GA[2*j]}, v{vGT0}, v{vGS}', f'v_fmac_f32 v{GA[2*j+1]}, v{vGT1}, v{vGS}']
    k(f's_mov_b32 s{sTH}, 0x{f2u(2.0**thresh_log2):08x}')
    g.stamp_first = 5 if P0 else 1
    g.emit(loop_sreg=None)
    k.stamp(6 if P0 else 2)
    if P0: k.stamp(7); k.stamp = lambda i: (Kern.stamp(k, i) if i == 8 else None)
    k('s_waitcnt vmcnt(16)')
    k('s_barrier')
    Kfr = lambda kb, ds: aF + 32 + (4 * kb + ds) * 4
    Vfr = lambda db: aF + 4 * db
    def kread(unit, kb, ds, dst=None):
        off = SL((unit >> 1) & 3) + ((unit & 1) * 32 + kb * 16) * 256
        return f'ds_read_b128 {R4("a", Kfr(kb, ds) if dst is None else dst)}, v{vKA+ds} offset:{off}'
    def vread(unit, db, hf):
        off = SL((unit >> 1) & 3) + ((unit & 1) * 32 + hf * 16) * 256
        return f'ds_read_b64_tr_b16 {R2("a", Vfr(db) + 2*hf)}, v{vVA+db} offset:{off}'
    for kb in range(2):
        for ds in range(4): k(kread(0, kb, ds, dst=Vfr(4 * kb + ds)))
    sc = math.log2(math.e) / math.sqrt(128.0)
    k(f'v_mov_b32 v46, 0x{f2u(sc):08x}'); k(f'v_mov_b32 v47, 0x{f2u(sc):08x}')
    Qf = lambda qb, ds: vQ + (qb * 4 + ds) * 4
    for u in range(4):
        for qb in range(4):
            p = Qf(qb, u)
            for h in range(2):
                A = acc0 + ((2 * u + h) * 4 + qb) * 4
                k(f'v_pk_mul_f32 {R2("v", A)}, {R2("v", A)}, {R2("v", 46)}')
                k(f'v_pk_mul_f32 {R2("v", A+2)}, {R2("v", A+2)}, {R2("v", 46)}')
                k(f'v_cvt_pk_bf16_f32 v{p+2*h}, v{A}, v{A+1}')
                k(f'v_cvt_pk_bf16_f32 v{p+2*h+1}, v{A+2}, v{A+3}')
        for sw in ('32', '16'):
            for qb in range(4):
                p = Qf(qb, u)
                k(f'v_permlane{sw}_swap_b32 v{p}, v{p+2}')
                k(f'v_permlane{sw}_swap_b32 v{p+1}, v{p+3}')
    k('s_waitcnt lgkmcnt(0)')
    for kb in range(2):
        for ds in range(4): k(kread(1, kb, ds))
    Sb = lambda N, kb, qb: vS + 32 * (N & 1) + (kb * 4 + qb) * 4
    Pb = lambda N, qb: vP + 16 * (N & 1) + 4 * qb
    Lb = lambda qb: vL + 4 * qb
    NM = lambda qb: vNM + 4 * qb
    def qk(N, kb, ds, qb, fr=None, czero=False):
        d = R4('v', Sb(N, kb, qb))
        c = ('0' if czero else R4('v', NM(qb))) if ds == 0 else d
        return f'{MF} {d}, {R4("a", Kfr(kb, ds) if fr is None else fr)}, {R4("v", Qf(qb, ds))}, {c}'
    def pv(N, db, qb):
        d = R4('a', aO + (db * 4 + qb) * 4)
        return f'{MF} {d}, {R4("a", Vfr(db))}, {R4("v", Pb(N, qb))}, {d}'
    def ones(N, qb):
        return f'{MF} {R4("v", Lb(qb))}, {R4("v", vONE)}, {R4("v", Pb(N, qb))}, {R4("v", Lb(qb))}'
    def E(N, i):
        return f'v_exp_f32 v{vE + (i & 7)}, v{Sb(N, i >> 4, (i >> 2) & 3) + (i & 3)}'
    def C(N, j):
        i = 2 * j
        return f'v_cvt_pk_bf16_f32 v{Pb(N, (i >> 2) & 3) + 2 * (i >> 4) + ((i >> 1) & 1)}, v{vE + (i & 7)}, v{vE + (i & 7) + 1}'
    def xmax(D, X):
        for sw in ('16', '32'):
            k(f'v_mov_b32 v{X}, v{D}')
            k('s_nop 1')
            k(f'v_permlane{sw}_swap_b32 v{D}, v{X}')
            k(f'v_max_f32 v{D}, v{D}, v{X}')
    def interleave(mf, fill, cap=2):
        fi = 0
        for gi, m in enumerate(mf):
            k(m)
            used = 0
            while fi < len(fill) and fill[fi][2] <= gi and used + fill[fi][1] <= cap:
                k(fill[fi][0]); used += fill[fi][1]; fi += 1
        for x in fill[fi:]: k(x[0])

    NG = 68
    def build_iter(N):
        T = (N - 1) >> 1
        first_in_pair = (N & 1) == 1
        mf = [pv(N - 1, db, qb) for db in range(8) for qb in range(4)]
        mf += [ones(N - 1, qb) for qb in range(4)]
        import sys
        if 'nochain' in sys.argv: mf += [qk(N + 1, kb, ds, qb) for kb in range(2) for ds in range(4) for qb in range(4)]
        else: mf += [qk(N + 1, kb, ds, qb) for kb in range(2) for qb in range(4) for ds in range(4)]
        first = [[] for _ in range(NG)]; rest = [[] for _ in range(NG)]; cost = [0] * NG
        def put(g, ins, mem=False, c=1):
            (first if mem else rest)[g].append(ins); cost[g] += c
        for i in range(32):
            gp = E0 + 2 * i
            if gp < NG: put(gp, E(N + 1, i), c=2)
            else: put(gp - NG, E(N, i), c=2)
        for j in range(16):
            gp = E0 + 2 * (2 * j + 1) + 1
            if gp < NG: put(gp, C(N + 1, j))
            else: put(gp - NG, C(N, j))
        rd = []
        for db in range(8):
            for hf in range(2):
                gp = 4 * db - lead + 2 * hf
                rd.append((gp % NG, vread(N - 1 if gp >= 0 else N, db, hf), ('V', db) if gp >= 0 else ('Vn', db)))
        for i in range(8):
            gp = 36 + 4 * i - lead
            rd.append((gp, kread(N + 1, i >> 2, i & 3), ('K', i)))
        rd.sort(key=lambda x: x[0])
        for gp, ins, tag in rd: put(gp, ins, mem=True)
        cyc = [(gp - NG, 'V' if tag[0] == 'Vn' else 'old', tag[1]) for gp, _, tag in rd] + \
              [(gp, tag[0], tag[1]) for gp, _, tag in rd]
        waits = {}
        for at, kind, hi in ((0, 'V', 3), (16, 'V', 7), (36, 'K', 3), (52, 'K', 7)):
            lastidx = max(i for i, x in enumerate(cyc) if x[1] == kind and x[2] == hi)
            n_after = sum(1 for i, x in enumerate(cyc) if i > lastidx and x[0] < at)
            assert cyc[lastidx][0] < at
            waits[at] = n_after
        for at in (16, 36, 52): put(at - 1, f's_waitcnt lgkmcnt({waits[at]})')
        put(NG - 1, f's_waitcnt lgkmcnt({waits[0]})')
        def putv(gp, ins):
            if 'plainpack' in sys.argv and ins.startswith('buffer_store'): ins += ' ; plain'
            assert cost[gp] == 0, (N, gp, first[gp], rest[gp])
            put(gp, ins, mem=True, c=2 if excl else 1)
        def puts(gp, seq, hi=NG):
            for ins in seq:
                while cost[gp] >= 2: gp += 1
                assert gp < hi, (N, ins)
                put(gp, ins)
                if ins.startswith('v_cmp'): gp += 2
        if not first_in_pair:
            X = lambda T: (2 if T % 4 in (1, 2) else 1) + (2 if T % 4 == 1 else 0) + (2 if T % 4 == 2 and split2 else 0)
            npf = X(T - 1) + X(T)
            if T % 4 == 0: npf -= 1
            put(19, f's_waitcnt vmcnt({12 + npf})'); put(19, 's_barrier')
            d = [x[0] for x in kdma(T % 4) if x[0] != 's_nop 0']
            put(15, d[0])
            for gp, ins in zip((23, 27, 31, 39), d[1:5]): putv(gp, ins)
            if T % 4 == 1:
                putv(7, gld[0]); putv(11, gld[1]); puts(35, gld[2:])
            if T % 4 == 2 and split2:
                putv(7, f'buffer_store_dwordx4 a[208:211], v{vPF}, s[72:75], s{sXB} offen'); putv(11, f'buffer_store_dwordx4 a[208:211], v{vT+3}, s[72:75], s{sXB} offen'); put(35, f's_add_u32 s{sXB}, s{sXB}, 0x100000')
            puts(43, d[5:])
            if T % 4 == 0: puts(0, gfma)
        else:
            d = [x[0] for x in vdma((T + 3) % 4) if x[0] != 's_nop 0']
            put(5, d[0])
            for gp, ins in zip((7, 11, 19, 23), d[1:5]): putv(gp, ins)
            puts(43, d[5:])
            if T % 4 == 0:
                putv(31, f'buffer_load_dwordx4 a[192:195], v{vPF}, s[32:35], s{sPF} offen ; pf')
            if T % 4 == 1:
                putv(27, f'buffer_store_dwordx4 a[196:199], v{vD1}, s[72:75], 0 offen')
                putv(31, f'buffer_load_dwordx4 a[196:199], v{vS1}, s[36:39], s{sL1} offen')
                puts(35, [f'v_mov_b32 v{vD1}, v{vN1}',
                        f'v_add_u32 v{vJ1}, 8, v{vJ1}',
                        f'v_add_u32 v{vN1}, {4*1024*224 + 128}, v{vN1}',
                        f'v_cmp_lt_u32 vcc, 13, v{vJ1}',
                        f's_add_u32 s{sL1}, s{sL1}, 1024',
                        f'v_cndmask_b32 v61, 0, v60, vcc',
                        f'v_cndmask_b32 v62, 0, 14, vcc',
                        f'v_add_u32 v{vN1}, v61, v{vN1}',
                        f'v_sub_u32 v{vJ1}, v{vJ1}, v62'])
            if T % 4 == 2:
                putv(27, f'buffer_store_dwordx4 a[200:203], v{vD2}, s[72:75], s{sST2} offen')
                putv(31, f'buffer_load_dwordx4 a[200:203], v{vPF}, s[60:63], s{sPF} offen')
            if T % 4 == 3:
                putv(27, 'buffer_load_dwordx4 a[204:207], v6, s[4:7], s8 offen ; pf')
                put(15, f's_lshr_b32 s{sST2}, s{sPF}, {3 if split2 else 4}')
                put(31, f's_add_u32 s{sPF}, s{sPF}, 0x100000')
                put(31, f's_sub_u32 s{sCNT}, s{sCNT}, 1')
        out = []
        for gi in range(NG):
            fl = first[gi] + rest[gi]
            if 'nobar' in dbg: fl = [x for x in fl if x != 's_barrier']
            if 'novm' in dbg: fl = [x for x in fl if not x.startswith(('buffer_', 's_waitcnt vmcnt'))]
            if 'nopack' in dbg: fl = [x for x in fl if not (x.startswith('buffer_') and not x.endswith(' lds'))]
            if 'nopack' in dbg: fl = ['s_waitcnt vmcnt(12)' if x.startswith('s_waitcnt vmcnt') else x for x in fl]
            for md in ('sc1', 'nt', 'sc0'):
                if 'kv' + md in dbg: fl = [x.replace(' lds', f' {md} lds') if x.endswith(' lds') else x for x in fl]
            if 'nods' in dbg: fl = [x for x in fl if not x.startswith(('ds_', 's_waitcnt lgkm'))]
            if 'noexp' in dbg: fl = [x for x in fl if not x.startswith('v_exp')]
            if 'nocvt' in dbg: fl = [x for x in fl if not x.startswith('v_cvt')]
            out.append(mf[gi]); out += fl
            if cost[gi] > 2: print('gap over', N, gi, cost[gi], first[gi] + rest[gi])
        return out, waits[0], rd

    mf0 = [qk(0, kb, ds, qb, fr=Vfr(4 * kb + ds), czero=True) for kb in range(2) for ds in range(4) for qb in range(4)]
    D = lambda qb: vE + qb
    X = lambda qb: vE + 4 + qb
    k(f's_mov_b32 s9, 0x{f2u(-float(bias)):08x}')
    f0 = [(f'v_add_u32 v{vT+3}, 0x800000, v{vPF}', 1, 0)] + [(f'v_accvgpr_write_b32 a{208+i}, -1', 1, 0) for i in range(4)] + [(f'v_mov_b32 v{vL+i}, 0', 1, 0) for i in range(16)] + [(f'v_mov_b32 v{vONE+i}, 0x3f803f80', 1, 0) for i in range(4)]
    for qb in range(4): f0.append((f'v_max3_f32 v{D(qb)}, v{Sb(0,0,qb)}, v{Sb(0,0,qb)+1}, v{Sb(0,0,qb)+2}', 1, 22))
    for qb in range(4): f0.append((f'v_max_f32 v{D(qb)}, v{D(qb)}, v{Sb(0,0,qb)+3}', 1, 0))
    interleave(mf0, f0)
    k('s_waitcnt lgkmcnt(0)')
    mf1 = [qk(1, kb, ds, qb, czero=True) for kb in range(2) for ds in range(4) for qb in range(4)]
    vn = [ins for gp, ins, tag in build_iter(0)[2] if tag[0] == 'Vn']
    f1 = [(x, 1, 0) for x in vn]
    for (M, kb, mg) in ((0, 1, 8), (1, 0, 20)):
        for h in range(2):
            for qb in range(4):
                f1.append((f'v_max3_f32 v{D(qb)}, v{D(qb)}, v{Sb(M,kb,qb)+2*h}, v{Sb(M,kb,qb)+2*h+1}', 1, mg + qb // 2))
    for sw in ('16', '32'):
        for qb in range(4): f1.append((f'v_mov_b32 v{X(qb)}, v{D(qb)}', 1, 0))
        for qb in range(4): f1.append((f'v_permlane{sw}_swap_b32 v{D(qb)}, v{X(qb)}', 1, 0))
        for qb in range(4): f1.append((f'v_max_f32 v{D(qb)}, v{D(qb)}, v{X(qb)}', 1, 0))
    for r in range(4):
        for qb in range(4): f1.append((f'v_sub_f32 v{NM(qb)+r}, s9, v{D(qb)}', 1, 0))
    interleave(mf1, f1)
    for M in range(2):
        for kb in range(2):
            for qb in range(4):
                for h in range(2):
                    r = Sb(M, kb, qb) + 2 * h
                    k(f'v_pk_add_f32 {R2("v", r)}, {R2("v", r)}, {R2("v", NM(qb))}')
    for i in range(0, 32, 2):
        k(E(0, i)); k(E(0, i + 1))
        if i: k(C(0, (i >> 1) - 1))
    k('s_nop 0')
    k(C(0, 15))
    for i in range(32):
        if E0 + 2 * i < NG: k(E(1, i)); k('s_nop 0')
        if i & 1 and E0 + 2 * i + 1 < NG: k(C(1, i >> 1))
    k(f's_mov_b32 s{sCNT}, 7')
    k(f's_waitcnt lgkmcnt({build_iter(1)[1]})')
    k.stamp(3)
    k(f'{Lloop}:')
    for N in range(1, 9):
        ins, w0, _ = build_iter(N)
        cnt = 0
        for idx, x in enumerate(ins):
            if x.startswith(MF):
                if N == 7 and cnt == 36:
                    k(f's_cbranch_scc1 {Ltail}')
                    tail_rest = ins[idx:]
                cnt += 1
            if N == 7 and 33 <= cnt <= 36: assert not (x.startswith('s_') and not x.startswith('s_waitcnt')), x
            k(x)
    k(f's_branch {Lloop}')
    k(f'{Ltail}:')
    k.stamp(4)
    N = 7
    for db in range(8):
        for hf in range(2): k(vread(N, db, hf))
    for x in tail_rest:
        if x.startswith('v_exp') and any(x == E(N, i) for i in range(32)): k(x); k('s_nop 0')
        elif x.startswith('v_cvt') and any(x == C(N, j) for j in range(16)): k(x)
    k('s_waitcnt lgkmcnt(0)')
    k('s_nop 0')
    red = [f'v_add_f32_dpp v{r}, v{r}, v{r} row_ror:8 row_mask:0xf bank_mask:0xf' for r in GA]
    red += [f'v_permlane16_swap_b32 v{GA[j]}, v{GA[j+1]}' for j in range(0, 8, 2)]
    red += [f'v_add_f32 v{GA[j]}, v{GA[j]}, v{GA[j+1]}' for j in range(0, 8, 2)]
    red += [f'v_and_b32 v{vGA}, 7, v1', f'v_lshrrev_b32 v{vGB}, 4, v1']
    red += [f'v_permlane32_swap_b32 v{GA[0]}, v{GA[2]}', f'v_permlane32_swap_b32 v{GA[4]}, v{GA[6]}']
    red += [f'v_add_f32 v{GA[0]}, v{GA[0]}, v{GA[2]}', f'v_add_f32 v{GA[4]}, v{GA[4]}, v{GA[6]}']
    red += [f'v_lshl_add_u32 v{vGA}, v{vGA}, 3, v{vGB}', f'v_lshlrev_b32 v{vGA}, 2, v{vGA}']
    red += [f'buffer_store_dword v{GA[0]}, v{vGA}, s[68:71], s43 offen sc1', f'buffer_store_dword v{GA[4]}, v{vGA}, s[68:71], s43 offen offset:16 sc1']
    for qb in range(4): k(ones(N, qb))
    for db in range(8):
        for qb in range(4):
            k(pv(N, db, qb))
            if red: k(red.pop(0))
    assert not red
    k(f'v_max3_f32 v{vT}, v{Lb(0)}, v{Lb(1)}, v{Lb(2)}')
    k(f'v_max_f32 v{vT}, v{vT}, v{Lb(3)}')
    k(f'v_cmp_nge_f32 vcc, s{sTH}, v{vT}')
    k(f's_cbranch_vccnz {Lslow}')
    k('s_mov_b64 s[66:67], -1')
    k(f'{Lepi}:')
    k('s_setreg_imm32_b32 hwreg(HW_REG_MODE, 4, 2), 3')
    RC = vE
    for qb in range(4):
        k(f'v_rcp_f32 v{RC+2*qb}, v{Lb(qb)}')
        k('s_nop 0')
        k(f'v_mov_b32 v{RC+2*qb+1}, v{RC+2*qb}')
    k('v_lshlrev_b32 v6, 4, v1')
    k(f's_lshl_b32 s48, s{sHEAD}, 9')
    k(f's_add_u32 s48, s48, s{sMB0}')
    k('s_lshl_b32 s48, s48, 10')
    n = 0
    for u in range(4):
        for qb in range(4):
            X = vS + (n % 4) * 8; D = vP + (n % 4) * 4; n += 1
            for h in range(2):
                a = aO + ((2 * u + h) * 4 + qb) * 4
                for r in range(4): k(f'v_accvgpr_read_b32 v{X+4*h+r}, a{a+r}')
            if u == 0:
                k(f'v_max3_f32 v{vT+1}, abs(v{X}), abs(v{X+1}), abs(v{X+2})')
                k(f'v_max3_f32 v{vT+1}, v{vT+1}, abs(v{X+3}), abs(v{X+4})')
                k(f'v_max3_f32 v{vT+1}, v{vT+1}, abs(v{X+5}), abs(v{X+6})')
                k(f'v_mov_b32 v{vT}, v{vT+1}' if qb == 0 else f'v_min_f32 v{vT}, v{vT}, v{vT+1}')
            for j in range(4): k(f'v_pk_mul_f32 {R2("v", X+2*j)}, {R2("v", X+2*j)}, {R2("v", RC+2*qb)}')
            for j in range(4): k(f'v_cvt_pk_bf16_f32 v{D+j}, v{X+2*j}, v{X+2*j+1}')
            k(f'buffer_store_dwordx4 {R4("v", D)}, v6, s[28:31], s48 offen offset:{qb*1024}')
        if u == 0:
            k(f'v_cmp_gt_f32 vcc, 0x{ufl:08x}, v{vT}')
            k('s_and_b64 vcc, vcc, s[66:67]')
            k(f's_cbranch_vccnz {Lslow}')
        if u < 3: k('s_add_u32 s48, s48, 131072')
    Lnext = k.label('next')
    if then:
        k('s_setreg_imm32_b32 hwreg(HW_REG_MODE, 4, 2), 0')
        k(f's_branch {Lnext}')
    else:
        k.stamp_out(kidx)
    k(f'{Lend}:')
    k('s_endpgm')

    k(f'{Lslow}:')
    k('s_waitcnt vmcnt(0)')
    k('s_mov_b64 s[66:67], 0')
    MX = vL + 16
    vKG = vL + 20
    vVP = vL + 22
    vVG = vL + 30
    k(f'v_and_b32 v{tmp}, 15, v1')
    k(f'v_lshrrev_b32 v{tmp+1}, 4, v1')
    k(f'v_lshlrev_b32 v{vKG}, 8, v{tmp}')
    k(f'v_lshl_add_u32 v{vKG}, v{tmp+1}, 4, v{vKG}')
    k(f'v_add_u32 v{vKG+1}, 4096, v{vKG}')
    k(f's_lshl_b32 s48, s{sWAVE}, 13')
    k(f's_add_u32 s48, s48, {SL(8)}')
    k(f's_sub_u32 s49, s48, 0x10000')
    for db in range(8): k(f'v_add_u32 v{vVP+db}, s49, v{vVA+db}')
    for j in range(2): k(f'v_subrev_u32 v{vVG+j}, s{sM0}, v{vVD+j}')
    for qb in range(4): k(f'v_mov_b32 v{MX+qb}, 0xff7fffff')
    for i in range(16): k(f'v_mov_b32 v{vNM+i}, 0')
    k(f's_mov_b32 s{sFIRST}, 0')
    Lp = k.label('spass'); Lu = k.label('sunit'); Lp1 = k.label('sp1'); Lnx = k.label('snext'); Lnov = k.label('snov')
    k(f'{Lp}:')
    k(f's_mov_b32 s{sK}, 0')
    k(f'{Lu}:')
    for kb in range(2):
        for ds in range(4):
            k(f'buffer_load_dwordx4 {R4("a", Kfr(kb, ds))}, v{vKG+kb}, s[20:23], s{sK} offen offset:{ds*64}')
    k(f's_cmp_eq_u32 s{sFIRST}, 0')
    k(f's_cbranch_scc1 {Lnov}')
    for half in range(2):
        k(f's_add_u32 m0, s48, {half*4096}')
        k(f's_add_u32 s49, s{sK}, {half*4096}')
        for n in range(4):
            k(f'buffer_load_dwordx4 v{vVG+(n&1)}, s[24:27], s49 offen offset:{n*1024} lds')
    k(f'{Lnov}:')
    k('s_waitcnt vmcnt(0)')
    for kb in range(2):
        for ds in range(4):
            for qb in range(4): k(qk(0, kb, ds, qb))
    k('s_nop 7')
    k(f's_cmp_eq_u32 s{sFIRST}, 0')
    k(f's_cbranch_scc0 {Lp1}')
    for qb in range(4):
        regs = [Sb(0, kb, qb) + r for kb in range(2) for r in range(4)]
        for i in range(0, 8, 2): k(f'v_max3_f32 v{MX+qb}, v{MX+qb}, v{regs[i]}, v{regs[i+1]}')
    k(f's_branch {Lnx}')
    k(f'{Lp1}:')
    for db in range(8):
        for hf in range(2):
            k(f'ds_read_b64_tr_b16 {R2("a", Vfr(db) + 2*hf)}, v{vVP+db} offset:{hf*4096}')
    for i in range(0, 32, 2):
        k(E(0, i)); k(E(0, i + 1)); k('s_nop 0'); k(C(0, i >> 1))
    k('s_waitcnt lgkmcnt(0)')
    k('s_nop 0')
    for qb in range(4): k(ones(0, qb))
    for db in range(8):
        for qb in range(4): k(pv(0, db, qb))
    k(f'{Lnx}:')
    k(f's_add_u32 s{sK}, s{sK}, 8192')
    k(f's_cmp_lt_u32 s{sK}, 524288')
    k(f's_cbranch_scc1 {Lu}')
    k('s_nop 7')
    k(f's_cmp_eq_u32 s{sFIRST}, 0')
    k(f's_cbranch_scc0 {Lepi}')
    for qb in range(4):
        xmax(MX + qb, vT)
        for r in range(4): k(f'v_sub_f32 v{NM(qb)+r}, 0, v{MX+qb}')
    for i in range(16): k(f'v_mov_b32 v{vL+i}, 0')
    for i in range(128): k(f'v_accvgpr_write_b32 a{aO+i}, 0')
    k(f's_mov_b32 s{sFIRST}, 1')
    k(f's_branch {Lp}')
    k.noreplay = {Lepi, Lp}
    if then:
        k(f'{Lnext}:')
        then(k)
    return k
```

```python
import sys
from gen_gk import *
from gen_front import *
from gen_back import publish, await_flags, FSH, sNONCE, ONE

THRESH_LOG2 = 16
P0 = 'p0' in sys.argv
NA_PF = 4
NMAIN = 8
for a in sys.argv:
    if a.startswith('npf='): NMAIN = 2 * int(a[4:])
for a in sys.argv:
    if a.startswith('napf='): NA_PF = int(a[5:])

def gen_attn(thresh_log2=THRESH_LOG2, lead=27, E0=58, bias=100, ufl=0x4000, pf=True, sched=(2, [1, 2, 1, 2]), name='attn_kernel', kidx=2, dbg='', excl=True, split2=True, wqpf=0, then=None, ln1=False):
    k = Kern(name, (256, 1, 1), (256, 1, 1), 160 * 1024, vgpr=256, agpr=256, sgpr=102)
    Lend = k.label('end')
    k('s_cmp_ge_u32 s2, 256')
    k(f's_cbranch_scc1 {Lend}')
    k.stamp(0)
    k(f's_load_dwordx4 s[4:7], s[0:1], {A_K}')
    k(f's_load_dwordx2 s[8:9], s[0:1], {A_WQ}')
    k(f's_load_dwordx2 s[10:11], s[0:1], {A_WS}')
    k(f's_load_dwordx2 s[32:33], s[0:1], {A_WO}')
    k(f's_load_dwordx2 s[36:37], s[0:1], {A_W1}')
    k(f's_load_dwordx2 s[60:61], s[0:1], {A_W2}')
    k(f's_load_dwordx2 s[64:65], s[0:1], {A_WMOD}')
    if ln1: k(f's_load_dwordx2 s[20:21], s[0:1], {A_X}')
    front = ln1 and ONE
    if front: k(f's_load_dwordx2 s[68:69], s[0:1], {A_C}')
    Lloop = k.label('loop'); Ltail = k.label('tail'); Lslow = k.label('slow'); Lepi = k.label('epi'); Lstart2 = k.label('st2')
    vKA, vVA, vKD, vVD = 8, 12, 20, 24
    tmp = 26
    vL = 32; vTA2 = 32; vWD = 40; vX = 44
    vQ, vS, vP, vNM, vE, vONE, vT = 64, 128, 192, 224, 240, 248, 252
    aO, aF = 0, 128
    sHEAD, sQT, sWAVE, sMB0, sW, sX, sM0, sK, sV, sCNT, sTH, sFIRST = 40, 41, 44, 47, 50, 51, 52, 53, 54, 55, 57, 58
    k('v_and_b32 v1, 63, v0')
    k('v_lshrrev_b32 v2, 6, v0')
    k('s_and_b32 s42, s2, 7')
    k(f'v_readfirstlane_b32 s{sWAVE}, v2')
    k('s_lshl_b32 s42, s42, 2')
    k('s_bfe_u32 s43, s2, 0x20003')
    k(f's_add_u32 s{sHEAD}, s42, s43')
    k(f's_lshr_b32 s{sQT}, s2, 5')
    XR, PR = 64, 80
    GW, GC, GACC = 208, 224, 232
    if ln1:
        k(f's_lshl_b32 s{sM0}, s{sWAVE}, 12')
        k(f'v_lshl_add_u32 v5, v1, 4, s{sM0}')
        k('v_lshlrev_b32 v6, 4, v0')
        k('s_lshl_b32 s48, s2, 14')
    if front:
        k('v_lshrrev_b32 v7, 1, v0')
        k('v_mul_u32_u24 v3, 12288, v7')
        k('v_and_b32 v4, 1, v0')
        k('v_lshl_add_u32 v3, v4, 4, v3')
        k('v_lshlrev_b32 v7, 1, v7')
        k('s_bfe_u32 s54, s2, 0x10003')
        k('s_and_b32 s55, s2, 7')
        k('s_lshl_b32 s55, s55, 4')
        k('s_lshr_b32 s56, s2, 4')
        k('s_add_u32 s55, s55, s56')
        k(f's_mul_i32 s56, s54, {512*12288}')
        k('s_lshl_b32 s57, s55, 5')
        k('s_add_u32 s56, s56, s57')
        k('s_lshl_b32 s57, s54, 10')
        k('s_lshl_b32 s58, s2, 2')
        k(f's_add_u32 s58, s58, s{sWAVE}')
        k('s_and_b32 s59, s58, 15')
        k('s_lshl_b32 s59, s59, 7')
        k(f'v_lshlrev_b32 v{tmp}, 1, v1')
        k.code_srd(28, Lstart2)
        k('s_lshr_b32 s49, s2, 3')
        k('s_lshl_b32 s49, s49, 12')
        k('buffer_load_dwordx4 a[0:3], v6, s[28:31], s49 offen ; pf')
        k('v_and_b32 v8, 15, v1')
        k('v_lshlrev_b32 v8, 2, v8')
        k('s_lshl_b32 s74, s2, 6')
        mod_dest(k, 70, 8, 9, 10)
        k('v_mov_b32 v10, -1')
        k('s_waitcnt lgkmcnt(0)')
        k(f'{Lstart2}:')
        k(f's_load_dword s{sNONCE}, s[10:11], {WS_NONCE}')
        k.srd(64, 64, 1024 * 12288)
        k.srd(68, 68, 2048)
        srd_off(k, 24, 10, 0, 1 * MB)
        k('buffer_store_dword v10, v9, s[24:27], s74 offen sc1')
        k('v_and_b32 v10, 3, v1')
        k('v_lshlrev_b32 v10, 7, v10')
        k('s_lshl_b32 s75, s2, 9')
        k(f's_add_u32 s75, s75, {WS_FL}')
        k('buffer_load_dword a0, v10, s[24:27], s75 offen ; pf')
        k('s_lshl_b32 s75, s2, 7')
        k(f's_add_u32 s75, s75, {WS_MP}')
        k('buffer_load_dword a0, v8, s[24:27], s75 offen ; pf')
        for p in range(4): k(f'buffer_load_ushort v{GC+p}, v7, s[68:71], s57 offen offset:{p*256}')
        k(f'buffer_load_ushort v{GC+4}, v{tmp}, s[68:71], s59 offen')
        for p in range(4):
            k(f'buffer_load_dwordx4 {R4("v", GW+4*p)}, v3, s[64:67], s56 offen')
            if p < 3: k(f's_add_u32 s56, s56, {128*12288}')
        k.srd(20, 20, 4 * MB)
        for j in range(4): k(f'buffer_load_dwordx4 {R4("v", XR + 4*j)}, v5, s[20:23], s48 offen offset:{j*1024}')
    elif ln1:
        k('s_waitcnt lgkmcnt(0)')
        k.srd(20, 20, 4 * MB)
        srd_off(k, 24, 10, WS_MP, 4 * 6144 * 4)
        for p in range(4):
            for sec in range(2):
                k(f's_mov_b32 s49, {p*24576 + sec*4096}')
                k(f'buffer_load_dwordx4 {R4("v", PR + 8*p + 4*sec)}, v6, s[24:27], s49 offen')
        for j in range(4): k(f'buffer_load_dwordx4 {R4("v", XR + 4*j)}, v5, s[20:23], s48 offen offset:{j*1024}')
    wd = wdma_regs(k, vWD, 256, 8192, 16, tmp, 1, sWAVE)
    k(f's_lshl_b32 s{sMB0}, s{sQT}, 4')
    k(f's_lshl_b32 s48, s{sWAVE}, 2')
    k(f's_add_u32 s{sMB0}, s{sMB0}, s48')
    k(f's_lshl_b32 s48, s{sMB0}, 10')
    k(f'v_lshl_add_u32 v{vX}, v1, 4, s48')
    k(f'v_add_u32 v{vX+1}, 0x20000, v{vX}')
    k(f's_lshl_b32 s{sW}, s{sHEAD}, 8')
    k(f's_mov_b32 s{sX}, 0')
    k(f's_lshl_b32 s{sM0}, s{sWAVE}, 12')
    k('s_waitcnt lgkmcnt(0)')
    k.srd(12, 8, 1024 * 8192)
    srd_off(k, 16, 10, WS_H, 4 * MB)
    S = 6
    SL = lambda i: i * 16384
    stage_off = [SL(6), SL(7), SL(8), SL(9), SL(4), SL(5)]
    bbase = {4: 0, 5: 32, 0: 64, 1: 96, 2: 128, 3: 160}
    def kdma(slot):
        return [[f's_add_u32 m0, s{sM0}, {SL(slot)}'], ['s_nop 0']] + \
               [[f'buffer_load_dwordx4 v{vKD+n}, s[20:23], s{sK} offen offset:{n*1024} lds'] for n in range(4)] + \
               [[f's_add_u32 s{sK}, s{sK}, 16384']]
    def vdma(slot):
        return [[f's_add_u32 m0, s{sM0}, {SL(4+slot)}'], ['s_nop 0']] + \
               [[f'buffer_load_dwordx4 v{vVD+(n&1)}, s[24:27], s{sV} offen offset:{n*1024} lds'] for n in range(4)] + \
               [[f's_add_u32 s{sV}, s{sV}, 16384']]
    def zero(base):
        return [[f'v_accvgpr_write_b32 a{base+i}, 0'] for i in range(32)]
    def extra(t):
        if t == 10: return [[x] for x in gld]
        if t == 11: return kdma(0) + kdma(1) + vdma(0) + zero(0)
        if t == 12: return kdma(2) + vdma(1) + zero(32)
        if t == 13: return kdma(3) + vdma(2) + zero(64)
        if t == 14: return zero(96)
        return []
    def extra_p(t):
        return {12: 12, 13: 20, 14: 28}.get(t, 0)
    acc0 = 128
    g = Gemm(k, 8, 4, 256, S, 4, 8, 16,
             acc=lambda a, b: R4('v', acc0 + (a * 4 + b) * 4),
             aring=lambda s: ('a', 192 + 4 * s),
             bring=lambda st, ks, b: R4('a', bbase[st] + (ks * 4 + b) * 4),
             vA=[None, [vVA + a for a in range(8)], [vTA2 + a for a in range(8)]], lds_base=0,
             srdW=12, sW=sW, wpitch=8192, wdma=wd, sM0=sM0, srdX=16, sX=sX, vX=[vX, vX + 1],
             extra_loads=extra, stage_off=stage_off)
    def zip_streams(streams):
        for a, b in zip(*streams):
            if a == 's_nop 1': k('s_nop 0'); continue
            if a == 's_nop 0': continue
            if a.startswith('s_waitcnt'): k(a); continue
            k(a); k(b)
    if front:
        g.pre_w = True; g.xmod = ' sc1'
        MODL = 32768; XX = [128, 144]; SA, C1 = 96, 112
        k(f's_add_u32 s{sNONCE}, s{sNONCE}, 1')
        srd_off(k, 28, 10, WS_FL, 1024 << FSH)
        k('s_mov_b32 s49, 0xbfb8aa3b')
        k(f's_and_b32 s62, s{sQT}, 3')
        k(f's_mul_i32 s62, s62, {4*8192}')
        k(f's_lshr_b32 s45, s{sQT}, 2')
        k(f's_mul_i32 s45, s45, {64*8192}')
        k('s_add_u32 s62, s62, s45')
        k(f's_add_u32 s62, s62, s{sW}')
        k('s_waitcnt vmcnt(8)')
        T5 = GACC + 8
        for p in range(5): k(f'v_lshlrev_b32 v{GC+p}, 16, v{GC+p}')
        for p in range(5): k(f'v_mul_f32 v{T5+p}, s49, v{GC+p}')
        for p in range(5): k(f'v_exp_f32 v{T5+p}, v{T5+p}')
        for p in range(5): k(f'v_add_f32 v{T5+p}, 1.0, v{T5+p}')
        for p in range(5): k(f'v_rcp_f32 v{T5+p}, v{T5+p}')
        for p in range(5): k(f'v_mul_f32 v{GC+p}, v{GC+p}, v{T5+p}')
        for p in range(0, 6, 2): round_pair(k, GC + p, GC + p + 1, T5 + p)
        for p in range(4):
            k(f's_waitcnt vmcnt({7-p})')
            for j in range(4):
                w = GW + 4 * p + j
                k(f'v_lshlrev_b32 v{T5}, 16, v{w}')
                k(f'v_and_b32 v{T5+1}, 0xffff0000, v{w}')
                op = 'v_mul_f32' if p == 0 else 'v_fmac_f32'
                k(f'{op} v{GACC+2*j}, v{T5}, v{GC+p}')
                k(f'{op} v{GACC+2*j+1}, v{T5+1}, v{GC+p}')
        for dp in ('quad_perm:[2,3,0,1]', 'row_ror:4', 'row_ror:8'):
            for j in range(8): k(f'v_add_f32_dpp v{GACC+j}, v{GACC+j}, v{GACC+j} {dp} row_mask:0xf bank_mask:0xf')
        for j in range(0, 8, 2): k(f'v_permlane16_swap_b32 v{GACC+j}, v{GACC+j+1}')
        for j in range(0, 8, 2): k(f'v_add_f32 v{GACC+j}, v{GACC+j}, v{GACC+j+1}')
        k('v_lshrrev_b32 v3, 4, v1')
        k(f'v_permlane32_swap_b32 v{GACC}, v{GACC+2}')
        k(f'v_permlane32_swap_b32 v{GACC+4}, v{GACC+6}')
        k(f'v_add_f32 v{GACC}, v{GACC}, v{GACC+2}')
        k(f'v_add_f32 v{GACC+1}, v{GACC+4}, v{GACC+6}')
        k('v_lshl_add_u32 v3, v4, 3, v3')
        k('v_lshl_add_u32 v3, v2, 4, v3')
        k('v_lshlrev_b32 v3, 2, v3')
        k(f'ds_write2_b32 v3, v{GACC}, v{GACC+1} offset0:0 offset1:4')
        k('s_lshl_b32 s58, s58, 8')
        k(f's_add_u32 s58, s58, {WS_SCP}')
        k('v_lshlrev_b32 v7, 2, v1')
        k(f'buffer_store_dword v{GC+4}, v7, s[24:27], s58 offen')
        k('s_waitcnt lgkmcnt(0)')
        k('s_barrier')
        Lw = k.label('w0'); Lpf = k.label('pfw'); Lj = k.label('fj')
        k(f's_cmp_ge_u32 s{sWAVE}, 2')
        k(f's_cbranch_scc1 {Lpf}')
        k(f's_cmp_lg_u32 s{sWAVE}, 0')
        k(f's_cbranch_scc1 {Lj}')
        k(f'ds_read2_b32 v[{GACC}:{GACC+1}], v8 offset0:0 offset1:16')
        k(f'ds_read2_b32 v[{GACC+2}:{GACC+3}], v8 offset0:32 offset1:48')
        k('s_lshl_b32 s54, s54, 14')
        k('s_lshl_b32 s55, s55, 7')
        k('s_add_u32 s54, s54, s55')
        k(f's_add_u32 s54, s54, {WS_MP}')
        k('v_lshlrev_b32 v9, 1, v8')
        k('s_waitcnt lgkmcnt(0)')
        k(f'v_add_f32 v{GACC}, v{GACC}, v{GACC+1}')
        k(f'v_add_f32 v{GACC+2}, v{GACC+2}, v{GACC+3}')
        k(f'v_add_f32 v{GACC}, v{GACC}, v{GACC+2}')
        k(f'v_mov_b32 v{GACC+1}, s{sNONCE}')
        k(f'buffer_store_dwordx2 v[{GACC}:{GACC+1}], v9, s[24:27], s54 offen sc1')
        k(f's_branch {Lj}')
        k(f'{Lpf}:')
        k('s_waitcnt vmcnt(1)')
        k('s_mov_b32 s48, s62')
        k(f'v_subrev_u32 v9, {32*8192}, v{vWD}')
        for j in range(NA_PF):
            k(f'buffer_load_dwordx4 a[0:3], v9, s[12:15], s48 offen ; pf')
            k(f'buffer_load_dwordx4 a[0:3], v{vWD}, s[12:15], s48 offen ; pf')
            k(f's_add_u32 s48, s48, {128*8192}')
        k(f's_branch {Lw}')
        k(f'{Lj}:')
        k('s_waitcnt vmcnt(1)')
        k(f'{Lw}:')
        if P0: k.stamp(1)
        k('s_mov_b32 s56, 0x3a800000')
        k('s_mov_b32 s57, 0xba800000')
        for r in range(2):
            unpack8(k, XX[r], XR + 8 * r); unpack8(k, XX[r] + 8, XR + 8 * r + 4)
        streams = []
        for r in range(2):
            q = Kern('rec', None, None, 0, 0)
            ln_core_pk(q, XX[r], 160 + 24 * r, 56)
            streams.append(q.lines)
        zip_streams(streams)
        Lg = k.label('gat'); Lgd = k.label('gatd')
        k(f's_cmp_ge_u32 s{sWAVE}, 2')
        k(f's_cbranch_scc1 {Lgd}')
        PG = 160
        k('s_mov_b32 s53, 0x80000')
        k(f'{Lg}:')
        for hs in range(2):
            for i in range(8):
                if i % 2 == 0: k(f's_mov_b32 s49, {WS_MP + hs*16384 + i*2048}')
                k(f'buffer_load_dwordx4 {R4("v", PG + 32*hs + 4*i)}, v6, s[24:27], s49 offen offset:{(i&1)*2048} sc1')
        k('s_sub_u32 s53, s53, 1')
        k('s_cselect_b64 s[58:59], 0, -1')
        k('s_waitcnt vmcnt(0)')
        tags = [PG + 2 * j + 1 for j in range(32)]
        k(f'v_min3_u32 v3, v{tags[0]}, v{tags[1]}, v{tags[2]}')
        k(f'v_max3_u32 v4, v{tags[0]}, v{tags[1]}, v{tags[2]}')
        for j in range(3, 31, 2):
            k(f'v_min3_u32 v3, v3, v{tags[j]}, v{tags[j+1]}')
            k(f'v_max3_u32 v4, v4, v{tags[j]}, v{tags[j+1]}')
        k(f'v_min_u32 v3, v3, v{tags[31]}')
        k(f'v_max_u32 v4, v4, v{tags[31]}')
        k(f'v_xor_b32 v3, s{sNONCE}, v3')
        k(f'v_xor_b32 v4, s{sNONCE}, v4')
        k('v_or_b32 v3, v3, v4')
        k('v_cmp_ne_u32 vcc, 0, v3')
        k('s_and_b64 vcc, vcc, s[58:59]')
        k(f's_cbranch_vccnz {Lg}')
        k('v_bfe_u32 v3, v0, 1, 1')
        k('v_lshlrev_b32 v3, 10, v3')
        k('v_lshrrev_b32 v4, 2, v0')
        k('v_lshl_add_u32 v3, v4, 4, v3')
        k('v_and_b32 v4, 1, v0')
        k('v_lshl_add_u32 v3, v4, 3, v3')
        for i in range(8):
            a = PG + 4 * i
            k(f'v_add_f32 v{a}, v{a}, v{a+32}')
            k(f'v_add_f32 v{a+1}, v{a+2}, v{a+34}')
            round_pair(k, a, a + 1, a + 2)
            if i >= 4:
                k(f'v_add_f32 v{a}, 1.0, v{a}'); k(f'v_add_f32 v{a+1}, 1.0, v{a+1}')
                round_pair(k, a, a + 1, a + 2)
            k(f'ds_write_b64 v3, {R2("v", a)} offset:{MODL + (i>>1)*2048 + (i&1)*512}')
        k(f'{Lgd}:')
        k('v_lshlrev_b32 v3, 4, v1')
        k('s_waitcnt lgkmcnt(0)')
        k('s_barrier')
        if P0: k.stamp(2)
        for base, sec in ((C1, 1), (SA, 0)):
            for h in range(2):
                for q in range(2):
                    k(f'ds_read_b128 {R4("v", base + 8*h + 4*q)}, v3 offset:{MODL + sec*4096 + h*2048 + q*1024}')
        k('s_waitcnt lgkmcnt(4)')
        streams = []
        for r in range(2):
            q = Kern('rec', None, None, 0, 0)
            x = XX[r]; T = 160 + 24 * r
            for j in range(0, 16, 2): q(f'v_pk_mul_f32 {R2("v", x+j)}, {R2("v", x+j)}, {R2("v", C1+j)}')
            round16(q, x, T + 8)
            q('s_waitcnt lgkmcnt(0)')
            for j in range(0, 16, 2): q(f'v_pk_add_f32 {R2("v", x+j)}, {R2("v", x+j)}, {R2("v", SA+j)}')
            for j in range(8): q(f'v_cvt_pk_bf16_f32 v{XR+8*r+j}, v{x+2*j}, v{x+2*j+1}')
            streams.append(q.lines)
        zip_streams(streams)
    if ln1 and not front:
        g.pre_w = True; g.xmod = ' sc1'
        k(f's_and_b32 s48, s{sQT}, 3')
        k(f's_mul_i32 s48, s48, {4*8192}')
        k(f's_lshr_b32 s45, s{sQT}, 2')
        k(f's_mul_i32 s45, s45, {64*8192}')
        k('s_add_u32 s48, s48, s45')
        k(f's_add_u32 s48, s48, s{sW}')
        for j in range(NMAIN):
            k(f'buffer_load_dwordx4 a[0:3], v{vWD}, s[12:15], s48 offen ; pf')
            k(f's_add_u32 s48, s48, {128*8192}')
        srd_off(k, 28, 10, WS_FL, 1024 << FSH)
        MODL = 32768
        k(f's_waitcnt vmcnt({4+NMAIN})')
        for p in range(1, 4):
            for h in range(4): k(f'v_pk_add_f32 {R2("v", PR+2*h)}, {R2("v", PR+2*h)}, {R2("v", PR+8*p+2*h)}')
        for h in range(4): round_pair(k, PR + 2 * h, PR + 2 * h + 1, PR + 8 + h)
        for j in range(4): k(f'v_add_f32 v{PR+4+j}, 1.0, v{PR+4+j}')
        for h in range(2, 4): round_pair(k, PR + 2 * h, PR + 2 * h + 1, PR + 8 + h)
        k('v_lshrrev_b32 v6, 7, v0')
        k('v_lshlrev_b32 v6, 11, v6')
        k('v_and_b32 v7, 1, v0')
        k('v_lshl_add_u32 v6, v7, 10, v6')
        k('v_bfe_u32 v7, v0, 1, 6')
        k('v_lshl_add_u32 v6, v7, 4, v6')
        k(f'ds_write_b128 v6, {R4("v", PR)} offset:{MODL}')
        k(f'ds_write_b128 v6, {R4("v", PR+4)} offset:{MODL+4096}')
        k('s_mov_b32 s56, 0x3a800000')
        k('s_mov_b32 s57, 0xba800000')
        k('v_lshlrev_b32 v3, 4, v1')
        XX = [128, 144]; SA, C1 = 96, 112
        k(f's_waitcnt vmcnt({NMAIN})')
        if P0: k.stamp(1)
        for r in range(2):
            unpack8(k, XX[r], XR + 8 * r); unpack8(k, XX[r] + 8, XR + 8 * r + 4)
        k('s_waitcnt lgkmcnt(0)')
        k('s_barrier')
        for base, sec in ((C1, 1), (SA, 0)):
            for h in range(2):
                for q in range(2):
                    k(f'ds_read_b128 {R4("v", base + 8*h + 4*q)}, v3 offset:{MODL + sec*4096 + h*2048 + q*1024}')
        streams = []
        for r in range(2):
            q = Kern('rec', None, None, 0, 0)
            x = XX[r]; T = 160 + 24 * r
            ln_core_pk(q, x, T, 56)
            q('s_waitcnt lgkmcnt(0)')
            for j in range(0, 16, 2): q(f'v_pk_mul_f32 {R2("v", x+j)}, {R2("v", x+j)}, {R2("v", C1+j)}')
            round16(q, x, T + 8)
            for j in range(0, 16, 2): q(f'v_pk_add_f32 {R2("v", x+j)}, {R2("v", x+j)}, {R2("v", SA+j)}')
            for j in range(8): q(f'v_cvt_pk_bf16_f32 v{XR+8*r+j}, v{x+2*j}, v{x+2*j+1}')
            streams.append(q.lines)
        for a, b in zip(*streams):
            if a == 's_nop 1': k('s_nop 0'); continue
            if a == 's_nop 0': continue
            if a.startswith('s_waitcnt'): k(a); continue
            k(a); k(b)
    if ln1:
        k('v_lshrrev_b32 v5, 2, v1')
        k('v_mul_u32_u24 v5, 528, v5')
        k('v_and_b32 v6, 1, v1')
        k('v_lshl_add_u32 v5, v6, 8, v5')
        k('v_bfe_u32 v6, v1, 1, 1')
        k('v_lshl_add_u32 v5, v6, 3, v5')
        k('v_lshl_add_u32 v5, v2, 5, v5')
        for r in range(2):
            P = XR + 8 * r
            k(f'ds_write_b64 v5, {R2("v", P)} offset:{16*r}')
            k(f'ds_write_b64 v5, {R2("v", P+2)} offset:{16*r+128}')
            k(f'ds_write_b64 v5, {R2("v", P+4)} offset:{16*r+16*528}')
            k(f'ds_write_b64 v5, {R2("v", P+6)} offset:{16*r+16*528+128}')
        k('v_lshrrev_b32 v6, 5, v0')
        k('v_and_b32 v7, 31, v0')
        k('v_mul_u32_u24 v5, 528, v6')
        k('v_lshl_add_u32 v5, v7, 4, v5')
        k('v_lshlrev_b32 v6, 17, v6')
        k('v_bfe_u32 v7, v0, 3, 2')
        k('v_lshl_add_u32 v6, v7, 8, v6')
        k('v_and_b32 v7, 7, v0')
        k('v_lshl_add_u32 v6, v7, 4, v6')
        k('s_lshr_b32 s48, s2, 1')
        k('s_lshl_b32 s48, s48, 10')
        k('s_and_b32 s49, s2, 1')
        k('s_lshl_b32 s49, s49, 7')
        k('s_add_u32 s48, s48, s49')
        k('s_waitcnt lgkmcnt(0)')
        k('s_barrier')
        for j in range(4): k(f'ds_read_b128 {R4("v", PR+4*j)}, v5 offset:{8*528*j}')
        for j in range(4):
            k(f's_waitcnt lgkmcnt({3-j})')
            k(f'buffer_store_dwordx4 {R4("v", PR+4*j)}, v6, s[16:19], s48 offen sc1')
            if j < 3: k(f's_add_u32 s48, s48, {8*131072}')
        k(f's_lshl_b32 s48, s2, {FSH}')
        k(f's_add_u32 s48, s48, {768 << FSH}')
        k(f's_lshl_b32 s49, s{sQT}, {5+FSH}')
        k(f's_add_u32 s49, s49, {768 << FSH}')
        publish(k, 48, srd=28)
        if P0: k.stamp(3)
        for x in g.wpreload(): k(x)
        await_flags(k, 49, 32, srd=28)
        if P0: k.stamp(4)
        sched = (3, [2])
    g.make_sched(*sched)
    g.prologue_loads()
    if front:
        for j in range(NA_PF, 8):
            k(f's_add_u32 s48, s62, {j*128*8192}')
            k(f'buffer_load_dwordx4 v[64:67], v{vWD}, s[12:15], s48 offen ; pf')
            g.vq.append('pf')
    tr_addr_regs(k, vVA, 8, 256, tmp, 1, add=0x10000)
    for a in range(8): k(f'v_add_u32 v{vTA2+a}, 0x10000, v{vVA+a}')
    k(f'v_and_b32 v{tmp}, 15, v1')
    k(f'v_lshrrev_b32 v{tmp+1}, 4, v1')
    k(f'v_xor_b32 v{tmp+2}, v{tmp}, v{tmp+1}')
    k(f'v_lshlrev_b32 v{tmp+3}, 8, v{tmp}')
    for ds in range(4):
        k(f'v_xor_b32 v{tmp+4}, {4*ds}, v{tmp+2}')
        k(f'v_lshl_add_u32 v{vKA+ds}, v{tmp+4}, 4, v{tmp+3}')
    k(f'v_lshlrev_b32 v{tmp+3}, 8, v{tmp+1}')
    k(f'v_add_u32 v{tmp+3}, s{sM0}, v{tmp+3}')
    for n in range(4):
        k(f'v_xor_b32 v{tmp+4}, {4*n}, v{tmp+2}')
        k(f'v_lshl_add_u32 v{vKD+n}, v{tmp+4}, 4, v{tmp+3}')
    k(f'v_lshlrev_b32 v{tmp+4}, 1, v{tmp+1}')
    k(f'v_xor_b32 v{tmp+4}, v{tmp+4}, v{tmp}')
    k(f'v_lshl_add_u32 v{vVD}, v{tmp+4}, 4, v{tmp+3}')
    k(f'v_xor_b32 v{tmp+4}, 8, v{tmp+4}')
    k(f'v_lshl_add_u32 v{vVD+1}, v{tmp+4}, 4, v{tmp+3}')
    k(f's_lshl_b32 s48, s{sHEAD}, 19')
    srd_off(k, 20, 4, 's48', 524288)
    srd_off(k, 24, 6, 's48', 524288)
    srd_off(k, 28, 10, WS_O, 16 * MB)
    k(f's_mov_b32 s{sK}, 0')
    k(f's_mov_b32 s{sV}, 0')
    k.srd(32, 32, 4096 * 2048); k.srd(36, 36, 1024 * 7168); k.srd(60, 60, 3584 * 2048)
    sPF, sST0, sST2, sL1, sXB = 59, 56, 49, 46, 41
    vPF, vD0, vD2, vS1, vD1, vN1, vJ1 = 7, 54, 55, 56, 57, 58, 59
    srd_off(k, 72, 10, WS_WO, 36 * MB)
    k(f's_mov_b32 s{sPF}, 0')
    k(f's_mov_b32 s{sL1}, 0')
    k(f's_mov_b32 s{sST0}, 0x70000000')
    k(f's_mov_b32 s{sST2}, 0x70000000')
    k('s_lshl_b32 s48, s2, 12')
    k(f'v_lshl_add_u32 v{vPF}, v0, 4, s48')
    k(f's_lshl_b32 s42, s2, 2')
    k(f's_add_u32 s42, s42, s{sWAVE}')
    k('s_lshr_b32 s43, s42, 1')
    k('s_and_b32 s45, s42, 1')
    k('s_and_b32 s48, s43, 7')
    k('s_lshl_b32 s48, s48, 1')
    k(f'v_xor_b32 v{tmp+4}, s48, v{tmp}')
    k(f'v_lshlrev_b32 v{tmp+4}, 4, v{tmp+4}')
    k(f'v_lshl_add_u32 v{vD0}, v{tmp+1}, 20, v{tmp+4}')
    k('s_lshl_b32 s48, s45, 22')
    k('s_lshl_b32 s62, s43, 8')
    k('s_add_u32 s48, s48, s62')
    k(f'v_add_u32 v{vD0}, s48, v{vD0}')
    if split2:
        k(f'v_mul_u32_u24 v{tmp+5}, {3584*256}, v{tmp+1}')
        k(f'v_add_u32 v{vD2}, v{tmp+4}, v{tmp+5}')
        k(f's_mul_i32 s48, s45, {4*3584*256}')
        k('s_add_u32 s48, s48, s62')
        k(f's_add_u32 s48, s48, {WS_W2 - WS_WO}')
        k(f'v_add_u32 v{vD2}, s48, v{vD2}')
        k(f's_mov_b32 s{sXB}, {WS_XB - WS_WO}')
    else:
        k('s_bfe_u32 s48, s43, 0x20001')
        k('s_lshl_b32 s48, s48, 1')
        k(f'v_and_b32 v{tmp+4}, 7, v1')
        k(f'v_xor_b32 v{tmp+4}, s48, v{tmp+4}')
        k(f'v_lshrrev_b32 v{tmp+5}, 3, v1')
        k(f'v_mul_u32_u24 v{tmp+5}, {3584*128}, v{tmp+5}')
        k(f'v_lshl_add_u32 v{vD2}, v{tmp+4}, 4, v{tmp+5}')
        k(f's_mul_i32 s48, s45, {8*3584*128}')
        k('s_lshl_b32 s62, s43, 7')
        k('s_add_u32 s48, s48, s62')
        k(f's_add_u32 s48, s48, {WS_W2 - WS_WO}')
        k(f'v_add_u32 v{vD2}, s48, v{vD2}')
    k('s_mul_i32 s48, s42, 7168')
    k(f'v_lshl_add_u32 v{vS1}, v1, 4, s48')
    k(f'v_mul_u32_u24 v{tmp+4}, 74, v1')
    k(f'v_lshrrev_b32 v{tmp+4}, 10, v{tmp+4}')
    k(f'v_mul_u32_u24 v{tmp+5}, 14, v{tmp+4}')
    k(f'v_sub_u32 v{vJ1}, v1, v{tmp+5}')
    k(f'v_mul_u32_u24 v{tmp+4}, {1024*224}, v{tmp+4}')
    k(f'v_lshl_add_u32 v{vN1}, v{vJ1}, 4, v{tmp+4}')
    k('s_mul_i32 s48, s42, 224')
    k(f's_add_u32 s48, s48, {WS_W1 - WS_WO}')
    k(f'v_add_u32 v{vN1}, s48, v{vN1}')
    k(f'v_mov_b32 v{vD1}, 0x70000000')
    k(f'v_mov_b32 v60, {1024*224 - 224}')
    k('s_mov_b32 s62, 3584 * 2048')
    GA = [48, 49, 50, 51, 52, 53, 63, 2]; vGW, vGS, vGT0, vGT1, vGA, vGB = 28, 27, 26, 3, 4, 5
    sGW, sGS = 76, 77
    if not front: k.srd(64, 64, 1024 * 12288)
    srd_off(k, 68, 10, 0, 1 * MB)
    k(f'v_lshrrev_b32 v{vGB}, 3, v1')
    k(f'v_mul_u32_u24 v{vGA}, 12288, v{vGB}')
    k(f'v_and_b32 v{vGT1}, 7, v1')
    k(f'v_lshl_add_u32 v{vGA}, v{vGT1}, 4, v{vGA}')
    k(f'v_lshlrev_b32 v{vGB}, 2, v{vGB}')
    k('s_and_b32 s48, s42, 15')
    k(f's_mul_i32 s{sGW}, s48, {64*12288}')
    k('s_lshr_b32 s43, s2, 2')
    k('s_lshl_b32 s45, s43, 7')
    k(f's_add_u32 s{sGW}, s{sGW}, s45')
    k(f's_add_u32 s{sGW}, s{sGW}, 4096')
    k(f's_lshl_b32 s{sGS}, s{42 if front else 48}, 8')
    k(f's_add_u32 s{sGS}, s{sGS}, {WS_SCP if front else WS_SC}')
    k('s_lshl_b32 s48, s48, 14')
    k('s_lshl_b32 s43, s43, 8')
    k('s_add_u32 s43, s43, s48')
    k(f's_add_u32 s43, s43, {WS_MP2}')
    for r in GA: k(f'v_mov_b32 v{r}, 0')
    k.code_srd(4, Ltail)
    k('s_lshr_b32 s8, s2, 3')
    k('s_lshl_b32 s8, s8, 12')
    k('v_lshlrev_b32 v6, 4, v0')
    gld = [f'buffer_load_dwordx4 {R4("v", vGW)}, v{vGA}, s[64:67], s{sGW} offen',
           f'buffer_load_dword v{vGS}, v{vGB}, s[68:71], s{sGS} offen',
           f's_add_u32 s{sGW}, s{sGW}, {8*12288}', f's_add_u32 s{sGS}, s{sGS}, 32']
    gfma = []
    for j in range(4):
        gfma += [f'v_lshlrev_b32 v{vGT0}, 16, v{vGW+j}', f'v_and_b32 v{vGT1}, 0xffff0000, v{vGW+j}',
                 f'v_fmac_f32 v{GA[2*j]}, v{vGT0}, v{vGS}', f'v_fmac_f32 v{GA[2*j+1]}, v{vGT1}, v{vGS}']
    k(f's_mov_b32 s{sTH}, 0x{f2u(2.0**thresh_log2):08x}')
    g.stamp_first = 5 if P0 else 1
    g.emit(loop_sreg=None)
    k.stamp(6 if P0 else 2)
    if P0: k.stamp(7); k.stamp = lambda i: (Kern.stamp(k, i) if i == 8 else None)
    k('s_waitcnt vmcnt(16)')
    k('s_barrier')
    Kfr = lambda kb, ds: aF + 32 + (4 * kb + ds) * 4
    Vfr = lambda db: aF + 4 * db
    def kread(unit, kb, ds, dst=None):
        off = SL((unit >> 1) & 3) + ((unit & 1) * 32 + kb * 16) * 256
        return f'ds_read_b128 {R4("a", Kfr(kb, ds) if dst is None else dst)}, v{vKA+ds} offset:{off}'
    def vread(unit, db, hf):
        off = SL((unit >> 1) & 3) + ((unit & 1) * 32 + hf * 16) * 256
        return f'ds_read_b64_tr_b16 {R2("a", Vfr(db) + 2*hf)}, v{vVA+db} offset:{off}'
    for kb in range(2):
        for ds in range(4): k(kread(0, kb, ds, dst=Vfr(4 * kb + ds)))
    sc = math.log2(math.e) / math.sqrt(128.0)
    k(f'v_mov_b32 v46, 0x{f2u(sc):08x}'); k(f'v_mov_b32 v47, 0x{f2u(sc):08x}')
    Qf = lambda qb, ds: vQ + (qb * 4 + ds) * 4
    for u in range(4):
        for qb in range(4):
            p = Qf(qb, u)
            for h in range(2):
                A = acc0 + ((2 * u + h) * 4 + qb) * 4
                k(f'v_pk_mul_f32 {R2("v", A)}, {R2("v", A)}, {R2("v", 46)}')
                k(f'v_pk_mul_f32 {R2("v", A+2)}, {R2("v", A+2)}, {R2("v", 46)}')
                k(f'v_cvt_pk_bf16_f32 v{p+2*h}, v{A}, v{A+1}')
                k(f'v_cvt_pk_bf16_f32 v{p+2*h+1}, v{A+2}, v{A+3}')
        for sw in ('32', '16'):
            for qb in range(4):
                p = Qf(qb, u)
                k(f'v_permlane{sw}_swap_b32 v{p}, v{p+2}')
                k(f'v_permlane{sw}_swap_b32 v{p+1}, v{p+3}')
    k('s_waitcnt lgkmcnt(0)')
    for kb in range(2):
        for ds in range(4): k(kread(1, kb, ds))
    Sb = lambda N, kb, qb: vS + 32 * (N & 1) + (kb * 4 + qb) * 4
    Pb = lambda N, qb: vP + 16 * (N & 1) + 4 * qb
    Lb = lambda qb: vL + 4 * qb
    NM = lambda qb: vNM + 4 * qb
    def qk(N, kb, ds, qb, fr=None, czero=False):
        d = R4('v', Sb(N, kb, qb))
        c = ('0' if czero else R4('v', NM(qb))) if ds == 0 else d
        return f'{MF} {d}, {R4("a", Kfr(kb, ds) if fr is None else fr)}, {R4("v", Qf(qb, ds))}, {c}'
    def pv(N, db, qb):
        d = R4('a', aO + (db * 4 + qb) * 4)
        return f'{MF} {d}, {R4("a", Vfr(db))}, {R4("v", Pb(N, qb))}, {d}'
    def ones(N, qb):
        return f'{MF} {R4("v", Lb(qb))}, {R4("v", vONE)}, {R4("v", Pb(N, qb))}, {R4("v", Lb(qb))}'
    def E(N, i):
        return f'v_exp_f32 v{vE + (i & 7)}, v{Sb(N, i >> 4, (i >> 2) & 3) + (i & 3)}'
    def C(N, j):
        i = 2 * j
        return f'v_cvt_pk_bf16_f32 v{Pb(N, (i >> 2) & 3) + 2 * (i >> 4) + ((i >> 1) & 1)}, v{vE + (i & 7)}, v{vE + (i & 7) + 1}'
    def xmax(D, X):
        for sw in ('16', '32'):
            k(f'v_mov_b32 v{X}, v{D}')
            k('s_nop 1')
            k(f'v_permlane{sw}_swap_b32 v{D}, v{X}')
            k(f'v_max_f32 v{D}, v{D}, v{X}')
    def interleave(mf, fill, cap=2):
        fi = 0
        for gi, m in enumerate(mf):
            k(m)
            used = 0
            while fi < len(fill) and fill[fi][2] <= gi and used + fill[fi][1] <= cap:
                k(fill[fi][0]); used += fill[fi][1]; fi += 1
        for x in fill[fi:]: k(x[0])

    NG = 68
    def build_iter(N):
        T = (N - 1) >> 1
        first_in_pair = (N & 1) == 1
        mf = [pv(N - 1, db, qb) for db in range(8) for qb in range(4)]
        mf += [ones(N - 1, qb) for qb in range(4)]
        import sys
        if 'nochain' in sys.argv: mf += [qk(N + 1, kb, ds, qb) for kb in range(2) for ds in range(4) for qb in range(4)]
        else: mf += [qk(N + 1, kb, ds, qb) for kb in range(2) for qb in range(4) for ds in range(4)]
        first = [[] for _ in range(NG)]; rest = [[] for _ in range(NG)]; cost = [0] * NG
        def put(g, ins, mem=False, c=1):
            (first if mem else rest)[g].append(ins); cost[g] += c
        for i in range(32):
            gp = E0 + 2 * i
            if gp < NG: put(gp, E(N + 1, i), c=2)
            else: put(gp - NG, E(N, i), c=2)
        for j in range(16):
            gp = E0 + 2 * (2 * j + 1) + 1
            if gp < NG: put(gp, C(N + 1, j))
            else: put(gp - NG, C(N, j))
        rd = []
        for db in range(8):
            for hf in range(2):
                gp = 4 * db - lead + 2 * hf
                rd.append((gp % NG, vread(N - 1 if gp >= 0 else N, db, hf), ('V', db) if gp >= 0 else ('Vn', db)))
        for i in range(8):
            gp = 36 + 4 * i - lead
            rd.append((gp, kread(N + 1, i >> 2, i & 3), ('K', i)))
        rd.sort(key=lambda x: x[0])
        for gp, ins, tag in rd: put(gp, ins, mem=True)
        cyc = [(gp - NG, 'V' if tag[0] == 'Vn' else 'old', tag[1]) for gp, _, tag in rd] + \
              [(gp, tag[0], tag[1]) for gp, _, tag in rd]
        waits = {}
        for at, kind, hi in ((0, 'V', 3), (16, 'V', 7), (36, 'K', 3), (52, 'K', 7)):
            lastidx = max(i for i, x in enumerate(cyc) if x[1] == kind and x[2] == hi)
            n_after = sum(1 for i, x in enumerate(cyc) if i > lastidx and x[0] < at)
            assert cyc[lastidx][0] < at
            waits[at] = n_after
        for at in (16, 36, 52): put(at - 1, f's_waitcnt lgkmcnt({waits[at]})')
        put(NG - 1, f's_waitcnt lgkmcnt({waits[0]})')
        def putv(gp, ins):
            if 'plainpack' in sys.argv and ins.startswith('buffer_store'): ins += ' ; plain'
            assert cost[gp] == 0, (N, gp, first[gp], rest[gp])
            put(gp, ins, mem=True, c=2 if excl else 1)
        def puts(gp, seq, hi=NG):
            for ins in seq:
                while cost[gp] >= 2: gp += 1
                assert gp < hi, (N, ins)
                put(gp, ins)
                if ins.startswith('v_cmp'): gp += 2
        if not first_in_pair:
            X = lambda T: (2 if T % 4 in (1, 2) else 1) + (2 if T % 4 == 1 else 0) + (2 if T % 4 == 2 and split2 else 0)
            npf = X(T - 1) + X(T)
            if T % 4 == 0: npf -= 1
            put(19, f's_waitcnt vmcnt({12 + npf})'); put(19, 's_barrier')
            d = [x[0] for x in kdma(T % 4) if x[0] != 's_nop 0']
            put(15, d[0])
            for gp, ins in zip((23, 27, 31, 39), d[1:5]): putv(gp, ins)
            if T % 4 == 1:
                putv(7, gld[0]); putv(11, gld[1]); puts(35, gld[2:])
            if T % 4 == 2 and split2:
                putv(7, f'buffer_store_dwordx4 a[208:211], v{vPF}, s[72:75], s{sXB} offen'); putv(11, f'buffer_store_dwordx4 a[208:211], v{vT+3}, s[72:75], s{sXB} offen'); put(35, f's_add_u32 s{sXB}, s{sXB}, 0x100000')
            puts(43, d[5:])
            if T % 4 == 0: puts(0, gfma)
        else:
            d = [x[0] for x in vdma((T + 3) % 4) if x[0] != 's_nop 0']
            put(5, d[0])
            for gp, ins in zip((7, 11, 19, 23), d[1:5]): putv(gp, ins)
            puts(43, d[5:])
            if T % 4 == 0:
                putv(31, f'buffer_load_dwordx4 a[192:195], v{vPF}, s[32:35], s{sPF} offen ; pf')
            if T % 4 == 1:
                putv(27, f'buffer_store_dwordx4 a[196:199], v{vD1}, s[72:75], 0 offen')
                putv(31, f'buffer_load_dwordx4 a[196:199], v{vS1}, s[36:39], s{sL1} offen')
                puts(35, [f'v_mov_b32 v{vD1}, v{vN1}',
                        f'v_add_u32 v{vJ1}, 8, v{vJ1}',
                        f'v_add_u32 v{vN1}, {4*1024*224 + 128}, v{vN1}',
                        f'v_cmp_lt_u32 vcc, 13, v{vJ1}',
                        f's_add_u32 s{sL1}, s{sL1}, 1024',
                        f'v_cndmask_b32 v61, 0, v60, vcc',
                        f'v_cndmask_b32 v62, 0, 14, vcc',
                        f'v_add_u32 v{vN1}, v61, v{vN1}',
                        f'v_sub_u32 v{vJ1}, v{vJ1}, v62'])
            if T % 4 == 2:
                putv(27, f'buffer_store_dwordx4 a[200:203], v{vD2}, s[72:75], s{sST2} offen')
                putv(31, f'buffer_load_dwordx4 a[200:203], v{vPF}, s[60:63], s{sPF} offen')
            if T % 4 == 3:
                putv(27, 'buffer_load_dwordx4 a[204:207], v6, s[4:7], s8 offen ; pf')
                put(15, f's_lshr_b32 s{sST2}, s{sPF}, {3 if split2 else 4}')
                put(31, f's_add_u32 s{sPF}, s{sPF}, 0x100000')
                put(31, f's_sub_u32 s{sCNT}, s{sCNT}, 1')
        out = []
        for gi in range(NG):
            fl = first[gi] + rest[gi]
            if 'nobar' in dbg: fl = [x for x in fl if x != 's_barrier']
            if 'novm' in dbg: fl = [x for x in fl if not x.startswith(('buffer_', 's_waitcnt vmcnt'))]
            if 'nopack' in dbg: fl = [x for x in fl if not (x.startswith('buffer_') and not x.endswith(' lds'))]
            if 'nopack' in dbg: fl = ['s_waitcnt vmcnt(12)' if x.startswith('s_waitcnt vmcnt') else x for x in fl]
            for md in ('sc1', 'nt', 'sc0'):
                if 'kv' + md in dbg: fl = [x.replace(' lds', f' {md} lds') if x.endswith(' lds') else x for x in fl]
            if 'nods' in dbg: fl = [x for x in fl if not x.startswith(('ds_', 's_waitcnt lgkm'))]
            if 'noexp' in dbg: fl = [x for x in fl if not x.startswith('v_exp')]
            if 'nocvt' in dbg: fl = [x for x in fl if not x.startswith('v_cvt')]
            out.append(mf[gi]); out += fl
            if cost[gi] > 2: print('gap over', N, gi, cost[gi], first[gi] + rest[gi])
        return out, waits[0], rd

    mf0 = [qk(0, kb, ds, qb, fr=Vfr(4 * kb + ds), czero=True) for kb in range(2) for ds in range(4) for qb in range(4)]
    D = lambda qb: vE + qb
    X = lambda qb: vE + 4 + qb
    k(f's_mov_b32 s9, 0x{f2u(-float(bias)):08x}')
    f0 = [(f'v_add_u32 v{vT+3}, 0x800000, v{vPF}', 1, 0)] + [(f'v_accvgpr_write_b32 a{208+i}, -1', 1, 0) for i in range(4)] + [(f'v_mov_b32 v{vL+i}, 0', 1, 0) for i in range(16)] + [(f'v_mov_b32 v{vONE+i}, 0x3f803f80', 1, 0) for i in range(4)]
    for qb in range(4): f0.append((f'v_max3_f32 v{D(qb)}, v{Sb(0,0,qb)}, v{Sb(0,0,qb)+1}, v{Sb(0,0,qb)+2}', 1, 22))
    for qb in range(4): f0.append((f'v_max_f32 v{D(qb)}, v{D(qb)}, v{Sb(0,0,qb)+3}', 1, 0))
    interleave(mf0, f0)
    k('s_waitcnt lgkmcnt(0)')
    mf1 = [qk(1, kb, ds, qb, czero=True) for kb in range(2) for ds in range(4) for qb in range(4)]
    vn = [ins for gp, ins, tag in build_iter(0)[2] if tag[0] == 'Vn']
    f1 = [(x, 1, 0) for x in vn]
    for (M, kb, mg) in ((0, 1, 8), (1, 0, 20)):
        for h in range(2):
            for qb in range(4):
                f1.append((f'v_max3_f32 v{D(qb)}, v{D(qb)}, v{Sb(M,kb,qb)+2*h}, v{Sb(M,kb,qb)+2*h+1}', 1, mg + qb // 2))
    for sw in ('16', '32'):
        for qb in range(4): f1.append((f'v_mov_b32 v{X(qb)}, v{D(qb)}', 1, 0))
        for qb in range(4): f1.append((f'v_permlane{sw}_swap_b32 v{D(qb)}, v{X(qb)}', 1, 0))
        for qb in range(4): f1.append((f'v_max_f32 v{D(qb)}, v{D(qb)}, v{X(qb)}', 1, 0))
    for r in range(4):
        for qb in range(4): f1.append((f'v_sub_f32 v{NM(qb)+r}, s9, v{D(qb)}', 1, 0))
    interleave(mf1, f1)
    for M in range(2):
        for kb in range(2):
            for qb in range(4):
                for h in range(2):
                    r = Sb(M, kb, qb) + 2 * h
                    k(f'v_pk_add_f32 {R2("v", r)}, {R2("v", r)}, {R2("v", NM(qb))}')
    for i in range(0, 32, 2):
        k(E(0, i)); k(E(0, i + 1))
        if i: k(C(0, (i >> 1) - 1))
    k('s_nop 0')
    k(C(0, 15))
    for i in range(32):
        if E0 + 2 * i < NG: k(E(1, i)); k('s_nop 0')
        if i & 1 and E0 + 2 * i + 1 < NG: k(C(1, i >> 1))
    k(f's_mov_b32 s{sCNT}, 7')
    k(f's_waitcnt lgkmcnt({build_iter(1)[1]})')
    k.stamp(3)
    k(f'{Lloop}:')
    for N in range(1, 9):
        ins, w0, _ = build_iter(N)
        cnt = 0
        for idx, x in enumerate(ins):
            if x.startswith(MF):
                if N == 7 and cnt == 36:
                    k(f's_cbranch_scc1 {Ltail}')
                    tail_rest = ins[idx:]
                cnt += 1
            if N == 7 and 33 <= cnt <= 36: assert not (x.startswith('s_') and not x.startswith('s_waitcnt')), x
            k(x)
    k(f's_branch {Lloop}')
    k(f'{Ltail}:')
    k.stamp(4)
    N = 7
    for db in range(8):
        for hf in range(2): k(vread(N, db, hf))
    for x in tail_rest:
        if x.startswith('v_exp') and any(x == E(N, i) for i in range(32)): k(x); k('s_nop 0')
        elif x.startswith('v_cvt') and any(x == C(N, j) for j in range(16)): k(x)
    k('s_waitcnt lgkmcnt(0)')
    k('s_nop 0')
    red = [f'v_add_f32_dpp v{r}, v{r}, v{r} row_ror:8 row_mask:0xf bank_mask:0xf' for r in GA]
    red += [f'v_permlane16_swap_b32 v{GA[j]}, v{GA[j+1]}' for j in range(0, 8, 2)]
    red += [f'v_add_f32 v{GA[j]}, v{GA[j]}, v{GA[j+1]}' for j in range(0, 8, 2)]
    red += [f'v_and_b32 v{vGA}, 7, v1', f'v_lshrrev_b32 v{vGB}, 4, v1']
    red += [f'v_permlane32_swap_b32 v{GA[0]}, v{GA[2]}', f'v_permlane32_swap_b32 v{GA[4]}, v{GA[6]}']
    red += [f'v_add_f32 v{GA[0]}, v{GA[0]}, v{GA[2]}', f'v_add_f32 v{GA[4]}, v{GA[4]}, v{GA[6]}']
    red += [f'v_lshl_add_u32 v{vGA}, v{vGA}, 3, v{vGB}', f'v_lshlrev_b32 v{vGA}, 2, v{vGA}']
    red += [f'buffer_store_dword v{GA[0]}, v{vGA}, s[68:71], s43 offen sc1', f'buffer_store_dword v{GA[4]}, v{vGA}, s[68:71], s43 offen offset:16 sc1']
    for qb in range(4): k(ones(N, qb))
    for db in range(8):
        for qb in range(4):
            k(pv(N, db, qb))
            if red: k(red.pop(0))
    assert not red
    k(f'v_max3_f32 v{vT}, v{Lb(0)}, v{Lb(1)}, v{Lb(2)}')
    k(f'v_max_f32 v{vT}, v{vT}, v{Lb(3)}')
    k(f'v_cmp_nge_f32 vcc, s{sTH}, v{vT}')
    k(f's_cbranch_vccnz {Lslow}')
    k('s_mov_b64 s[66:67], -1')
    k(f'{Lepi}:')
    k('s_setreg_imm32_b32 hwreg(HW_REG_MODE, 4, 2), 3')
    RC = vE
    for qb in range(4):
        k(f'v_rcp_f32 v{RC+2*qb}, v{Lb(qb)}')
        k('s_nop 0')
        k(f'v_mov_b32 v{RC+2*qb+1}, v{RC+2*qb}')
    k('v_lshlrev_b32 v6, 4, v1')
    k(f's_lshl_b32 s48, s{sHEAD}, 9')
    k(f's_add_u32 s48, s48, s{sMB0}')
    k('s_lshl_b32 s48, s48, 10')
    n = 0
    for u in range(4):
        for qb in range(4):
            X = vS + (n % 4) * 8; D = vP + (n % 4) * 4; n += 1
            for h in range(2):
                a = aO + ((2 * u + h) * 4 + qb) * 4
                for r in range(4): k(f'v_accvgpr_read_b32 v{X+4*h+r}, a{a+r}')
            if u == 0:
                k(f'v_max3_f32 v{vT+1}, abs(v{X}), abs(v{X+1}), abs(v{X+2})')
                k(f'v_max3_f32 v{vT+1}, v{vT+1}, abs(v{X+3}), abs(v{X+4})')
                k(f'v_max3_f32 v{vT+1}, v{vT+1}, abs(v{X+5}), abs(v{X+6})')
                k(f'v_mov_b32 v{vT}, v{vT+1}' if qb == 0 else f'v_min_f32 v{vT}, v{vT}, v{vT+1}')
            for j in range(4): k(f'v_pk_mul_f32 {R2("v", X+2*j)}, {R2("v", X+2*j)}, {R2("v", RC+2*qb)}')
            for j in range(4): k(f'v_cvt_pk_bf16_f32 v{D+j}, v{X+2*j}, v{X+2*j+1}')
            k(f'buffer_store_dwordx4 {R4("v", D)}, v6, s[28:31], s48 offen offset:{qb*1024}')
        if u == 0:
            k(f'v_cmp_gt_f32 vcc, 0x{ufl:08x}, v{vT}')
            k('s_and_b64 vcc, vcc, s[66:67]')
            k(f's_cbranch_vccnz {Lslow}')
        if u < 3: k('s_add_u32 s48, s48, 131072')
    Lnext = k.label('next')
    if then:
        k('s_setreg_imm32_b32 hwreg(HW_REG_MODE, 4, 2), 0')
        k(f's_branch {Lnext}')
    else:
        k.stamp_out(kidx)
    k(f'{Lend}:')
    k('s_endpgm')

    k(f'{Lslow}:')
    k('s_waitcnt vmcnt(0)')
    k('s_mov_b64 s[66:67], 0')
    MX = vL + 16
    vKG = vL + 20
    vVP = vL + 22
    vVG = vL + 30
    k(f'v_and_b32 v{tmp}, 15, v1')
    k(f'v_lshrrev_b32 v{tmp+1}, 4, v1')
    k(f'v_lshlrev_b32 v{vKG}, 8, v{tmp}')
    k(f'v_lshl_add_u32 v{vKG}, v{tmp+1}, 4, v{vKG}')
    k(f'v_add_u32 v{vKG+1}, 4096, v{vKG}')
    k(f's_lshl_b32 s48, s{sWAVE}, 13')
    k(f's_add_u32 s48, s48, {SL(8)}')
    k(f's_sub_u32 s49, s48, 0x10000')
    for db in range(8): k(f'v_add_u32 v{vVP+db}, s49, v{vVA+db}')
    for j in range(2): k(f'v_subrev_u32 v{vVG+j}, s{sM0}, v{vVD+j}')
    for qb in range(4): k(f'v_mov_b32 v{MX+qb}, 0xff7fffff')
    for i in range(16): k(f'v_mov_b32 v{vNM+i}, 0')
    k(f's_mov_b32 s{sFIRST}, 0')
    Lp = k.label('spass'); Lu = k.label('sunit'); Lp1 = k.label('sp1'); Lnx = k.label('snext'); Lnov = k.label('snov')
    k(f'{Lp}:')
    k(f's_mov_b32 s{sK}, 0')
    k(f'{Lu}:')
    for kb in range(2):
        for ds in range(4):
            k(f'buffer_load_dwordx4 {R4("a", Kfr(kb, ds))}, v{vKG+kb}, s[20:23], s{sK} offen offset:{ds*64}')
    k(f's_cmp_eq_u32 s{sFIRST}, 0')
    k(f's_cbranch_scc1 {Lnov}')
    for half in range(2):
        k(f's_add_u32 m0, s48, {half*4096}')
        k(f's_add_u32 s49, s{sK}, {half*4096}')
        for n in range(4):
            k(f'buffer_load_dwordx4 v{vVG+(n&1)}, s[24:27], s49 offen offset:{n*1024} lds')
    k(f'{Lnov}:')
    k('s_waitcnt vmcnt(0)')
    for kb in range(2):
        for ds in range(4):
            for qb in range(4): k(qk(0, kb, ds, qb))
    k('s_nop 7')
    k(f's_cmp_eq_u32 s{sFIRST}, 0')
    k(f's_cbranch_scc0 {Lp1}')
    for qb in range(4):
        regs = [Sb(0, kb, qb) + r for kb in range(2) for r in range(4)]
        for i in range(0, 8, 2): k(f'v_max3_f32 v{MX+qb}, v{MX+qb}, v{regs[i]}, v{regs[i+1]}')
    k(f's_branch {Lnx}')
    k(f'{Lp1}:')
    for db in range(8):
        for hf in range(2):
            k(f'ds_read_b64_tr_b16 {R2("a", Vfr(db) + 2*hf)}, v{vVP+db} offset:{hf*4096}')
    for i in range(0, 32, 2):
        k(E(0, i)); k(E(0, i + 1)); k('s_nop 0'); k(C(0, i >> 1))
    k('s_waitcnt lgkmcnt(0)')
    k('s_nop 0')
    for qb in range(4): k(ones(0, qb))
    for db in range(8):
        for qb in range(4): k(pv(0, db, qb))
    k(f'{Lnx}:')
    k(f's_add_u32 s{sK}, s{sK}, 8192')
    k(f's_cmp_lt_u32 s{sK}, 524288')
    k(f's_cbranch_scc1 {Lu}')
    k('s_nop 7')
    k(f's_cmp_eq_u32 s{sFIRST}, 0')
    k(f's_cbranch_scc0 {Lepi}')
    for qb in range(4):
        xmax(MX + qb, vT)
        for r in range(4): k(f'v_sub_f32 v{NM(qb)+r}, 0, v{MX+qb}')
    for i in range(16): k(f'v_mov_b32 v{vL+i}, 0')
    for i in range(128): k(f'v_accvgpr_write_b32 a{aO+i}, 0')
    k(f's_mov_b32 s{sFIRST}, 1')
    k(f's_branch {Lp}')
    k.noreplay = {Lepi, Lp}
    if then:
        k(f'{Lnext}:')
        then(k)
    return k
```

```python
NAME = 'adaLN_cond__mha_block_cached__mixer_channel_mlp__prompt'

HEADER = open('cdna_kernels/' + NAME + '.s.ref').read().split('; Override launch')[0]

class Kern:
    def __init__(self, name, grid, block, lds, vgpr, agpr=0, sgpr=102, wgid_y=False):
        self.name = name; self.grid = grid; self.block = block; self.lds = lds
        self.vgpr = vgpr; self.agpr = agpr; self.sgpr = sgpr; self.wgid_y = wgid_y
        self.lines = []
        self.nlabel = 0
    def __call__(self, s):
        for l in s.split('\n'):
            l = l.strip()
            if l:
                if l.startswith('buffer_store_dwordx4') and Kern.STORE_MOD and not getattr(self, 'plain_stores', False) and ' sc1' not in l and '; plain' not in l: l += Kern.STORE_MOD
                self.lines.append(l)
    def label(self, base='L'):
        self.nlabel += 1
        return f'{self.name}_{base}{self.nlabel}'
    def srd(self, d, base, nbytes):
        if d != base: self(f's_mov_b32 s{d}, s{base}')
        self(f's_and_b32 s{d+1}, s{base+1}, 0xffff')
        self(f's_mov_b32 s{d+2}, {nbytes}')
        self(f's_mov_b32 s{d+3}, 0x20000')
    def code_srd(self, d, target):
        L = self.label('pc')
        self(f's_getpc_b64 s[{d}:{d+1}]')
        self(f'{L}:')
        self(f's_add_u32 s{d}, s{d}, {target}-{L}')
        self(f's_addc_u32 s{d+1}, s{d+1}, 0')
        self(f's_and_b32 s{d+1}, s{d+1}, 0xffff')
        self(f's_mov_b32 s{d+2}, code_end-{target}')
        self(f's_mov_b32 s{d+3}, 0x20000')
    STAMP = False
    STORE_MOD = ''
    def stamp(self, i):
        if not Kern.STAMP: return
        self.sgpr = 102
        if Kern.STAMP == 'both' and self.name == 'attn_kernel':
            self.nstamp = 8
            if i in (3, 4):
                self(f's_memtime s[{78+2*(i+2)}:{79+2*(i+2)}]')
            elif i in (5, 6): return
        self.nstamp = max(getattr(self, 'nstamp', 0), i + 1)
        self(f'{"s_memtime" if Kern.STAMP == "cyc" else "s_memrealtime"} s[{78+2*i}:{79+2*i}]')
        self('s_waitcnt lgkmcnt(0)')
    def stamp_out(self, kidx, vtmp=0):
        if not Kern.STAMP: return
        self(f's_load_dwordx2 s[4:5], s[0:1], 112')
        self('s_waitcnt lgkmcnt(0) vmcnt(0)')
        self.stamp(self.nstamp)
        self(f's_add_u32 s96, s4, {200*1048576 + kidx*65536}')
        self('s_addc_u32 s97, s5, 0')
        self('s_and_b32 s97, s97, 0xffff')
        self('s_mov_b32 s98, 65536')
        self('s_mov_b32 s99, 0x20000')
        self('s_lshl_b32 s100, s2, 6')
        self('s_mov_b64 exec, 1')
        self(f'v_mov_b32 v{vtmp+1}, 0')
        for i in range(self.nstamp):
            self(f'v_mov_b32 v{vtmp}, s{78+2*i}')
            self(f'buffer_store_dword v{vtmp}, v{vtmp+1}, s[96:99], s100 offen offset:{4*i}')
    def text(self):
        out = [f'.globl {self.name}', '.p2align 8', f'.type {self.name},@function', f'{self.name}:']
        for l in self.lines:
            out.append(l if l.endswith(':') else '  ' + l)
        return '\n'.join(out) + '\n'
    def desc(self):
        acc = (self.vgpr + 3) // 4 * 4
        nfv = acc + self.agpr if self.agpr else self.vgpr
        s = f'''.p2align 6
.amdhsa_kernel {self.name}
  .amdhsa_next_free_vgpr {nfv}
  .amdhsa_next_free_sgpr {self.sgpr}
  .amdhsa_accum_offset {acc}
  .amdhsa_group_segment_fixed_size 0
  .amdhsa_kernarg_size 120
  .amdhsa_user_sgpr_count 2
  .amdhsa_user_sgpr_kernarg_segment_ptr 1
  .amdhsa_system_sgpr_workgroup_id_x 1
'''
        if self.wgid_y:
            s += '  .amdhsa_system_sgpr_workgroup_id_y 1\n'
        s += '.end_amdhsa_kernel\n'
        return s
    def launch_line(self):
        g = self.grid; b = self.block
        return f'; @launch kernel={self.name} grid=({g[0]},{g[1]},{g[2]}) block=({b[0]},{b[1]},{b[2]}) lds={self.lds}'

def emit(path, launches):
    uniq = []
    for k in launches:
        if k not in uniq:
            uniq.append(k)
    s = HEADER
    for k in launches:
        s += k.launch_line() + '\n'
    s += '.amdgcn_target "amdgcn-amd-amdhsa--gfx950"\n.text\n'
    for k in uniq:
        s += k.text()
    s += 'code_end:\n  s_endpgm\n'
    s += '.section .rodata,"a"\n'
    for k in uniq:
        s += k.desc()
    open(path, 'w').write(s)
```

```python
import sys
from gen_gk import *
from gen_front import *
from gen_back import publish, await_flags, FSH, sNONCE, ONE

THRESH_LOG2 = 16
P0 = 'p0' in sys.argv
NA_PF = 4
NMAIN = 8
for a in sys.argv:
    if a.startswith('npf='): NMAIN = 2 * int(a[4:])
    if a.startswith('nmain='): NMAIN = int(a[6:])
for a in sys.argv:
    if a.startswith('napf='): NA_PF = int(a[5:])

def gen_attn(thresh_log2=THRESH_LOG2, lead=27, E0=58, bias=100, ufl=0x4000, pf=True, sched=(2, [1, 2, 1, 2]), name='attn_kernel', kidx=2, dbg='', excl=True, split2=True, wqpf=0, then=None, ln1=False):
    k = Kern(name, (256, 1, 1), (256, 1, 1), 160 * 1024, vgpr=256, agpr=256, sgpr=102)
    Lend = k.label('end')
    k('s_cmp_ge_u32 s2, 256')
    k(f's_cbranch_scc1 {Lend}')
    k.stamp(0)
    k(f's_load_dwordx4 s[4:7], s[0:1], {A_K}')
    k(f's_load_dwordx2 s[8:9], s[0:1], {A_WQ}')
    k(f's_load_dwordx2 s[10:11], s[0:1], {A_WS}')
    k(f's_load_dwordx2 s[32:33], s[0:1], {A_WO}')
    k(f's_load_dwordx2 s[36:37], s[0:1], {A_W1}')
    k(f's_load_dwordx2 s[60:61], s[0:1], {A_W2}')
    k(f's_load_dwordx2 s[64:65], s[0:1], {A_WMOD}')
    if ln1: k(f's_load_dwordx2 s[20:21], s[0:1], {A_X}')
    front = ln1 and ONE
    if front: k(f's_load_dwordx2 s[68:69], s[0:1], {A_C}')
    Lloop = k.label('loop'); Ltail = k.label('tail'); Lslow = k.label('slow'); Lepi = k.label('epi'); Lstart2 = k.label('st2')
    vKA, vVA, vKD, vVD = 8, 12, 20, 24
    tmp = 26
    vL = 32; vTA2 = 32; vWD = 40; vX = 44
    vQ, vS, vP, vNM, vE, vONE, vT = 64, 128, 192, 224, 240, 248, 252
    aO, aF = 0, 128
    sHEAD, sQT, sWAVE, sMB0, sW, sX, sM0, sK, sV, sCNT, sTH, sFIRST = 40, 41, 44, 47, 50, 51, 52, 53, 54, 55, 57, 58
    k('v_and_b32 v1, 63, v0')
    k('v_lshrrev_b32 v2, 6, v0')
    k('s_and_b32 s42, s2, 7')
    k(f'v_readfirstlane_b32 s{sWAVE}, v2')
    k('s_lshl_b32 s42, s42, 2')
    k('s_bfe_u32 s43, s2, 0x20003')
    k(f's_add_u32 s{sHEAD}, s42, s43')
    k(f's_lshr_b32 s{sQT}, s2, 5')
    XR, PR = 64, 80
    GW, GC, GACC = 208, 224, 232
    if ln1:
        k(f's_lshl_b32 s{sM0}, s{sWAVE}, 12')
        k(f'v_lshl_add_u32 v5, v1, 4, s{sM0}')
        k('v_lshlrev_b32 v6, 4, v0')
        k('s_lshl_b32 s48, s2, 14')
    if front:
        k('v_lshrrev_b32 v7, 1, v0')
        k('v_mul_u32_u24 v3, 12288, v7')
        k('v_and_b32 v4, 1, v0')
        k('v_lshl_add_u32 v3, v4, 4, v3')
        k('v_lshlrev_b32 v7, 1, v7')
        k('s_bfe_u32 s54, s2, 0x10003')
        k('s_and_b32 s55, s2, 7')
        k('s_lshl_b32 s55, s55, 4')
        k('s_lshr_b32 s56, s2, 4')
        k('s_add_u32 s55, s55, s56')
        k(f's_mul_i32 s56, s54, {512*12288}')
        k('s_lshl_b32 s57, s55, 5')
        k('s_add_u32 s56, s56, s57')
        k('s_lshl_b32 s57, s54, 10')
        k('s_lshl_b32 s58, s2, 2')
        k(f's_add_u32 s58, s58, s{sWAVE}')
        k('s_and_b32 s59, s58, 15')
        k('s_lshl_b32 s59, s59, 7')
        k(f'v_lshlrev_b32 v{tmp}, 1, v1')
        k.code_srd(28, Lstart2)
        k('s_lshr_b32 s49, s2, 3')
        k('s_lshl_b32 s49, s49, 12')
        k('buffer_load_dwordx4 a[0:3], v6, s[28:31], s49 offen ; pf')
        k('v_and_b32 v8, 15, v1')
        k('v_lshlrev_b32 v8, 2, v8')
        k('s_lshl_b32 s74, s2, 6')
        mod_dest(k, 70, 8, 9, 10)
        k('v_mov_b32 v10, -1')
        k('s_waitcnt lgkmcnt(0)')
        k(f'{Lstart2}:')
        k(f's_load_dword s{sNONCE}, s[10:11], {WS_NONCE}')
        k.srd(64, 64, 1024 * 12288)
        k.srd(68, 68, 2048)
        srd_off(k, 24, 10, 0, 1 * MB)
        k('buffer_store_dword v10, v9, s[24:27], s74 offen sc1')
        k('v_and_b32 v10, 3, v1')
        k('v_lshlrev_b32 v10, 7, v10')
        k('s_lshl_b32 s75, s2, 9')
        k(f's_add_u32 s75, s75, {WS_FL}')
        k('buffer_load_dword a0, v10, s[24:27], s75 offen ; pf')
        k('s_lshl_b32 s75, s2, 7')
        k(f's_add_u32 s75, s75, {WS_MP}')
        k('buffer_load_dword a0, v8, s[24:27], s75 offen ; pf')
        for p in range(4): k(f'buffer_load_ushort v{GC+p}, v7, s[68:71], s57 offen offset:{p*256}')
        k(f'buffer_load_ushort v{GC+4}, v{tmp}, s[68:71], s59 offen')
        for p in range(4):
            k(f'buffer_load_dwordx4 {R4("v", GW+4*p)}, v3, s[64:67], s56 offen')
            if p < 3: k(f's_add_u32 s56, s56, {128*12288}')
        k.srd(20, 20, 4 * MB)
        for j in range(4): k(f'buffer_load_dwordx4 {R4("v", XR + 4*j)}, v5, s[20:23], s48 offen offset:{j*1024}')
    elif ln1:
        k('s_waitcnt lgkmcnt(0)')
        k.srd(20, 20, 4 * MB)
        srd_off(k, 24, 10, WS_MP, 4 * 6144 * 4)
        for p in range(4):
            for sec in range(2):
                k(f's_mov_b32 s49, {p*24576 + sec*4096}')
                k(f'buffer_load_dwordx4 {R4("v", PR + 8*p + 4*sec)}, v6, s[24:27], s49 offen')
        for j in range(4): k(f'buffer_load_dwordx4 {R4("v", XR + 4*j)}, v5, s[20:23], s48 offen offset:{j*1024}')
    wd = wdma_regs(k, vWD, 256, 8192, 16, tmp, 1, sWAVE)
    k(f's_lshl_b32 s{sMB0}, s{sQT}, 4')
    k(f's_lshl_b32 s48, s{sWAVE}, 2')
    k(f's_add_u32 s{sMB0}, s{sMB0}, s48')
    k(f's_lshl_b32 s48, s{sMB0}, 10')
    k(f'v_lshl_add_u32 v{vX}, v1, 4, s48')
    k(f'v_add_u32 v{vX+1}, 0x20000, v{vX}')
    k(f's_lshl_b32 s{sW}, s{sHEAD}, 8')
    k(f's_mov_b32 s{sX}, 0')
    k(f's_lshl_b32 s{sM0}, s{sWAVE}, 12')
    k('s_waitcnt lgkmcnt(0)')
    k.srd(12, 8, 1024 * 8192)
    srd_off(k, 16, 10, WS_H, 4 * MB)
    S = 6
    SL = lambda i: i * 16384
    stage_off = [SL(6), SL(7), SL(8), SL(9), SL(4), SL(5)]
    bbase = {4: 0, 5: 32, 0: 64, 1: 96, 2: 128, 3: 160}
    def kdma(slot):
        return [[f's_add_u32 m0, s{sM0}, {SL(slot)}'], ['s_nop 0']] + \
               [[f'buffer_load_dwordx4 v{vKD+n}, s[20:23], s{sK} offen offset:{n*1024} lds'] for n in range(4)] + \
               [[f's_add_u32 s{sK}, s{sK}, 16384']]
    def vdma(slot):
        return [[f's_add_u32 m0, s{sM0}, {SL(4+slot)}'], ['s_nop 0']] + \
               [[f'buffer_load_dwordx4 v{vVD+(n&1)}, s[24:27], s{sV} offen offset:{n*1024} lds'] for n in range(4)] + \
               [[f's_add_u32 s{sV}, s{sV}, 16384']]
    def zero(base):
        return [[f'v_accvgpr_write_b32 a{base+i}, 0'] for i in range(32)]
    def extra(t):
        if t == 10: return [[x] for x in gld]
        if t == 11: return kdma(0) + kdma(1) + vdma(0) + zero(0)
        fill = [[f'buffer_store_dwordx4 v[68:71], v{vPF}, s[72:75], s{sXB} offen'], [f's_add_u32 s{sXB}, s{sXB}, 0x100000']]
        if t == 12: return kdma(2) + vdma(1) + fill * 3 + zero(32)
        if t == 13: return kdma(3) + vdma(2) + fill + zero(64)
        if t == 14: return zero(96)
        return []
    def extra_p(t):
        return {12: 12, 13: 20, 14: 28}.get(t, 0)
    acc0 = 128
    g = Gemm(k, 8, 4, 256, S, 4, 8, 16,
             acc=lambda a, b: R4('v', acc0 + (a * 4 + b) * 4),
             aring=lambda s: ('a', 192 + 4 * s),
             bring=lambda st, ks, b: R4('a', bbase[st] + (ks * 4 + b) * 4),
             vA=[None, [vVA + a for a in range(8)], [vTA2 + a for a in range(8)]], lds_base=0,
             srdW=12, sW=sW, wpitch=8192, wdma=wd, sM0=sM0, srdX=16, sX=sX, vX=[vX, vX + 1],
             extra_loads=extra, stage_off=stage_off)
    def zip_streams(streams):
        for a, b in zip(*streams):
            if a == 's_nop 1': k('s_nop 0'); continue
            if a == 's_nop 0': continue
            if a.startswith('s_waitcnt'): k(a); continue
            k(a); k(b)
    if front:
        g.pre_w = True; g.xmod = ' sc1'
        MODL = 32768; XX = [128, 144]; SA, C1 = 96, 112
        k(f's_add_u32 s{sNONCE}, s{sNONCE}, 1')
        srd_off(k, 28, 10, WS_FL, 1024 << FSH)
        k('s_mov_b32 s49, 0xbfb8aa3b')
        k(f's_and_b32 s62, s{sQT}, 3')
        k(f's_mul_i32 s62, s62, {4*8192}')
        k(f's_lshr_b32 s45, s{sQT}, 2')
        k(f's_mul_i32 s45, s45, {64*8192}')
        k('s_add_u32 s62, s62, s45')
        k(f's_add_u32 s62, s62, s{sW}')
        k('s_waitcnt vmcnt(8)')
        T5 = GACC + 8
        for p in range(5): k(f'v_lshlrev_b32 v{GC+p}, 16, v{GC+p}')
        for p in range(5): k(f'v_mul_f32 v{T5+p}, s49, v{GC+p}')
        for p in range(5): k(f'v_exp_f32 v{T5+p}, v{T5+p}')
        for p in range(5): k(f'v_add_f32 v{T5+p}, 1.0, v{T5+p}')
        for p in range(5): k(f'v_rcp_f32 v{T5+p}, v{T5+p}')
        for p in range(5): k(f'v_mul_f32 v{GC+p}, v{GC+p}, v{T5+p}')
        for p in range(0, 6, 2): round_pair(k, GC + p, GC + p + 1, T5 + p)
        for p in range(4):
            k(f's_waitcnt vmcnt({7-p})')
            for j in range(4):
                w = GW + 4 * p + j
                k(f'v_lshlrev_b32 v{T5}, 16, v{w}')
                k(f'v_and_b32 v{T5+1}, 0xffff0000, v{w}')
                op = 'v_mul_f32' if p == 0 else 'v_fmac_f32'
                k(f'{op} v{GACC+2*j}, v{T5}, v{GC+p}')
                k(f'{op} v{GACC+2*j+1}, v{T5+1}, v{GC+p}')
        for dp in ('quad_perm:[2,3,0,1]', 'row_ror:4', 'row_ror:8'):
            for j in range(8): k(f'v_add_f32_dpp v{GACC+j}, v{GACC+j}, v{GACC+j} {dp} row_mask:0xf bank_mask:0xf')
        for j in range(0, 8, 2): k(f'v_permlane16_swap_b32 v{GACC+j}, v{GACC+j+1}')
        for j in range(0, 8, 2): k(f'v_add_f32 v{GACC+j}, v{GACC+j}, v{GACC+j+1}')
        k('v_lshrrev_b32 v3, 4, v1')
        k(f'v_permlane32_swap_b32 v{GACC}, v{GACC+2}')
        k(f'v_permlane32_swap_b32 v{GACC+4}, v{GACC+6}')
        k(f'v_add_f32 v{GACC}, v{GACC}, v{GACC+2}')
        k(f'v_add_f32 v{GACC+1}, v{GACC+4}, v{GACC+6}')
        k('v_lshl_add_u32 v3, v4, 3, v3')
        k('v_lshl_add_u32 v3, v2, 4, v3')
        k('v_lshlrev_b32 v3, 2, v3')
        k(f'ds_write2_b32 v3, v{GACC}, v{GACC+1} offset0:0 offset1:4')
        k('s_lshl_b32 s58, s58, 8')
        k(f's_add_u32 s58, s58, {WS_SCP}')
        k('v_lshlrev_b32 v7, 2, v1')
        k(f'buffer_store_dword v{GC+4}, v7, s[24:27], s58 offen')
        k('s_waitcnt lgkmcnt(0)')
        k('s_barrier')
        Lw = k.label('w0'); Lpf = k.label('pfw'); Lj = k.label('fj')
        k(f's_cmp_ge_u32 s{sWAVE}, 2')
        k(f's_cbranch_scc1 {Lpf}')
        k(f's_cmp_lg_u32 s{sWAVE}, 0')
        k(f's_cbranch_scc1 {Lj}')
        k(f'ds_read2_b32 v[{GACC}:{GACC+1}], v8 offset0:0 offset1:16')
        k(f'ds_read2_b32 v[{GACC+2}:{GACC+3}], v8 offset0:32 offset1:48')
        k('s_lshl_b32 s54, s54, 14')
        k('s_lshl_b32 s55, s55, 7')
        k('s_add_u32 s54, s54, s55')
        k(f's_add_u32 s54, s54, {WS_MP}')
        k('v_lshlrev_b32 v9, 1, v8')
        k('s_waitcnt lgkmcnt(0)')
        k(f'v_add_f32 v{GACC}, v{GACC}, v{GACC+1}')
        k(f'v_add_f32 v{GACC+2}, v{GACC+2}, v{GACC+3}')
        k(f'v_add_f32 v{GACC}, v{GACC}, v{GACC+2}')
        k(f'v_mov_b32 v{GACC+1}, s{sNONCE}')
        k(f'buffer_store_dwordx2 v[{GACC}:{GACC+1}], v9, s[24:27], s54 offen sc1')
        k(f's_branch {Lj}')
        k(f'{Lpf}:')
        k('s_waitcnt vmcnt(1)')
        k('s_mov_b32 s48, s62')
        k(f'v_subrev_u32 v9, {32*8192}, v{vWD}')
        for j in range(NA_PF):
            k(f'buffer_load_dwordx4 a[0:3], v9, s[12:15], s48 offen ; pf')
            k(f'buffer_load_dwordx4 a[0:3], v{vWD}, s[12:15], s48 offen ; pf')
            k(f's_add_u32 s48, s48, {128*8192}')
        k(f's_branch {Lw}')
        k(f'{Lj}:')
        k('s_waitcnt vmcnt(1)')
        k(f'{Lw}:')
        if P0: k.stamp(1)
        k('s_mov_b32 s56, 0x3a800000')
        k('s_mov_b32 s57, 0xba800000')
        for r in range(2):
            unpack8(k, XX[r], XR + 8 * r); unpack8(k, XX[r] + 8, XR + 8 * r + 4)
        streams = []
        for r in range(2):
            q = Kern('rec', None, None, 0, 0)
            ln_core_pk(q, XX[r], 160 + 24 * r, 56)
            streams.append(q.lines)
        zip_streams(streams)
        Lg = k.label('gat'); Lgd = k.label('gatd')
        k(f's_cmp_ge_u32 s{sWAVE}, 2')
        k(f's_cbranch_scc1 {Lgd}')
        PG = 160
        k('s_mov_b32 s53, 0x80000')
        k(f'{Lg}:')
        for hs in range(2):
            for i in range(8):
                if i % 2 == 0: k(f's_mov_b32 s49, {WS_MP + hs*16384 + i*2048}')
                k(f'buffer_load_dwordx4 {R4("v", PG + 32*hs + 4*i)}, v6, s[24:27], s49 offen offset:{(i&1)*2048} sc1')
        k('s_sub_u32 s53, s53, 1')
        k('s_cselect_b64 s[58:59], 0, -1')
        k('s_waitcnt vmcnt(0)')
        tags = [PG + 2 * j + 1 for j in range(32)]
        k(f'v_min3_u32 v3, v{tags[0]}, v{tags[1]}, v{tags[2]}')
        k(f'v_max3_u32 v4, v{tags[0]}, v{tags[1]}, v{tags[2]}')
        for j in range(3, 31, 2):
            k(f'v_min3_u32 v3, v3, v{tags[j]}, v{tags[j+1]}')
            k(f'v_max3_u32 v4, v4, v{tags[j]}, v{tags[j+1]}')
        k(f'v_min_u32 v3, v3, v{tags[31]}')
        k(f'v_max_u32 v4, v4, v{tags[31]}')
        k(f'v_xor_b32 v3, s{sNONCE}, v3')
        k(f'v_xor_b32 v4, s{sNONCE}, v4')
        k('v_or_b32 v3, v3, v4')
        k('v_cmp_ne_u32 vcc, 0, v3')
        k('s_and_b64 vcc, vcc, s[58:59]')
        k(f's_cbranch_vccnz {Lg}')
        k('v_bfe_u32 v3, v0, 1, 1')
        k('v_lshlrev_b32 v3, 10, v3')
        k('v_lshrrev_b32 v4, 2, v0')
        k('v_lshl_add_u32 v3, v4, 4, v3')
        k('v_and_b32 v4, 1, v0')
        k('v_lshl_add_u32 v3, v4, 3, v3')
        for i in range(8):
            a = PG + 4 * i
            k(f'v_add_f32 v{a}, v{a}, v{a+32}')
            k(f'v_add_f32 v{a+1}, v{a+2}, v{a+34}')
            round_pair(k, a, a + 1, a + 2)
            if i >= 4:
                k(f'v_add_f32 v{a}, 1.0, v{a}'); k(f'v_add_f32 v{a+1}, 1.0, v{a+1}')
                round_pair(k, a, a + 1, a + 2)
            k(f'ds_write_b64 v3, {R2("v", a)} offset:{MODL + (i>>1)*2048 + (i&1)*512}')
        k(f'{Lgd}:')
        k('v_lshlrev_b32 v3, 4, v1')
        k('s_waitcnt lgkmcnt(0)')
        k('s_barrier')
        if P0: k.stamp(2)
        for base, sec in ((C1, 1), (SA, 0)):
            for h in range(2):
                for q in range(2):
                    k(f'ds_read_b128 {R4("v", base + 8*h + 4*q)}, v3 offset:{MODL + sec*4096 + h*2048 + q*1024}')
        k('s_waitcnt lgkmcnt(4)')
        streams = []
        for r in range(2):
            q = Kern('rec', None, None, 0, 0)
            x = XX[r]; T = 160 + 24 * r
            for j in range(0, 16, 2): q(f'v_pk_mul_f32 {R2("v", x+j)}, {R2("v", x+j)}, {R2("v", C1+j)}')
            round16(q, x, T + 8)
            q('s_waitcnt lgkmcnt(0)')
            for j in range(0, 16, 2): q(f'v_pk_add_f32 {R2("v", x+j)}, {R2("v", x+j)}, {R2("v", SA+j)}')
            for j in range(8): q(f'v_cvt_pk_bf16_f32 v{XR+8*r+j}, v{x+2*j}, v{x+2*j+1}')
            streams.append(q.lines)
        zip_streams(streams)
    if ln1 and not front:
        g.pre_w = True; g.xmod = ' sc1'
        k(f's_and_b32 s48, s{sQT}, 3')
        k(f's_mul_i32 s48, s48, {4*8192}')
        k(f's_lshr_b32 s45, s{sQT}, 2')
        k(f's_mul_i32 s45, s45, {64*8192}')
        k('s_add_u32 s48, s48, s45')
        k(f's_add_u32 s48, s48, s{sW}')
        for j in range(NMAIN):
            k(f'buffer_load_dwordx4 a[0:3], v{vWD}, s[12:15], s48 offen ; pf')
            k(f's_add_u32 s48, s48, {128*8192}')
        srd_off(k, 28, 10, WS_FL, 1024 << FSH)
        MODL = 32768
        k(f's_waitcnt vmcnt({4+NMAIN})')
        for p in range(1, 4):
            for h in range(4): k(f'v_pk_add_f32 {R2("v", PR+2*h)}, {R2("v", PR+2*h)}, {R2("v", PR+8*p+2*h)}')
        for h in range(4): round_pair(k, PR + 2 * h, PR + 2 * h + 1, PR + 8 + h)
        for j in range(4): k(f'v_add_f32 v{PR+4+j}, 1.0, v{PR+4+j}')
        for h in range(2, 4): round_pair(k, PR + 2 * h, PR + 2 * h + 1, PR + 8 + h)
        k('v_lshrrev_b32 v6, 7, v0')
        k('v_lshlrev_b32 v6, 11, v6')
        k('v_and_b32 v7, 1, v0')
        k('v_lshl_add_u32 v6, v7, 10, v6')
        k('v_bfe_u32 v7, v0, 1, 6')
        k('v_lshl_add_u32 v6, v7, 4, v6')
        k(f'ds_write_b128 v6, {R4("v", PR)} offset:{MODL}')
        k(f'ds_write_b128 v6, {R4("v", PR+4)} offset:{MODL+4096}')
        k('s_mov_b32 s56, 0x3a800000')
        k('s_mov_b32 s57, 0xba800000')
        k('v_lshlrev_b32 v3, 4, v1')
        XX = [128, 144]; SA, C1 = 96, 112
        k(f's_waitcnt vmcnt({NMAIN})')
        if P0: k.stamp(1)
        for r in range(2):
            unpack8(k, XX[r], XR + 8 * r); unpack8(k, XX[r] + 8, XR + 8 * r + 4)
        k('s_waitcnt lgkmcnt(0)')
        k('s_barrier')
        for base, sec in ((C1, 1), (SA, 0)):
            for h in range(2):
                for q in range(2):
                    k(f'ds_read_b128 {R4("v", base + 8*h + 4*q)}, v3 offset:{MODL + sec*4096 + h*2048 + q*1024}')
        streams = []
        for r in range(2):
            q = Kern('rec', None, None, 0, 0)
            x = XX[r]; T = 160 + 24 * r
            ln_core_pk(q, x, T, 56)
            q('s_waitcnt lgkmcnt(0)')
            for j in range(0, 16, 2): q(f'v_pk_mul_f32 {R2("v", x+j)}, {R2("v", x+j)}, {R2("v", C1+j)}')
            round16(q, x, T + 8)
            for j in range(0, 16, 2): q(f'v_pk_add_f32 {R2("v", x+j)}, {R2("v", x+j)}, {R2("v", SA+j)}')
            for j in range(8): q(f'v_cvt_pk_bf16_f32 v{XR+8*r+j}, v{x+2*j}, v{x+2*j+1}')
            streams.append(q.lines)
        for a, b in zip(*streams):
            if a == 's_nop 1': k('s_nop 0'); continue
            if a == 's_nop 0': continue
            if a.startswith('s_waitcnt'): k(a); continue
            k(a); k(b)
    if ln1:
        k('v_lshrrev_b32 v5, 2, v1')
        k('v_mul_u32_u24 v5, 528, v5')
        k('v_and_b32 v6, 1, v1')
        k('v_lshl_add_u32 v5, v6, 8, v5')
        k('v_bfe_u32 v6, v1, 1, 1')
        k('v_lshl_add_u32 v5, v6, 3, v5')
        k('v_lshl_add_u32 v5, v2, 5, v5')
        for r in range(2):
            P = XR + 8 * r
            k(f'ds_write_b64 v5, {R2("v", P)} offset:{16*r}')
            k(f'ds_write_b64 v5, {R2("v", P+2)} offset:{16*r+128}')
            k(f'ds_write_b64 v5, {R2("v", P+4)} offset:{16*r+16*528}')
            k(f'ds_write_b64 v5, {R2("v", P+6)} offset:{16*r+16*528+128}')
        k('v_lshrrev_b32 v6, 5, v0')
        k('v_and_b32 v7, 31, v0')
        k('v_mul_u32_u24 v5, 528, v6')
        k('v_lshl_add_u32 v5, v7, 4, v5')
        k('v_lshlrev_b32 v6, 17, v6')
        k('v_bfe_u32 v7, v0, 3, 2')
        k('v_lshl_add_u32 v6, v7, 8, v6')
        k('v_and_b32 v7, 7, v0')
        k('v_lshl_add_u32 v6, v7, 4, v6')
        k('s_lshr_b32 s48, s2, 1')
        k('s_lshl_b32 s48, s48, 10')
        k('s_and_b32 s49, s2, 1')
        k('s_lshl_b32 s49, s49, 7')
        k('s_add_u32 s48, s48, s49')
        k('s_waitcnt lgkmcnt(0)')
        k('s_barrier')
        for j in range(4): k(f'ds_read_b128 {R4("v", PR+4*j)}, v5 offset:{8*528*j}')
        for j in range(4):
            k(f's_waitcnt lgkmcnt({3-j})')
            k(f'buffer_store_dwordx4 {R4("v", PR+4*j)}, v6, s[16:19], s48 offen sc1')
            if j < 3: k(f's_add_u32 s48, s48, {8*131072}')
        k(f's_lshl_b32 s48, s2, {FSH}')
        k(f's_add_u32 s48, s48, {768 << FSH}')
        k(f's_lshl_b32 s49, s{sQT}, {5+FSH}')
        k(f's_add_u32 s49, s49, {768 << FSH}')
        publish(k, 48, srd=28)
        if P0: k.stamp(3)
        await_flags(k, 49, 32, srd=28, pre=g.wpreload())
        if P0: k.stamp(4)
        sched = (3, [2])
    g.make_sched(*sched)
    g.prologue_loads()
    if front:
        for j in range(NA_PF, 8):
            k(f's_add_u32 s48, s62, {j*128*8192}')
            k(f'buffer_load_dwordx4 v[64:67], v{vWD}, s[12:15], s48 offen ; pf')
            g.vq.append('pf')
    tr_addr_regs(k, vVA, 8, 256, tmp, 1, add=0x10000)
    for a in range(8): k(f'v_add_u32 v{vTA2+a}, 0x10000, v{vVA+a}')
    k(f'v_and_b32 v{tmp}, 15, v1')
    k(f'v_lshrrev_b32 v{tmp+1}, 4, v1')
    k(f'v_xor_b32 v{tmp+2}, v{tmp}, v{tmp+1}')
    k(f'v_lshlrev_b32 v{tmp+3}, 8, v{tmp}')
    for ds in range(4):
        k(f'v_xor_b32 v{tmp+4}, {4*ds}, v{tmp+2}')
        k(f'v_lshl_add_u32 v{vKA+ds}, v{tmp+4}, 4, v{tmp+3}')
    k(f'v_lshlrev_b32 v{tmp+3}, 8, v{tmp+1}')
    k(f'v_add_u32 v{tmp+3}, s{sM0}, v{tmp+3}')
    for n in range(4):
        k(f'v_xor_b32 v{tmp+4}, {4*n}, v{tmp+2}')
        k(f'v_lshl_add_u32 v{vKD+n}, v{tmp+4}, 4, v{tmp+3}')
    k(f'v_lshlrev_b32 v{tmp+4}, 1, v{tmp+1}')
    k(f'v_xor_b32 v{tmp+4}, v{tmp+4}, v{tmp}')
    k(f'v_lshl_add_u32 v{vVD}, v{tmp+4}, 4, v{tmp+3}')
    k(f'v_xor_b32 v{tmp+4}, 8, v{tmp+4}')
    k(f'v_lshl_add_u32 v{vVD+1}, v{tmp+4}, 4, v{tmp+3}')
    k(f's_lshl_b32 s48, s{sHEAD}, 19')
    srd_off(k, 20, 4, 's48', 524288)
    srd_off(k, 24, 6, 's48', 524288)
    srd_off(k, 28, 10, WS_O, 16 * MB)
    k(f's_mov_b32 s{sK}, 0')
    k(f's_mov_b32 s{sV}, 0')
    k.srd(32, 32, 4096 * 2048); k.srd(36, 36, 1024 * 7168); k.srd(60, 60, 3584 * 2048)
    sPF, sST0, sST2, sL1, sXB = 59, 56, 49, 46, 41
    vPF, vD0, vD2, vS1, vD1, vN1, vJ1 = 7, 54, 55, 56, 57, 58, 59
    srd_off(k, 72, 10, WS_WO, 36 * MB)
    k(f's_mov_b32 s{sPF}, 0')
    k(f's_mov_b32 s{sST0}, 0x08000000')
    k(f's_mov_b32 s{sST2}, 0x70000000')
    k('s_lshl_b32 s48, s2, 12')
    k(f'v_lshl_add_u32 v{vPF}, v0, 4, s48')
    k(f's_lshl_b32 s42, s2, 2')
    k(f's_add_u32 s42, s42, s{sWAVE}')
    k('s_lshr_b32 s43, s42, 1')
    k('s_and_b32 s45, s42, 1')
    k('s_and_b32 s48, s43, 7')
    k('s_lshl_b32 s48, s48, 1')
    k(f'v_xor_b32 v{tmp+4}, s48, v{tmp}')
    k(f'v_lshlrev_b32 v{tmp+4}, 4, v{tmp+4}')
    k(f'v_lshl_add_u32 v{vD0}, v{tmp+1}, 20, v{tmp+4}')
    k('s_lshl_b32 s48, s45, 22')
    k('s_lshl_b32 s62, s43, 8')
    k('s_add_u32 s48, s48, s62')
    k(f'v_add_u32 v{vD0}, s48, v{vD0}')
    if split2:
        k(f'v_mul_u32_u24 v{tmp+5}, {3584*256}, v{tmp+1}')
        k(f'v_add_u32 v{vD2}, v{tmp+4}, v{tmp+5}')
        k(f's_mul_i32 s48, s45, {4*3584*256}')
        k('s_add_u32 s48, s48, s62')
        k(f's_add_u32 s48, s48, {WS_W2 - WS_WO}')
        k(f'v_add_u32 v{vD2}, s48, v{vD2}')
        k(f's_mov_b32 s{sXB}, {WS_XB - WS_WO}')
        for i in range(4): k(f'v_mov_b32 v{68+i}, -1')
    else:
        k('s_bfe_u32 s48, s43, 0x20001')
        k('s_lshl_b32 s48, s48, 1')
        k(f'v_and_b32 v{tmp+4}, 7, v1')
        k(f'v_xor_b32 v{tmp+4}, s48, v{tmp+4}')
        k(f'v_lshrrev_b32 v{tmp+5}, 3, v1')
        k(f'v_mul_u32_u24 v{tmp+5}, {3584*128}, v{tmp+5}')
        k(f'v_lshl_add_u32 v{vD2}, v{tmp+4}, 4, v{tmp+5}')
        k(f's_mul_i32 s48, s45, {8*3584*128}')
        k('s_lshl_b32 s62, s43, 7')
        k('s_add_u32 s48, s48, s62')
        k(f's_add_u32 s48, s48, {WS_W2 - WS_WO}')
        k(f'v_add_u32 v{vD2}, s48, v{vD2}')
    k(f'v_mul_u32_u24 v{tmp+4}, 74, v1')
    k(f'v_lshrrev_b32 v{tmp+4}, 10, v{tmp+4}')
    k(f'v_mul_u32_u24 v{tmp+5}, 14, v{tmp+4}')
    k(f'v_sub_u32 v{tmp+5}, v1, v{tmp+5}')
    k(f'v_mul_u32_u24 v{tmp+4}, 7168, v{tmp+4}')
    k(f'v_lshl_add_u32 v{vS1}, v{tmp+5}, 4, v{tmp+4}')
    k('s_and_b32 s48, s42, 31')
    k('s_lshr_b32 s62, s42, 5')
    k(f's_mul_i32 s{sL1}, s48, 224')
    k(f's_mul_i32 s45, s62, {4*7168}')
    k(f's_add_u32 s{sL1}, s{sL1}, s45')
    k(f's_mul_i32 s48, s48, {1024*224}')
    k('s_mul_i32 s62, s62, 896')
    k('s_add_u32 s48, s48, s62')
    k(f's_add_u32 s48, s48, {WS_W1 - WS_WO}')
    k(f'v_lshl_add_u32 v{vD1}, v1, 4, s48')
    k('v_cmp_lt_u32 vcc, 55, v1')
    k(f'v_mov_b32 v{tmp+4}, 0x70000000')
    k('s_nop 0')
    k(f'v_cndmask_b32 v{vS1}, v{vS1}, v{tmp+4}, vcc')
    k(f'v_cndmask_b32 v{vD1}, v{vD1}, v{tmp+4}, vcc')
    k('s_mov_b32 s62, 3584 * 2048')
    GA = [48, 49, 50, 51, 52, 53, 63, 2]; vGW, vGS, vGT0, vGT1, vGA, vGB = 28, 27, 26, 3, 4, 5
    sGW, sGS = 76, 77
    if not front: k.srd(64, 64, 1024 * 12288)
    srd_off(k, 68, 10, 0, 1 * MB)
    k(f'v_lshrrev_b32 v{vGB}, 3, v1')
    k(f'v_mul_u32_u24 v{vGA}, 12288, v{vGB}')
    k(f'v_and_b32 v{vGT1}, 7, v1')
    k(f'v_lshl_add_u32 v{vGA}, v{vGT1}, 4, v{vGA}')
    k(f'v_lshlrev_b32 v{vGB}, 2, v{vGB}')
    k('s_and_b32 s48, s42, 15')
    k(f's_mul_i32 s{sGW}, s48, {64*12288}')
    k('s_lshr_b32 s43, s2, 2')
    k('s_lshl_b32 s45, s43, 7')
    k(f's_add_u32 s{sGW}, s{sGW}, s45')
    k(f's_add_u32 s{sGW}, s{sGW}, 4096')
    k(f's_lshl_b32 s{sGS}, s{42 if front else 48}, 8')
    k(f's_add_u32 s{sGS}, s{sGS}, {WS_SCP if front else WS_SC}')
    k('s_lshl_b32 s48, s48, 14')
    k('s_lshl_b32 s43, s43, 8')
    k('s_add_u32 s43, s43, s48')
    k(f's_add_u32 s43, s43, {WS_MP2}')
    for r in GA: k(f'v_mov_b32 v{r}, 0')
    k.code_srd(4, Ltail)
    k('s_lshr_b32 s8, s2, 3')
    k('s_lshl_b32 s8, s8, 12')
    k('v_lshlrev_b32 v6, 4, v0')
    gld = [f'buffer_load_dwordx4 {R4("v", vGW)}, v{vGA}, s[64:67], s{sGW} offen',
           f'buffer_load_dword v{vGS}, v{vGB}, s[68:71], s{sGS} offen',
           f's_add_u32 s{sGW}, s{sGW}, {8*12288}', f's_add_u32 s{sGS}, s{sGS}, 32']
    gfma = []
    for j in range(4):
        gfma += [f'v_lshlrev_b32 v{vGT0}, 16, v{vGW+j}', f'v_and_b32 v{vGT1}, 0xffff0000, v{vGW+j}',
                 f'v_fmac_f32 v{GA[2*j]}, v{vGT0}, v{vGS}', f'v_fmac_f32 v{GA[2*j+1]}, v{vGT1}, v{vGS}']
    k(f's_mov_b32 s{sTH}, 0x{f2u(2.0**thresh_log2):08x}')
    g.stamp_first = 5 if P0 else 1
    g.emit(loop_sreg=None)
    k.stamp(6 if P0 else 2)
    if P0: k.stamp(7); k.stamp = lambda i: (Kern.stamp(k, i) if i == 8 else None)
    if 'touch' in sys.argv: k(f's_load_dwordx2 s[16:17], s[0:1], {A_OUT}')
    k('s_waitcnt vmcnt(20)')
    k('s_barrier')
    Kfr = lambda kb, ds: aF + 32 + (4 * kb + ds) * 4
    Vfr = lambda db: aF + 4 * db
    def kread(unit, kb, ds, dst=None):
        off = SL((unit >> 1) & 3) + ((unit & 1) * 32 + kb * 16) * 256
        return f'ds_read_b128 {R4("a", Kfr(kb, ds) if dst is None else dst)}, v{vKA+ds} offset:{off}'
    def vread(unit, db, hf):
        off = SL((unit >> 1) & 3) + ((unit & 1) * 32 + hf * 16) * 256
        return f'ds_read_b64_tr_b16 {R2("a", Vfr(db) + 2*hf)}, v{vVA+db} offset:{off}'
    for kb in range(2):
        for ds in range(4): k(kread(0, kb, ds, dst=Vfr(4 * kb + ds)))
    sc = math.log2(math.e) / math.sqrt(128.0)
    k(f'v_mov_b32 v46, 0x{f2u(sc):08x}'); k(f'v_mov_b32 v47, 0x{f2u(sc):08x}')
    Qf = lambda qb, ds: vQ + (qb * 4 + ds) * 4
    for u in range(4):
        for qb in range(4):
            p = Qf(qb, u)
            for h in range(2):
                A = acc0 + ((2 * u + h) * 4 + qb) * 4
                k(f'v_pk_mul_f32 {R2("v", A)}, {R2("v", A)}, {R2("v", 46)}')
                k(f'v_pk_mul_f32 {R2("v", A+2)}, {R2("v", A+2)}, {R2("v", 46)}')
                k(f'v_cvt_pk_bf16_f32 v{p+2*h}, v{A}, v{A+1}')
                k(f'v_cvt_pk_bf16_f32 v{p+2*h+1}, v{A+2}, v{A+3}')
        for sw in ('32', '16'):
            for qb in range(4):
                p = Qf(qb, u)
                k(f'v_permlane{sw}_swap_b32 v{p}, v{p+2}')
                k(f'v_permlane{sw}_swap_b32 v{p+1}, v{p+3}')
    k('s_waitcnt lgkmcnt(0)')
    for kb in range(2):
        for ds in range(4): k(kread(1, kb, ds))
    Sb = lambda N, kb, qb: vS + 32 * (N & 1) + (kb * 4 + qb) * 4
    Pb = lambda N, qb: vP + 16 * (N & 1) + 4 * qb
    Lb = lambda qb: vL + 4 * qb
    NM = lambda qb: vNM + 4 * qb
    def qk(N, kb, ds, qb, fr=None, czero=False):
        d = R4('v', Sb(N, kb, qb))
        c = ('0' if czero else R4('v', NM(qb))) if ds == 0 else d
        return f'{MF} {d}, {R4("a", Kfr(kb, ds) if fr is None else fr)}, {R4("v", Qf(qb, ds))}, {c}'
    def pv(N, db, qb):
        d = R4('a', aO + (db * 4 + qb) * 4)
        return f'{MF} {d}, {R4("a", Vfr(db))}, {R4("v", Pb(N, qb))}, {d}'
    def ones(N, qb):
        return f'{MF} {R4("v", Lb(qb))}, {R4("v", vONE)}, {R4("v", Pb(N, qb))}, {R4("v", Lb(qb))}'
    def E(N, i):
        return f'v_exp_f32 v{vE + (i & 7)}, v{Sb(N, i >> 4, (i >> 2) & 3) + (i & 3)}'
    def C(N, j):
        i = 2 * j
        return f'v_cvt_pk_bf16_f32 v{Pb(N, (i >> 2) & 3) + 2 * (i >> 4) + ((i >> 1) & 1)}, v{vE + (i & 7)}, v{vE + (i & 7) + 1}'
    def xmax(D, X):
        for sw in ('16', '32'):
            k(f'v_mov_b32 v{X}, v{D}')
            k('s_nop 1')
            k(f'v_permlane{sw}_swap_b32 v{D}, v{X}')
            k(f'v_max_f32 v{D}, v{D}, v{X}')
    def interleave(mf, fill, cap=2):
        fi = 0
        for gi, m in enumerate(mf):
            k(m)
            used = 0
            while fi < len(fill) and fill[fi][2] <= gi and used + fill[fi][1] <= cap:
                k(fill[fi][0]); used += fill[fi][1]; fi += 1
        for x in fill[fi:]: k(x[0])

    NG = 68
    def build_iter(N):
        T = (N - 1) >> 1
        first_in_pair = (N & 1) == 1
        mf = [pv(N - 1, db, qb) for db in range(8) for qb in range(4)]
        mf += [ones(N - 1, qb) for qb in range(4)]
        import sys
        if 'nochain' in sys.argv: mf += [qk(N + 1, kb, ds, qb) for kb in range(2) for ds in range(4) for qb in range(4)]
        else: mf += [qk(N + 1, kb, ds, qb) for kb in range(2) for qb in range(4) for ds in range(4)]
        first = [[] for _ in range(NG)]; rest = [[] for _ in range(NG)]; cost = [0] * NG
        def put(g, ins, mem=False, c=1):
            (first if mem else rest)[g].append(ins); cost[g] += c
        for i in range(32):
            gp = E0 + 2 * i
            if gp < NG: put(gp, E(N + 1, i), c=2)
            else: put(gp - NG, E(N, i), c=2)
        for j in range(16):
            gp = E0 + 2 * (2 * j + 1) + 1
            if gp < NG: put(gp, C(N + 1, j))
            else: put(gp - NG, C(N, j))
        rd = []
        for db in range(8):
            for hf in range(2):
                gp = 4 * db - lead + 2 * hf
                rd.append((gp % NG, vread(N - 1 if gp >= 0 else N, db, hf), ('V', db) if gp >= 0 else ('Vn', db)))
        kg = (5, 9, 13, 15, 17, 21, 25, 29)
        for i in range(8):
            rd.append((kg[i], kread(N + 1, i >> 2, i & 3), ('K', i)))
        rd.sort(key=lambda x: x[0])
        for gp, ins, tag in rd: put(gp, ins, mem=True)
        cyc = [(gp - NG, 'V' if tag[0] == 'Vn' else 'old', tag[1]) for gp, _, tag in rd] + \
              [(gp, tag[0], tag[1]) for gp, _, tag in rd]
        waits = {}
        for at, kind, hi in ((0, 'V', 3), (16, 'V', 7), (36, 'K', 7)):
            lastidx = max(i for i, x in enumerate(cyc) if x[1] == kind and x[2] == hi)
            n_after = sum(1 for i, x in enumerate(cyc) if i > lastidx and x[0] < at)
            assert cyc[lastidx][0] < at
            waits[at] = n_after
        for at in (16, 36): put(at - 1, f's_waitcnt lgkmcnt({waits[at]})')
        put(NG - 1, f's_waitcnt lgkmcnt({waits[0]})')
        def putv(gp, ins):
            if 'plainpack' in sys.argv and ins.startswith('buffer_store'): ins += ' ; plain'
            assert cost[gp] == 0, (N, gp, first[gp], rest[gp])
            put(gp, ins, mem=True, c=2 if excl else 1)
        def puts(gp, seq, hi=NG):
            for ins in seq:
                while cost[gp] >= 2: gp += 1
                assert gp < hi, (N, ins)
                put(gp, ins)
                if ins.startswith('v_cmp'): gp += 2
        sideA = {0: [f'buffer_load_dwordx4 a[192:195], v{vPF}, s[32:35], s{sPF} offen ; pf'],
                 1: [f'buffer_store_dwordx4 a[196:199], v{vD1}, s[72:75], s{sST0} offen',
                     f'buffer_load_dwordx4 a[196:199], v{vS1}, s[36:39], s{sL1} offen'],
                 2: [f'buffer_store_dwordx4 a[200:203], v{vD2}, s[72:75], s{sST2} offen',
                     f'buffer_load_dwordx4 a[200:203], v{vPF}, s[60:63], s{sPF} offen'],
                 3: ['buffer_load_dwordx4 a[204:207], v6, s[4:7], s8 offen ; pf']}
        touch = [] if 'touch' not in sys.argv else [
            f'buffer_load_dwordx4 a[212:215], v{vPF}, s[28:31], s{sPF} offen ; pf',
            f'buffer_load_dwordx4 a[212:215], v{vT+3}, s[28:31], s{sPF} offen ; pf']
        if touch: sideA[0].append(f'buffer_load_dwordx4 a[212:215], v{vPF}, s[16:19], s{sPF} offen ; pf')
        sideB = {0: touch, 1: gld[:2],
                 2: [f'buffer_store_dwordx4 a[208:211], v{vPF}, s[72:75], s{sXB} offen'], 3: []}
        if 'pack2' not in sys.argv: sideA[2] = [sideA[2][1] + ' ; pf']
        if 'pack1' not in sys.argv: sideA[1] = [f'buffer_load_dwordx4 a[196:199], v{vPF}, s[36:39], s{sPF} offen ; pf']
        if 'nost' in sys.argv:
            for dd in (sideA, sideB):
                for kk in dd: dd[kk] = [x for x in dd[kk] if not x.startswith('buffer_store')]
        if 'nold' in sys.argv:
            for dd in (sideA, sideB):
                for kk in dd: dd[kk] = [x for x in dd[kk] if not x.startswith('buffer_load')]
        X = lambda T: len(sideA[T % 4]) + len(sideB[T % 4])
        if not first_in_pair:
            npf = X(T - 2) + X(T - 1) + X(T)
            put(39, f's_waitcnt vmcnt({16 + npf})'); put(39, 's_barrier')
            d = [x[0] for x in kdma((T + 1) % 4) if x[0] != 's_nop 0']
            put(43, d[0])
            putv(54, d[1]); putv(56, d[2])
            for gp, ins in zip((27, 31) if T % 4 == 1 else (7, 11), sideB[T % 4]): putv(gp, ins)
            if T % 4 == 1: puts(0, gfma[8:], hi=27)
            if T % 4 == 1: puts(33, gld[2:] + [f's_mul_i32 s{sST0}, s{sPF}, 7', f's_lshr_b32 s{sST0}, s{sST0}, 8', f's_add_u32 s{sL1}, s{sL1}, {128*7168}'])
            if T % 4 == 2: puts(19, [f's_add_u32 s{sXB}, s{sXB}, 0x100000', f's_lshr_b32 s{sST2}, s{sPF}, 3', f's_add_u32 s{sPF}, s{sPF}, 0x100000'])
            if T % 4 == 0: puts(41, gfma[:6])
        else:
            d = [x[0] for x in kdma(T % 4) if x[0] != 's_nop 0']
            putv(7, d[3]); put(11, d[4], mem=True)
            dv = [x[0] for x in vdma((T + 3) % 4) if x[0] != 's_nop 0']
            put(11, dv[0])
            for gp, ins in zip((19, 23, 27, 31), dv[1:5]): putv(gp, ins)
            puts(43, [d[5], dv[5]])
            for gp, ins in zip((39, 54), sideA[T % 4]): putv(gp, ins)
            if T % 4 == 1: puts(33, gfma[6:8])
            if T % 4 == 3: put(33, f's_sub_u32 s{sCNT}, s{sCNT}, 1')
        out = []
        for gi in range(NG):
            fl = first[gi] + rest[gi]
            if 'nobar' in dbg: fl = [x for x in fl if x != 's_barrier']
            if 'novm' in dbg: fl = [x for x in fl if not x.startswith(('buffer_', 's_waitcnt vmcnt'))]
            if 'nopack' in dbg: fl = [x for x in fl if not (x.startswith('buffer_') and not x.endswith(' lds'))]
            if 'nopack' in dbg: fl = ['s_waitcnt vmcnt(12)' if x.startswith('s_waitcnt vmcnt') else x for x in fl]
            for md in ('sc1', 'nt', 'sc0'):
                if 'kv' + md in dbg: fl = [x.replace(' lds', f' {md} lds') if x.endswith(' lds') else x for x in fl]
            if 'nods' in dbg: fl = [x for x in fl if not x.startswith(('ds_', 's_waitcnt lgkm'))]
            if 'noexp' in dbg: fl = [x for x in fl if not x.startswith('v_exp')]
            if 'nocvt' in dbg: fl = [x for x in fl if not x.startswith('v_cvt')]
            out.append(mf[gi]); out += fl
            if cost[gi] > 2: print('gap over', N, gi, cost[gi], first[gi] + rest[gi])
        return out, waits[0], rd

    mf0 = [qk(0, kb, ds, qb, fr=Vfr(4 * kb + ds), czero=True) for kb in range(2) for ds in range(4) for qb in range(4)]
    D = lambda qb: vE + qb
    X = lambda qb: vE + 4 + qb
    k(f's_mov_b32 s9, 0x{f2u(-float(bias)):08x}')
    if 'touch' in sys.argv: k.srd(16, 16, 4 * MB)
    f0 = [(f'v_add_u32 v{vT+3}, 0x800000, v{vPF}', 1, 0)] + [(f'v_accvgpr_write_b32 a{208+i}, -1', 1, 0) for i in range(4)] + [(f'v_mov_b32 v{vL+i}, 0', 1, 0) for i in range(16)] + [(f'v_mov_b32 v{vONE+i}, 0x3f803f80', 1, 0) for i in range(4)]
    for qb in range(4): f0.append((f'v_max3_f32 v{D(qb)}, v{Sb(0,0,qb)}, v{Sb(0,0,qb)+1}, v{Sb(0,0,qb)+2}', 1, 22))
    for qb in range(4): f0.append((f'v_max_f32 v{D(qb)}, v{D(qb)}, v{Sb(0,0,qb)+3}', 1, 0))
    interleave(mf0, f0)
    k('s_waitcnt lgkmcnt(0)')
    mf1 = [qk(1, kb, ds, qb, czero=True) for kb in range(2) for ds in range(4) for qb in range(4)]
    vn = [ins for gp, ins, tag in build_iter(0)[2] if tag[0] == 'Vn']
    f1 = [(x, 1, 0) for x in vn]
    for (M, kb, mg) in ((0, 1, 8), (1, 0, 20)):
        for h in range(2):
            for qb in range(4):
                f1.append((f'v_max3_f32 v{D(qb)}, v{D(qb)}, v{Sb(M,kb,qb)+2*h}, v{Sb(M,kb,qb)+2*h+1}', 1, mg + qb // 2))
    for sw in ('16', '32'):
        for qb in range(4): f1.append((f'v_mov_b32 v{X(qb)}, v{D(qb)}', 1, 0))
        for qb in range(4): f1.append((f'v_permlane{sw}_swap_b32 v{D(qb)}, v{X(qb)}', 1, 0))
        for qb in range(4): f1.append((f'v_max_f32 v{D(qb)}, v{D(qb)}, v{X(qb)}', 1, 0))
    for r in range(4):
        for qb in range(4): f1.append((f'v_sub_f32 v{NM(qb)+r}, s9, v{D(qb)}', 1, 0))
    interleave(mf1, f1)
    for M in range(2):
        for kb in range(2):
            for qb in range(4):
                for h in range(2):
                    r = Sb(M, kb, qb) + 2 * h
                    k(f'v_pk_add_f32 {R2("v", r)}, {R2("v", r)}, {R2("v", NM(qb))}')
    for i in range(0, 32, 2):
        k(E(0, i)); k(E(0, i + 1))
        if i: k(C(0, (i >> 1) - 1))
    k('s_nop 0')
    k(C(0, 15))
    for i in range(32):
        if E0 + 2 * i < NG: k(E(1, i)); k('s_nop 0')
        if i & 1 and E0 + 2 * i + 1 < NG: k(C(1, i >> 1))
    k(f's_mov_b32 s{sCNT}, 7')
    k('s_barrier')
    for x in kdma(0)[:4]: k(x[0])
    k(f's_waitcnt lgkmcnt({build_iter(1)[1]})')
    k.stamp(3)
    k(f'{Lloop}:')
    for N in range(1, 9):
        ins, w0, _ = build_iter(N)
        cnt = 0
        for idx, x in enumerate(ins):
            if x.startswith(MF):
                if N == 7 and cnt == 36:
                    k(f's_cbranch_scc1 {Ltail}')
                    tail_rest = ins[idx:]
                cnt += 1
            if N == 7 and 35 <= cnt <= 36: assert not (x.startswith('s_') and not x.startswith('s_waitcnt')), x
            k(x)
    k(f's_branch {Lloop}')
    k(f'{Ltail}:')
    k.stamp(4)
    N = 7
    for db in range(8):
        for hf in range(2): k(vread(N, db, hf))
    for x in tail_rest:
        if x.startswith('v_exp') and any(x == E(N, i) for i in range(32)): k(x); k('s_nop 0')
        elif x.startswith('v_cvt') and any(x == C(N, j) for j in range(16)): k(x)
    k('s_waitcnt lgkmcnt(0)')
    k('s_nop 0')
    red = [f'v_add_f32_dpp v{r}, v{r}, v{r} row_ror:8 row_mask:0xf bank_mask:0xf' for r in GA]
    red += [f'v_permlane16_swap_b32 v{GA[j]}, v{GA[j+1]}' for j in range(0, 8, 2)]
    red += [f'v_add_f32 v{GA[j]}, v{GA[j]}, v{GA[j+1]}' for j in range(0, 8, 2)]
    red += [f'v_and_b32 v{vGA}, 7, v1', f'v_lshrrev_b32 v{vGB}, 4, v1']
    if 'pack1' in sys.argv: red += ['s_waitcnt vmcnt(18)', f'buffer_store_dwordx4 a[196:199], v{vD1}, s[72:75], s{sST0} offen sc1']
    red += [f'v_permlane32_swap_b32 v{GA[0]}, v{GA[2]}', f'v_permlane32_swap_b32 v{GA[4]}, v{GA[6]}']
    red += [f'v_add_f32 v{GA[0]}, v{GA[0]}, v{GA[2]}', f'v_add_f32 v{GA[4]}, v{GA[4]}, v{GA[6]}']
    red += [f'v_lshl_add_u32 v{vGA}, v{vGA}, 3, v{vGB}', f'v_lshlrev_b32 v{vGA}, 2, v{vGA}']
    red += [f'buffer_store_dword v{GA[0]}, v{vGA}, s[68:71], s43 offen sc1', f'buffer_store_dword v{GA[4]}, v{vGA}, s[68:71], s43 offen offset:16 sc1']
    for qb in range(4): k(ones(N, qb))
    for db in range(8):
        for qb in range(4):
            k(pv(N, db, qb))
            if red: k(red.pop(0))
    assert not red
    k(f'v_max3_f32 v{vT}, v{Lb(0)}, v{Lb(1)}, v{Lb(2)}')
    k(f'v_max_f32 v{vT}, v{vT}, v{Lb(3)}')
    k(f'v_cmp_nge_f32 vcc, s{sTH}, v{vT}')
    k(f's_cbranch_vccnz {Lslow}')
    k('s_mov_b64 s[66:67], -1')
    k(f'{Lepi}:')
    k('s_setreg_imm32_b32 hwreg(HW_REG_MODE, 4, 2), 3')
    RC = vE
    for qb in range(4):
        k(f'v_rcp_f32 v{RC+2*qb}, v{Lb(qb)}')
        k('s_nop 0')
        k(f'v_mov_b32 v{RC+2*qb+1}, v{RC+2*qb}')
    k('v_lshlrev_b32 v6, 4, v1')
    k(f's_lshl_b32 s48, s{sHEAD}, 9')
    k(f's_add_u32 s48, s48, s{sMB0}')
    k('s_lshl_b32 s48, s48, 10')
    n = 0
    for u in range(4):
        for qb in range(4):
            X = vS + (n % 4) * 8; D = vP + (n % 4) * 4; n += 1
            for h in range(2):
                a = aO + ((2 * u + h) * 4 + qb) * 4
                for r in range(4): k(f'v_accvgpr_read_b32 v{X+4*h+r}, a{a+r}')
            if u == 0:
                k(f'v_max3_f32 v{vT+1}, abs(v{X}), abs(v{X+1}), abs(v{X+2})')
                k(f'v_max3_f32 v{vT+1}, v{vT+1}, abs(v{X+3}), abs(v{X+4})')
                k(f'v_max3_f32 v{vT+1}, v{vT+1}, abs(v{X+5}), abs(v{X+6})')
                k(f'v_mov_b32 v{vT}, v{vT+1}' if qb == 0 else f'v_min_f32 v{vT}, v{vT}, v{vT+1}')
            for j in range(4): k(f'v_pk_mul_f32 {R2("v", X+2*j)}, {R2("v", X+2*j)}, {R2("v", RC+2*qb)}')
            for j in range(4): k(f'v_cvt_pk_bf16_f32 v{D+j}, v{X+2*j}, v{X+2*j+1}')
            k(f'buffer_store_dwordx4 {R4("v", D)}, v6, s[28:31], s48 offen offset:{qb*1024}')
        if u == 0:
            k(f'v_cmp_gt_f32 vcc, 0x{ufl:08x}, v{vT}')
            k('s_and_b64 vcc, vcc, s[66:67]')
            k(f's_cbranch_vccnz {Lslow}')
        if u < 3: k('s_add_u32 s48, s48, 131072')
    Lnext = k.label('next')
    if then:
        k('s_setreg_imm32_b32 hwreg(HW_REG_MODE, 4, 2), 0')
        k(f's_branch {Lnext}')
    else:
        k.stamp_out(kidx)
    k(f'{Lend}:')
    k('s_endpgm')

    k(f'{Lslow}:')
    k('s_waitcnt vmcnt(0)')
    k('s_mov_b64 s[66:67], 0')
    MX = vL + 16
    vKG = vL + 20
    vVP = vL + 22
    vVG = vL + 30
    k(f'v_and_b32 v{tmp}, 15, v1')
    k(f'v_lshrrev_b32 v{tmp+1}, 4, v1')
    k(f'v_lshlrev_b32 v{vKG}, 8, v{tmp}')
    k(f'v_lshl_add_u32 v{vKG}, v{tmp+1}, 4, v{vKG}')
    k(f'v_add_u32 v{vKG+1}, 4096, v{vKG}')
    k(f's_lshl_b32 s48, s{sWAVE}, 13')
    k(f's_add_u32 s48, s48, {SL(8)}')
    k(f's_sub_u32 s49, s48, 0x10000')
    for db in range(8): k(f'v_add_u32 v{vVP+db}, s49, v{vVA+db}')
    for j in range(2): k(f'v_subrev_u32 v{vVG+j}, s{sM0}, v{vVD+j}')
    for qb in range(4): k(f'v_mov_b32 v{MX+qb}, 0xff7fffff')
    for i in range(16): k(f'v_mov_b32 v{vNM+i}, 0')
    k(f's_mov_b32 s{sFIRST}, 0')
    Lp = k.label('spass'); Lu = k.label('sunit'); Lp1 = k.label('sp1'); Lnx = k.label('snext'); Lnov = k.label('snov')
    k(f'{Lp}:')
    k(f's_mov_b32 s{sK}, 0')
    k(f'{Lu}:')
    for kb in range(2):
        for ds in range(4):
            k(f'buffer_load_dwordx4 {R4("a", Kfr(kb, ds))}, v{vKG+kb}, s[20:23], s{sK} offen offset:{ds*64}')
    k(f's_cmp_eq_u32 s{sFIRST}, 0')
    k(f's_cbranch_scc1 {Lnov}')
    for half in range(2):
        k(f's_add_u32 m0, s48, {half*4096}')
        k(f's_add_u32 s49, s{sK}, {half*4096}')
        for n in range(4):
            k(f'buffer_load_dwordx4 v{vVG+(n&1)}, s[24:27], s49 offen offset:{n*1024} lds')
    k(f'{Lnov}:')
    k('s_waitcnt vmcnt(0)')
    for kb in range(2):
        for ds in range(4):
            for qb in range(4): k(qk(0, kb, ds, qb))
    k('s_nop 7')
    k(f's_cmp_eq_u32 s{sFIRST}, 0')
    k(f's_cbranch_scc0 {Lp1}')
    for qb in range(4):
        regs = [Sb(0, kb, qb) + r for kb in range(2) for r in range(4)]
        for i in range(0, 8, 2): k(f'v_max3_f32 v{MX+qb}, v{MX+qb}, v{regs[i]}, v{regs[i+1]}')
    k(f's_branch {Lnx}')
    k(f'{Lp1}:')
    for db in range(8):
        for hf in range(2):
            k(f'ds_read_b64_tr_b16 {R2("a", Vfr(db) + 2*hf)}, v{vVP+db} offset:{hf*4096}')
    for i in range(0, 32, 2):
        k(E(0, i)); k(E(0, i + 1)); k('s_nop 0'); k(C(0, i >> 1))
    k('s_waitcnt lgkmcnt(0)')
    k('s_nop 0')
    for qb in range(4): k(ones(0, qb))
    for db in range(8):
        for qb in range(4): k(pv(0, db, qb))
    k(f'{Lnx}:')
    k(f's_add_u32 s{sK}, s{sK}, 8192')
    k(f's_cmp_lt_u32 s{sK}, 524288')
    k(f's_cbranch_scc1 {Lu}')
    k('s_nop 7')
    k(f's_cmp_eq_u32 s{sFIRST}, 0')
    k(f's_cbranch_scc0 {Lepi}')
    for qb in range(4):
        xmax(MX + qb, vT)
        for r in range(4): k(f'v_sub_f32 v{NM(qb)+r}, 0, v{MX+qb}')
    for i in range(16): k(f'v_mov_b32 v{vL+i}, 0')
    for i in range(128): k(f'v_accvgpr_write_b32 a{aO+i}, 0')
    k(f's_mov_b32 s{sFIRST}, 1')
    k(f's_branch {Lp}')
    k.noreplay = {Lepi, Lp}
    if then:
        k(f'{Lnext}:')
        then(k)
    return k
```

```python
from gen_gk import *

import sys
FSH = 7
SLEEP = 4
for a in sys.argv:
    if a.startswith('sleep='): SLEEP = int(a[6:])
LATE = 'early' not in sys.argv
P3 = 'p3' in sys.argv
CHEAP = 'nocheap' not in sys.argv
WIDE = 'nowide' not in sys.argv
RAW2 = 'pack2' not in sys.argv
RAW1 = 'pack1' not in sys.argv
sWS, sB1, sOUT, sB2, sWAVE = 4, 6, 8, 10, 44
vW = 8
sNONCE = 101
ONE = 'one' in sys.argv

def sentinel(k, regs, acc):
    k(f'v_max3_u32 v{acc}, v{regs[0]}, v{regs[1]}, v{regs[2]}')
    i = 3
    while i + 1 < len(regs):
        k(f'v_max3_u32 v{acc}, v{acc}, v{regs[i]}, v{regs[i+1]}'); i += 2
    if i < len(regs): k(f'v_max_u32 v{acc}, v{acc}, v{regs[i]}')

def publish(k, s_off, srd=68):
    L = k.label('pub')
    k('s_waitcnt vmcnt(0)')
    k('s_barrier')
    k(f's_cmp_lg_u32 s{sWAVE}, 0')
    k(f's_cbranch_scc1 {L}')
    k('v_mov_b32 v3, 0')
    k(f'v_mov_b32 v4, s{sNONCE}' if ONE else 'v_mov_b32 v4, 1')
    k(f'buffer_store_dword v4, v3, s[{srd}:{srd+3}], s{s_off} offen sc1')
    k(f'{L}:')

def await_flags(k, s_off, n, srd=68):
    L = k.label('aw'); Ld = k.label('awd')
    k(f's_cmp_lg_u32 s{sWAVE}, 0')
    k(f's_cbranch_scc1 {Ld}')
    if n: k(f'v_and_b32 v3, {n-1}, v1')
    k(f'v_lshlrev_b32 v3, {FSH}, v3')
    k('s_mov_b32 s53, 0x80000')
    k(f'{L}:')
    if SLEEP: k(f's_sleep {SLEEP}')
    k(f'buffer_load_dword v4, v3, s[{srd}:{srd+3}], s{s_off} offen sc1')
    k('s_sub_u32 s53, s53, 1')
    k('s_cselect_b64 s[58:59], 0, -1')
    k('s_waitcnt vmcnt(0)')
    k(f'v_cmp_ne_u32 vcc, s{sNONCE}, v4' if ONE else 'v_cmp_eq_u32 vcc, 0, v4')
    k('s_and_b64 vcc, vcc, s[58:59]')
    k(f's_cbranch_vccnz {L}')
    k(f'{Ld}:')
    k('s_barrier')

def widen(k, X, Y, T):
    for r in range(4): k(f'v_mov_b32 v{T+r}, v{X+r}')
    for r in range(4): k(f'v_mov_b32_dpp v{X+r}, v{Y+r} row_ror:8 row_mask:0xf bank_mask:0xc')
    for r in range(4): k(f'v_mov_b32_dpp v{Y+r}, v{T+r} row_ror:8 row_mask:0xf bank_mask:0x3')

def wide_addr(k, v, t):
    k(f'v_and_b32 v{v}, 7, v1')
    k(f'v_lshlrev_b32 v{v}, 11, v{v}')
    k(f'v_bfe_u32 v{t}, v1, 3, 1')
    k(f'v_lshl_add_u32 v{v}, v{t}, 6, v{v}')
    k(f'v_lshrrev_b32 v{t}, 4, v1')
    k(f'v_lshl_add_u32 v{v}, v{t}, 4, v{v}')

def coords_128(k):
    k('s_bfe_u32 s40, s2, 0x10002')
    k('s_bfe_u32 s42, s2, 0x10001')
    k('s_lshl_b32 s42, s42, 3')
    k('s_lshr_b32 s43, s2, 5')
    k('s_add_u32 s42, s42, s43')
    k('s_and_b32 s43, s2, 1')
    k('s_lshl_b32 s43, s43, 2')
    k('s_bfe_u32 s41, s2, 0x20003')
    k('s_add_u32 s43, s43, s41')
    k('s_lshl_b32 s47, s42, 3')
    k(f's_lshl_b32 s48, s{sWAVE}, 1')
    k('s_add_u32 s47, s47, s48')

def gen_back(kidx=3, k=None):
    S = 8; MODL = S * 16384
    fused = k is not None
    if not fused:
        k = Kern('oproj_kernel', (256, 1, 1), (256, 1, 1), MODL + 12288, vgpr=256, agpr=220, sgpr=78)
    k.plain_stores = True
    Lend = k.label('end')
    if not fused:
        k('s_cmp_ge_u32 s2, 256')
        k(f's_cbranch_scc1 {Lend}')
        k.stamp(0)
    st = (lambda i: None) if fused else k.stamp
    if fused and 'pb' in sys.argv:
        st = lambda i: Kern.stamp(k, i)
        k.stamp = lambda i: (Kern.stamp(k, 0) if i == 6 else (Kern.stamp(k, 8) if i == 8 else None))
    k(f's_load_dwordx2 s[{sWS}:{sWS+1}], s[0:1], {A_WS}')
    k(f's_load_dwordx2 s[28:29], s[0:1], {A_X}')
    k(f's_load_dwordx2 s[{sB1}:{sB1+1}], s[0:1], {A_B1}')
    k(f's_load_dwordx2 s[{sOUT}:{sOUT+1}], s[0:1], {A_OUT}')
    k(f's_load_dwordx2 s[{sB2}:{sB2+1}], s[0:1], {A_B2}')
    k(f's_load_dwordx2 s[12:13], s[0:1], {A_WO}')
    k('v_and_b32 v1, 63, v0')
    k('v_lshrrev_b32 v2, 6, v0')
    k('s_nop 0')
    k(f'v_readfirstlane_b32 s{sWAVE}, v2')
    NA, NB, LP, RA, PD = 8, 2, 256, 8, 4
    coords_128(k)
    vX = 12; vA = 16; vA2 = 24; tmp = 32
    k(f's_lshl_b32 s52, s{sWAVE}, 12')
    k(f'v_lshl_add_u32 v{vW}, v1, 4, s52')
    wd = [(vW, n * 1024) for n in range(4)]
    wdo = wdma_regs(k, 56, LP, 2048, 16, tmp, 1, sWAVE)
    k('s_lshl_b32 s48, s47, 10')
    k(f'v_lshl_add_u32 v{vX}, v1, 4, s48')
    k(f'v_add_u32 v{vX+1}, 0x20000, v{vX}')
    k('s_lshl_b32 s50, s43, 8')
    k('s_lshl_b32 s48, s40, 22')
    k('s_add_u32 s50, s50, s48')
    k('s_lshl_b32 s51, s40, 23')
    k('s_waitcnt lgkmcnt(0)')
    k.srd(12, 12, 4096 * 2048)
    srd_off(k, 16, sWS, WS_O, 16 * MB)
    srd_off(k, 68, sWS, WS_FL, 768 << FSH)
    acc0 = 64; XR = 128
    ext = {}
    g = Gemm(k, NA, NB, LP, S, PD, RA, 32,
             acc=lambda a, b: R4('v', acc0 + (a * NB + b) * 4),
             aring=lambda s: ('a', 16 * S + 4 * s),
             bring=lambda st, ks, b: R4('a', st * 16 + (ks * NB + b) * 4),
             vA=[[vA + a for a in range(NA)], [vA2 + a for a in range(NA)]], lds_base=0,
             srdW=12, sW=50, wpitch=2048, wdma=wdo, sM0=52, srdX=16, sX=51, vX=[vX, vX + 1], wait_every=2,
             extra_loads=lambda t: ext.get(t, []), xmod=' sc1', pre_w=fused)
    if fused:
        k(f's_lshl_b32 s45, s2, {FSH}')
        k(f's_add_u32 s45, s45, {512 << FSH}')
        publish(k, 45)
        k.stamp(5)
        for x in g.wpreload(): k(x)
        k('v_and_b32 v3, 3, v1')
        k('v_bfe_u32 v4, v1, 2, 2')
        k('v_lshl_add_u32 v4, v3, 3, v4')
        k('s_lshr_b32 s45, s42, 1')
        k('s_lshl_b32 s45, s45, 5')
        k('s_lshl_b32 s46, s40, 2')
        k('s_add_u32 s45, s45, s46')
        k('v_add_u32 v4, s45, v4')
        k('s_and_b32 s45, s2, 0xfc')
        k('v_add_u32 v3, s45, v3')
        k('v_cmp_gt_u32 vcc, 16, v1')
        k(f's_mov_b32 s45, {512 << FSH}')
        k('s_nop 0')
        k('v_cndmask_b32 v3, v3, v4, vcc')
        await_flags(k, 45, 0)
        k.stamp(6)
    g.make_sched(*((5, [2]) if fused else (3, [1, 2, 2, 2, 2])))
    g.prologue_loads()
    tr_addr_regs(k, vA, NA, LP, tmp, 1)
    for a in range(NA): k(f'v_add_u32 v{vA2+a}, 0x10000, v{vA+a}')
    fin = mod_finalize(k, sWS, 56, 40, 1)
    g.vq += ['m'] * 4
    rec = Kern('rec', None, None, 0, 0); fin(rec)
    ext[5 if fused else 2] = [[x] for x in rec.lines]
    Ltail = k.label('tail')
    k.code_srd(32, Ltail)
    k('s_lshr_b32 s55, s2, 3')
    k('s_lshl_b32 s55, s55, 12')
    k('v_lshlrev_b32 v52, 4, v0')
    k.srd(28, 28, 4 * MB)
    k.srd(72, sB2, 2048)
    srd_off(k, 24, sWS, WS_P, 8 * MB)
    srd_off(k, 20, sWS, WS_MOD32 + 8192, 12288)
    srd_off(k, 36, sWS, WS_X1, 4 * MB)
    srd_off(k, 64, sWS, WS_Y, 4 * MB)
    k('v_and_b32 v4, 15, v1')
    k('v_lshrrev_b32 v5, 4, v1')
    k('v_lshlrev_b32 v6, 11, v4')
    k('v_lshl_add_u32 v7, v5, 4, v6')
    k('v_lshlrev_b32 v3, 4, v1')
    wide_addr(k, 14, 15)
    k('v_add_u32 v15, 0x4000, v14')
    k('s_lshl_b32 s48, s47, 15')
    k('s_lshl_b32 s49, s43, 8')
    k('s_add_u32 s48, s48, s49')
    k('s_lshl_b32 s49, s40, 22')
    k('s_add_u32 s48, s48, s49')
    k('s_add_u32 s49, s48, 32768')
    k('s_lshl_b32 s46, s42, 4')
    k('s_lshl_b32 s45, s43, 1')
    k('s_add_u32 s46, s46, s45')
    k('s_add_u32 s46, s46, s40')
    k('s_lshl_b32 s54, s46, 14')
    k(f's_add_u32 s45, s54, {4*MB}')
    k(f's_mul_i32 s41, s{sWAVE}, 3072')
    ext[25] = [['buffer_load_dwordx4 v[48:51], v52, s[32:35], s55 offen ; pf'],
               ['buffer_load_dwordx4 v[48:51], v52, s[72:75], 0 offen ; pf']]
    ext[26] = [[f'buffer_load_dwordx4 {R4("v", XR + 4*j)}, v{vW}, s[28:31], s54 offen offset:{j*1024}'] for j in range(4)]
    allf = [f'buffer_load_dword v{60+j}, v53, s[68:71], s{63 if j & 1 == 0 else 62} offen sc1'.replace('v53', 'v53' if j < 2 else 'v54') for j in range(4)]
    if fused:
        k(f'v_lshlrev_b32 v53, {FSH}, v1')
        k(f'v_add_u32 v54, {128 << FSH}, v53')
        ext[27] = [[f's_mov_b32 s63, {512 << FSH}'], [f's_mov_b32 s62, {576 << FSH}']] + [[x] for x in allf]
    ext[28] = [[f's_add_u32 m0, s41, {MODL}'], ['s_nop 0']] + \
              [[f'buffer_load_dwordx4 v3, s[20:23], s41 offen offset:{j*1024} sc1 lds'] for j in range(3)]
    g.emit(loop_sreg=53)
    if not P3: st(1)
    if fused: k.stamp(7)
    k(f'{Ltail}:')
    if fused:
        La = k.label('allchk'); Lao = k.label('allok')
        k('s_mov_b32 s53, 0x80000')
        k('s_mov_b32 s76, 0')
        if ONE: srd_off(k, 32, sWS, 0, 65536)
        k('s_waitcnt vmcnt(3)')
        k(f'{La}:')
        if ONE:
            for j in range(4): k(f'v_xor_b32 v{60+j}, s{sNONCE}, v{60+j}')
            k('v_or3_b32 v4, v60, v61, v62')
            k('v_or_b32 v4, v4, v63')
        else:
            k('v_min3_u32 v4, v60, v61, v62')
            k('v_min_u32 v4, v4, v63')
        k('s_sub_u32 s53, s53, 1')
        k('s_cselect_b64 s[58:59], 0, -1')
        k('v_cmp_ne_u32 vcc, 0, v4' if ONE else 'v_cmp_eq_u32 vcc, 0, v4')
        k('s_and_b64 vcc, vcc, s[58:59]')
        k(f's_cbranch_vccz {Lao}')
        k('s_mov_b32 s76, -1')
        for x in allf: k(x)
        k('s_waitcnt vmcnt(0)')
        k(f's_branch {La}')
        k(f'{Lao}:')
        if ONE:
            Lc = k.label('cnt')
            k(f's_or_b32 s53, s2, s{sWAVE}')
            k(f's_cbranch_scc1 {Lc}')
            k('v_mov_b32 v60, 0')
            k(f'v_mov_b32 v61, s{sNONCE}')
            k(f's_mov_b32 s53, {WS_NONCE}')
            k('buffer_store_dword v61, v60, s[56:59], s53 offen sc1'.replace('s[56:59]', 's[32:35]'))
            k(f'{Lc}:')
        k.norep2 = La
    else:
        k('s_nop 5')
    n = 0
    for u in range(4):
        ps = []
        for b in range(NB):
            p = 144 + n * 4; n += 1
            ps.append(p)
            A0 = acc0 + ((2 * u) * NB + b) * 4; A1 = acc0 + ((2 * u + 1) * NB + b) * 4
            k(f'v_cvt_pk_bf16_f32 v{p}, v{A0}, v{A0+1}')
            k(f'v_cvt_pk_bf16_f32 v{p+1}, v{A0+2}, v{A0+3}')
            k(f'v_cvt_pk_bf16_f32 v{p+2}, v{A1}, v{A1+1}')
            k(f'v_cvt_pk_bf16_f32 v{p+3}, v{A1+2}, v{A1+3}')
        for sw in ('32', '16'):
            for p in ps:
                k(f'v_permlane{sw}_swap_b32 v{p}, v{p+2}')
                k(f'v_permlane{sw}_swap_b32 v{p+1}, v{p+3}')
        if not WIDE:
            for b, p in enumerate(ps):
                k(f'buffer_store_dwordx4 {R4("v", p)}, v7, s[24:27], s{48+b} offen offset:{u*64} sc1')
        elif u & 1:
            for b, p in enumerate(ps):
                widen(k, p - 8, p, 32 + 4 * b)
            for b, p in enumerate(ps):
                k(f'buffer_store_dwordx4 {R4("v", p-8)}, v14, s[24:27], s{48+b} offen offset:{(u>>1)*128} sc1')
                k(f'buffer_store_dwordx4 {R4("v", p)}, v15, s[24:27], s{48+b} offen offset:{(u>>1)*128} sc1')
    k('s_waitcnt vmcnt(8)')
    k('s_barrier')
    GA, SB, CB = 176, 192, 208
    X = [64, 80]
    k(f'v_add_u32 v10, {MODL}, v3')
    for base, sec in ((GA, 0), (SB, 1), (CB, 2)):
        for h in range(2):
            for q in range(2):
                k(f'ds_read_b128 {R4("v", base + 8*h + 4*q)}, v10 offset:{sec*4096 + h*2048 + q*1024}')
    for r in range(2):
        unpack8(k, X[r], XR + 8 * r); unpack8(k, X[r] + 8, XR + 8 * r + 4)
    k('s_and_b32 s40, s2, 7')
    k('s_lshr_b32 s41, s2, 3')
    k('s_lshr_b32 s42, s40, 2')
    k('s_lshl_b32 s42, s42, 2')
    k('s_lshr_b32 s43, s41, 3')
    k('s_add_u32 s42, s42, s43')
    k('s_and_b32 s43, s40, 3')
    k('s_lshl_b32 s43, s43, 3')
    k('s_and_b32 s41, s41, 7')
    k('s_add_u32 s43, s43, s41')
    k('s_mul_i32 s62, s43, 224')
    k.srd(28, sB1, 7168)
    S1 = 6; BP = 40; BI = 64; acc1 = 96
    ext1 = {}
    if RAW1:
        k(f's_load_dwordx2 s[12:13], s[0:1], {A_W1}')
        k('s_mov_b32 s50, s62')
        kw = dict(LP=256, vA=[[vA + a for a in range(7)], [vA2 + a for a in range(7)]], aimm=0, wpitch=7168, wdma=[(208 + n, n * 1024) for n in range(4)])
    else:
        k(f's_cmp_eq_u32 s{sWAVE}, 3')
        k('s_cselect_b32 s41, 0x7ff00000, 0')
        k(f'v_add_u32 v{vW+1}, s41, v{vW}')
        k('s_lshl_b32 s50, s62, 10')
        srd_off(k, 12, sWS, WS_W1, 1024 * 7168)
        kw = dict(LP=224, vA=[[vA] * 7, [vA + 1] * 7], aimm=32, wpitch=224, wdma=[(vW, 0), (vW, 1024), (vW + 1, 2048), (vW + 1, 3072)])
    g1 = Gemm(k, NA=7, NB=4, S=S1, PD=4, RA=7, ntiles=16,
              acc=lambda a, b: R4('v', acc1 + (a * 4 + b) * 4),
              aring=lambda s: ('a', 32 * S1 + 4 * s),
              bring=lambda st, ks, b: R4('a', st * 32 + (ks * 4 + b) * 4),
              lds_base=32768, tile_bytes=16384, srdW=12, sW=50,
              sM0=52, srdX=64, sX=51, vX=[vX, vX + 1], cinit=lambda a, b: R4('v', BI + 4 * a),
              extra_loads=lambda t: ext1.get(t, []), pre_w=True, xmod=' sc1', **kw)
    g1.wmod = '' if RAW1 else ' sc1'
    k('s_mov_b32 s60, 0x3a800000')
    k('s_mov_b32 s61, 0xba800000')
    k('s_mov_b32 s53, 0x40000')
    k('s_waitcnt lgkmcnt(0)')
    Lm = k.label('modchk'); Lmok = k.label('modok')
    k(f'{Lm}:')
    sentinel(k, list(range(GA, GA + 48)), 4)
    if fused:
        k('v_or_b32 v4, s76, v4')
        k('s_mov_b32 s76, 0')
    k('s_sub_u32 s53, s53, 1')
    k('s_cselect_b64 s[58:59], 0, -1')
    k('v_cmp_eq_u32 vcc, -1, v4')
    k('s_and_b64 vcc, vcc, s[58:59]')
    k(f's_cbranch_vccz {Lmok}')
    for j in range(12):
        k(f's_mov_b32 s41, {(j >> 2) * 4096}')
        k(f'buffer_load_dwordx4 {R4("v", GA + 4*j)}, v3, s[20:23], s41 offen offset:{(j & 3)*1024} sc1')
    k('s_waitcnt vmcnt(0)')
    k(f's_branch {Lm}')
    k(f'{Lmok}:')
    k('s_mov_b32 s53, 0x80000')
    if not CHEAP: k('s_waitcnt vmcnt(0)')
    RX = 224
    Lp = k.label('poll'); Lq = k.label('cheap')
    if CHEAP:
        k('v_and_b32 v4, 7, v1')
        k('v_lshlrev_b32 v4, 8, v4')
        k('v_bfe_u32 v11, v1, 3, 1')
        k('v_lshl_add_u32 v11, v11, 22, v4')
        k('v_add_u32 v11, s52, v11')
    k(f'{Lp}:')
    if CHEAP:
        Lq1 = k.label('cheap1')
        k(f's_branch {Lq1}')
        k(f'{Lq}:')
        k(f's_sleep {SLEEP}')
        k(f'{Lq1}:')
        k(f'buffer_load_dword v4, v11, s[24:27], s54 offen offset:{2048+252} sc1')
        k('s_sub_u32 s53, s53, 1')
        k('s_cselect_b64 s[58:59], 0, -1')
        k('s_waitcnt vmcnt(0)')
        k('v_cmp_eq_u32 vcc, -1, v4')
        k('s_and_b64 vcc, vcc, s[58:59]')
        k(f's_cbranch_vccnz {Lq}')
        k('s_max_i32 s53, s53, 0')
    for kh in range(2):
        for j in range(4):
            k(f'buffer_load_dwordx4 {R4("v", RX + 16*kh + 4*j)}, v{vW}, s[24:27], s{54 if kh == 0 else 45} offen offset:{j*1024} sc1')
    k('s_sub_u32 s53, s53, 1')
    k('s_cselect_b64 s[58:59], 0, -1')
    k('s_waitcnt vmcnt(0)')
    sentinel(k, list(range(RX, RX + 32)), 4)
    k('v_cmp_eq_u32 vcc, -1, v4')
    k('s_and_b64 vcc, vcc, s[58:59]')
    k(f's_cbranch_vccnz {Lp}')
    if not P3: st(2)
    streams = []
    for r in range(2):
        q = Kern('rec', None, None, 0, 0)
        U0, U1, T, PK = 96 + 16 * r, 144 + 16 * r, 32 + 4 * r, 128 + 8 * r
        unpack8(q, U0, RX + 8 * r); unpack8(q, U0 + 8, RX + 8 * r + 4)
        unpack8(q, U1, RX + 16 + 8 * r); unpack8(q, U1 + 8, RX + 16 + 8 * r + 4)
        x = X[r]
        for j in range(0, 16, 2): q(f'v_pk_add_f32 {R2("v", U0+j)}, {R2("v", U0+j)}, {R2("v", U1+j)}')
        for j in range(0, 16, 2): q(f'v_pk_fma_f32 {R2("v", x+j)}, {R2("v", U0+j)}, {R2("v", GA+j)}, {R2("v", x+j)}')
        for j in range(8): q(f'v_cvt_pk_bf16_f32 v{PK+j}, v{x+2*j}, v{x+2*j+1}')
        q(f'buffer_store_dwordx4 {R4("v", PK)}, v{vW}, s[36:39], s54 offen offset:{r*2048} sc1')
        q(f'buffer_store_dwordx4 {R4("v", PK+4)}, v{vW}, s[36:39], s54 offen offset:{r*2048+1024} sc1')
        ln_fast(q, x, T, 60)
        for j in range(0, 16, 2): q(f'v_pk_mul_f32 {R2("v", x+j)}, {R2("v", x+j)}, {R2("v", T)}')
        for j in range(0, 16, 2): q(f'v_pk_fma_f32 {R2("v", x+j)}, {R2("v", x+j)}, {R2("v", CB+j)}, {R2("v", SB+j)}')
        ln_fast(q, x, T, 60)
        for j in range(0, 16, 2): q(f'v_pk_mul_f32 {R2("v", x+j)}, {R2("v", x+j)}, {R2("v", T)}')
        for j in range(8): q(f'v_cvt_pk_bf16_f32 v{U0+j}, v{x+2*j}, v{x+2*j+1}')
        streams.append(q.lines)
    k('v_lshlrev_b32 v4, 3, v5')
    pre = [f'buffer_load_dwordx2 {R2("v", BP + 2*a)}, v4, s[28:31], s62 offen offset:{a*32}' for a in range(7)] + \
          ([] if LATE else [x for x in g1.wpreload() if x != 's_nop 0'])
    cnt = 0
    for a, b in zip(*streams):
        if a == 's_nop 1': k('s_nop 0'); continue
        if a == 's_nop 0': continue
        k(a); k(b)
        cnt += 1
        if cnt % 3 == 0 and pre: k(pre.pop(0))
    assert not pre
    k('v_lshrrev_b32 v5, 2, v1')
    k('v_mul_u32_u24 v5, 528, v5')
    k('v_and_b32 v6, 1, v1')
    k('v_lshl_add_u32 v5, v6, 8, v5')
    k('v_bfe_u32 v6, v1, 1, 1')
    k('v_lshl_add_u32 v5, v6, 3, v5')
    k('v_lshl_add_u32 v5, v2, 5, v5')
    for r in range(2):
        P = 96 + 16 * r
        k(f'ds_write_b64 v5, {R2("v", P)} offset:{16*r}')
        k(f'ds_write_b64 v5, {R2("v", P+2)} offset:{16*r+128}')
        k(f'ds_write_b64 v5, {R2("v", P+4)} offset:{16*r+16*528}')
        k(f'ds_write_b64 v5, {R2("v", P+6)} offset:{16*r+16*528+128}')
    k('v_lshrrev_b32 v6, 5, v0')
    k('v_and_b32 v7, 31, v0')
    k('v_mul_u32_u24 v5, 528, v6')
    k('v_lshl_add_u32 v5, v7, 4, v5')
    k('v_lshlrev_b32 v6, 17, v6')
    k('v_bfe_u32 v7, v0, 3, 2')
    k('v_lshl_add_u32 v6, v7, 8, v6')
    k('v_and_b32 v7, 7, v0')
    k('v_lshl_add_u32 v6, v7, 4, v6')
    k('s_lshr_b32 s48, s46, 1')
    k('s_lshl_b32 s48, s48, 10')
    k('s_and_b32 s49, s46, 1')
    k('s_lshl_b32 s49, s49, 7')
    k('s_add_u32 s48, s48, s49')
    k('s_waitcnt lgkmcnt(0)')
    k('s_barrier')
    for j in range(4): k(f'ds_read_b128 {R4("v", 144+4*j)}, v5 offset:{8*528*j}')
    for j in range(4):
        k(f's_waitcnt lgkmcnt({3-j})')
        k(f'buffer_store_dwordx4 {R4("v", 144+4*j)}, v6, s[64:67], s48 offen sc1')
        if j < 3: k(f's_add_u32 s48, s48, {8*131072}')
    k(f's_lshl_b32 s46, s46, {FSH}')
    k(f's_lshl_b32 s45, s42, {5+FSH}')
    k('s_lshl_b32 s47, s42, 4')
    k(f's_lshl_b32 s48, s{sWAVE}, 2')
    k('s_add_u32 s47, s47, s48')
    k('s_lshl_b32 s48, s47, 10')
    k(f'v_lshl_add_u32 v{vX}, v1, 4, s48')
    k(f'v_add_u32 v{vX+1}, 0x20000, v{vX}')
    k('s_mov_b32 s51, 0')
    if RAW1:
        k.srd(12, 12, 1024 * 7168)
        k('s_mov_b32 s63, s45'); k('s_mov_b32 s57, s46')
        wdma_regs(k, 208, 256, 7168, 14, tmp, 1, sWAVE)
        k('s_mov_b32 s45, s63'); k('s_mov_b32 s46, s57')
    else:
        k(f'v_lshrrev_b32 v{tmp}, 2, v1')
        k(f'v_mul_u32_u24 v{tmp}, 224, v{tmp}')
        k(f'v_and_b32 v{tmp+1}, 3, v1')
        k(f'v_lshl_add_u32 v{vA}, v{tmp+1}, 3, v{tmp}')
        k(f'v_add_u32 v{vA+1}, 0x10000, v{vA}')
    Lepi = k.label('epi')
    k.code_srd(32, Lepi)
    k('v_lshlrev_b32 v60, 4, v0')
    ext1[11] = [['buffer_load_dwordx4 v[56:59], v60, s[32:35], s55 offen ; pf']]
    publish(k, 46)
    if not P3: st(3)
    if LATE:
        for x in g1.wpreload(): k(x)
    for a in range(7):
        for j in range(2):
            k(f'v_lshlrev_b32 v{BI+4*a+2*j}, 16, v{BP+2*a+j}')
            k(f'v_and_b32 v{BI+4*a+2*j+1}, 0xffff0000, v{BP+2*a+j}')
    await_flags(k, 45, 32)
    if not P3: st(4)
    g1.make_sched(3, [2])
    g1.prologue_loads()
    g1.emit(loop_sreg=None)
    st(1 if P3 else 5)
    k(f'{Lepi}:')
    k('s_waitcnt vmcnt(0)')
    if not LATE: k('s_barrier')
    srd_off(k, 24, sWS, WS_HH, 2048 * 3584 * 2)
    k('s_and_b32 s62, s2, 1')
    k('s_lshl_b32 s62, s62, 2')
    k('s_bfe_u32 s63, s2, 0x20003')
    k('s_add_u32 s62, s62, s63')
    k('s_bfe_u32 s63, s2, 0x10002')
    if RAW2:
        k(f's_load_dwordx2 s[12:13], s[0:1], {A_W2}')
        k('s_lshl_b32 s50, s62, 8')
        k(f's_mul_i32 s63, s63, {1792*2048}')
        k('s_add_u32 s50, s50, s63')
        wd2 = wdma_regs(k, 208, LP, 2048, 16, tmp, 1, sWAVE)
        k('s_waitcnt lgkmcnt(0)')
        k.srd(12, 12, 3584 * 2048)
    else:
        wd2 = wd
        k(f's_mul_i32 s50, s62, {3584*256}')
        k(f's_mul_i32 s63, s63, {1792*256}')
        k('s_add_u32 s50, s50, s63')
        srd_off(k, 12, sWS, WS_W2, 3584 * 2048)
    NT = 28; SP = 184
    send = []
    for q in range(4):
        send += [[f'v_cvt_pk_bf16_f32 v{SP+4*q+j}, v{acc0+8*q+2*j}, v{acc0+8*q+2*j+1}'] for j in range(4)]
    A = lambda a, b: acc0 + (a * NB + b) * 4
    g2 = Gemm(k, NA, NB, LP, S, PD, RA, NT,
              acc=lambda a, b: R4('v', A(a, b)),
              aring=lambda s: ('a', 16 * S + 4 * s),
              bring=lambda st, ks, b: R4('a', st * 16 + (ks * NB + b) * 4),
              vA=[[vA + a for a in range(NA)], [vA2 + a for a in range(NA)]], lds_base=0,
              srdW=12, sW=50, wpitch=2048 if RAW2 else 256, wdma=wd2, sM0=52, srdX=24, sX=51, vX=[vX, vX + 1], wait_every=2,
              extra_loads=lambda t: send if t == NT - 1 else [], pre_w=True, xmod=' sc1')
    g2.wmod = '' if RAW2 else ' sc1'
    c1 = -2.0 * math.log2(math.e) * math.sqrt(2.0 / math.pi); c2 = c1 * 0.044715
    C1, C2, VONE = 40, 42, 44
    for (r, v) in ((C1, c1), (C2, c2), (VONE, 1.0)):
        k(f'v_mov_b32 v{r}, 0x{f2u(v):08x}'); k(f'v_mov_b32 v{r+1}, 0x{f2u(v):08x}')
    k('v_lshlrev_b32 v6, 4, v1')
    k('s_mul_i32 s54, s43, 7')
    k('s_lshr_b32 s55, s54, 1')
    k('s_lshl_b32 s55, s55, 7')
    k('s_add_u32 s55, s55, s47')
    k('s_lshl_b32 s55, s55, 10')
    for j in range(1, 4): k(f's_add_u32 s{55+j}, s55, {j*131072}')
    T = 48
    Lodd = k.label('odd'); Ljoin = k.label('join')
    k('s_bitcmp1_b32 s43, 0')
    k(f's_cbranch_scc1 {Lodd}')
    for odd in range(2):
        if odd: k(f'{Lodd}:')
        pre = [] if LATE else [x for x in g2.wpreload() if x != 's_nop 0']
        def gelu_tile(Ar, dst):
            for h in range(2):
                x = R2('v', Ar + 2 * h); t = R2('v', T + 2 * h)
                k(f'v_pk_mul_f32 {t}, {x}, {x}')
                k(f'v_pk_fma_f32 {t}, {t}, {R2("v", C2)}, {R2("v", C1)}')
                k(f'v_pk_mul_f32 {t}, {t}, {x}')
            if pre: k(pre.pop(0))
            for r in range(4): k(f'v_exp_f32 v{T+r}, v{T+r}')
            for h in range(2):
                t = R2('v', T + 2 * h)
                k(f'v_pk_add_f32 {t}, {t}, {R2("v", VONE)}')
            if pre: k(pre.pop(0))
            for r in range(4): k(f'v_rcp_f32 v{T+r}, v{T+r}')
            for h in range(2):
                x = R2('v', Ar + 2 * h); t = R2('v', T + 2 * h)
                k(f'v_pk_mul_f32 {x}, {x}, {t}')
            for h in range(2):
                k(f'v_cvt_pk_bf16_f32 v{dst+h}, v{Ar+2*h}, v{Ar+2*h+1}')
        n = 0
        order = [(b, blk) for b in range(4) for blk in range(4)]
        half = 0 if odd else 3
        order.sort(key=lambda x: x[1] != half)
        for b, blk in order:
            aa = [a for a in range(7) if (a + odd) >> 1 == blk]
            D = 56 + (n % 2) * 4; n += 1
            for a in aa:
                gelu_tile(acc1 + (a * 4 + b) * 4, D + 2 * ((a + odd) & 1))
            if len(aa) == 2:
                k(f'buffer_store_dwordx4 {R4("v", D)}, v6, s[24:27], s{55+blk} offen offset:{b*1024} sc1')
            else:
                hf = (aa[0] + odd) & 1
                k(f'buffer_store_dwordx2 {R2("v", D + 2*hf)}, v6, s[24:27], s{55+blk} offen offset:{b*1024 + 8*hf} sc1')
        assert not pre
        if not odd: k(f's_branch {Ljoin}')
    k(f'{Ljoin}:')
    k('s_lshl_b32 s46, s42, 5')
    k('s_add_u32 s46, s46, s43')
    k(f's_lshl_b32 s46, s46, {FSH}')
    k(f's_add_u32 s57, s46, {256 << FSH}')
    coords_128(k)
    k('s_lshr_b32 s45, s42, 1')
    k(f's_lshl_b32 s45, s45, {5+FSH}')
    k(f's_lshl_b32 s46, s40, {4+FSH}')
    k('s_add_u32 s45, s45, s46')
    k(f's_add_u32 s60, s45, {256 << FSH}')
    k('s_lshl_b32 s48, s47, 10')
    k(f'v_lshl_add_u32 v{vX}, v1, 4, s48')
    k(f'v_add_u32 v{vX+1}, 0x20000, v{vX}')
    k(f's_mul_i32 s51, s40, {56*131072}')
    k('s_xor_b32 s45, s40, 1')
    k('s_lshl_b32 s45, s45, 2')
    tr_addr_regs(k, vA, NA, LP, tmp, 1, xor_s=45)
    for a in range(NA): k(f'v_add_u32 v{vA2+a}, 0x10000, v{vA+a}')
    srd_off(k, 16, sWS, WS_XB, 4 * MB)
    k('s_lshl_b32 s55, s2, 14')
    k('s_xor_b32 s56, s55, 0x10000')
    k.srd(20, sOUT, 4 * MB)
    srd_off(k, 28, sWS, WS_MOD32 + 5 * 4096, 4096)
    k('v_and_b32 v4, 15, v1')
    k('v_lshrrev_b32 v5, 4, v1')
    k('v_lshlrev_b32 v6, 11, v4')
    k('v_lshl_add_u32 v7, v5, 4, v6')
    k('s_lshl_b32 s46, s43, 1')
    k('s_add_u32 s46, s46, s40')
    k('s_lshl_b32 s48, s47, 15')
    k('s_lshl_b32 s49, s46, 7')
    k('s_add_u32 s48, s48, s49')
    k('s_add_u32 s49, s48, 32768')
    k('v_lshlrev_b32 v10, 5, v5')
    k('v_lshlrev_b32 v11, 4, v5')
    k('s_lshl_b32 s54, s46, 8')
    k('s_lshl_b32 s61, s46, 7')
    publish(k, 57)
    st(2 if P3 else 6)
    if LATE:
        for x in g2.wpreload(): k(x)
    await_flags(k, 60, 16)
    st(3 if P3 else 7)
    XR, GR, BR, RX, UB = 32, 48, 128, 136, 168
    g2.make_sched(5, [2])
    g2.prologue_loads()
    for b in range(NB):
        for u in range(2):
            k(f'buffer_load_dwordx4 {R4("v", XR + (b*2+u)*4)}, v7, s[36:39], s{48+b} offen offset:{u*64} sc1')
    gate = [f'buffer_load_dwordx4 {R4("v", GR + (u*2+h)*4)}, v10, s[28:31], s54 offen offset:{u*128 + h*16} sc1' for u in range(2) for h in range(2)]
    for x in gate: k(x)
    for u in range(2):
        k(f'buffer_load_dwordx4 {R4("v", BR + u*4)}, v11, s[72:75], s61 offen offset:{u*64}')
    g2.vq += ['e'] * 10
    if P3 and not fused: g2.stamp_first = 4
    g2.emit(loop_sreg=53)
    if P3: st(5)
    for q in range(4): k(f'buffer_store_dwordx4 {R4("v", SP+4*q)}, v{vW}, s[16:19], s55 offen offset:{q*1024} sc1')
    for u in range(2):
        for j in range(4):
            k(f'v_lshlrev_b32 v{UB+8*u+2*j}, 16, v{BR+4*u+j}')
            k(f'v_and_b32 v{UB+8*u+2*j+1}, 0xffff0000, v{BR+4*u+j}')
    for i in range(16):
        k(f'v_lshlrev_b32 v{acc0+2*i}, 16, v{XR+i}')
        k(f'v_and_b32 v{acc0+2*i+1}, 0xffff0000, v{XR+i}')
    k('s_mov_b32 s53, 0x40000')
    Lg = k.label('gchk'); Lgok = k.label('gok')
    k(f'{Lg}:')
    sentinel(k, list(range(GR, GR + 16)), 4)
    k('s_sub_u32 s53, s53, 1')
    k('s_cselect_b64 s[58:59], 0, -1')
    k('v_cmp_eq_u32 vcc, -1, v4')
    k('s_and_b64 vcc, vcc, s[58:59]')
    k(f's_cbranch_vccz {Lgok}')
    for x in gate: k(x)
    k('s_waitcnt vmcnt(0)')
    k(f's_branch {Lg}')
    k(f'{Lgok}:')
    k('s_mov_b32 s53, 0x80000')
    k('v_mov_b32 v3, s52')
    if not CHEAP: k('s_waitcnt vmcnt(0)')
    if P3: st(6)
    Lp2 = k.label('poll')
    k(f'{Lp2}:')
    if CHEAP:
        Lr = k.label('cheap'); Lr1 = k.label('cheap1')
        k(f's_branch {Lr1}')
        k(f'{Lr}:')
        k(f's_sleep {SLEEP}')
        k(f'{Lr1}:')
        k(f'buffer_load_dword v4, v3, s[16:19], s56 offen offset:{4092} sc1')
        k('s_sub_u32 s53, s53, 1')
        k('s_cselect_b64 s[58:59], 0, -1')
        k('s_waitcnt vmcnt(0)')
        k('v_cmp_eq_u32 vcc, -1, v4')
        k('s_and_b64 vcc, vcc, s[58:59]')
        k(f's_cbranch_vccnz {Lr}')
        k('s_max_i32 s53, s53, 0')
    for q in range(4):
        k(f'buffer_load_dwordx4 {R4("v", RX + 4*q)}, v{vW}, s[16:19], s56 offen offset:{q*1024} sc1')
    k('s_sub_u32 s53, s53, 1')
    k('s_cselect_b64 s[58:59], 0, -1')
    k('s_waitcnt vmcnt(0)')
    sentinel(k, list(range(RX, RX + 16)), 4)
    k('v_cmp_eq_u32 vcc, -1, v4')
    k('s_and_b64 vcc, vcc, s[58:59]')
    k(f's_cbranch_vccnz {Lp2}')
    if P3: st(7)
    for i in range(16):
        o = acc0 + 32 + 2 * i; t = RX + 16 + 2 * (i % 4)
        k(f'v_lshlrev_b32 v{t}, 16, v{RX+i}')
        k(f'v_and_b32 v{t+1}, 0xffff0000, v{RX+i}')
        k(f'v_pk_add_f32 {R2("v", o)}, {R2("v", o)}, {R2("v", t)}')
    k('s_nop 0')
    for sw in ('32', '16'):
        for b in range(NB):
            for u in range(2):
                for r in range(4): k(f'v_permlane{sw}_swap_b32 v{A(4+2*u, b)+r}, v{A(5+2*u, b)+r}')
    for b in range(NB):
        for u in range(2):
            P = RX + (b * 2 + u) * 4
            for h in range(2):
                o = A(4 + 2 * u + h, b)
                for j in range(2):
                    x = R2('v', o + 2 * j)
                    k(f'v_pk_add_f32 {x}, {x}, {R2("v", UB+8*u+4*h+2*j)}')
                    k(f'v_pk_fma_f32 {x}, {x}, {R2("v", GR+(u*2+h)*4+2*j)}, {R2("v", acc0+(b*2+u)*8+4*h+2*j)}')
                for j in range(2): k(f'v_cvt_pk_bf16_f32 v{P+2*h+j}, v{o+2*j}, v{o+2*j+1}')
            if not WIDE: k(f'buffer_store_dwordx4 {R4("v", P)}, v7, s[20:23], s{48+b} offen offset:{u*64} sc1')
            elif u == 1:
                widen(k, P - 4, P, RX + 16 + 4 * b)
                k(f'buffer_store_dwordx4 {R4("v", P-4)}, v14, s[20:23], s{48+b} offen sc1')
                k(f'buffer_store_dwordx4 {R4("v", P)}, v15, s[20:23], s{48+b} offen sc1')
    k.stamp_out(kidx)
    k(f'{Lend}:')
    k('s_endpgm')
    k.noreplay = set(getattr(k, 'noreplay', set())) | {Lm, Lg, getattr(k, 'norep2', Lm)}
    return k
```

```python
import sys
from asmgen import *
from gen_small import *
from gen_gk import *
from gen_attn import *
from gen_front import *
from gen_back import gen_back
import lint
Kern.STAMP = 'both' if 'both' in sys.argv else 'cyc' if 'cyc' in sys.argv else ('stamp' in sys.argv)
th = 16
NPF = 4
for a in sys.argv:
    if a.startswith('npf='): NPF = int(a[4:])
for a in sys.argv:
    if a.startswith('sm='): Kern.STORE_MOD = ' ' + a[3:].replace('+', ' ')
for a in sys.argv:
    if a.startswith('th='): th = float(a[3:])
WQ = 4 - NPF
for a in sys.argv:
    if a.startswith('wq='): WQ = int(a[3:])
ks = [gen_mod(wq=WQ), gen_ln1(npf=NPF), gen_attn(thresh_log2=th, split2='nosplit' not in sys.argv, wqpf=0), *([gen_oproj(), gen_ln2()] if 'nofuse' in sys.argv else [gen_opln()]), (gen_mlp1_w8(prio='prio' in sys.argv) if 'w8' in sys.argv else gen_mlp1()), (gen_resid(True) if 'nosplit' in sys.argv else gen_mlp2s(WAITOWN='nowait' not in sys.argv, POLL1='poll1' in sys.argv))]
if 'nomega' in sys.argv: ks = ks[:3] + [gen_back()]
elif 'noln1' in sys.argv: ks = ks[:2] + [gen_attn(thresh_log2=th, then=lambda k: gen_back(kidx=2, k=k))]
else: ks = (ks[:1] if 'one' not in sys.argv else []) + [gen_attn(thresh_log2=th, ln1=True, then=lambda k: gen_back(kidx=2, k=k))]
ne = 0
for k in ks: ne += lint.lint_kernel(k)
print('lint errors', ne)
emit(sys.argv[1] if len(sys.argv) > 1 else 'k.s', ks)
```

```python
NAME = 'adaLN_cond__mha_block_cached__mixer_channel_mlp__prompt'

HEADER = open('cdna_kernels/' + NAME + '.s.ref').read().split('; Override launch')[0]

DOC = """;
; attn_kernel: persistent, one workgroup per CU, phases linked by flags / sentinel words in d_ws (all sc1 accesses):
"""

class Kern:
    def __init__(self, name, grid, block, lds, vgpr, agpr=0, sgpr=102, wgid_y=False):
        self.name = name; self.grid = grid; self.block = block; self.lds = lds
        self.vgpr = vgpr; self.agpr = agpr; self.sgpr = sgpr; self.wgid_y = wgid_y
        self.lines = []
        self.nlabel = 0
    def __call__(self, s):
        for l in s.split('\n'):
            l = l.strip()
            if l:
                if l.startswith('buffer_store_dwordx4') and Kern.STORE_MOD and not getattr(self, 'plain_stores', False) and ' sc1' not in l and '; plain' not in l: l += Kern.STORE_MOD
                self.lines.append(l)
    def label(self, base='L'):
        self.nlabel += 1
        return f'{self.name}_{base}{self.nlabel}'
    def srd(self, d, base, nbytes):
        if d != base: self(f's_mov_b32 s{d}, s{base}')
        self(f's_and_b32 s{d+1}, s{base+1}, 0xffff')
        self(f's_mov_b32 s{d+2}, {nbytes}')
        self(f's_mov_b32 s{d+3}, 0x20000')
    def code_srd(self, d, target):
        L = self.label('pc')
        self(f's_getpc_b64 s[{d}:{d+1}]')
        self(f'{L}:')
        self(f's_add_u32 s{d}, s{d}, {target}-{L}')
        self(f's_addc_u32 s{d+1}, s{d+1}, 0')
        self(f's_and_b32 s{d+1}, s{d+1}, 0xffff')
        self(f's_mov_b32 s{d+2}, code_end-{target}')
        self(f's_mov_b32 s{d+3}, 0x20000')
    STAMP = False
    STORE_MOD = ''
    def stamp(self, i):
        if not Kern.STAMP: return
        self.sgpr = 102
        if Kern.STAMP == 'both' and self.name == 'attn_kernel':
            self.nstamp = 8
            if i in (3, 4):
                self(f's_memtime s[{78+2*(i+2)}:{79+2*(i+2)}]')
            elif i in (5, 6): return
        self.nstamp = max(getattr(self, 'nstamp', 0), i + 1)
        self(f'{"s_memtime" if Kern.STAMP == "cyc" else "s_memrealtime"} s[{78+2*i}:{79+2*i}]')
        self('s_waitcnt lgkmcnt(0)')
    def stamp_out(self, kidx, vtmp=0):
        if not Kern.STAMP: return
        self(f's_load_dwordx2 s[4:5], s[0:1], 112')
        self('s_waitcnt lgkmcnt(0) vmcnt(0)')
        self.stamp(self.nstamp)
        self(f's_add_u32 s96, s4, {200*1048576 + kidx*65536}')
        self('s_addc_u32 s97, s5, 0')
        self('s_and_b32 s97, s97, 0xffff')
        self('s_mov_b32 s98, 65536')
        self('s_mov_b32 s99, 0x20000')
        self('s_lshl_b32 s100, s2, 6')
        self('s_mov_b64 exec, 1')
        self(f'v_mov_b32 v{vtmp+1}, 0')
        for i in range(self.nstamp):
            self(f'v_mov_b32 v{vtmp}, s{78+2*i}')
            self(f'buffer_store_dword v{vtmp}, v{vtmp+1}, s[96:99], s100 offen offset:{4*i}')
    def text(self):
        out = [f'.globl {self.name}', '.p2align 8', f'.type {self.name},@function', f'{self.name}:']
        for l in self.lines:
            out.append(l if l.endswith(':') else '  ' + l)
        return '\n'.join(out) + '\n'
    def desc(self):
        acc = (self.vgpr + 3) // 4 * 4
        nfv = acc + self.agpr if self.agpr else self.vgpr
        s = f'''.p2align 6
.amdhsa_kernel {self.name}
  .amdhsa_next_free_vgpr {nfv}
  .amdhsa_next_free_sgpr {self.sgpr}
  .amdhsa_accum_offset {acc}
  .amdhsa_group_segment_fixed_size 0
  .amdhsa_kernarg_size 120
  .amdhsa_user_sgpr_count 2
  .amdhsa_user_sgpr_kernarg_segment_ptr 1
  .amdhsa_system_sgpr_workgroup_id_x 1
'''
        if self.wgid_y:
            s += '  .amdhsa_system_sgpr_workgroup_id_y 1\n'
        s += '.end_amdhsa_kernel\n'
        return s
    def launch_line(self):
        g = self.grid; b = self.block
        return f'; @launch kernel={self.name} grid=({g[0]},{g[1]},{g[2]}) block=({b[0]},{b[1]},{b[2]}) lds={self.lds}'

def emit(path, launches):
    uniq = []
    for k in launches:
        if k not in uniq:
            uniq.append(k)
    s = HEADER
    for k in launches:
        s += k.launch_line() + '\n'
    s += DOC
    s += '.amdgcn_target "amdgcn-amd-amdhsa--gfx950"\n.text\n'
    for k in uniq:
        s += k.text()
    s += 'code_end:\n  s_endpgm\n'
    s += '.section .rodata,"a"\n'
    for k in uniq:
        s += k.desc()
    open(path, 'w').write(s)
```

```python
from gen_gk import *

import sys
FSH = 7
SLEEP = 0
MIDF = 0
for a in sys.argv:
    if a.startswith('sleep='): SLEEP = int(a[6:])
    if a.startswith('midf='): MIDF = float(a[5:])
LATE = 'early' not in sys.argv
P3 = 'p3' in sys.argv
CHEAP = 'nocheap' not in sys.argv
KS = 'ks' in sys.argv
GRP = 'grp' in sys.argv or 'grp1' in sys.argv
GRP1 = 'grp1' in sys.argv
WIDE = 'nowide' not in sys.argv
RAW2 = 'pack2' not in sys.argv
RAW1 = 'pack1' not in sys.argv
sWS, sB1, sOUT, sB2, sWAVE = 4, 6, 8, 10, 44
vW = 8
sNONCE = 101
ONE = 'one' in sys.argv

def sentinel(k, regs, acc):
    k(f'v_max3_u32 v{acc}, v{regs[0]}, v{regs[1]}, v{regs[2]}')
    i = 3
    while i + 1 < len(regs):
        k(f'v_max3_u32 v{acc}, v{acc}, v{regs[i]}, v{regs[i+1]}'); i += 2
    if i < len(regs): k(f'v_max_u32 v{acc}, v{acc}, v{regs[i]}')

def publish(k, s_off, srd=68):
    L = k.label('pub')
    k('s_waitcnt vmcnt(0)')
    k('s_barrier')
    k(f's_cmp_lg_u32 s{sWAVE}, 0')
    k(f's_cbranch_scc1 {L}')
    k('v_mov_b32 v3, 0')
    k(f'v_mov_b32 v4, s{sNONCE}' if ONE else 'v_mov_b32 v4, 1')
    k(f'buffer_store_dword v4, v3, s[{srd}:{srd+3}], s{s_off} offen sc1')
    k(f'{L}:')

def await_flags(k, s_off, n, srd=68, pre=()):
    L = k.label('aw'); Ld = k.label('awd')
    pre = list(pre)
    if n: k(f'v_and_b32 v3, {n-1}, v1')
    k(f'v_lshlrev_b32 v3, {FSH}, v3')
    poll = f'buffer_load_dword v4, v3, s[{srd}:{srd+3}], s{s_off} offen sc1'
    cmp_ = f'v_cmp_ne_u32 vcc, s{sNONCE}, v4' if ONE else 'v_cmp_eq_u32 vcc, 0, v4'
    nv = sum(1 for x in pre if x.startswith('buffer'))
    cut = int(nv * MIDF) // 4 * 4 if MIDF else nv
    seen = 0; i = 0
    while i < len(pre) and seen < cut:
        k(pre[i]); seen += pre[i].startswith('buffer'); i += 1
    if MIDF: k(poll)
    for x in pre[i:]: k(x)
    if MIDF: k(f's_waitcnt vmcnt({nv - cut})')
    k(f's_cmp_lg_u32 s{sWAVE}, 0')
    k(f's_cbranch_scc1 {Ld}')
    k('s_mov_b32 s53, 0x80000')
    if MIDF:
        k(cmp_)
        k(f's_cbranch_vccz {Ld}')
    k(f'{L}:')
    k(poll)
    k('s_sub_u32 s53, s53, 1')
    k('s_cselect_b64 s[58:59], 0, -1')
    k('s_waitcnt vmcnt(0)')
    k(cmp_)
    k('s_and_b64 vcc, vcc, s[58:59]')
    k(f's_cbranch_vccz {Ld}')
    if SLEEP: k(f's_sleep {SLEEP}')
    k(f's_branch {L}')
    k(f'{Ld}:')
    k('s_barrier')

def widen(k, X, Y, T):
    for r in range(4): k(f'v_mov_b32 v{T+r}, v{X+r}')
    for r in range(4): k(f'v_mov_b32_dpp v{X+r}, v{Y+r} row_ror:8 row_mask:0xf bank_mask:0xc')
    for r in range(4): k(f'v_mov_b32_dpp v{Y+r}, v{T+r} row_ror:8 row_mask:0xf bank_mask:0x3')

def wide_addr(k, v, t):
    k(f'v_and_b32 v{v}, 7, v1')
    k(f'v_lshlrev_b32 v{v}, 11, v{v}')
    k(f'v_bfe_u32 v{t}, v1, 3, 1')
    k(f'v_lshl_add_u32 v{v}, v{t}, 6, v{v}')
    k(f'v_lshrrev_b32 v{t}, 4, v1')
    k(f'v_lshl_add_u32 v{v}, v{t}, 4, v{v}')

def ks_setup(k, vA, vA2, vX):
    k(f's_and_b32 s62, s{sWAVE}, 1')
    k('s_lshl_b32 s63, s62, 14')
    for a in range(8):
        k(f'v_add_u32 v{vA+a}, s63, v{vA+a}')
        k(f'v_add_u32 v{vA2+a}, s63, v{vA2+a}')

def ks_xaddr(k, vX):
    k(f's_and_b32 s62, s{sWAVE}, 1')
    k('s_lshl_b32 s63, s62, 18')
    k(f'v_add_u32 v220, s63, v{vX}')
    k(f'v_add_u32 v222, s63, v{vX+1}')
    k('v_xor_b32 v221, 0x800, v220')
    k('v_xor_b32 v223, 0x800, v222')

def ks_gemm(k, nt, vA, vA2, **kw):
    return Gemm(k, 8, 4, 256, 4, 4, 8, nt,
                acc=lambda a, b: R4('v', 64 + (b >> 1) * 64 + (a * 2 + (b & 1)) * 4),
                aring=lambda s: ('a', 128 + 4 * s),
                bring=lambda st, ks, b: R4('a', st * 32 + (ks * 4 + b) * 4),
                vA=[[vA + a for a in range(8)], [vA2 + a for a in range(8)]], lds_base=0, tile_bytes=32768,
                srdW=12, sW=50, sM0=52, sX=51, vX=None, wsub=2, xaddr=lambda ks, b: (220 + 2 * ks + (b >> 1), (b & 1) * 1024),
                xmod=' sc1', **kw)

def ks_reduce(k, base):
    k(f's_lshl_b32 s62, s{sWAVE}, 14')
    k(f's_add_u32 s62, s62, {base}')
    k('v_lshl_add_u32 v220, v1, 4, s62')
    k('v_xor_b32 v221, 0x4000, v220')
    k('s_nop 4')
    for q in range(16): k(f'ds_write_b128 v220, {R4("v", 128 + 4*q)} offset:{q*1024}')
    k('s_waitcnt lgkmcnt(0)')
    k('s_barrier')
    for q in range(16): k(f'ds_read_b128 {R4("v", 128 + 4*q)}, v221 offset:{q*1024}')
    for q in range(16):
        if q % 4 == 0: k(f's_waitcnt lgkmcnt({12 - q})')
        for h in range(2): k(f'v_pk_add_f32 {R2("v", 64+4*q+2*h)}, {R2("v", 64+4*q+2*h)}, {R2("v", 128+4*q+2*h)}')

def coords_128(k):
    k('s_bfe_u32 s40, s2, 0x10002')
    k('s_bfe_u32 s42, s2, 0x10001')
    if GRP:
        k('s_lshr_b32 s43, s2, 5')
        k('s_lshl_b32 s43, s43, 1')
    else:
        k('s_lshl_b32 s42, s42, 3')
        k('s_lshr_b32 s43, s2, 5')
    k('s_add_u32 s42, s42, s43')
    k('s_and_b32 s43, s2, 1')
    k('s_lshl_b32 s43, s43, 2')
    k('s_bfe_u32 s41, s2, 0x20003')
    k('s_add_u32 s43, s43, s41')
    k('s_lshl_b32 s47, s42, 3')
    k(f's_lshl_b32 s48, s{sWAVE}, 1')
    k('s_add_u32 s47, s47, s48')

def gen_back(kidx=3, k=None):
    S = 8; MODL = S * 16384
    fused = k is not None
    if not fused:
        k = Kern('oproj_kernel', (256, 1, 1), (256, 1, 1), MODL + 12288, vgpr=256, agpr=220, sgpr=78)
    k.plain_stores = True
    Lend = k.label('end')
    if not fused:
        k('s_cmp_ge_u32 s2, 256')
        k(f's_cbranch_scc1 {Lend}')
        k.stamp(0)
    st = (lambda i: None) if fused else k.stamp
    if fused and 'pb' in sys.argv:
        st = lambda i: Kern.stamp(k, i)
        k.stamp = lambda i: (Kern.stamp(k, 0) if i == 6 else (Kern.stamp(k, 8) if i == 8 else None))
    k(f's_load_dwordx2 s[{sWS}:{sWS+1}], s[0:1], {A_WS}')
    k(f's_load_dwordx2 s[28:29], s[0:1], {A_X}')
    k(f's_load_dwordx2 s[{sB1}:{sB1+1}], s[0:1], {A_B1}')
    k(f's_load_dwordx2 s[{sOUT}:{sOUT+1}], s[0:1], {A_OUT}')
    k(f's_load_dwordx2 s[{sB2}:{sB2+1}], s[0:1], {A_B2}')
    k(f's_load_dwordx2 s[12:13], s[0:1], {A_WO}')
    k('v_and_b32 v1, 63, v0')
    k('v_lshrrev_b32 v2, 6, v0')
    k('s_nop 0')
    k(f'v_readfirstlane_b32 s{sWAVE}, v2')
    NA, NB, LP, RA, PD = 8, 2, 256, 8, 4
    coords_128(k)
    vX = 12; vA = 16; vA2 = 24; tmp = 32
    k(f's_lshl_b32 s52, s{sWAVE}, 12')
    k(f'v_lshl_add_u32 v{vW}, v1, 4, s52')
    wd = [(vW, n * 1024) for n in range(4)]
    wdo = wdma_regs(k, 56, LP, 2048, 16, tmp, 1, sWAVE)
    k('s_lshl_b32 s48, s47, 10')
    k(f'v_lshl_add_u32 v{vX}, v1, 4, s48')
    k(f'v_add_u32 v{vX+1}, 0x20000, v{vX}')
    k('s_lshl_b32 s50, s43, 8')
    k('s_lshl_b32 s48, s40, 22')
    k('s_add_u32 s50, s50, s48')
    k('s_lshl_b32 s51, s40, 23')
    k('s_waitcnt lgkmcnt(0)')
    k.srd(12, 12, 4096 * 2048)
    srd_off(k, 16, sWS, WS_O, 16 * MB)
    srd_off(k, 68, sWS, WS_FL, 768 << FSH)
    acc0 = 64; XR = 240 if KS else 128
    ext = {}
    g = Gemm(k, NA, NB, LP, S, PD, RA, 32,
             acc=lambda a, b: R4('v', acc0 + (a * NB + b) * 4),
             aring=lambda s: ('a', 16 * S + 4 * s),
             bring=lambda st, ks, b: R4('a', st * 16 + (ks * NB + b) * 4),
             vA=[[vA + a for a in range(NA)], [vA2 + a for a in range(NA)]], lds_base=0,
             srdW=12, sW=50, wpitch=2048, wdma=wdo, sM0=52, srdX=16, sX=51, vX=[vX, vX + 1], wait_every=2,
             extra_loads=lambda t: ext.get(t, []), xmod=' sc1', pre_w=fused)
    if KS:
        ks_xaddr(k, vX)
        g = ks_gemm(k, 16, vA, vA2, wpitch=2048, wdma=wdo, srdX=16, pre_w=fused,
                    extra_loads=lambda t: ext.get(2 * t - 1, []) + ext.get(2 * t, []))
    if fused:
        k(f's_lshl_b32 s45, s2, {FSH}')
        k(f's_add_u32 s45, s45, {512 << FSH}')
        publish(k, 45)
        k.stamp(5)
        k('v_and_b32 v3, 3, v1')
        k('v_bfe_u32 v4, v1, 2, 2')
        k('v_lshl_add_u32 v4, v3, 3, v4')
        k('s_lshr_b32 s45, s42, 1')
        k('s_lshl_b32 s45, s45, 5')
        k('s_lshl_b32 s46, s40, 2')
        k('s_add_u32 s45, s45, s46')
        k('v_add_u32 v4, s45, v4')
        k('s_and_b32 s45, s2, 0xfc')
        k('v_add_u32 v3, s45, v3')
        k('v_cmp_gt_u32 vcc, 16, v1')
        k(f's_mov_b32 s45, {512 << FSH}')
        k('s_nop 0')
        k('v_cndmask_b32 v3, v3, v4, vcc')
        await_flags(k, 45, 0, pre=g.wpreload())
        k.stamp(6)
    g.make_sched(*((3, []) if KS else (5, [2]) if fused else (3, [1, 2, 2, 2, 2])))
    g.prologue_loads()
    tr_addr_regs(k, vA, NA, LP, tmp, 1)
    for a in range(NA): k(f'v_add_u32 v{vA2+a}, 0x10000, v{vA+a}')
    if KS: ks_setup(k, vA, vA2, vX)
    fin = mod_finalize(k, sWS, 56, 40, 1)
    g.vq += ['m'] * 4
    rec = Kern('rec', None, None, 0, 0); fin(rec)
    ext[4 if KS else 5 if fused else 2] = [[x] for x in rec.lines]
    Ltail = k.label('tail')
    k.code_srd(32, Ltail)
    k('s_lshr_b32 s55, s2, 3')
    k('s_lshl_b32 s55, s55, 12')
    k('v_lshlrev_b32 v52, 4, v0')
    k.srd(28, 28, 4 * MB)
    k.srd(72, sB2, 2048)
    srd_off(k, 24, sWS, WS_P, 8 * MB)
    srd_off(k, 20, sWS, WS_MOD32 + 8192, 12288)
    srd_off(k, 36, sWS, WS_X1, 4 * MB)
    srd_off(k, 64, sWS, WS_Y, 4 * MB)
    k('v_and_b32 v4, 15, v1')
    k('v_lshrrev_b32 v5, 4, v1')
    k('v_lshlrev_b32 v6, 11, v4')
    k('v_lshl_add_u32 v7, v5, 4, v6')
    k('v_lshlrev_b32 v3, 4, v1')
    wide_addr(k, 14, 15)
    k('v_add_u32 v15, 0x4000, v14')
    k('s_lshl_b32 s48, s47, 15')
    k('s_lshl_b32 s49, s43, 8')
    k('s_add_u32 s48, s48, s49')
    k('s_lshl_b32 s49, s40, 22')
    k('s_add_u32 s48, s48, s49')
    k('s_add_u32 s49, s48, 32768')
    k('s_lshl_b32 s46, s42, 4')
    k('s_lshl_b32 s45, s43, 1')
    k('s_add_u32 s46, s46, s45')
    k('s_add_u32 s46, s46, s40')
    k('s_lshl_b32 s54, s46, 14')
    k(f's_add_u32 s45, s54, {4*MB}')
    k(f's_mul_i32 s41, s{sWAVE}, 3072')
    ext[25] = [['buffer_load_dwordx4 v[48:51], v52, s[32:35], s55 offen ; pf'],
               ['buffer_load_dwordx4 v[48:51], v52, s[72:75], 0 offen ; pf']]
    ext[26] = [[f'buffer_load_dwordx4 {R4("v", XR + 4*j)}, v{vW}, s[28:31], s54 offen offset:{j*1024}'] for j in range(4)]
    allf = [f'buffer_load_dword v{60+j}, v53, s[68:71], s{63 if j & 1 == 0 else 62} offen sc1'.replace('v53', 'v53' if j < 2 else 'v54') for j in range(4)]
    if fused:
        k(f'v_lshlrev_b32 v53, {FSH}, v1')
        k(f'v_add_u32 v54, {128 << FSH}, v53')
        ext[27] = [[f's_mov_b32 s63, {512 << FSH}'], [f's_mov_b32 s62, {576 << FSH}']] + [[x] for x in allf]
    ext[28] = [[f's_add_u32 m0, s41, {MODL}'], ['s_nop 0']] + \
              [[f'buffer_load_dwordx4 v3, s[20:23], s41 offen offset:{j*1024} sc1 lds'] for j in range(3)]
    g.emit(loop_sreg=53)
    if not P3: st(1)
    if fused: k.stamp(7)
    k(f'{Ltail}:')
    if KS:
        ks_reduce(k, 0)
        k(f's_mov_b32 s62, {576 << FSH}')
    if fused:
        La = k.label('allchk'); Lao = k.label('allok')
        k('s_mov_b32 s53, 0x80000')
        k('s_mov_b32 s76, 0')
        if ONE: srd_off(k, 32, sWS, 0, 65536)
        k('s_waitcnt vmcnt(3)')
        k(f'{La}:')
        if ONE:
            for j in range(4): k(f'v_xor_b32 v{60+j}, s{sNONCE}, v{60+j}')
            k('v_or3_b32 v4, v60, v61, v62')
            k('v_or_b32 v4, v4, v63')
        else:
            k('v_min3_u32 v4, v60, v61, v62')
            k('v_min_u32 v4, v4, v63')
        k('s_sub_u32 s53, s53, 1')
        k('s_cselect_b64 s[58:59], 0, -1')
        k('v_cmp_ne_u32 vcc, 0, v4' if ONE else 'v_cmp_eq_u32 vcc, 0, v4')
        k('s_and_b64 vcc, vcc, s[58:59]')
        k(f's_cbranch_vccz {Lao}')
        k('s_mov_b32 s76, -1')
        for x in allf: k(x)
        k('s_waitcnt vmcnt(0)')
        k(f's_branch {La}')
        k(f'{Lao}:')
        if ONE:
            Lc = k.label('cnt')
            k(f's_or_b32 s53, s2, s{sWAVE}')
            k(f's_cbranch_scc1 {Lc}')
            k('v_mov_b32 v60, 0')
            k(f'v_mov_b32 v61, s{sNONCE}')
            k(f's_mov_b32 s53, {WS_NONCE}')
            k('buffer_store_dword v61, v60, s[56:59], s53 offen sc1'.replace('s[56:59]', 's[32:35]'))
            k(f'{Lc}:')
        k.norep2 = La
    else:
        k('s_nop 5')
    n = 0
    for u in range(4):
        ps = []
        for b in range(NB):
            p = 144 + n * 4; n += 1
            ps.append(p)
            A0 = acc0 + ((2 * u) * NB + b) * 4; A1 = acc0 + ((2 * u + 1) * NB + b) * 4
            k(f'v_cvt_pk_bf16_f32 v{p}, v{A0}, v{A0+1}')
            k(f'v_cvt_pk_bf16_f32 v{p+1}, v{A0+2}, v{A0+3}')
            k(f'v_cvt_pk_bf16_f32 v{p+2}, v{A1}, v{A1+1}')
            k(f'v_cvt_pk_bf16_f32 v{p+3}, v{A1+2}, v{A1+3}')
        for sw in ('32', '16'):
            for p in ps:
                k(f'v_permlane{sw}_swap_b32 v{p}, v{p+2}')
                k(f'v_permlane{sw}_swap_b32 v{p+1}, v{p+3}')
        if not WIDE:
            for b, p in enumerate(ps):
                k(f'buffer_store_dwordx4 {R4("v", p)}, v7, s[24:27], s{48+b} offen offset:{u*64} sc1')
        elif u & 1:
            for b, p in enumerate(ps):
                widen(k, p - 8, p, 32 + 4 * b)
            for b, p in enumerate(ps):
                k(f'buffer_store_dwordx4 {R4("v", p-8)}, v14, s[24:27], s{48+b} offen offset:{(u>>1)*128} sc1')
                k(f'buffer_store_dwordx4 {R4("v", p)}, v15, s[24:27], s{48+b} offen offset:{(u>>1)*128} sc1')
    k('s_waitcnt vmcnt(8)')
    k('s_barrier')
    GA, SB, CB = 176, 192, 208
    X = [64, 80]
    k(f'v_add_u32 v10, {MODL}, v3')
    for base, sec in ((GA, 0), (SB, 1), (CB, 2)):
        for h in range(2):
            for q in range(2):
                k(f'ds_read_b128 {R4("v", base + 8*h + 4*q)}, v10 offset:{sec*4096 + h*2048 + q*1024}')
    for r in range(2):
        unpack8(k, X[r], XR + 8 * r); unpack8(k, X[r] + 8, XR + 8 * r + 4)
    if GRP1:
        k('s_lshr_b32 s42, s2, 5')
        k('s_and_b32 s43, s2, 7')
        k('s_lshl_b32 s43, s43, 2')
        k('s_bfe_u32 s41, s2, 0x20003')
        k('s_add_u32 s43, s43, s41')
    else:
        k('s_and_b32 s40, s2, 7')
        k('s_lshr_b32 s41, s2, 3')
        k('s_lshr_b32 s42, s40, 2')
        k('s_lshl_b32 s42, s42, 2')
        k('s_lshr_b32 s43, s41, 3')
        k('s_add_u32 s42, s42, s43')
        k('s_and_b32 s43, s40, 3')
        k('s_lshl_b32 s43, s43, 3')
        k('s_and_b32 s41, s41, 7')
        k('s_add_u32 s43, s43, s41')
    k('s_mul_i32 s62, s43, 224')
    k.srd(28, sB1, 7168)
    S1 = 6; BP = 40; BI = 64; acc1 = 96
    ext1 = {}
    if RAW1:
        k(f's_load_dwordx2 s[12:13], s[0:1], {A_W1}')
        k('s_mov_b32 s50, s62')
        kw = dict(LP=256, vA=[[vA + a for a in range(7)], [vA2 + a for a in range(7)]], aimm=0, wpitch=7168, wdma=[(208 + n, n * 1024) for n in range(4)])
    else:
        k(f's_cmp_eq_u32 s{sWAVE}, 3')
        k('s_cselect_b32 s41, 0x7ff00000, 0')
        k(f'v_add_u32 v{vW+1}, s41, v{vW}')
        k('s_lshl_b32 s50, s62, 10')
        srd_off(k, 12, sWS, WS_W1, 1024 * 7168)
        kw = dict(LP=224, vA=[[vA] * 7, [vA + 1] * 7], aimm=32, wpitch=224, wdma=[(vW, 0), (vW, 1024), (vW + 1, 2048), (vW + 1, 3072)])
    g1 = Gemm(k, NA=7, NB=4, S=S1, PD=4, RA=7, ntiles=16,
              acc=lambda a, b: R4('v', acc1 + (a * 4 + b) * 4),
              aring=lambda s: ('a', 32 * S1 + 4 * s),
              bring=lambda st, ks, b: R4('a', st * 32 + (ks * 4 + b) * 4),
              lds_base=32768, tile_bytes=16384, srdW=12, sW=50,
              sM0=52, srdX=64, sX=51, vX=[vX, vX + 1], cinit=lambda a, b: R4('v', BI + 4 * a),
              extra_loads=lambda t: ext1.get(t, []), pre_w=True, xmod=' sc1', **kw)
    g1.wmod = '' if RAW1 else ' sc1'
    k('s_mov_b32 s60, 0x3a800000')
    k('s_mov_b32 s61, 0xba800000')
    k('s_mov_b32 s53, 0x40000')
    k('s_waitcnt lgkmcnt(0)')
    Lm = k.label('modchk'); Lmok = k.label('modok')
    k(f'{Lm}:')
    sentinel(k, list(range(GA, GA + 48)), 4)
    if fused:
        k('v_or_b32 v4, s76, v4')
        k('s_mov_b32 s76, 0')
    k('s_sub_u32 s53, s53, 1')
    k('s_cselect_b64 s[58:59], 0, -1')
    k('v_cmp_eq_u32 vcc, -1, v4')
    k('s_and_b64 vcc, vcc, s[58:59]')
    k(f's_cbranch_vccz {Lmok}')
    for j in range(12):
        k(f's_mov_b32 s41, {(j >> 2) * 4096}')
        k(f'buffer_load_dwordx4 {R4("v", GA + 4*j)}, v3, s[20:23], s41 offen offset:{(j & 3)*1024} sc1')
    k('s_waitcnt vmcnt(0)')
    k(f's_branch {Lm}')
    k(f'{Lmok}:')
    k('s_mov_b32 s53, 0x80000')
    if not CHEAP: k('s_waitcnt vmcnt(0)')
    RX = 224
    Lp = k.label('poll'); Lq = k.label('cheap')
    if CHEAP:
        k('v_and_b32 v4, 7, v1')
        k('v_lshlrev_b32 v4, 8, v4')
        k('v_bfe_u32 v11, v1, 3, 1')
        k('v_lshl_add_u32 v11, v11, 22, v4')
        k('v_add_u32 v11, s52, v11')
    k(f'{Lp}:')
    if CHEAP:
        Lq1 = k.label('cheap1')
        k(f's_branch {Lq1}')
        k(f'{Lq}:')
        if SLEEP: k(f"s_sleep {SLEEP}")
        k(f'{Lq1}:')
        k(f'buffer_load_dword v4, v11, s[24:27], s54 offen offset:{2048+252} sc1')
        k('s_sub_u32 s53, s53, 1')
        k('s_cselect_b64 s[58:59], 0, -1')
        k('s_waitcnt vmcnt(0)')
        k('v_cmp_eq_u32 vcc, -1, v4')
        k('s_and_b64 vcc, vcc, s[58:59]')
        k(f's_cbranch_vccnz {Lq}')
        k('s_max_i32 s53, s53, 0')
    for kh in range(2):
        for j in range(4):
            k(f'buffer_load_dwordx4 {R4("v", RX + 16*kh + 4*j)}, v{vW}, s[24:27], s{54 if kh == 0 else 45} offen offset:{j*1024} sc1')
    k('s_sub_u32 s53, s53, 1')
    k('s_cselect_b64 s[58:59], 0, -1')
    k('s_waitcnt vmcnt(0)')
    sentinel(k, list(range(RX, RX + 32)), 4)
    k('v_cmp_eq_u32 vcc, -1, v4')
    k('s_and_b64 vcc, vcc, s[58:59]')
    k(f's_cbranch_vccnz {Lp}')
    if not P3: st(2)
    streams = []
    for r in range(2):
        q = Kern('rec', None, None, 0, 0)
        U0, U1, T, PK = 96 + 16 * r, 144 + 16 * r, 32 + 4 * r, 128 + 8 * r
        unpack8(q, U0, RX + 8 * r); unpack8(q, U0 + 8, RX + 8 * r + 4)
        unpack8(q, U1, RX + 16 + 8 * r); unpack8(q, U1 + 8, RX + 16 + 8 * r + 4)
        x = X[r]
        for j in range(0, 16, 2): q(f'v_pk_add_f32 {R2("v", U0+j)}, {R2("v", U0+j)}, {R2("v", U1+j)}')
        for j in range(0, 16, 2): q(f'v_pk_fma_f32 {R2("v", x+j)}, {R2("v", U0+j)}, {R2("v", GA+j)}, {R2("v", x+j)}')
        for j in range(8): q(f'v_cvt_pk_bf16_f32 v{PK+j}, v{x+2*j}, v{x+2*j+1}')
        q(f'buffer_store_dwordx4 {R4("v", PK)}, v{vW}, s[36:39], s54 offen offset:{r*2048} sc1')
        q(f'buffer_store_dwordx4 {R4("v", PK+4)}, v{vW}, s[36:39], s54 offen offset:{r*2048+1024} sc1')
        ln_fast(q, x, T, 60)
        for j in range(0, 16, 2): q(f'v_pk_mul_f32 {R2("v", x+j)}, {R2("v", x+j)}, {R2("v", T)}')
        for j in range(0, 16, 2): q(f'v_pk_fma_f32 {R2("v", x+j)}, {R2("v", x+j)}, {R2("v", CB+j)}, {R2("v", SB+j)}')
        ln_fast(q, x, T, 60)
        for j in range(0, 16, 2): q(f'v_pk_mul_f32 {R2("v", x+j)}, {R2("v", x+j)}, {R2("v", T)}')
        for j in range(8): q(f'v_cvt_pk_bf16_f32 v{U0+j}, v{x+2*j}, v{x+2*j+1}')
        streams.append(q.lines)
    k('v_lshlrev_b32 v4, 3, v5')
    pre = [f'buffer_load_dwordx2 {R2("v", BP + 2*a)}, v4, s[28:31], s62 offen offset:{a*32}' for a in range(7)] + \
          ([] if LATE else [x for x in g1.wpreload() if x != 's_nop 0'])
    cnt = 0
    for a, b in zip(*streams):
        if a == 's_nop 1': k('s_nop 0'); continue
        if a == 's_nop 0': continue
        k(a); k(b)
        cnt += 1
        if cnt % 3 == 0 and pre: k(pre.pop(0))
    assert not pre
    k('v_lshrrev_b32 v5, 2, v1')
    k('v_mul_u32_u24 v5, 528, v5')
    k('v_and_b32 v6, 1, v1')
    k('v_lshl_add_u32 v5, v6, 8, v5')
    k('v_bfe_u32 v6, v1, 1, 1')
    k('v_lshl_add_u32 v5, v6, 3, v5')
    k('v_lshl_add_u32 v5, v2, 5, v5')
    for r in range(2):
        P = 96 + 16 * r
        k(f'ds_write_b64 v5, {R2("v", P)} offset:{16*r}')
        k(f'ds_write_b64 v5, {R2("v", P+2)} offset:{16*r+128}')
        k(f'ds_write_b64 v5, {R2("v", P+4)} offset:{16*r+16*528}')
        k(f'ds_write_b64 v5, {R2("v", P+6)} offset:{16*r+16*528+128}')
    k('v_lshrrev_b32 v6, 5, v0')
    k('v_and_b32 v7, 31, v0')
    k('v_mul_u32_u24 v5, 528, v6')
    k('v_lshl_add_u32 v5, v7, 4, v5')
    k('v_lshlrev_b32 v6, 17, v6')
    k('v_bfe_u32 v7, v0, 3, 2')
    k('v_lshl_add_u32 v6, v7, 8, v6')
    k('v_and_b32 v7, 7, v0')
    k('v_lshl_add_u32 v6, v7, 4, v6')
    k('s_lshr_b32 s48, s46, 1')
    k('s_lshl_b32 s48, s48, 10')
    k('s_and_b32 s49, s46, 1')
    k('s_lshl_b32 s49, s49, 7')
    k('s_add_u32 s48, s48, s49')
    k('s_waitcnt lgkmcnt(0)')
    k('s_barrier')
    for j in range(4): k(f'ds_read_b128 {R4("v", 144+4*j)}, v5 offset:{8*528*j}')
    for j in range(4):
        k(f's_waitcnt lgkmcnt({3-j})')
        k(f'buffer_store_dwordx4 {R4("v", 144+4*j)}, v6, s[64:67], s48 offen sc1')
        if j < 3: k(f's_add_u32 s48, s48, {8*131072}')
    k(f's_lshl_b32 s46, s46, {FSH}')
    k(f's_lshl_b32 s45, s42, {5+FSH}')
    k('s_lshl_b32 s47, s42, 4')
    k(f's_lshl_b32 s48, s{sWAVE}, 2')
    k('s_add_u32 s47, s47, s48')
    k('s_lshl_b32 s48, s47, 10')
    k(f'v_lshl_add_u32 v{vX}, v1, 4, s48')
    k(f'v_add_u32 v{vX+1}, 0x20000, v{vX}')
    k('s_mov_b32 s51, 0')
    if RAW1:
        k.srd(12, 12, 1024 * 7168)
        tr_addr_regs(k, vA, NA, LP, tmp, 1)
        for a in range(NA): k(f'v_add_u32 v{vA2+a}, 0x10000, v{vA+a}')
        k('s_mov_b32 s63, s45'); k('s_mov_b32 s57, s46')
        wdma_regs(k, 208, 256, 7168, 14, tmp, 1, sWAVE)
        k('s_mov_b32 s45, s63'); k('s_mov_b32 s46, s57')
    else:
        k(f'v_lshrrev_b32 v{tmp}, 2, v1')
        k(f'v_mul_u32_u24 v{tmp}, 224, v{tmp}')
        k(f'v_and_b32 v{tmp+1}, 3, v1')
        k(f'v_lshl_add_u32 v{vA}, v{tmp+1}, 3, v{tmp}')
        k(f'v_add_u32 v{vA+1}, 0x10000, v{vA}')
    Lepi = k.label('epi')
    k.code_srd(32, Lepi)
    k('v_lshlrev_b32 v60, 4, v0')
    ext1[11] = [['buffer_load_dwordx4 v[56:59], v60, s[32:35], s55 offen ; pf']]
    publish(k, 46)
    if not P3: st(3)
    for a in range(7):
        for j in range(2):
            k(f'v_lshlrev_b32 v{BI+4*a+2*j}, 16, v{BP+2*a+j}')
            k(f'v_and_b32 v{BI+4*a+2*j+1}, 0xffff0000, v{BP+2*a+j}')
    await_flags(k, 45, 32, pre=g1.wpreload())
    if not P3: st(4)
    g1.make_sched(3, [2])
    g1.prologue_loads()
    g1.emit(loop_sreg=None)
    st(1 if P3 else 5)
    k(f'{Lepi}:')
    k('s_waitcnt vmcnt(0)')
    if not LATE: k('s_barrier')
    srd_off(k, 24, sWS, WS_HH, 2048 * 3584 * 2)
    k('s_and_b32 s62, s2, 1')
    k('s_lshl_b32 s62, s62, 2')
    k('s_bfe_u32 s63, s2, 0x20003')
    k('s_add_u32 s62, s62, s63')
    k('s_bfe_u32 s63, s2, 0x10002')
    if RAW2:
        k(f's_load_dwordx2 s[12:13], s[0:1], {A_W2}')
        k('s_lshl_b32 s50, s62, 8')
        k(f's_mul_i32 s63, s63, {1792*2048}')
        k('s_add_u32 s50, s50, s63')
        wd2 = wdma_regs(k, 216, LP, 2048, 16, tmp, 1, sWAVE)
        k('s_waitcnt lgkmcnt(0)')
        k.srd(12, 12, 3584 * 2048)
    else:
        wd2 = wd
        k(f's_mul_i32 s50, s62, {3584*256}')
        k(f's_mul_i32 s63, s63, {1792*256}')
        k('s_add_u32 s50, s50, s63')
        srd_off(k, 12, sWS, WS_W2, 3584 * 2048)
    NT = 28; SP = 200
    send = []
    for q in range(4):
        send += [[f'v_cvt_pk_bf16_f32 v{SP+4*q+j}, v{acc0+8*q+2*j}, v{acc0+8*q+2*j+1}'] for j in range(4)]
    A = lambda a, b: acc0 + (a * NB + b) * 4
    g2 = Gemm(k, NA, NB, LP, S, PD, RA, NT,
              acc=lambda a, b: R4('v', A(a, b)),
              aring=lambda s: ('a', 16 * S + 4 * s),
              bring=lambda st, ks, b: R4('a', st * 16 + (ks * NB + b) * 4),
              vA=[[vA + a for a in range(NA)], [vA2 + a for a in range(NA)]], lds_base=0,
              srdW=12, sW=50, wpitch=2048 if RAW2 else 256, wdma=wd2, sM0=52, srdX=24, sX=51, vX=[vX, vX + 1], wait_every=2,
              extra_loads=lambda t: send if t == NT - 1 else [], pre_w=True, xmod=' sc1')
    if KS: g2 = ks_gemm(k, 14, vA, vA2, wpitch=2048 if RAW2 else 256, wdma=wd2, srdX=24, pre_w=True)
    g2.wmod = '' if RAW2 else ' sc1'
    c1 = -2.0 * math.log2(math.e) * math.sqrt(2.0 / math.pi); c2 = c1 * 0.044715
    C1, C2, VONE = 40, 42, 44
    for (r, v) in ((C1, c1), (C2, c2), (VONE, 1.0)):
        k(f'v_mov_b32 v{r}, 0x{f2u(v):08x}'); k(f'v_mov_b32 v{r+1}, 0x{f2u(v):08x}')
    k('v_lshlrev_b32 v6, 4, v1')
    k('s_mul_i32 s54, s43, 7')
    k('s_lshr_b32 s55, s54, 1')
    k('s_lshl_b32 s55, s55, 7')
    k('s_add_u32 s55, s55, s47')
    k('s_lshl_b32 s55, s55, 10')
    for j in range(1, 4): k(f's_add_u32 s{55+j}, s55, {j*131072}')
    T = 48
    Lodd = k.label('odd'); Ljoin = k.label('join')
    k('s_bitcmp1_b32 s43, 0')
    k(f's_cbranch_scc1 {Lodd}')
    for odd in range(2):
        if odd: k(f'{Lodd}:')
        pre = [] if LATE else [x for x in g2.wpreload() if x != 's_nop 0']
        def gelu_tile(Ar, dst):
            for h in range(2):
                x = R2('v', Ar + 2 * h); t = R2('v', T + 2 * h)
                k(f'v_pk_mul_f32 {t}, {x}, {x}')
                k(f'v_pk_fma_f32 {t}, {t}, {R2("v", C2)}, {R2("v", C1)}')
                k(f'v_pk_mul_f32 {t}, {t}, {x}')
            if pre: k(pre.pop(0))
            for r in range(4): k(f'v_exp_f32 v{T+r}, v{T+r}')
            for h in range(2):
                t = R2('v', T + 2 * h)
                k(f'v_pk_add_f32 {t}, {t}, {R2("v", VONE)}')
            if pre: k(pre.pop(0))
            for r in range(4): k(f'v_rcp_f32 v{T+r}, v{T+r}')
            for h in range(2):
                x = R2('v', Ar + 2 * h); t = R2('v', T + 2 * h)
                k(f'v_pk_mul_f32 {x}, {x}, {t}')
            for h in range(2):
                k(f'v_cvt_pk_bf16_f32 v{dst+h}, v{Ar+2*h}, v{Ar+2*h+1}')
        n = 0
        order = [(b, blk) for b in range(4) for blk in range(4)]
        half = 0 if odd else 3
        order.sort(key=lambda x: x[1] != half)
        for b, blk in order:
            aa = [a for a in range(7) if (a + odd) >> 1 == blk]
            D = 56 + (n % 2) * 4; n += 1
            for a in aa:
                gelu_tile(acc1 + (a * 4 + b) * 4, D + 2 * ((a + odd) & 1))
            if len(aa) == 2:
                k(f'buffer_store_dwordx4 {R4("v", D)}, v6, s[24:27], s{55+blk} offen offset:{b*1024} sc1')
            else:
                hf = (aa[0] + odd) & 1
                k(f'buffer_store_dwordx2 {R2("v", D + 2*hf)}, v6, s[24:27], s{55+blk} offen offset:{b*1024 + 8*hf} sc1')
        assert not pre
        if not odd: k(f's_branch {Ljoin}')
    k(f'{Ljoin}:')
    k('s_lshl_b32 s46, s42, 5')
    k('s_add_u32 s46, s46, s43')
    k(f's_lshl_b32 s46, s46, {FSH}')
    k(f's_add_u32 s57, s46, {256 << FSH}')
    coords_128(k)
    k('s_lshr_b32 s45, s42, 1')
    k(f's_lshl_b32 s45, s45, {5+FSH}')
    k(f's_lshl_b32 s46, s40, {4+FSH}')
    k('s_add_u32 s45, s45, s46')
    k(f's_add_u32 s60, s45, {256 << FSH}')
    k('s_lshl_b32 s48, s47, 10')
    k(f'v_lshl_add_u32 v{vX}, v1, 4, s48')
    k(f'v_add_u32 v{vX+1}, 0x20000, v{vX}')
    k(f's_mul_i32 s51, s40, {56*131072}')
    k('s_xor_b32 s45, s40, 1')
    k('s_lshl_b32 s45, s45, 2')
    tr_addr_regs(k, vA, NA, LP, tmp, 1, xor_s=45)
    for a in range(NA): k(f'v_add_u32 v{vA2+a}, 0x10000, v{vA+a}')
    if KS: ks_setup(k, vA, vA2, vX); ks_xaddr(k, vX)
    srd_off(k, 16, sWS, WS_XB, 4 * MB)
    k('s_lshl_b32 s55, s2, 14')
    k('s_xor_b32 s56, s55, 0x10000')
    k.srd(20, sOUT, 4 * MB)
    srd_off(k, 28, sWS, WS_MOD32 + 5 * 4096, 4096)
    k('v_and_b32 v4, 15, v1')
    k('v_lshrrev_b32 v5, 4, v1')
    k('v_lshlrev_b32 v6, 11, v4')
    k('v_lshl_add_u32 v7, v5, 4, v6')
    k('s_lshl_b32 s46, s43, 1')
    k('s_add_u32 s46, s46, s40')
    k('s_lshl_b32 s48, s47, 15')
    k('s_lshl_b32 s49, s46, 7')
    k('s_add_u32 s48, s48, s49')
    k('s_add_u32 s49, s48, 32768')
    k('v_lshlrev_b32 v10, 5, v5')
    k('v_lshlrev_b32 v11, 4, v5')
    k('s_lshl_b32 s54, s46, 8')
    k('s_lshl_b32 s61, s46, 7')
    publish(k, 57)
    st(2 if P3 else 6)
    await_flags(k, 60, 16, pre=g2.wpreload())
    st(3 if P3 else 7)
    XR, GR, BR, RX, UB = 32, 48, 192, 136, 168
    g2.make_sched(*((3, []) if KS else (5, [2])))
    g2.prologue_loads()
    for b in range(NB):
        for u in range(2):
            k(f'buffer_load_dwordx4 {R4("v", XR + (b*2+u)*4)}, v7, s[36:39], s{48+b} offen offset:{u*64} sc1')
    gate = [f'buffer_load_dwordx4 {R4("v", GR + (u*2+h)*4)}, v10, s[28:31], s54 offen offset:{u*128 + h*16} sc1' for u in range(2) for h in range(2)]
    for x in gate: k(x)
    for u in range(2):
        k(f'buffer_load_dwordx4 {R4("v", BR + u*4)}, v11, s[72:75], s61 offen offset:{u*64}')
    g2.vq += ['e'] * 10
    if P3 and not fused: g2.stamp_first = 4
    g2.emit(loop_sreg=53)
    if P3: st(5)
    if KS:
        ks_reduce(k, 65536)
        for x in send: k(x[0])
    for q in range(4): k(f'buffer_store_dwordx4 {R4("v", SP+4*q)}, v{vW}, s[16:19], s55 offen offset:{q*1024} sc1')
    for u in range(2):
        for j in range(4):
            k(f'v_lshlrev_b32 v{UB+8*u+2*j}, 16, v{BR+4*u+j}')
            k(f'v_and_b32 v{UB+8*u+2*j+1}, 0xffff0000, v{BR+4*u+j}')
    for i in range(16):
        k(f'v_lshlrev_b32 v{acc0+2*i}, 16, v{XR+i}')
        k(f'v_and_b32 v{acc0+2*i+1}, 0xffff0000, v{XR+i}')
    k('s_mov_b32 s53, 0x40000')
    Lg = k.label('gchk'); Lgok = k.label('gok')
    k(f'{Lg}:')
    sentinel(k, list(range(GR, GR + 16)), 4)
    k('s_sub_u32 s53, s53, 1')
    k('s_cselect_b64 s[58:59], 0, -1')
    k('v_cmp_eq_u32 vcc, -1, v4')
    k('s_and_b64 vcc, vcc, s[58:59]')
    k(f's_cbranch_vccz {Lgok}')
    for x in gate: k(x)
    k('s_waitcnt vmcnt(0)')
    k(f's_branch {Lg}')
    k(f'{Lgok}:')
    k('s_mov_b32 s53, 0x80000')
    k('v_mov_b32 v3, s52')
    if not CHEAP: k('s_waitcnt vmcnt(0)')
    if P3: st(6)
    Lp2 = k.label('poll')
    k(f'{Lp2}:')
    if CHEAP:
        Lr = k.label('cheap'); Lr1 = k.label('cheap1')
        k(f's_branch {Lr1}')
        k(f'{Lr}:')
        if SLEEP: k(f"s_sleep {SLEEP}")
        k(f'{Lr1}:')
        k(f'buffer_load_dword v4, v3, s[16:19], s56 offen offset:{4092} sc1')
        k('s_sub_u32 s53, s53, 1')
        k('s_cselect_b64 s[58:59], 0, -1')
        k('s_waitcnt vmcnt(0)')
        k('v_cmp_eq_u32 vcc, -1, v4')
        k('s_and_b64 vcc, vcc, s[58:59]')
        k(f's_cbranch_vccnz {Lr}')
        k('s_max_i32 s53, s53, 0')
    for q in range(4):
        k(f'buffer_load_dwordx4 {R4("v", RX + 4*q)}, v{vW}, s[16:19], s56 offen offset:{q*1024} sc1')
    k('s_sub_u32 s53, s53, 1')
    k('s_cselect_b64 s[58:59], 0, -1')
    k('s_waitcnt vmcnt(0)')
    sentinel(k, list(range(RX, RX + 16)), 4)
    k('v_cmp_eq_u32 vcc, -1, v4')
    k('s_and_b64 vcc, vcc, s[58:59]')
    k(f's_cbranch_vccnz {Lp2}')
    if P3: st(7)
    for i in range(16):
        o = acc0 + 32 + 2 * i; t = RX + 16 + 2 * (i % 4)
        k(f'v_lshlrev_b32 v{t}, 16, v{RX+i}')
        k(f'v_and_b32 v{t+1}, 0xffff0000, v{RX+i}')
        k(f'v_pk_add_f32 {R2("v", o)}, {R2("v", o)}, {R2("v", t)}')
    k('s_nop 0')
    for sw in ('32', '16'):
        for b in range(NB):
            for u in range(2):
                for r in range(4): k(f'v_permlane{sw}_swap_b32 v{A(4+2*u, b)+r}, v{A(5+2*u, b)+r}')
    for b in range(NB):
        for u in range(2):
            P = RX + (b * 2 + u) * 4
            for h in range(2):
                o = A(4 + 2 * u + h, b)
                for j in range(2):
                    x = R2('v', o + 2 * j)
                    k(f'v_pk_add_f32 {x}, {x}, {R2("v", UB+8*u+4*h+2*j)}')
                    k(f'v_pk_fma_f32 {x}, {x}, {R2("v", GR+(u*2+h)*4+2*j)}, {R2("v", acc0+(b*2+u)*8+4*h+2*j)}')
                for j in range(2): k(f'v_cvt_pk_bf16_f32 v{P+2*h+j}, v{o+2*j}, v{o+2*j+1}')
            if not WIDE: k(f'buffer_store_dwordx4 {R4("v", P)}, v7, s[20:23], s{48+b} offen offset:{u*64} sc1')
            elif u == 1:
                widen(k, P - 4, P, RX + 16 + 4 * b)
                k(f'buffer_store_dwordx4 {R4("v", P-4)}, v14, s[20:23], s{48+b} offen sc1')
                k(f'buffer_store_dwordx4 {R4("v", P)}, v15, s[20:23], s{48+b} offen sc1')
    k.stamp_out(kidx)
    k(f'{Lend}:')
    k('s_endpgm')
    k.noreplay = set(getattr(k, 'noreplay', set())) | {Lm, Lg, getattr(k, 'norep2', Lm)}
    return k
```

```python
from asmgen import *
from gen_small import *

def R4(kind, i): return f'{kind}[{i}:{i+3}]'
def R2(kind, i): return f'{kind}[{i}:{i+1}]'
MF = 'v_mfma_f32_16x16x32_bf16'

class Gemm:
    def __init__(self, k, NA, NB, LP, S, PD, RA, ntiles, acc, aring, bring, vA, lds_base,
                 srdW, sW, wpitch, wdma, sM0, srdX, sX, vX, cinit=None, wait_every=1, extra_loads=None, stage_off=None, extra_pending=None, aimm=0, tile_bytes=None, NS=2, chain=True, pre_w=False, xmod='', wsub=1, xaddr=None):
        self.__dict__.update(locals())
        import sys
        if 'nochain' in sys.argv: self.chain = False
        self.tile_bytes = tile_bytes or 64 * LP
        self.nops = wsub * len(wdma) + NS * NB
        if stage_off is None: self.stage_off = [lds_base + i * self.tile_bytes for i in range(S)]
        self.vq = []
        self.make_sched(S - 1, [])

    def loads(self, t):
        st = t % self.S
        bl = []
        for ks in range(self.NS):
            for b in range(self.NB):
                xv, xo = self.xaddr(ks, b) if self.xaddr else (self.vX[ks], b * 1024)
                bl.append([f'buffer_load_dwordx4 {self.bring(st, ks, b)}, v{xv}, s[{self.srdX}:{self.srdX+3}], s{self.sX} offen offset:{xo}{self.xmod}'])
        if self.wsub == 2:
            g = []
            for h in range(2):
                g += [bl[4 * h], [f's_add_u32 m0, s{self.sM0}, {self.stage_off[st] + h * 16384}'], bl[4 * h + 1]]
                for (voff, ioff) in self.wdma:
                    g.append([f'buffer_load_dwordx4 v{voff}, s[{self.srdW}:{self.srdW+3}], s{self.sW} offen offset:{ioff}{getattr(self, "wmod", "")} lds'])
                g.append([f's_add_u32 s{self.sW}, s{self.sW}, {64 * self.wpitch}'])
                g += bl[4 * h + 2: 4 * h + 4]
            if self.pre_w and t < self.S - 1: g = list(bl)
            g.append([f's_add_u32 s{self.sX}, s{self.sX}, 524288'])
            return g
        g = [bl[0], [f's_add_u32 m0, s{self.sM0}, {self.stage_off[st]}'], bl[1]]
        for (voff, ioff) in self.wdma:
            g.append([f'buffer_load_dwordx4 v{voff}, s[{self.srdW}:{self.srdW+3}], s{self.sW} offen offset:{ioff}{getattr(self, "wmod", "")} lds'])
        dbg = getattr(self, 'dbg', None) or ''
        g.append([f's_add_u32 s{self.sW}, s{self.sW}, {64 * self.wpitch}'] + ([f's_sub_u32 s{self.sW}, s{self.sW}, {4 * 64 * self.wpitch}'] if 'wrapW' in dbg and t % 4 == 3 else []))
        g += bl[2:]
        if self.pre_w and t < self.S - 1: g = list(bl)
        if t >= self.S - 1:
            if 'noW' in dbg: g = [x for x in g if not x[0].endswith(' lds')]
            if 'noX' in dbg: g = [x for x in g if not (x[0].startswith('buffer') and not x[0].endswith(' lds'))]
            if 'noX' in dbg and 'noW' not in dbg: g.insert(1, ['s_nop 0'])
        g.append([f's_add_u32 s{self.sX}, s{self.sX}, 262144'] + ([f's_sub_u32 s{self.sX}, s{self.sX}, {4 * 262144}'] if 'wrapX' in dbg and t % 4 == 3 else []))
        return g

    def fidx(self, f):
        if self.chain:
            a, ks = divmod(f, 2)
            return ks, a
        return divmod(f, self.NA)

    def wpreload(self):
        r = []
        for t in range((self.S - 1) * self.wsub):
            r.append(f's_add_u32 m0, s{self.sM0}, {self.stage_off[t // self.wsub] + (t % self.wsub) * 16384}')
            r.append('s_nop 0')
            for (voff, ioff) in self.wdma:
                r.append(f'buffer_load_dwordx4 v{voff}, s[{self.srdW}:{self.srdW+3}], s{self.sW} offen offset:{ioff}{getattr(self, "wmod", "")} lds')
            r.append(f's_add_u32 s{self.sW}, s{self.sW}, {64 * self.wpitch}')
        return r

    def reads(self, t, f):
        ks, a = self.fidx(f)
        slot = (t * self.NS * self.NA + f) % self.RA
        kind, base = self.aring(slot)
        r = []
        for hf in range(2):
            off = self.stage_off[t % self.S] + (32 * ks + 16 * hf) * self.LP
            off += a * self.aimm
            va = self.vA[off >> 16][a]
            r.append(f'ds_read_b64_tr_b16 {R2(kind, base + 2 * hf)}, v{va} offset:{off & 0xffff}')
        if 'nods' in (getattr(self, 'dbg', None) or '') and t > 0: r = ['s_nop 0', 's_nop 0']
        return r

    def mfmas(self, t, f):
        ks, a = self.fidx(f)
        slot = (t * self.NS * self.NA + f) % self.RA
        kind, base = self.aring(slot)
        r = []
        for b in range(self.NB):
            c = self.acc(a, b)
            if t == 0 and ks == 0:
                c = self.cinit(a, b) if self.cinit else '0'
            r.append(f'{MF} {self.acc(a, b)}, {R4(kind, base)}, {self.bring(t % self.S, ks, b)}, {c}')
        return r

    def _track(self, ins, tag):
        if ins.startswith('buffer_'): self.vq.append(tag)

    def prologue_loads(self, tiles=None):
        for t in (self.sched.get(-2, []) if tiles is None else tiles):
            for g in self.loads(t):
                for i in g:
                    self.k(i); self._track(i, t)

    def pending(self, tile):
        idx = max(i for i, x in enumerate(self.vq) if x == tile)
        return len(self.vq) - 1 - idx

    def body(self, t, pending_after=None, ldtiles=None):
        k = self.k; NA2 = self.NS * self.NA; PD = self.PD; nt = self.ntiles
        has_next = t + 1 < nt
        if has_next:
            dbg = getattr(self, 'dbg', None) or ''
            if pending_after is None: pending_after = self.pending(t + 1) if (t + 1) in self.vq else 63
            assert pending_after <= 63
            k(f's_waitcnt vmcnt({pending_after})')
            widx = len(k.lines) - 1
            if not ('nobar' in dbg and t >= 0): k('s_barrier')
            if t == -1 and getattr(self, 'stamp_first', None): k.stamp(self.stamp_first)
        ld = []
        for tau in (self.sched.get(t, []) if ldtiles is None else ldtiles):
            assert tau < self.S - 1 + max(t, 0) + 1 and (tau < self.S or tau - self.S + 1 <= t), (t, tau)
            ld += [(x, tau) for x in self.loads(tau)]
        if self.extra_loads: ld += [(x, 'x') for x in self.extra_loads(t)]
        groups = []
        for i in range(NA2):
            if i < PD: groups.append((t, NA2 - PD + i) if t >= 0 else None)
            else: groups.append((t + 1, i - PD) if has_next else None)
        queue = [(t, NA2 - PD + i) for i in range(PD)] if t >= 0 else []
        queue = queue[getattr(self, '_carry', 0):] if t >= 0 else []
        sk = []
        step = 2 if self.chain else 1
        we = max(self.wait_every, step)
        for i in range(0, NA2, step):
            gs = groups[i:i + step]
            rds = [self.reads(t + 1, i + j) if has_next else [] for j in range(step)]
            if gs[0] is None:
                for j, rd in enumerate(rds):
                    for r in rd: sk.append(['i', r])
                    if rd: queue.append((t + 1, i + j))
                continue
            if gs[-1] in queue:
                idx = queue.index(gs[0]) if gs[0] in queue else 0
                upto = min(idx + we - 1, len(queue) - 1)
                remain = len(queue) - 1 - upto
                if sk and sk[-1][0] == 'gap': sk[-1][1] = False
                sk.append(['i', f's_waitcnt lgkmcnt({2 * remain})'])
                queue = queue[upto + 1:]
            mfs = [self.mfmas(*g) for g in gs]
            mf = [mfs[j][b] for b in range(self.NB) for j in range(step)]
            for n, m in enumerate(mf):
                sk.append(['i', m])
                j, rem = divmod(n, self.NB)
                if rem == 0 and rds[j]:
                    for r in rds[j]: sk.append(['i', r])
                    queue.append((t + 1, i + j))
                else:
                    sk.append(['gap', True])
        if sk and sk[-1][0] == 'gap': sk[-1][1] = False
        if has_next and sk and sk[0][0] == 'i' and sk[0][1].startswith('s_waitcnt lgkmcnt'):
            k.lines[widx] += ' ' + sk[0][1].split()[1]
            sk = sk[1:]
        items = [(x, tag) for grp, tag in ld for x in grp]
        isv = lambda x: x.startswith('buffer_')
        gaps = [e for e in sk if e[0] == 'gap']
        nclean = sum(1 for e in gaps if e[1])
        nv = sum(1 for x, _ in items if isv(x))
        use_clean_only = nv <= nclean
        li = 0; seen_c = 0; seen = 0; done_v = 0
        for e in sk:
            if e[0] == 'i':
                k(e[1]); continue
            seen += 1
            if e[1]: seen_c += 1
            room = 2 if e[1] else 1
            if use_clean_only and nv:
                want_v = (seen_c * nv + nclean - 1) // nclean
            else:
                want_v = (seen * nv + len(gaps) - 1) // len(gaps) if nv else 0
            want_all = (seen * len(items) + len(gaps) - 1) // len(gaps)
            placed_v = False
            while li < len(items) and room > 0:
                x, tag = items[li]
                if isv(x):
                    if placed_v and use_clean_only: break
                    if (use_clean_only and not e[1]) or done_v >= want_v: break
                    if use_clean_only and room < 2: break
                    k(x); self._track(x, tag); li += 1; done_v += 1; placed_v = True
                    room -= 2 if use_clean_only else 1
                else:
                    if nv == 0 and li >= want_all: break
                    if e[1] and use_clean_only and (nclean - seen_c) < (nv - done_v) and not x.startswith('s_add_u32 m0'):
                        k(x); li += 1; continue
                    k(x); li += 1; room -= 1
                    if x.startswith('s_add_u32 m0') and li < len(items) and items[li][0].endswith(' lds'): break
        while li < len(items):
            x, tag = items[li]
            k(x); self._track(x, tag); li += 1
        self._carry = PD - len(queue) if has_next else 0

    def make_sched(self, first, ramp):
        S, nt = self.S, self.ntiles
        sched = {-2: list(range(first))}
        nxt = first
        t = -1
        while nxt < nt:
            n = ramp[t + 1] if t + 1 < len(ramp) else 1
            lim = max(t, 0) + S - 1 if t >= 0 else S - 2
            tl = [x for x in range(nxt, min(nxt + n, lim + 1, nt))]
            sched[t] = tl; nxt += len(tl); t += 1
        self.sched = sched

    def emit(self, loop_sreg=None):
        k = self.k; S = self.S; nt = self.ntiles
        self.body(-1)
        t = 0
        steady = lambda t: self.sched.get(t) == [t + S - 1]
        if loop_sreg is not None:
            while t < nt and not (steady(t) and (t > 0 or (self.NS == 2 and not self.chain)) and (S - 3) * self.nops <= self.pending(t + 1) <= (S - 3) * self.nops + 1 and not (self.extra_loads and self.extra_loads(t))):
                self.body(t); t += 1
            nsteady = nt - S + 1 - t
            trips = nsteady // S
            if trips >= 2:
                c0 = self._carry
                k(f's_mov_b32 s{loop_sreg}, {trips}')
                L = k.label('gloop')
                k(f'{L}:')
                for u in range(trips * S): assert not (self.extra_loads and self.extra_loads(t + u)), t + u
                for u in range(S):
                    self.body(t + u, pending_after=(S - 3) * self.nops)
                assert self._carry == c0
                k(f's_sub_u32 s{loop_sreg}, s{loop_sreg}, 1')
                k(f's_cmp_lg_u32 s{loop_sreg}, 0')
                k(f's_cbranch_scc1 {L}')
                sh = (trips - 1) * S
                self.vq = [x + sh if isinstance(x, int) else x for x in self.vq]
                t += trips * S
        while t < nt:
            self.body(t)
            t += 1

def tr_addr_regs(k, vbase, NA, LP, tmp, lane, add=0, xor_s=None):
    t0, t1, t2 = tmp, tmp + 1, tmp + 2
    k(f'v_lshrrev_b32 v{t0}, 2, v{lane}')
    k(f'v_and_b32 v{t1}, 3, v{lane}')
    if LP == 256:
        k(f'v_and_b32 v{t2}, 7, v{t0}')
        sh = 8
    else:
        k(f'v_bfe_u32 v{t2}, v{t0}, 1, 2')
        sh = 7
    if xor_s is not None: k(f'v_xor_b32 v{t2}, s{xor_s}, v{t2}')
    k(f'v_lshlrev_b32 v{t0}, {sh}, v{t0}')
    k(f'v_lshl_add_u32 v{t0}, v{t1}, 3, v{t0}')
    if add: k(f'v_add_u32 v{t0}, {add}, v{t0}')
    for a in range(NA):
        k(f'v_xor_b32 v{t1}, {a}, v{t2}')
        k(f'v_lshl_add_u32 v{vbase+a}, v{t1}, 5, v{t0}')

def wdma_regs(k, vbase, LP, pitch, nchunks, tmp, lane, swave):
    t0, t1, t2, t3 = tmp, tmp + 1, tmp + 2, tmp + 3
    res = []
    if LP == 256:
        n_ins, rows_per, shl, msk = 4, 4, 4, 15
    else:
        n_ins, rows_per, shl, msk = 2, 8, 3, 7
    k(f'v_lshrrev_b32 v{t0}, {shl}, v{lane}')
    k(f'v_and_b32 v{t1}, {msk}, v{lane}')
    k(f's_lshl_b32 s{swave+1}, s{swave}, 4')
    k(f's_mov_b32 s{swave+2}, {pitch}')
    for n in range(n_ins):
        k(f'v_add_u32 v{t2}, {n * rows_per}, v{t0}')
        if LP == 256:
            k(f'v_and_b32 v{t3}, 7, v{t2}')
        else:
            k(f'v_bfe_u32 v{t3}, v{t2}, 1, 2')
        k(f'v_lshlrev_b32 v{t3}, 1, v{t3}')
        k(f'v_xor_b32 v{t3}, v{t3}, v{t1}')
        k(f'v_add_u32 v{t2}, s{swave+1}, v{t2}')
        k(f'v_mul_lo_u32 v{t2}, v{t2}, s{swave+2}')
        k(f'v_lshl_add_u32 v{vbase+n}, v{t3}, 4, v{t2}')
        if n: k(f'v_subrev_u32 v{vbase+n}, {n*1024}, v{vbase+n}')
        if nchunks <= msk:
            k(f'v_cmp_le_u32 vcc, {nchunks}, v{t3}')
            k(f'v_mov_b32 v{t2}, 0x7ff00000')
            k('s_nop 0')
            k(f'v_cndmask_b32 v{vbase+n}, v{vbase+n}, v{t2}, vcc')
        res.append((vbase + n, n * 1024))
    return res
```
